```python
import torch

def _softmax(x, axis=-1):
    return torch.softmax(x, dim=axis)
def _gelu(x):
    return torch.nn.functional.gelu(x, approximate="tanh")
def _silu(x):
    return torch.nn.functional.silu(x)
def _sigmoid(x):
    return torch.sigmoid(x)
def _layernorm(x, axis=-1, eps=1e-5):
    m = x.mean(dim=axis, keepdim=True)
    v = x.var(dim=axis, keepdim=True, unbiased=False)
    return (x - m) / torch.sqrt(v + eps)
def _scatter_add(tgt, idx, src, axis=0):
    return tgt.clone().index_add_(axis, idx, src)
def _segment_sum(src, seg, n):
    out = torch.zeros((n,) + src.shape[1:], dtype=src.dtype)
    return out.index_add_(0, seg, src)
def _pad(x, pw):
    flat = tuple(v for pair in reversed(pw) for v in pair)
    return torch.nn.functional.pad(x, flat)

kernel_name = 'interleave_layers__sliding_block__glu_gated_geglu__prompt'

def setup_inputs():

    _w = (lambda a: (lambda t: t.to(torch.bfloat16) if t.is_floating_point() else t)(torch.as_tensor(a)))
    def _A_setup():
        B, S, D = 1, 2048, 576
        return {
            "x": _w((lambda *s: torch.randn(*s, dtype=torch.bfloat16) * 0.05)(B, S, D)),
            "wqkv": _w((lambda *s: torch.randn(*s, dtype=torch.bfloat16) * 0.05)(D, 3 * D)),
            "wo": _w((lambda *s: torch.randn(*s, dtype=torch.bfloat16) * 0.05)(D, D)),
        }
    _A_in = _A_setup()

    def _B_setup():
        B, S, Dm, Df = 1, 2048, 576, 4608
        return {
            "x": _w((lambda *s: torch.randn(*s, dtype=torch.bfloat16) * 0.05)(B, S, Dm)),
            "w_gate": _w((lambda *s: torch.randn(*s, dtype=torch.bfloat16) * 0.8)(Dm, Df) * (Dm ** -0.5)),
            "w_up": _w((lambda *s: torch.randn(*s, dtype=torch.bfloat16) * 0.8)(Dm, Df) * (Dm ** -0.5)),
            "w_down": _w((lambda *s: torch.randn(*s, dtype=torch.bfloat16) * 0.8)(Df, Dm) * (Df ** -0.5)),
        }
    _B_in = _B_setup()

    return {
        "A_x": _A_in["x"],
        "A_wqkv": _A_in["wqkv"],
        "A_wo": _A_in["wo"],
        "B_x": _B_in["x"],
        "B_w_gate": _B_in["w_gate"],
        "B_w_up": _B_in["w_up"],
        "B_w_down": _B_in["w_down"],
    }

def reference(A_x, A_wqkv, A_wo, B_x, B_w_gate, B_w_up, B_w_down):
    def _A_ref(x, wqkv, wo):
        B, S, D = x.shape
        H = 32; Dh = D // H; W = 256
        qkv = (lambda x, *d: x.permute(*d))((x @ wqkv).reshape(B, S, 3, H, Dh), 2, 0, 3, 1, 4)
        q, k, v = qkv[0], qkv[1], qkv[2]
        scores = torch.einsum("bhqd,bhkd->bhqk", q, k) * (Dh ** -0.5)
        idx = torch.arange(S)
        mask = (idx[:, None] - idx[None, :] >= 0) & (idx[:, None] - idx[None, :] < W)
        scores = torch.where(mask[None, None], scores, -1e9)
        p = _softmax(scores, axis=-1)
        o = torch.einsum("bhqk,bhkd->bhqd", p, v)
        return (lambda x, *d: x.permute(*d))(o, 0, 2, 1, 3).reshape(B, S, D) @ wo

    def _B_ref(x, w_gate, w_up, w_down):
        g = torch.einsum("bsd,df->bsf", x, w_gate)
        u = torch.einsum("bsd,df->bsf", x, w_up)
        h = _gelu(g) * u
        return torch.einsum("bsf,fd->bsd", h, w_down)

    x = A_x
    x = x + _A_ref(_layernorm(x, axis=-1), A_wqkv, A_wo)
    x = x + _B_ref(_layernorm(x, axis=-1), B_w_gate, B_w_up, B_w_down)
    x = x + _A_ref(_layernorm(x, axis=-1), A_wqkv, A_wo)
    x = x + _B_ref(_layernorm(x, axis=-1), B_w_gate, B_w_up, B_w_down)
    return x
```

```python
import sys
S, D, F, H, DH, W = 2048, 576, 4608, 32, 18, 256
out = []
def e(s): out.append(s)
kernels = []
descs = []
def srd(reg, slot, off, nbytes):
    e(f"s_load_dwordx2 s[{reg}:{reg+1}], s[0:1], {slot*8}")
    e("s_waitcnt lgkmcnt(0)")
    if off:
        e(f"s_add_u32 s{reg}, s{reg}, {off}")
        e(f"s_addc_u32 s{reg+1}, s{reg+1}, 0")
    e(f"s_mov_b32 s{reg+2}, {nbytes}")
    e(f"s_mov_b32 s{reg+3}, 0x00020000")
def begin(name, grid, block=256, lds=0, vg=64):
    e(f".p2align 8\n.globl {name}\n.type {name},@function\n{name}:")
    e(f"s_cmp_ge_u32 s2, {grid}")
    e(f"s_cbranch_scc1 {name}_done")
    descs.append(f""".p2align 6
.amdhsa_kernel {name}
  .amdhsa_next_free_vgpr {vg}
  .amdhsa_next_free_sgpr 96
  .amdhsa_accum_offset {vg}
  .amdhsa_group_segment_fixed_size 0
  .amdhsa_kernarg_size 80
  .amdhsa_user_sgpr_count 2
  .amdhsa_user_sgpr_kernarg_segment_ptr 1
  .amdhsa_system_sgpr_workgroup_id_x 1
.end_amdhsa_kernel""")
def end(name):
    e(f"{name}_done:\ns_endpgm")
WS=9
XIN=(0,0,S*D*2); WQKV=(1,0,D*3*D*2); WO=(2,0,D*D*2); WG=(4,0,D*F*2); WU=(5,0,D*F*2); WD=(6,0,F*D*2); OUT=(7,0,S*D*2)
o=0
def wsb(n):
    global o
    r=(WS,o,n); o+=(n+4095)//4096*4096; return r
def wave_sum(v, tmp, addr):
    for m in (1,2,4,8,16,32):
        e(f"v_xor_b32 v{addr}, {m*4}, v60")
        e(f"ds_bpermute_b32 v{tmp}, v{addr}, v{v}")
        e("s_waitcnt lgkmcnt(0)")
        e(f"v_add_f32 v{v}, v{v}, v{tmp}")
def ln(name, src, dst):
    begin(name, S//4)
    srd(4,*src); srd(8,*dst)
    e("v_and_b32 v1, 63, v0"); e("v_lshlrev_b32 v60, 2, v1")
    e("v_lshrrev_b32 v2, 6, v0"); e("s_lshl_b32 s3, s2, 2"); e("v_add_u32 v2, s3, v2")
    e(f"v_mul_u32_u24 v2, {D*2}, v2"); e("v_lshlrev_b32 v3, 1, v1"); e("v_add_u32 v2, v2, v3")
    for i in range(9): e(f"buffer_load_ushort v{10+i}, v2, s[4:7], 0 offen offset:{i*128}")
    e("s_waitcnt vmcnt(0)")
    e("v_mov_b32 v4, 0")
    for i in range(9):
        e(f"v_lshlrev_b32 v{10+i}, 16, v{10+i}"); e(f"v_add_f32 v4, v4, v{10+i}")
    wave_sum(4,5,6)
    e(f"v_mul_f32 v4, {1.0/D!r}, v4".replace(repr(1.0/D), hex(f2u(1.0/D))))
    e("v_mov_b32 v7, 0")
    for i in range(9):
        e(f"v_sub_f32 v{10+i}, v{10+i}, v4"); e(f"v_fmac_f32 v7, v{10+i}, v{10+i}")
    wave_sum(7,5,6)
    e(f"v_mul_f32 v7, {hex(f2u(1.0/D))}, v7"); e(f"v_add_f32 v7, {hex(f2u(1e-5))}, v7")
    e("v_rsq_f32 v7, v7"); e("s_nop 0")
    for i in range(9):
        e(f"v_mul_f32 v{10+i}, v{10+i}, v7"); e(f"v_cvt_pk_bf16_f32 v{10+i}, v{10+i}, v{10+i}")
        e(f"buffer_store_short v{10+i}, v2, s[8:11], 0 offen offset:{i*128}")
    e("s_waitcnt vmcnt(0)")
    end(name)
import struct
def f2u(x): return struct.unpack('<I', struct.pack('<f', x))[0]
R=8
def gemm(name, A, Wt, N, K, dst, res=None, W2=None):
    ncb=(N+127)//128
    grid=(S//(R*4))*ncb
    begin(name, grid, vg=96)
    srd(4,*A); srd(8,*Wt); srd(12,*dst)
    if res: srd(16,*res)
    if W2: srd(20,*W2)
    M=(2**32+ncb-1)//ncb
    e(f"s_mov_b32 s26, {M}"); e("s_mul_hi_u32 s25, s2, s26"); e(f"s_mul_i32 s24, s25, {ncb}"); e("s_sub_u32 s24, s2, s24")
    e("v_lshrrev_b32 v2, 6, v0"); e("s_nop 0"); e("v_readfirstlane_b32 s27, v2"); e("s_nop 3")
    e("s_lshl_b32 s25, s25, 2"); e("s_add_u32 s25, s25, s27"); e(f"s_mul_i32 s25, s25, {R}")
    e("v_and_b32 v1, 63, v0"); e("v_lshlrev_b32 v1, 1, v1"); e("s_lshl_b32 s28, s24, 7"); e("v_add_u32 v1, s28, v1")
    e(f"v_cmp_gt_u32 vcc, {N}, v1"); e("s_and_saveexec_b64 s[30:31], vcc"); e(f"s_cbranch_execz {name}_done")
    e("v_lshlrev_b32 v3, 1, v1")
    for i in range(4*R): e(f"v_mov_b32 v{32+i}, 0")
    e(f"s_mul_i32 s29, s25, {K*2}")
    e("s_mov_b32 s33, 0")
    e("s_mov_b32 s34, 0")
    e(f"{name}_loop:")
    for r in range(R):
        e(f"s_add_u32 s35, s29, {r*K*2}"); e(f"s_buffer_load_dword s{40+r}, s[4:7], s35")
    e("buffer_load_dword v4, v3, s[8:11], s33 offen")
    e(f"s_add_u32 s36, s33, {N*2}")
    e("buffer_load_dword v5, v3, s[8:11], s36 offen")
    if W2:
        e("buffer_load_dword v6, v3, s[20:23], s33 offen"); e("buffer_load_dword v7, v3, s[20:23], s36 offen")
    e("s_waitcnt vmcnt(0) lgkmcnt(0)")
    for (src,lo) in ((4,8),(5,10))+(((6,12),(7,14)) if W2 else ()):
        e(f"v_lshlrev_b32 v{lo}, 16, v{src}"); e(f"v_and_b32 v{lo+1}, 0xffff0000, v{src}")
    for r in range(R):
        e(f"s_lshl_b32 s50, s{40+r}, 16"); e(f"s_and_b32 s51, s{40+r}, 0xffff0000")
        e(f"v_fmac_f32 v{32+r*2}, s50, v8"); e(f"v_fmac_f32 v{33+r*2}, s50, v9")
        e(f"v_fmac_f32 v{32+r*2}, s51, v10"); e(f"v_fmac_f32 v{33+r*2}, s51, v11")
        if W2:
            b=32+2*R
            e(f"v_fmac_f32 v{b+r*2}, s50, v12"); e(f"v_fmac_f32 v{b+1+r*2}, s50, v13")
            e(f"v_fmac_f32 v{b+r*2}, s51, v14"); e(f"v_fmac_f32 v{b+1+r*2}, s51, v15")
    e("s_add_u32 s29, s29, 4"); e(f"s_add_u32 s33, s33, {N*4}"); e("s_add_u32 s34, s34, 2")
    e(f"s_cmp_lt_u32 s34, {K}"); e(f"s_cbranch_scc1 {name}_loop")
    e(f"s_mul_i32 s29, s25, {N*2}")
    c1=-2*1.4426950408889634*0.7978845608028654; c2=c1*0.044715
    for r in range(R):
        e(f"s_add_u32 s35, s29, {r*N*2}")
        if res:
            e("buffer_load_dword v4, v3, s[16:19], s35 offen"); e("s_waitcnt vmcnt(0)")
            e("v_lshlrev_b32 v8, 16, v4"); e("v_and_b32 v9, 0xffff0000, v4")
            e(f"v_add_f32 v{32+r*2}, v{32+r*2}, v8"); e(f"v_add_f32 v{33+r*2}, v{33+r*2}, v9")
        if W2:
            for c in range(2):
                g=32+r*2+c; u=32+2*R+r*2+c
                e(f"v_mul_f32 v8, v{g}, v{g}"); e(f"v_mov_b32 v10, {hex(f2u(c2))}")
                e(f"v_fmaak_f32 v8, v8, v10, {hex(f2u(c1))}"); e(f"v_mul_f32 v8, v8, v{g}")
                e("v_exp_f32 v8, v8"); e("s_nop 0"); e("v_add_f32 v8, 1.0, v8"); e("v_rcp_f32 v8, v8"); e("s_nop 0")
                e(f"v_mul_f32 v{g}, v{g}, v{u}"); e(f"v_mul_f32 v{g}, v{g}, v8")
        e(f"v_cvt_pk_bf16_f32 v4, v{32+r*2}, v{33+r*2}")
        e("buffer_store_dword v4, v3, s[12:15], s35 offen")
        e("s_waitcnt vmcnt(0)")
    end(name)
    return grid
def attn(name, qkv, dst):
    grid=(S//256)*H
    begin(name, grid, vg=96)
    srd(4,*qkv); srd(8,*dst)
    e("s_and_b32 s12, s2, 31"); e("s_lshr_b32 s13, s2, 5"); e("s_lshl_b32 s13, s13, 8")
    e("v_add_u32 v1, s13, v0")
    e(f"v_mul_u32_u24 v2, {3*D*2}, v1"); e(f"s_mul_i32 s14, s12, {DH*2}"); e("v_add_u32 v2, s14, v2")
    for i in range(9): e(f"buffer_load_dword v{40+i}, v2, s[4:7], 0 offen offset:{i*4}")
    e("s_waitcnt vmcnt(0)")
    sc=DH**-0.5*1.4426950408889634
    for i in range(9):
        e(f"v_lshlrev_b32 v{10+2*i}, 16, v{40+i}"); e(f"v_and_b32 v{11+2*i}, 0xffff0000, v{40+i}")
    for i in range(18):
        e(f"v_mul_f32 v{10+i}, {hex(f2u(sc))}, v{10+i}"); e(f"v_mov_b32 v{60+i}, 0")
    e("v_mov_b32 v4, 0xff7fffff"); e("v_mov_b32 v5, 0")
    e("s_mov_b32 s15, 0")
    e(f"{name}_loop:")
    e("v_subrev_u32 v6, s15, v1")
    e("v_cmp_le_i32 vcc, 0, v6"); e("s_and_saveexec_b64 s[20:21], vcc"); e(f"s_cbranch_execz {name}_skip")
    e(f"v_mul_u32_u24 v7, {3*D*2}, v6"); e("v_add_u32 v7, s14, v7")
    for i in range(9): e(f"buffer_load_dword v{40+i}, v7, s[4:7], 0 offen offset:{D*2+i*4}")
    for i in range(9): e(f"buffer_load_dword v{50+i}, v7, s[4:7], 0 offen offset:{2*D*2+i*4}")
    e("s_waitcnt vmcnt(0)")
    e("v_mov_b32 v8, 0")
    for i in range(9):
        e(f"v_lshlrev_b32 v9, 16, v{40+i}"); e(f"v_fmac_f32 v8, v9, v{10+2*i}")
        e(f"v_and_b32 v9, 0xffff0000, v{40+i}"); e(f"v_fmac_f32 v8, v9, v{11+2*i}")
    e("v_max_f32 v30, v4, v8"); e("v_sub_f32 v31, v4, v30"); e("v_exp_f32 v31, v31"); e("v_sub_f32 v32, v8, v30"); e("v_exp_f32 v32, v32")
    e("v_mov_b32 v4, v30"); e("v_fma_f32 v5, v5, v31, v32")
    for i in range(9):
        e(f"v_lshlrev_b32 v9, 16, v{50+i}"); e(f"v_mul_f32 v{60+2*i}, v{60+2*i}, v31"); e(f"v_fmac_f32 v{60+2*i}, v9, v32")
        e(f"v_and_b32 v9, 0xffff0000, v{50+i}"); e(f"v_mul_f32 v{61+2*i}, v{61+2*i}, v31"); e(f"v_fmac_f32 v{61+2*i}, v9, v32")
    e(f"{name}_skip:")
    e("s_mov_b64 exec, s[20:21]")
    e("s_add_u32 s15, s15, 1"); e(f"s_cmp_lt_u32 s15, {W}"); e(f"s_cbranch_scc1 {name}_loop")
    e("v_rcp_f32 v5, v5")
    e(f"v_mul_u32_u24 v2, {D*2}, v1"); e("v_add_u32 v2, s14, v2")
    for i in range(9):
        e(f"v_mul_f32 v{60+2*i}, v{60+2*i}, v5"); e(f"v_mul_f32 v{61+2*i}, v{61+2*i}, v5")
        e(f"v_cvt_pk_bf16_f32 v9, v{60+2*i}, v{61+2*i}")
        e(f"buffer_store_dword v9, v2, s[8:11], 0 offen offset:{i*4}"); e("s_waitcnt vmcnt(0)")
    end(name)
    return grid
def empty(name):
    begin(name, 256); end(name)
launch=[]
npre=int(sys.argv[1]) if len(sys.argv)>1 else 0
npost=int(sys.argv[2]) if len(sys.argv)>2 else 0
empty("empty_kernel")
for i in range(npre): launch.append(("empty_kernel",256))
x=XIN
for L in range(2):
    xn=wsb(S*D*2); qkv=wsb(S*3*D*2); ob=wsb(S*D*2); x1=wsb(S*D*2); xn2=wsb(S*D*2); hb=wsb(S*F*2); x2=wsb(S*D*2) if L==0 else OUT
    ln(f"lna{L}_kernel", x, xn); launch.append((f"lna{L}_kernel",S//4))
    launch.append((f"qkv{L}_kernel", gemm(f"qkv{L}_kernel", xn, WQKV, 3*D, D, qkv)))
    launch.append((f"att{L}_kernel", attn(f"att{L}_kernel", qkv, ob)))
    launch.append((f"wo{L}_kernel", gemm(f"wo{L}_kernel", ob, WO, D, D, x1, res=x)))
    ln(f"lnb{L}_kernel", x1, xn2); launch.append((f"lnb{L}_kernel",S//4))
    launch.append((f"gu{L}_kernel", gemm(f"gu{L}_kernel", xn2, WG, F, D, hb, W2=WU)))
    launch.append((f"dn{L}_kernel", gemm(f"dn{L}_kernel", hb, WD, D, F, x2, res=x1)))
    x=x2
for i in range(npost): launch.append(("empty_kernel",256))
hdr="".join(f"; @launch kernel={n} grid=({g},1,1) block=(256,1,1) lds=0\n" for n,g in launch)
print(hdr+'.amdgcn_target "amdgcn-amd-amdhsa--gfx950"\n.text\n'+"\n".join(out)+'\n.section .rodata,"a"\n'+"\n".join(descs))
```

```python
import sys
S, D, F, H, DH, W = 2048, 576, 4608, 32, 18, 256
out = []
def e(s): out.append(s)
kernels = []
descs = []
def srd(reg, slot, off, nbytes):
    e(f"s_load_dwordx2 s[{reg}:{reg+1}], s[0:1], {slot*8}")
    e("s_waitcnt lgkmcnt(0)")
    if off:
        e(f"s_add_u32 s{reg}, s{reg}, {off}")
        e(f"s_addc_u32 s{reg+1}, s{reg+1}, 0")
    e(f"s_mov_b32 s{reg+2}, {nbytes}")
    e(f"s_mov_b32 s{reg+3}, 0x00020000")
def begin(name, grid, block=256, lds=0, vg=64):
    e(f".p2align 8\n.globl {name}\n.type {name},@function\n{name}:")
    e(f"s_cmp_ge_u32 s2, {grid}")
    e(f"s_cbranch_scc1 {name}_done")
    descs.append(f""".p2align 6
.amdhsa_kernel {name}
  .amdhsa_next_free_vgpr {vg}
  .amdhsa_next_free_sgpr 96
  .amdhsa_accum_offset {vg}
  .amdhsa_group_segment_fixed_size 0
  .amdhsa_kernarg_size 80
  .amdhsa_user_sgpr_count 2
  .amdhsa_user_sgpr_kernarg_segment_ptr 1
  .amdhsa_system_sgpr_workgroup_id_x 1
.end_amdhsa_kernel""")
def end(name):
    e(f"{name}_done:\ns_endpgm")
WS=9
XIN=(0,0,S*D*2); WQKV=(1,0,D*3*D*2); WO=(2,0,D*D*2); WG=(4,0,D*F*2); WU=(5,0,D*F*2); WD=(6,0,F*D*2); OUT=(7,0,S*D*2)
o=0
def wsb(n):
    global o
    r=(WS,o,n); o+=(n+4095)//4096*4096; return r
def wave_sum(v, tmp, addr):
    for m in (1,2,4,8,16,32):
        e(f"v_xor_b32 v{addr}, {m*4}, v60")
        e(f"ds_bpermute_b32 v{tmp}, v{addr}, v{v}")
        e("s_waitcnt lgkmcnt(0)")
        e(f"v_add_f32 v{v}, v{v}, v{tmp}")
def ln(name, src, dst):
    begin(name, S//4)
    srd(4,*src); srd(8,*dst)
    e("v_and_b32 v1, 63, v0"); e("v_lshlrev_b32 v60, 2, v1")
    e("v_lshrrev_b32 v2, 6, v0"); e("s_lshl_b32 s3, s2, 2"); e("v_add_u32 v2, s3, v2")
    e(f"v_mul_u32_u24 v2, {D*2}, v2"); e("v_lshlrev_b32 v3, 1, v1"); e("v_add_u32 v2, v2, v3")
    for i in range(9): e(f"buffer_load_ushort v{10+i}, v2, s[4:7], 0 offen offset:{i*128}")
    e("s_waitcnt vmcnt(0)")
    e("v_mov_b32 v4, 0")
    for i in range(9):
        e(f"v_lshlrev_b32 v{10+i}, 16, v{10+i}"); e(f"v_add_f32 v4, v4, v{10+i}")
    wave_sum(4,5,6)
    e(f"v_mul_f32 v4, {1.0/D!r}, v4".replace(repr(1.0/D), hex(f2u(1.0/D))))
    e("v_mov_b32 v7, 0")
    for i in range(9):
        e(f"v_sub_f32 v{10+i}, v{10+i}, v4"); e(f"v_fmac_f32 v7, v{10+i}, v{10+i}")
    wave_sum(7,5,6)
    e(f"v_mul_f32 v7, {hex(f2u(1.0/D))}, v7"); e(f"v_add_f32 v7, {hex(f2u(1e-5))}, v7")
    e("v_rsq_f32 v7, v7"); e("s_nop 0")
    for i in range(9):
        e(f"v_mul_f32 v{10+i}, v{10+i}, v7"); e(f"v_cvt_pk_bf16_f32 v{10+i}, v{10+i}, v{10+i}")
        e(f"buffer_store_short v{10+i}, v2, s[8:11], 0 offen offset:{i*128}")
    e("s_waitcnt vmcnt(0)")
    end(name)
import struct
def f2u(x): return struct.unpack('<I', struct.pack('<f', x))[0]
R=8
def gemm(name, A, Wt, N, K, dst, res=None, W2=None):
    ncb=(N+127)//128
    grid=(S//(R*4))*ncb
    begin(name, grid, vg=96)
    srd(4,*A); srd(8,*Wt); srd(12,*dst)
    if res: srd(16,*res)
    if W2: srd(20,*W2)
    M=(2**32+ncb-1)//ncb
    e(f"s_mov_b32 s26, {M}"); e("s_mul_hi_u32 s25, s2, s26"); e(f"s_mul_i32 s24, s25, {ncb}"); e("s_sub_u32 s24, s2, s24")
    e("v_lshrrev_b32 v2, 6, v0"); e("s_nop 0"); e("v_readfirstlane_b32 s27, v2"); e("s_nop 3")
    e("s_lshl_b32 s25, s25, 2"); e("s_add_u32 s25, s25, s27"); e(f"s_mul_i32 s25, s25, {R}")
    e("v_and_b32 v1, 63, v0"); e("v_lshlrev_b32 v1, 1, v1"); e("s_lshl_b32 s28, s24, 7"); e("v_add_u32 v1, s28, v1")
    e(f"v_cmp_gt_u32 vcc, {N}, v1"); e("s_and_saveexec_b64 s[30:31], vcc"); e(f"s_cbranch_execz {name}_done")
    e("v_lshlrev_b32 v3, 1, v1")
    for i in range(4*R): e(f"v_mov_b32 v{32+i}, 0")
    e(f"s_mul_i32 s29, s25, {K*2}")
    e("s_mov_b32 s33, 0")
    e("s_mov_b32 s34, 0")
    e(f"{name}_loop:")
    for r in range(R):
        e(f"s_add_u32 s35, s29, {r*K*2}"); e(f"s_buffer_load_dword s{40+r}, s[4:7], s35")
    e("buffer_load_dword v4, v3, s[8:11], s33 offen")
    e(f"s_add_u32 s36, s33, {N*2}")
    e("buffer_load_dword v5, v3, s[8:11], s36 offen")
    if W2:
        e("buffer_load_dword v6, v3, s[20:23], s33 offen"); e("buffer_load_dword v7, v3, s[20:23], s36 offen")
    e("s_waitcnt vmcnt(0) lgkmcnt(0)")
    for (src,lo) in ((4,8),(5,10))+(((6,12),(7,14)) if W2 else ()):
        e(f"v_lshlrev_b32 v{lo}, 16, v{src}"); e(f"v_and_b32 v{lo+1}, 0xffff0000, v{src}")
    for r in range(R):
        e(f"s_lshl_b32 s50, s{40+r}, 16"); e(f"s_and_b32 s51, s{40+r}, 0xffff0000")
        e(f"v_fmac_f32 v{32+r*2}, s50, v8"); e(f"v_fmac_f32 v{33+r*2}, s50, v9")
        e(f"v_fmac_f32 v{32+r*2}, s51, v10"); e(f"v_fmac_f32 v{33+r*2}, s51, v11")
        if W2:
            b=32+2*R
            e(f"v_fmac_f32 v{b+r*2}, s50, v12"); e(f"v_fmac_f32 v{b+1+r*2}, s50, v13")
            e(f"v_fmac_f32 v{b+r*2}, s51, v14"); e(f"v_fmac_f32 v{b+1+r*2}, s51, v15")
    e("s_add_u32 s29, s29, 4"); e(f"s_add_u32 s33, s33, {N*4}"); e("s_add_u32 s34, s34, 2")
    e(f"s_cmp_lt_u32 s34, {K}"); e(f"s_cbranch_scc1 {name}_loop")
    e(f"s_mul_i32 s29, s25, {N*2}")
    c1=-2*1.4426950408889634*0.7978845608028654; c2=c1*0.044715
    for r in range(R):
        e(f"s_add_u32 s35, s29, {r*N*2}")
        if res:
            e("buffer_load_dword v4, v3, s[16:19], s35 offen"); e("s_waitcnt vmcnt(0)")
            e("v_lshlrev_b32 v8, 16, v4"); e("v_and_b32 v9, 0xffff0000, v4")
            e(f"v_add_f32 v{32+r*2}, v{32+r*2}, v8"); e(f"v_add_f32 v{33+r*2}, v{33+r*2}, v9")
        if W2:
            for c in range(2):
                g=32+r*2+c; u=32+2*R+r*2+c
                e(f"v_mul_f32 v8, v{g}, v{g}"); e(f"v_mov_b32 v10, {hex(f2u(c2))}")
                e(f"v_fmaak_f32 v8, v8, v10, {hex(f2u(c1))}"); e(f"v_mul_f32 v8, v8, v{g}")
                e("v_exp_f32 v8, v8"); e("s_nop 0"); e("v_add_f32 v8, 1.0, v8"); e("v_rcp_f32 v8, v8"); e("s_nop 0")
                e(f"v_mul_f32 v{g}, v{g}, v{u}"); e(f"v_mul_f32 v{g}, v{g}, v8")
        e(f"v_cvt_pk_bf16_f32 v4, v{32+r*2}, v{33+r*2}")
        e("buffer_store_dword v4, v3, s[12:15], s35 offen")
        e("s_waitcnt vmcnt(0)")
    end(name)
    return grid
def attn(name, qkv, dst):
    grid=(S//256)*H
    begin(name, grid, vg=96)
    srd(4,*qkv); srd(8,*dst)
    e("s_and_b32 s12, s2, 31"); e("s_lshr_b32 s13, s2, 5"); e("s_lshl_b32 s13, s13, 8")
    e("v_add_u32 v1, s13, v0")
    e(f"v_mul_u32_u24 v2, {3*D*2}, v1"); e(f"s_mul_i32 s14, s12, {DH*2}"); e("v_add_u32 v2, s14, v2")
    for i in range(9): e(f"buffer_load_dword v{40+i}, v2, s[4:7], 0 offen offset:{i*4}")
    e("s_waitcnt vmcnt(0)")
    sc=DH**-0.5*1.4426950408889634
    for i in range(9):
        e(f"v_lshlrev_b32 v{10+2*i}, 16, v{40+i}"); e(f"v_and_b32 v{11+2*i}, 0xffff0000, v{40+i}")
    for i in range(18):
        e(f"v_mul_f32 v{10+i}, {hex(f2u(sc))}, v{10+i}"); e(f"v_mov_b32 v{60+i}, 0")
    e("v_mov_b32 v4, 0xff7fffff"); e("v_mov_b32 v5, 0")
    e("s_mov_b32 s15, 0")
    e(f"{name}_loop:")
    e("v_subrev_u32 v6, s15, v1")
    e("v_cmp_le_i32 vcc, 0, v6"); e("s_and_saveexec_b64 s[20:21], vcc"); e(f"s_cbranch_execz {name}_skip")
    e(f"v_mul_u32_u24 v7, {3*D*2}, v6"); e("v_add_u32 v7, s14, v7")
    for i in range(9): e(f"buffer_load_dword v{40+i}, v7, s[4:7], 0 offen offset:{D*2+i*4}")
    for i in range(9): e(f"buffer_load_dword v{50+i}, v7, s[4:7], 0 offen offset:{2*D*2+i*4}")
    e("s_waitcnt vmcnt(0)")
    e("v_mov_b32 v8, 0")
    for i in range(9):
        e(f"v_lshlrev_b32 v9, 16, v{40+i}"); e(f"v_fmac_f32 v8, v9, v{10+2*i}")
        e(f"v_and_b32 v9, 0xffff0000, v{40+i}"); e(f"v_fmac_f32 v8, v9, v{11+2*i}")
    e("v_max_f32 v30, v4, v8"); e("v_sub_f32 v31, v4, v30"); e("v_exp_f32 v31, v31"); e("v_sub_f32 v32, v8, v30"); e("v_exp_f32 v32, v32")
    e("v_mov_b32 v4, v30"); e("v_fma_f32 v5, v5, v31, v32")
    for i in range(9):
        e(f"v_lshlrev_b32 v9, 16, v{50+i}"); e(f"v_mul_f32 v{60+2*i}, v{60+2*i}, v31"); e(f"v_fmac_f32 v{60+2*i}, v9, v32")
        e(f"v_and_b32 v9, 0xffff0000, v{50+i}"); e(f"v_mul_f32 v{61+2*i}, v{61+2*i}, v31"); e(f"v_fmac_f32 v{61+2*i}, v9, v32")
    e(f"{name}_skip:")
    e("s_mov_b64 exec, s[20:21]")
    e("s_add_u32 s15, s15, 1"); e(f"s_cmp_lt_u32 s15, {W}"); e(f"s_cbranch_scc1 {name}_loop")
    e("v_rcp_f32 v5, v5")
    e(f"v_mul_u32_u24 v2, {D*2}, v1"); e("v_add_u32 v2, s14, v2")
    for i in range(9):
        e(f"v_mul_f32 v{60+2*i}, v{60+2*i}, v5"); e(f"v_mul_f32 v{61+2*i}, v{61+2*i}, v5")
        e(f"v_cvt_pk_bf16_f32 v9, v{60+2*i}, v{61+2*i}")
        e(f"buffer_store_dword v9, v2, s[8:11], 0 offen offset:{i*4}"); e("s_waitcnt vmcnt(0)")
    end(name)
    return grid
def empty(name):
    begin(name, 256); end(name)
launch=[]
npre=int(sys.argv[1]) if len(sys.argv)>1 else 0
npost=int(sys.argv[2]) if len(sys.argv)>2 else 0
empty("empty_kernel")
for i in range(npre): launch.append(("empty_kernel",256))
x=XIN
for L in range(2):
    xn=wsb(S*D*2); qkv=wsb(S*3*D*2); ob=wsb(S*D*2); x1=wsb(S*D*2); xn2=wsb(S*D*2); hb=wsb(S*F*2); x2=wsb(S*D*2) if L==0 else OUT
    ln(f"lna{L}_kernel", x, xn); launch.append((f"lna{L}_kernel",S//4))
    launch.append((f"qkv{L}_kernel", gemm(f"qkv{L}_kernel", xn, WQKV, 3*D, D, qkv)))
    launch.append((f"att{L}_kernel", attn(f"att{L}_kernel", qkv, ob)))
    launch.append((f"wo{L}_kernel", gemm(f"wo{L}_kernel", ob, WO, D, D, x1, res=x)))
    ln(f"lnb{L}_kernel", x1, xn2); launch.append((f"lnb{L}_kernel",S//4))
    launch.append((f"gu{L}_kernel", gemm(f"gu{L}_kernel", xn2, WG, F, D, hb, W2=WU)))
    launch.append((f"dn{L}_kernel", gemm(f"dn{L}_kernel", hb, WD, D, F, x2, res=x1)))
    x=x2
for i in range(npost): launch.append(("empty_kernel",256))
import os
if os.environ.get("PERT"):
    mode,val=os.environ["PERT"].split(":"); val=float(val)
    n = 1 if mode=="one" else S*D//2//256
    begin("pert_kernel", n)
    srd(4,*OUT)
    e("s_lshl_b32 s3, s2, 8"); e("v_add_u32 v1, s3, v0"); e("v_lshlrev_b32 v1, 2, v1")
    if mode=="one":
        e("v_cmp_eq_u32 vcc, 0, v0"); e("s_and_saveexec_b64 s[20:21], vcc"); e("s_cbranch_execz pert_kernel_done")
    e("buffer_load_dword v2, v1, s[4:7], 0 offen"); e("s_waitcnt vmcnt(0)")
    e("v_lshlrev_b32 v3, 16, v2"); e("v_and_b32 v4, 0xffff0000, v2")
    if mode=="one": e(f"v_add_f32 v3, {hex(f2u(val))}, v3")
    elif mode=="add": e(f"v_add_f32 v3, {hex(f2u(val))}, v3"); e(f"v_subrev_f32 v4, {hex(f2u(val))}, v4")
    else: e(f"v_mul_f32 v3, {hex(f2u(val))}, v3"); e(f"v_mul_f32 v4, {hex(f2u(val))}, v4")
    e("v_cvt_pk_bf16_f32 v2, v3, v4"); e("buffer_store_dword v2, v1, s[4:7], 0 offen"); e("s_waitcnt vmcnt(0)")
    end("pert_kernel"); launch.append(("pert_kernel",n))
hdr="".join(f"; @launch kernel={n} grid=({g},1,1) block=(256,1,1) lds=0\n" for n,g in launch)
print(hdr+'.amdgcn_target "amdgcn-amd-amdhsa--gfx950"\n.text\n'+"\n".join(out)+'\n.section .rodata,"a"\n'+"\n".join(descs))
```

```python
import re, struct

def f2u(x): return struct.unpack('<I', struct.pack('<f', x))[0]
def hx(x): return "0x%08x" % (x & 0xffffffff)
def fl(x): return hx(f2u(x))
def bf16u(x):
    u = f2u(x); return ((u + 0x7fff + ((u >> 16) & 1)) >> 16) & 0xffff

def v(n, c=1): return f"v{n}" if c == 1 else f"v[{n}:{n+c-1}]"
def a(n, c=1): return f"a{n}" if c == 1 else f"a[{n}:{n+c-1}]"
def s(n, c=1): return f"s{n}" if c == 1 else f"s[{n}:{n+c-1}]"

class Kern:
    def __init__(self, name):
        self.name = name; self.L = []
    def __call__(self, *lines):
        for x in lines:
            if isinstance(x, (list, tuple)): self(*x)
            else:
                for y in x.split("\n"):
                    y = y.strip()
                    if y: self.L.append(y)
    def label(self, n): self.L.append(n + ":")
    def text(self): return "\n".join((l if l.endswith(":") or l.startswith(".") else "  " + l) for l in self.L)

def desc(name, vgpr, agpr=0, sgpr=96):
    acc = (vgpr + 3) // 4 * 4
    nfv = acc + agpr if agpr else vgpr
    return f""".p2align 6
.amdhsa_kernel {name}
  .amdhsa_next_free_vgpr {nfv}
  .amdhsa_next_free_sgpr {sgpr}
  .amdhsa_accum_offset {acc}
  .amdhsa_group_segment_fixed_size 0
  .amdhsa_kernarg_size 80
  .amdhsa_user_sgpr_count 2
  .amdhsa_user_sgpr_kernarg_segment_ptr 1
  .amdhsa_system_sgpr_workgroup_id_x 1
  .amdhsa_float_denorm_mode_32 3
.end_amdhsa_kernel"""

def merge(main, fill, per=None, start=0):
    out = []; n = len(main); m = len(fill); k = 0
    for i, x in enumerate(main):
        out.append(x)
        if i < start: continue
        tgt = m if i == n - 1 and per is None else (min(m, (i - start + 1) * per) if per is not None else (m * (i - start + 1)) // (n - start))
        while k < tgt:
            out.append(fill[k]); k += 1
    while k < m:
        out.append(fill[k]); k += 1
    return out

REG = re.compile(r"\b([vas])(\d+)\b|\b([vas])\[(\d+):(\d+)\]")
def regs(op):
    r = set()
    for m in REG.finditer(op):
        if m.group(1): r.add((m.group(1), int(m.group(2))))
        else:
            for i in range(int(m.group(4)), int(m.group(5)) + 1): r.add((m.group(3), i))
    if re.search(r"\bvcc\b", op): r.add(("s", 106)); r.add(("s", 107))
    if re.search(r"\bm0\b", op): r.add(("s", 124))
    if re.search(r"\bexec\b", op): r.add(("s", 126)); r.add(("s", 127))
    return r
TRANS = ("v_exp_f32", "v_log_f32", "v_rcp_f32", "v_rsq_f32", "v_sqrt_f32", "v_sin_f32", "v_cos_f32")
class I:
    pass
def parse(line):
    t = line.split(";")[0].strip()
    i = I(); i.text = t
    if not t or t.endswith(":") or t.startswith("."):
        i.kind = "label" if t.endswith(":") else "dir"; return i
    p = t.split(None, 1); op = p[0]; rest = p[1] if len(p) > 1 else ""
    ops = [x.strip() for x in rest.split(",")] if rest else []
    i.op = op; i.w = set(); i.r = set(); i.ws = 1; i.kind = "other"; i.passes = 0
    i.cregs = set(); i.abregs = set(); i.vm = False; i.lgkm = False; i.lds_dma = False; i.wide_store = False; i.ldst = set()
    def R(x): return regs(x)
    if op == "s_nop": i.kind = "nop"; i.ws = int(ops[0], 0) + 1
    elif op.startswith("v_mfma"):
        i.kind = "mfma"; i.passes = 8 if "32x32x16" in op else 4
        i.w = R(ops[0]); i.abregs = R(ops[1]) | R(ops[2]); i.cregs = R(ops[3]); i.r = i.abregs | i.cregs
    elif op.startswith("v_"):
        i.kind = "valu"; i.trans = any(op.startswith(x) for x in TRANS)
        i.dpp = ("dpp" in op) or ("row_" in rest) or ("quad_perm" in rest)
        if op.startswith("v_cmp"):
            i.w = R(ops[0]); i.r = set().union(*[R(x) for x in ops[1:]])
        elif op.startswith("v_permlane") and "swap" in op:
            i.w = R(ops[0]) | R(ops[1]); i.r = set(i.w); i.kind = "valu"; i.perm = True
        elif op.startswith("v_readfirstlane") or op.startswith("v_readlane"):
            i.w = R(ops[0]); i.r = set().union(*[R(x) for x in ops[1:]]); i.rdlane = True
        elif op.startswith(("v_add_co", "v_sub_co", "v_addc_co", "v_subb_co")):
            i.w = R(ops[0]) | R(ops[1]); i.r = set().union(*[R(x) for x in ops[2:]])
        else:
            i.w = R(ops[0]); i.r = set().union(*[R(x) for x in ops[1:]]) if len(ops) > 1 else set()
            if op.startswith(("v_fmac", "v_dot2c", "v_mac", "v_pk_fmac")) : i.r |= i.w
            if op.startswith("v_cndmask") and len(ops) == 3: i.r |= {("s", 106), ("s", 107)}
    elif op.startswith("ds_"):
        i.kind = "ds"; i.lgkm = True
        if op.startswith(("ds_read", "ds_bpermute", "ds_permute", "ds_swizzle")):
            i.w = R(ops[0]); i.r = set().union(*[R(x) for x in ops[1:]]); i.ldst = set(i.w)
        else:
            i.r = set().union(*[R(x) for x in ops])
    elif op.startswith(("buffer_", "global_")):
        i.kind = "vmem"; i.vm = True
        if op in ("buffer_inv", "buffer_wbl2"): pass
        elif re.search(r"\blds\b", rest) or "load_lds" in op:
            i.lds_dma = True; i.r = set().union(*[R(x) for x in ops]) | {("s", 124)}
        elif "load" in op:
            i.w = R(ops[0]); i.r = set().union(*[R(x) for x in ops[1:]]); i.ldst = set(i.w)
        elif "atomic" in op and re.search(r"\bsc0\b", rest):
            i.w = R(ops[0]); i.r = set().union(*[R(x) for x in ops]); i.ldst = set(i.w)
        else:
            i.r = set().union(*[R(x) for x in ops])
            if "x4" in op or "x3" in op:
                i.wide_store = True; i.sdata = R(ops[0]) if op.startswith("buffer_") else R(ops[1])
    elif op.startswith(("s_load", "s_buffer_load", "s_memtime", "s_memrealtime")):
        i.kind = "smem"; i.lgkm = True; i.w = R(ops[0]); i.r = set().union(*[R(x) for x in ops[1:]]) if len(ops) > 1 else set(); i.ldst = set(i.w)
    elif op == "s_waitcnt":
        i.kind = "wait"
        m = re.search(r"vmcnt\((\d+)\)", rest); i.vmc = int(m.group(1)) if m else None
        m = re.search(r"lgkmcnt\((\d+)\)", rest); i.lgc = int(m.group(1)) if m else None
    elif op.startswith(("s_cbranch", "s_branch")):
        i.kind = "branch"; i.target = ops[0]
    elif op.startswith("s_"):
        i.kind = "salu"
        if op.startswith(("s_cmp", "s_barrier", "s_endpgm", "s_setprio", "s_sleep", "s_bitcmp")):
            i.r = set().union(*[R(x) for x in ops]) if ops else set()
        else:
            i.w = R(ops[0]); i.r = set().union(*[R(x) for x in ops[1:]]) if len(ops) > 1 else set()
            if "saveexec" in op: i.w |= {("s", 126), ("s", 127)}
            if op.startswith(("s_addk","s_mulk")): i.r |= i.w
    else:
        raise ValueError("unknown op " + t)
    return i

def isv(r): return r[0] in "va"
def check_trace(tr, name, errs):
    ins = [x for x in tr if x.kind not in ("label", "dir")]
    vmq = []; lgq = []
    for n, c in enumerate(ins):
        dist = 0; k = n - 1
        while k >= 0 and dist < 24:
            p = ins[k]; need = 0; why = ""
            def req(cond, nn, w):
                nonlocal need, why
                if cond and nn > need: need = nn; why = w
            if p.kind == "valu":
                pw_v = {x for x in p.w if isv(x)}; pw_s = {x for x in p.w if x[0] == "s"}
                if c.kind == "mfma": req(pw_v & c.r, 2, "valu->mfma")
                if c.kind == "valu":
                    req(getattr(p, "trans", False) and not getattr(c, "trans", False) and (pw_v & c.r), 1, "trans->valu")
                    req(pw_s & c.r, 2, "valu sgpr->valu")
                    req(getattr(c, "rdlane", False) and (pw_v & c.r), 1, "valu->readlane")
                    req(getattr(c, "rdlane", False) and (pw_s & c.r), 4, "valu sgpr->lanesel")
                    req(getattr(c, "dpp", False) and (pw_v & c.r), 2, "valu->dpp")
                    req(getattr(c, "perm", False) and (pw_v & c.r), 2, "valu->permlane")
                if p.op.startswith("v_dot"):
                    if c.kind == "valu" and c.op == p.op:
                        srcs = c.r - c.w if c.op.startswith("v_dot2c") else c.r
                        req((pw_v & c.r) and not (pw_v & c.w), 3, "dot->dot AB")
                    elif c.kind in ("valu", "mfma", "ds", "vmem"): req(pw_v & (c.r | c.w), 3, "dot->other")
                if c.kind == "vmem": req(pw_s & c.r, 5, "valu sgpr->vmem")
                if c.kind == "salu" or c.kind == "smem": req(pw_s & c.r, 1, "valu sgpr->salu(pad)")
            if p.kind == "mfma":
                big = 12 if p.passes == 8 else 8
                if c.kind == "mfma":
                    req(p.w & c.abregs, big, "mfma D->AB")
                    if p.w & c.cregs and not (p.w == c.cregs and p.passes == c.passes): req(True, big - 2, "mfma D->C partial")
                    if p.w & c.w and not (p.w == c.cregs): req(True, big - 2, "mfma WAW")
                if c.kind == "valu":
                    req(p.w & (c.r | c.w), big, "mfma D->valu")
                    req(p.cregs & c.w, 7 if p.passes == 8 else 3, "mfma C WAR")
                if c.kind in ("ds", "vmem"): req(p.w & (c.r | c.w), big, "mfma D->mem")
            if p.kind == "salu" and c.kind == "vmem" and c.lds_dma: req(("s", 124) in p.w, 1, "m0->dma")
            if p.kind == "vmem" and p.wide_store and c.kind in ("valu",): req(p.sdata & c.w, 2, "store data WAR")
            if p.kind == "vmem" and p.wide_store and c.kind in ("ds", "vmem", "mfma"): req(p.sdata & c.w, 1, "store data WAR")
            if need > dist:
                errs.append(f"{name}: hazard {why}: need {need} have {dist}: [{p.text}] -> [{c.text}]")
            dist += p.ws; k -= 1
        if c.kind == "wait":
            if c.vmc is not None:
                while len(vmq) > c.vmc: vmq.pop(0)
            if c.lgc is not None:
                if c.lgc == 0: lgq = []
                else:
                    if any(x.kind == "smem" for x in lgq): errs.append(f"{name}: counted lgkmcnt with smem outstanding: {c.text}")
                    while len(lgq) > c.lgc: lgq.pop(0)
        else:
            touched = getattr(c, "r", set()) | getattr(c, "w", set())
            for q in vmq + lgq:
                if q.ldst & touched and not (getattr(c,'junk',False) or 'JUNK' in getattr(c,'cm','')):
                    if c.kind==q.kind and not (q.ldst & c.r) and getattr(c,'okwaw',False): continue
                    errs.append(f"{name}: use of outstanding load dest: [{q.text}] -> [{c.text}]")
            if c.vm:
                vmq.append(c)
                if len(vmq) > 63: errs.append(f"{name}: vmcnt overflow ({len(vmq)}) at {c.text}")
            if c.lgkm: lgq.append(c)

def build_trace(lines, trips):
    P = []
    for l in lines:
        i = parse(l); i.cm = l.split(";", 1)[1] if ";" in l else ""
        if 'WAWOK' in i.cm: i.okwaw = True
        P.append(i)
    lab = {i.text[:-1]: n for n, i in enumerate(P) if i.kind == "label"}
    tr = []; pc = 0; cnt = {}
    while pc < len(P):
        i = P[pc]; tr.append(i)
        if i.kind == "branch":
            key = (pc)
            if i.op == "s_branch": pc = lab[i.target]; continue
            spec = trips.get(i.target, 0)
            c = cnt.get(key, 0); cnt[key] = c + 1
            taken = spec[c] if isinstance(spec, (list, tuple)) else (c < spec)
            if taken: pc = lab[i.target]; continue
        if i.kind == "salu" and i.op == "s_endpgm": break
        pc += 1
        if len(tr) > 400000: raise RuntimeError("trace too long")
    return tr

def check(k, trips_list=({},)):
    errs = []
    for trips in trips_list:
        check_trace(build_trace(k.L, trips), k.name, errs)
    seen = set(); out = []
    for e in errs:
        if e not in seen: seen.add(e); out.append(e)
    return out
```

```python
from asmlib import *
S, D, F, H, DH, WIN = 2048, 576, 4608, 32, 18, 256
TILE = 73728
ACT = 32 * TILE
A_X, A_WQKV, A_WO, A_BX, A_WG, A_WU, A_WD, A_OUT, A_DBG, A_WS = range(10)
LSTR = 40 << 20
WS_KV = 0
KVB = 27648
WS_O = 8 << 20
WS_X1 = 11 << 20
WS_X2 = 14 << 20
WS_P = 17 << 20
assert WS_P + 8 * ACT <= LSTR

def srd_fill(k, reg, nbytes):
    k(f"s_mov_b32 s{reg+2}, {hx(nbytes)}", f"s_mov_b32 s{reg+3}, 0x00020000")

def ln_stats_norm(k, X, T, sOnes, nq=18):
    S0, S1, Q0, Q1 = T, T+1, T+2, T+3
    k(f"v_mov_b32 v{S0}, 0", f"v_mov_b32 v{S1}, 0", f"v_mov_b32 v{Q0}, 0", f"v_mov_b32 v{Q1}, 0")
    return S0, S1, Q0, Q1

def ln_acc(X, T, sOnes, i):
    S0, S1, Q0, Q1 = T, T+1, T+2, T+3
    o = []
    for d in range(4):
        x = X + 4*i + d
        o.append(f"v_dot2c_f32_bf16 v{S0 + (d&1)}, s{sOnes}, v{x}")
        o.append(f"v_dot2c_f32_bf16 v{Q0 + (d&1)}, v{x}, v{x}")
    return o

def ln_finish(k, T):
    S0, S1, Q0, Q1 = T, T+1, T+2, T+3
    k("s_nop 2")
    k(f"v_add_f32 v{S0}, v{S0}, v{S1}", f"v_add_f32 v{Q0}, v{Q0}, v{Q1}")
    for sw in ("v_permlane16_swap_b32", "v_permlane32_swap_b32"):
        k(f"v_mov_b32 v{S1}, v{S0}", f"v_mov_b32 v{Q1}, v{Q0}", "s_nop 1")
        k(f"{sw} v{S0}, v{S1}", f"{sw} v{Q0}, v{Q1}", "s_nop 1")
        k(f"v_add_f32 v{S0}, v{S0}, v{S1}", f"v_add_f32 v{Q0}, v{Q0}, v{Q1}")
    k(f"v_mul_f32 v{S0}, {fl(1.0/D)}, v{S0}")
    k(f"v_mul_f32 v{Q0}, {fl(1.0/D)}, v{Q0}")
    k(f"v_fma_f32 v{Q0}, -v{S0}, v{S0}, v{Q0}")
    k(f"v_max_f32 v{Q0}, 0, v{Q0}")
    k(f"v_add_f32 v{Q0}, {fl(1e-5)}, v{Q0}")
    k(f"v_rsq_f32 v{T+4}, v{Q0}", "s_nop 0")
    k(f"v_mul_f32 v{T+6}, v{S0}, v{T+4}")
    k(f"v_sub_f32 v{T+6}, 0, v{T+6}")

def ln_apply(X, T, i):
    o = []
    for d in range(4):
        x = X + 4*i + d; t = T + 8 + 2*d
        o.append(f"v_lshlrev_b32 v{t}, 16, v{x}")
        o.append(f"v_and_b32 v{t+1}, 0xffff0000, v{x}")
    for d in range(4):
        t = T + 8 + 2*d
        o.append(f"v_pk_fma_f32 v[{t}:{t+1}], v[{t}:{t+1}], v[{T+4}:{T+5}], v[{T+6}:{T+7}] op_sel_hi:[1,0,0]")
    for d in range(4):
        x = X + 4*i + d; t = T + 8 + 2*d
        o.append(f"v_cvt_pk_bf16_f32 v{x}, v{t}, v{t+1}")
    return o
WS_W = 2 * LSTR
WFR = 486
KV_QM, KV_KM, KV_V, KV_QT, KV_KT = 0, 8192, 16384, 25600, 26624
QSCALE = DH ** -0.5 * 1.4426950408889634
def stamp_out(k, name, n=7):
    k(f"s_load_dwordx2 s[44:45], s[0:1], {A_DBG*8}", "s_waitcnt lgkmcnt(0)")
    srd_fill(k, 44, 256)
    k("s_cmp_lg_u32 s20, 0", f"s_cbranch_scc1 {name}_done", "s_cmp_ge_u32 s2, 4", f"s_cbranch_scc1 {name}_done")
    k("s_lshl_b32 s48, s2, 6", "v_mov_b32 v2, s48")
    for i in range(n):
        k(f"s_sub_u32 s50, s{60+2*i}, s60", "v_mov_b32 v4, s50", "v_mov_b32 v5, 0", f"buffer_store_dwordx2 v[4:5], v2, s[44:47], 0 offen offset:{8*i}")
STAMP = [0]
def stamp(k, i):
    if STAMP[0] == 1: k(f"s_memtime s[{60+2*i}:{61+2*i}]")
    if STAMP[0] == 3: k(f"s_memrealtime s[{60+2*i}:{61+2*i}]")
```

```python
from common import *
VT = 10240
LDS = 5 * VT
TRIPS = [{}]
V_L16, V_KT, V_QT, V_V0, V_V1, V_SO, V_ST, V_D4 = 1, 2, 3, 4, 5, 6, 7, 8
V_MX = 10
V_MK = 14
V_Q = 24
V_NM = 40
V_O = 72
V_S = 104
V_P = 168
V_T = 200
NV = 216
A_K = 0
A_V = 60
NA = 92
MSK = 28
NEG = bf16u(-1e30)
def mf(d, A, B, c): return f"v_mfma_f32_32x32x16_bf16 {d}, {A}, {B}, {c}"
def qk(t, b, sb, c):
    S_ = v(V_S + 16 * sb, 16)
    return [mf(S_, a(A_K + 6*b + 2, 4), v(V_Q + 8*t + 4, 4), c), mf(S_, a(A_K + 6*b, 4), v(V_Q + 8*t, 4), S_)]
def vread(b, vb):
    return [f"ds_read_b64_tr_b16 {a(A_V + 8*vb + 4*s_ + 2*e, 2)}, v{V_V0+e} offset:{(b//2)*VT + (32*(b%2) + 16*s_)*16}" for s_ in range(2) for e in range(2)]
def cost(x): return 2 if x.startswith(("v_exp", "v_rcp")) else 1
def inter(k, main, side, lead=0, tail=0):
    tot = sum(cost(x) for x in main); span = max(1, tot - lead - tail); c = 0; si = 0
    for x in main:
        while si < len(side) and c >= lead + si * span / len(side):
            k(side[si]); si += 1
        k(x); c += cost(x)
    while si < len(side): k(side[si]); si += 1

def gen_att(sc=""):
    k = Kern("att")
    k.label("att_body")
    stamp(k, 0)
    k("s_cmp_ge_u32 s2, 256", "s_cbranch_scc1 att_done")
    k(f"s_load_dwordx2 s[8:9], s[0:1], {A_WS*8}")
    k("v_lshrrev_b32 v1, 6, v0", "v_and_b32 v0, 63, v0", "v_readfirstlane_b32 s20, v1")
    k("s_and_b32 s22, s2, 7", "s_lshr_b32 s21, s2, 3")
    T = V_T
    k(f"v_lshlrev_b32 v{V_L16}, 4, v0", f"v_and_b32 v{T}, 31, v0", f"v_lshrrev_b32 v{T+1}, 5, v0")
    for i in range(5):
        k(f"s_add_i32 s23, s21, {i-4}", f"s_cmp_lt_i32 s23, 0", f"s_cselect_b32 s{81+i}, {NEG}, 0", "s_max_i32 s23, s23, 0",
          "s_lshl_b32 s23, s23, 3", "s_add_u32 s23, s23, s22", f"s_mul_i32 s{76+i}, s23, {KVB}")
    k("s_lshl_b32 s24, s20, 11")
    k(f"v_add_u32 v{T+2}, s24, v{V_L16}")
    k("s_lshr_b32 s25, s20, 1", "s_lshl_b32 s25, s25, 9", "s_and_b32 s26, s20, 1", "s_lshl_b32 s27, s26, 2", "s_add_u32 s25, s25, s27")
    k(f"v_lshlrev_b32 v{V_KT}, 3, v{T}", f"v_add_u32 v{V_KT}, s25, v{V_KT}")
    k(f"v_mov_b32 v{T+3}, 0x80000000", f"v_cmp_gt_u32 vcc, 32, v0", f"v_add_u32 v{T+4}, {KV_QT}, v{V_KT}", f"v_add_u32 v{V_KT}, {KV_KT}, v{V_KT}")
    k(f"v_cndmask_b32 v{V_QT}, v{T+3}, v{T+4}, vcc")
    srd_fill(k, 4, 256 * KVB)
    k("s_waitcnt lgkmcnt(0)")
    k("s_add_u32 s4, s8, s3", "s_addc_u32 s5, s9, 0")
    nvm = 0
    for t in range(2):
        k(f"buffer_load_dwordx4 {v(V_Q+8*t+4,4)}, v{T+2}, s[4:7], s80 offen offset:{1024*t}", f"buffer_load_dword v{V_Q+8*t}, v{V_QT}, s[4:7], s80 offen offset:{256*t}")
    k(f"v_add_u32 v{T+2}, {KV_KM}, v{T+2}")
    korder = [0, 8, 1, 9, 2, 3, 4, 5, 6, 7]
    for b in korder:
        k(f"buffer_load_dwordx4 {a(A_K+6*b+2,4)}, v{T+2}, s[4:7], s{76+b//2} offen offset:{1024*(b%2)}",
          f"buffer_load_dword {a(A_K+6*b)}, v{V_KT}, s[4:7], s{76+b//2} offen offset:{256*(b%2)}")
    stamp(k, 1)
    k(f"v_add_u32 v{T+5}, s24, v{V_L16}", f"v_add_u32 v{T+5}, {KV_V}, v{T+5}")
    k("s_lshl_b32 s27, s20, 8", f"v_lshlrev_b32 v{T+6}, 2, v0", f"v_add_u32 v{T+6}, s27, v{T+6}", f"v_add_u32 v{T+8}, 9216, v{T+6}", f"v_add_u32 v{T+6}, {KV_V+8192}, v{T+6}")
    for i in [0, 4, 1, 2, 3]:
        k(f"s_add_u32 m0, s24, {i*VT}", "s_nop 0")
        k(f"buffer_load_dwordx4 v{T+5}, s[4:7], s{76+i} offen lds", f"buffer_load_dwordx4 v{T+5}, s[4:7], s{76+i} offen offset:1024 lds")
        k(f"s_add_u32 m0, s27, {i*VT+8192}", "s_nop 0")
        k(f"buffer_load_dword v{T+6}, s[4:7], s{76+i} offen lds")
    k(f"v_mov_b32 v{T+7}, 0x3f803f80")
    for i in range(5): k(f"ds_write_b32 v{T+8}, v{T+7} offset:{i*VT}")
    for b in range(10): k(f"v_mov_b32 v{T+9}, s{81+b//2}", f"v_accvgpr_write_b32 {a(A_K+6*b+1)}, v{T+9}") if b % 2 == 0 else k(f"v_accvgpr_write_b32 {a(A_K+6*b+1)}, v{T+9}")
    k(f"v_mov_b32 v{T+9}, 0x3f80", f"v_cmp_gt_u32 vcc, 32, v0")
    for t in range(2): k(f"v_mov_b32 v{V_Q+8*t+2}, 0", f"v_mov_b32 v{V_Q+8*t+3}, 0", f"v_cndmask_b32 v{V_Q+8*t+1}, 0, v{T+9}, vcc")
    k(f"v_lshlrev_b32 v{V_D4}, 2, v{T+1}", f"v_sub_u32 v{V_D4}, v{T}, v{V_D4}")
    for i in range(16): k(f"v_cmp_le_i32 s[{MSK+2*i}:{MSK+2*i+1}], {8*(i//4) + i%4}, v{V_D4}")
    k(f"v_mov_b32 v{T+9}, 0xffff")
    for d in range(8): k(f"v_cndmask_b32 v{V_MK+d}, 0, v{T+9}, s[{MSK+4*d}:{MSK+4*d+1}]")
    for d in range(8): k(f"v_cndmask_b32 v{V_MK+d}, v{V_MK+d}, -1, s[{MSK+4*d+2}:{MSK+4*d+3}]")
    q_, r4, c_, m_, pl = T+9, T+10, T+11, T+12, T+13
    k(f"v_bfe_u32 v{q_}, v0, 4, 1", f"v_bfe_u32 v{r4}, v0, 2, 2", f"v_and_b32 v{c_}, 3, v0")
    k("s_mul_i32 s23, s20, 9", "s_add_u32 s23, s23, 1", "s_lshr_b32 s23, s23, 1")
    k("s_lshr_b32 s86, s20, 1", "s_mul_i32 s86, s86, 9", "s_add_u32 s86, s86, 4")
    k(f"v_add_u32 v{m_}, s23, v{c_}", f"v_mov_b32 v{pl}, s86", f"v_cmp_eq_u32 vcc, 1, v{q_}", "s_nop 1", f"v_cndmask_b32 v{m_}, v{m_}, v{pl}, vcc")
    k(f"v_lshrrev_b32 v{pl}, 1, v{m_}", f"v_and_b32 v{m_}, 1, v{m_}", f"v_and_b32 v{T+14}, 3, v{pl}")
    k(f"v_mul_u32_u24 v{c_}, v{c_}, v{q_}", "s_lshl_b32 s87, s26, 1", "s_sub_u32 s87, 3, s87", f"v_cmp_lt_u32 vcc, 0, v{c_}", f"v_mov_b32 v{q_}, s87", "s_nop 0")
    k(f"v_cndmask_b32 v{pl}, v{pl}, 9, vcc", f"v_cndmask_b32 v{m_}, v{m_}, 0, vcc", f"v_cndmask_b32 v{T+14}, v{T+14}, v{q_}, vcc")
    k(f"v_lshl_add_u32 v{r4}, v{T+1}, 2, v{r4}", f"v_lshlrev_b32 v{T+14}, 2, v{T+14}", f"v_xor_b32 v{r4}, v{r4}, v{T+14}")
    k(f"v_lshlrev_b32 v{pl}, 10, v{pl}", f"v_lshl_add_u32 v{pl}, v{m_}, 3, v{pl}")
    k(f"v_lshl_add_u32 v{V_V0}, v{r4}, 4, v{pl}", f"v_xor_b32 v{V_V1}, 128, v{V_V0}")
    k(f"s_mul_i32 s23, s21, {TILE}", "s_add_u32 s23, s23, s3", f"s_add_u32 s23, s23, {hx(WS_O)}", "s_add_u32 s12, s8, s23", "s_addc_u32 s13, s9, 0")
    srd_fill(k, 12, TILE)
    k("s_lshl_b32 s88, s22, 13", "s_add_u32 s88, s88, s24")
    k(f"v_lshlrev_b32 v{V_SO}, 4, v{T}", f"v_lshl_add_u32 v{V_SO}, v{T+1}, 10, v{V_SO}")
    k("s_add_u32 s89, s22, 64", "s_lshl_b32 s89, s89, 10", "s_lshl_b32 s23, s20, 2", "s_add_u32 s89, s89, s23")
    k(f"v_cmp_gt_u32 vcc, 32, v0", "s_nop 1", f"v_cndmask_b32 v{V_ST}, v{T+3}, v{V_L16}, vcc")
    for i in range(4): k(f"v_mov_b32 v{V_MX+i}, 0xff7fffff")
    stamp(k, 2)
    units = [(0, (0, 8)), (1, (1, 9)), (1, (8,)), (0, (1,))] + [(t, (b,)) for b in range(2, 8) for t in range(2)]
    nV = 15
    loaded = {}
    def kwait(bs):
        last = max(korder.index(b) for b in bs)
        return f"s_waitcnt vmcnt({nV + 2 * (9 - last)})"
    free = [0, 1, 2, 3]; sb = {}
    def m1(i, c):
        t, bs = units[i]; sb[i] = [free.pop(0) for _ in bs]; o = []
        for b, s_ in zip(bs, sb[i]): o += qk(t, b, s_, c(t))
        return o
    def merge_ops(i):
        lo, hi = [V_S + 16 * x for x in sb[i]]
        return [f"v_cndmask_b32 v{lo+n}, v{lo+n}, v{hi+n}, s[{MSK+2*n}:{MSK+2*n+1}]" for n in range(16)]
    zero = lambda t: "0"
    k(kwait(units[0][1])); k(m1(0, zero))
    k(kwait(units[1][1])); k(m1(1, zero)); k("s_nop 7")
    seen = set(korder[:4]); nxt = [2]
    def issue_next():
        o = []
        if nxt[0] < 16 and free:
            nb = units[nxt[0]][1]
            if not set(nb) <= seen: o.append(kwait(nb)); seen.update(nb)
            o += m1(nxt[0], zero); nxt[0] += 1
        return o
    pend = []
    for i in range(16):
        t, bs = units[i]; S_ = V_S + 16 * sb[i][0]
        mx = [f"v_max3_f32 v{V_MX+2*t+(n&1)}, v{S_+2*n}, v{S_+2*n+1}, v{V_MX+2*t+(n&1)}" for n in range(8)]
        if len(bs) == 2:
            inter(k, merge_ops(i), pend); free.append(sb[i][1]); pend = issue_next()
        if i == 15: k("s_nop 3")
        inter(k, mx, pend); free.append(sb[i][0]); pend = issue_next()
    stamp(k, 3)
    for t in range(2):
        m = V_MX + 2 * t
        k(f"v_max_f32 v{m}, v{m}, v{m+1}")
    for t in range(2): k(f"v_mov_b32 v{V_MX+2*t+1}, v{V_MX+2*t}")
    k("s_nop 1")
    for t in range(2): k(f"v_permlane32_swap_b32 v{V_MX+2*t}, v{V_MX+2*t+1}")
    k("s_nop 1")
    for t in range(2): k(f"v_max_f32 v{V_MX+2*t}, v{V_MX+2*t}, v{V_MX+2*t+1}")
    for t in range(2):
        for n in range(16): k(f"v_sub_f32 v{V_NM+16*t+n}, 0, v{V_MX+2*t}")
    k("s_waitcnt vmcnt(0) lgkmcnt(0)", "s_barrier")
    units = [(0, (0, 8)), (1, (8,)), (1, (1, 9)), (0, (1,))] + [(t, (b,)) for b in range(2, 8) for t in range(2)]
    free = [0, 1, 2, 3]; sb = {}; pfree = [0, 1, 2, 3]; pb = {}; vfree = [0, 1, 2, 3]; vb = {}
    nmc = lambda t: v(V_NM + 16 * t, 16)
    lastuse = {}
    for i, (t, bs) in enumerate(units):
        for b in bs: lastuse[b] = i
    def vloads(i):
        o = []
        for b in units[i][1]:
            if b not in vb: vb[b] = vfree.pop(0); o += vread(b, vb[b])
        return o
    ostarted = set()
    def m2(i):
        t, bs = units[i]; o = []; O_ = v(V_O + 16 * t, 16)
        for b, p_ in zip(bs, pb[i]):
            for s_ in range(2):
                c = O_ if t in ostarted else "0"; ostarted.add(t)
                o.append(mf(O_, a(A_V + 8*vb[b] + 4*s_, 4), v(V_P + 8*p_ + 4*s_, 4), c))
        return o
    def release2(i):
        for p_ in pb[i]: pfree.append(p_)
        for b in units[i][1]:
            if lastuse[b] == i: vfree.append(vb[b])
    k(vloads(0)); k(m1(0, nmc)); k("s_nop 11")
    for i in range(16):
        t, bs = units[i]; S_ = V_S + 16 * sb[i][0]
        side = []
        if i + 1 < 16: side += m1(i + 1, nmc)
        m2ops = m2(i - 1) if i >= 1 else []
        pb[i] = [pfree.pop(0) for _ in bs]
        P0 = V_P + 8 * pb[i][0]
        x = merge_ops(i) if len(bs) == 2 else []
        for n in range(8): x += [f"v_exp_f32 v{S_+2*n}, v{S_+2*n}", f"v_exp_f32 v{S_+2*n+1}, v{S_+2*n+1}"] + ([f"v_cvt_pk_bf16_f32 v{P0+n-1}, v{S_+2*n-2}, v{S_+2*n-1}"] if n else [])
        x += ["s_nop 0", f"v_cvt_pk_bf16_f32 v{P0+7}, v{S_+14}, v{S_+15}"]
        if len(bs) == 2:
            P1 = V_P + 8 * pb[i][1]
            for n in range(8): x.append(f"v_and_b32 v{P1+n}, v{P0+n}, v{V_MK+n}")
            for n in range(8): x.append(f"v_xor_b32 v{P0+n}, v{P0+n}, v{P1+n}")
        if i >= 1: release2(i - 1)
        sd = []
        if m2ops: sd.append("s_waitcnt lgkmcnt(0)")
        allm = []
        a_, b_ = list(m2ops), list(side)
        while a_ or b_:
            if b_: allm.append(b_.pop(0))
            if a_: allm.append(a_.pop(0))
        vl = vloads(i + 1) if i + 1 < 16 else []
        inter(k, x, sd + allm + vl, 1, 6)
        for s_ in sb[i]: free.append(s_)
    k("s_waitcnt lgkmcnt(0)", "s_nop 0")
    k(m2(15))
    stamp(k, 4)
    k("s_nop 7", "s_bitcmp1_b32 s20, 0", "s_cselect_b64 vcc, -1, 0")
    for t in range(2):
        O_ = V_O + 16 * t
        if t == 1: k("s_nop 3")
        k(f"v_rcp_f32 v{T+2*t}, v{O_+12}")
        k(f"v_cndmask_b32 v{O_+8}, v{O_+8}, v{O_+10}, vcc", f"v_cndmask_b32 v{O_+9}, v{O_+9}, v{O_+11}, vcc")
        for n in range(10): k(f"v_mul_f32 v{O_+n}, v{O_+n}, v{T+2*t}")
        for n in range(5): k(f"v_cvt_pk_bf16_f32 v{V_S+8*t+n}, v{O_+2*n}, v{O_+2*n+1}")
        k(f"buffer_store_dwordx4 {v(V_S+8*t,4)}, v{V_SO}, s[12:15], s88 offen offset:{512*t} {sc}")
        k(f"buffer_store_dword v{V_S+8*t+4}, v{V_ST}, s[12:15], s89 offen offset:{512*t} {sc}")
    if STAMP[0]:
        stamp(k, 5); k("s_waitcnt vmcnt(0)"); stamp(k, 6); stamp_out(k, "att")
    k.label("att_done")
    k("s_endpgm")
    return k
if __name__ == "__main__":
    k = gen_att()
    for e in check(k, TRIPS): print(e)
    print(len(k.L))
```

```python
from common import *
IMG = 0
LDS = TILE
V_WO = 1
V_XR1, V_HW, V_ST, V_XW, V_XL, V_C2 = 3, 6, 7, 8, 2, 4
V_XR0 = V_WO
V_PF = 11; V_JK = 12
def touch(): return [f"buffer_load_dword v{V_JK}, v{V_PF}, s[4:7], s49 offen ; WAWOK", f"s_add_u32 s49, s49, {TILE}"]
V_BF = 16; V_AC = 48; V_RG = 112; V_T = 184; V_HP = 192
V_X = 184; V_LT = 48
NB = 18
def BREG(n): return a(4*n, 4) if n < 64 else v(V_BF + 4*(n-64), 4)
C1 = -2.0 * 1.4426950408889634 * 0.7978845608028654
C2 = C1 * 0.044715
STAMP = 0; MAP = 1; WG = 1
LPOS = 3
def stamp(k, i, lvl=1):
    if STAMP == 3:
        if lvl == 1: k(f"s_memrealtime s[{60+2*i}:{61+2*i}]")
    elif STAMP == lvl or (STAMP and i == 0): k(f"s_memtime s[{60+2*i}:{61+2*i}]")
def wload(c):
    o = [f"buffer_load_dwordx4 {v(V_RG + 4*(c % NB), 4)}, v{V_WO}, s[4:7], s23 offen" + (f" offset:{(c%3)*1024}" if c % 3 else "")]
    if c % 3 == 2: o.append("s_add_u32 s23, s23, 0xc00")
    return o
def fread(n):
    return f"ds_read_b128 {BREG(n)}, v{V_XR1 if n >= 36 else V_XR0} offset:{(n % 36) * 1024}"
def gelu_ops(acc):
    o = []
    for tb in range(4):
        g = [acc + 4*tb + i for i in range(4)]
        u = [x + 16 for x in g]
        t = [V_T + 4*(tb & 1) + i for i in range(4)]
        for i in range(4): o.append(f"v_mul_f32 v{t[i]}, v{g[i]}, v{g[i]}")
        for i in range(4): o.append(f"v_fmaak_f32 v{t[i]}, v{t[i]}, v{V_C2}, {fl(C1)}")
        for i in range(4): o.append(f"v_mul_f32 v{t[i]}, v{t[i]}, v{g[i]}")
        for i in range(4):
            o.append(f"v_exp_f32 v{t[i]}, v{t[i]}")
            o.append(f"v_mul_f32 v{g[i]}, v{g[i]}, v{u[i]}")
        for i in range(4): o.append(f"v_add_f32 v{t[i]}, 1.0, v{t[i]}")
        for i in range(4): o.append(f"v_rcp_f32 v{t[i]}, v{t[i]}")
        for i in range(4): o.append(f"v_mul_f32 v{g[i]}, v{g[i]}, v{t[i]}")
        for i in range(2): o.append(f"v_cvt_pk_bf16_f32 v{V_HP + 2*tb + i}, v{g[2*i]}, v{g[2*i+1]}")
        o.append(f"ds_write_b64 v{V_HW}, {v(V_HP + 2*tb, 2)} offset:{1024*tb}")
    return o
def cost(x): return 2 if x.startswith(("v_exp", "v_rcp", "ds_write")) else 1
def place(fill, ops, g0, g1, cap3=0):
    gaps = list(range(g0, g1)); wts = [cap3 if g % 4 == LPOS else 2 for g in gaps]
    W = sum(wts); tot = sum(cost(x) for x in ops); c = 0; gi = 0; acc_w = wts[0]
    for x in ops:
        while (c + 0.5 * cost(x)) * W > acc_w * tot and gi < len(gaps) - 1:
            gi += 1; acc_w += wts[gi]
        fill[gaps[gi]].append(x); c += cost(x)
def waits(k, n, extra=lambda n: 0, base=None):
    if n % WG == 0:
        m = n + WG - 1
        k(f"s_waitcnt vmcnt({(NB - 1 - (WG - 1) + min(extra(i) for i in range(n, m + 1))) if base is None else base(m) + min(extra(i) for i in range(n, m + 1))})")

def groupA(k, par, last=False):
    acc = V_AC + 32 * par
    gl = gelu_ops(V_AC + 32 * (1 - par))
    gl += [f"v_add_u32 v{V_HW}, s28, v{V_HW}", "s_movk_i32 s28, 0x2000"]
    fill = [[] for _ in range(144)]
    place(fill, gl, 6, 142)
    if last:
        k("s_waitcnt lgkmcnt(0)", "s_barrier")
        for f in range(56):
            g = 4 * (2 * (f // 4) + 2) + (f % 4) * 2
            fill[g].append(fread(f))
            if f % 8 == 7: fill[g + 1].append("s_waitcnt lgkmcnt(4)")
    tch = TOUCH and par == 0
    if tch: fill[1] += touch()
    for n in range(36):
        rg = v(V_RG + 4 * (n % NB), 4); ks, m = n // 2, n % 2
        waits(k, n, (lambda i: 1 if 1 <= i <= 17 else 0) if tch else (lambda i: 0))
        for tb in range(4):
            d = v(acc + 16*m + 4*tb, 4)
            k(f"v_mfma_f32_16x16x32_bf16 {d}, {rg}, {BREG(4*ks+tb)}, {'0' if ks == 0 else d}")
            if tb == 3: k(wload(n))
            k(fill[4*n + tb])

def epiB_cvt(acc, O):
    return [f"v_cvt_pk_bf16_f32 v{O+2*tb+d}, v{acc+4*tb+2*d}, v{acc+4*tb+2*d+1}" for tb in range(4) for d in range(2)]
def epiB_swap(O):
    return [f"v_permlane16_swap_b32 v{O}, v{O+2}", f"v_permlane16_swap_b32 v{O+1}, v{O+3}",
            f"v_permlane16_swap_b32 v{O+4}, v{O+6}", f"v_permlane16_swap_b32 v{O+5}, v{O+7}"]
def epiB_store(O, sc):
    if sc == "none": return ["buffer_load_dword v255, v1, s[4:7], 0 offen ; WAWOK", "buffer_load_dword v255, v1, s[4:7], 0 offen ; WAWOK", "s_add_u32 s27, s27, 0x2000"]
    return [f"buffer_store_dwordx4 {v(O,4)}, v{V_ST}, s[16:19], s27 offen {sc}",
            f"buffer_store_dwordx4 {v(O+4,4)}, v{V_ST}, s[16:19], s27 offen offset:512 {sc}", "s_add_u32 s27, s27, 0x2000"]
def groupB(k, mode, sc, par):
    acc = V_AC + 32 + 16 * par; prev = V_AC + 32 + 16 * (1 - par); O = V_HP
    fill = [[] for _ in range(72)]
    if mode == "first":
        place(fill, gelu_ops(V_AC), 4, 44, 1)
        fill[44] += ["s_waitcnt lgkmcnt(0)", "s_barrier"]
        for i in range(16): fill[45 + i // 2].append(fread(56 + i))
        fill[55] += ["s_waitcnt lgkmcnt(0)"]
        k("s_waitcnt lgkmcnt(0)")
    else:
        place(fill, epiB_cvt(prev, O), 4, 10)
        place(fill, epiB_swap(O), 12, 15)
        st = epiB_store(O, sc)
        fill[17].append(st[0]); fill[21] += st[1:]
    ex = (lambda n: 0) if mode == "first" else (lambda n: 0 if n <= 4 else (1 if n == 5 else 2))
    for n in range(18):
        rg = v(V_RG + 4 * n, 4)
        waits(k, n, ex, (lambda m: 17 - m) if mode == "last" else None)
        for tb in range(4):
            d = v(acc + 4*tb, 4)
            k(f"v_mfma_f32_16x16x32_bf16 {d}, {rg}, {BREG(4*n+tb)}, {'0' if n == 0 else d}")
            if tb == 3 and mode != "last": k(wload(n))
            k(fill[4*n + tb])
    if mode == "last":
        k("s_nop 7")
        k(epiB_cvt(acc, O)); k("s_nop 1"); k(epiB_swap(O)); k(epiB_store(O, sc))

TRIPS = [{"ffn_loopA": 3, "ffn_loopB": 2}]
TOUCH = 0
def gen_ffn(sc="sc1", st=0, mp=2, late=8, wg=1, tch_=0):
    global STAMP, MAP, WG, TOUCH
    TOUCH = int(tch_)
    STAMP, MAP, late, WG = int(st), int(mp), int(late), int(wg)
    if sc == "plain": sc = ""
    k = Kern("ffn")
    k.label("ffn_body")
    stamp(k, 0)
    k("s_cmp_ge_u32 s2, 256", "s_cbranch_scc1 ffn_done")
    k(f"s_load_dwordx2 s[36:37], s[0:1], {A_WS*8}")
    k("v_lshrrev_b32 v1, 6, v0", "v_and_b32 v0, 63, v0", "v_readfirstlane_b32 s20, v1")
    if MAP == 1:
        k("s_and_b32 s22, s2, 7", "s_lshr_b32 s21, s2, 3", "s_mov_b32 s44, s21")
    else:
        lg = {2: 1, 4: 2}[MAP]
        k("s_and_b32 s45, s2, 7", "s_lshr_b32 s46, s2, 3")
        k(f"s_lshr_b32 s22, s45, {lg}", f"s_lshl_b32 s22, s22, {lg}", f"s_and_b32 s47, s46, {MAP-1}", "s_add_u32 s22, s22, s47")
        k(f"s_lshr_b32 s44, s46, {lg}", f"s_lshl_b32 s21, s44, {lg}", f"s_and_b32 s47, s45, {MAP-1}", "s_add_u32 s21, s21, s47")
    k("s_mov_b32 s29, 0x3f803f80")
    t0, t1, t2, t5, t6 = 64, 65, 66, 67, 68
    k(f"v_lshrrev_b32 v{t0}, 4, v0", f"v_and_b32 v{t1}, 15, v0", "s_lshl_b32 s38, s20, 8")
    k(f"v_lshlrev_b32 v{t2}, 10, v{t0}", f"v_lshl_add_u32 v{t2}, v{t1}, 4, v{t2}", f"v_add_u32 v{V_XL}, s38, v{t2}")
    k(f"s_mul_i32 s39, s21, {TILE}", "s_add_u32 s39, s39, s3", f"s_add_u32 s39, s39, {hx(WS_X1)}")
    k("s_lshl_b32 s24, s22, 2", "s_add_u32 s24, s24, s20", f"s_mul_i32 s24, s24, {WFR*1024}", f"s_add_u32 s24, s24, {hx(WS_W)}")
    k(f"v_lshlrev_b32 v{V_WO}, 4, v0")
    srd_fill(k, 12, TILE); srd_fill(k, 4, WFR * 1024)
    k("s_mov_b32 s40, 0", "s_mov_b32 s23, 0")
    k("s_waitcnt lgkmcnt(0)")
    stamp(k, 1, 2)
    k("s_add_u32 s12, s36, s39", "s_addc_u32 s13, s37, 0")
    for i in range(18):
        k(f"buffer_load_dwordx4 {v(V_X+4*i,4)}, v{V_XL}, s[12:15], s40 offen")
        if i < 17: k("s_add_u32 s40, s40, 0x1000")
    k("s_add_u32 s4, s36, s24", "s_addc_u32 s5, s37, 0")
    if late < 0:
        for c in range(NB): k(wload(c))
    k("s_lshl_b32 s41, s22, 5", "s_add_u32 s41, s41, s21", f"s_mul_i32 s41, s41, {TILE}", "s_add_u32 s41, s41, s3", f"s_add_u32 s41, s41, {hx(WS_P)}")
    k("s_add_u32 s16, s36, s41", "s_addc_u32 s17, s37, 0")
    srd_fill(k, 16, TILE)
    k("s_mov_b32 s27, 0")
    k(f"v_and_b32 v{t6}, 1, v{t0}", f"v_lshrrev_b32 v{t5}, 1, v{t0}")
    k(f"v_add_u32 v{V_XR1}, 36864, v{V_XR0}")
    k("s_lshr_b32 s41, s20, 1", "s_lshl_b32 s41, s41, 12", "s_and_b32 s42, s20, 1", "s_lshl_b32 s42, s42, 3", "s_add_u32 s41, s41, s42", f"s_add_u32 s41, s41, {8*8192}")
    k(f"v_add_u32 v{V_HW}, s41, v{V_XR0}")
    k(f"s_mov_b32 s28, {hx(-8*8192)}")
    k("s_lshl_b32 s41, s20, 10", f"v_add_u32 v{V_XW}, s41, v{V_XR0}")
    k(f"v_lshlrev_b32 v{V_ST}, 10, v{t5}", f"v_lshl_add_u32 v{V_ST}, v{t6}, 8, v{V_ST}", f"v_lshl_add_u32 v{V_ST}, v{t1}, 4, v{V_ST}")
    k("s_lshl_b32 s41, s20, 11", f"v_add_u32 v{V_ST}, s41, v{V_ST}")
    k(f"v_mov_b32 v{V_C2}, {fl(C2)}")
    if TOUCH:
        k(f"s_mul_i32 s41, s44, {18*MAP}", f"v_add_u32 v{V_PF}, s41, v0", f"v_lshlrev_b32 v{V_PF}, 7, v{V_PF}")
        k(f"v_cmp_gt_u32 vcc, {18*MAP}, v0", f"v_mov_b32 v{V_JK}, 0x80000000", "s_mov_b32 s49, 0", f"v_cndmask_b32 v{V_PF}, v{V_JK}, v{V_PF}, vcc")
    ln_stats_norm(k, V_X, V_LT, 29)
    stamp(k, 2, 2)
    for i in range(18):
        k(f"s_waitcnt vmcnt({17 - i + (NB + (2 if TOUCH else 0) if i > late else 0)})")
        if i == 0: stamp(k, 3, 2)
        k(ln_acc(V_X, V_LT, 29, i))
        if i == late:
            if TOUCH: k(touch(), touch())
            for c in range(NB): k(wload(c))
    stamp(k, 4, 2)
    ln_finish(k, V_LT)
    for i in range(18):
        k(ln_apply(V_X, V_LT, i))
        off = i * 4096
        if off < 65536: k(f"ds_write_b128 v{V_XW}, {v(V_X+4*i,4)} offset:{off}")
        else:
            if i == 16: k(f"v_add_u32 v{V_XW}, 0x10000, v{V_XW}")
            k(f"ds_write_b128 v{V_XW}, {v(V_X+4*i,4)} offset:{off - 65536}")
    stamp(k, 5, 2)
    k("s_waitcnt lgkmcnt(0)", "s_barrier")
    for n in range(72):
        k(fread(n))
        if n % 8 == 7 and n < 64: k("s_waitcnt lgkmcnt(6)")
    k("s_waitcnt lgkmcnt(0)", "s_barrier")
    stamp(k, 1); stamp(k, 6, 2)
    k("s_mov_b32 s25, 4")
    k.label("ffn_loopA")
    groupA(k, 0); groupA(k, 1)
    k("s_sub_u32 s25, s25, 1", "s_cmp_lg_u32 s25, 0", "s_cbranch_scc1 ffn_loopA")
    stamp(k, 2)
    groupA(k, 0, last=True)
    stamp(k, 3)
    groupB(k, "first", sc, 0)
    groupB(k, "mid", sc, 1)
    stamp(k, 4)
    k("s_mov_b32 s25, 3")
    k.label("ffn_loopB")
    groupB(k, "mid", sc, 0); groupB(k, "mid", sc, 1)
    k("s_sub_u32 s25, s25, 1", "s_cmp_lg_u32 s25, 0", "s_cbranch_scc1 ffn_loopB")
    groupB(k, "last", sc, 0)
    if STAMP:
        stamp(k, 5)
        k("s_waitcnt vmcnt(0)")
        stamp(k, 6)
        k(f"s_load_dwordx2 s[44:45], s[0:1], {A_DBG*8}", "s_waitcnt lgkmcnt(0)")
        srd_fill(k, 44, 256)
        k("s_cmp_lg_u32 s20, 0", "s_cbranch_scc1 ffn_done", "s_cmp_ge_u32 s2, 4", "s_cbranch_scc1 ffn_done")
        k("s_lshl_b32 s48, s2, 6", "v_mov_b32 v2, s48")
        for i in range(7):
            k(f"s_sub_u32 s50, s{60+2*i}, s60", "v_mov_b32 v4, s50", "v_mov_b32 v5, 0", f"buffer_store_dwordx2 v[4:5], v2, s[44:47], 0 offen offset:{8*i}")
    k.label("ffn_done")
    k("s_endpgm")
    return k
if __name__ == "__main__":
    for wg in (1, 2, 3):
        k = gen_ffn(wg=wg)
        for e in check(k, TRIPS): print(e)
        print(len(k.L), "lines")
```

```python
from common import *
LDS = 65536
NV = 40
TRIPS = [{"prep_isB": 0, "prep_ldA": 7, "prep_stA": 7}, {"prep_isB": 1, "prep_ldB": 15, "prep_stB": 15}]
def gen_prep():
    k = Kern("prep")
    k.label("prep_body")
    k("s_cmp_ge_u32 s2, 256", "s_cbranch_scc1 prep_done")
    k(f"s_load_dwordx4 s[32:35], s[0:1], {A_WG*8}", f"s_load_dwordx2 s[8:9], s[0:1], {A_WD*8}", f"s_load_dwordx2 s[36:37], s[0:1], {A_WS*8}")
    k("v_lshrrev_b32 v1, 6, v0", "v_and_b32 v0, 63, v0", "v_readfirstlane_b32 s20, v1")
    k("s_and_b32 s22, s2, 7", "s_lshr_b32 s21, s2, 3")
    k("v_lshrrev_b32 v2, 4, v0", "v_and_b32 v3, 15, v0", "v_lshrrev_b32 v4, 3, v0", "v_and_b32 v5, 7, v0")
    k("v_lshrrev_b32 v6, 2, v3", "v_and_b32 v7, 3, v0", "v_and_b32 v8, 1, v2")
    k("v_lshrrev_b32 v10, 1, v6", "v_lshl_add_u32 v10, v8, 1, v10", "v_xor_b32 v10, s20, v10")
    k("v_lshlrev_b32 v10, 5, v10", "v_lshl_add_u32 v10, v7, 3, v10", "v_lshl_add_u32 v10, v6, 7, v10")
    k("v_lshlrev_b32 v13, 4, v0")
    k("s_lshl_b32 s25, s20, 3", "v_add_u32 v15, s25, v4")
    k("s_lshl_b32 s24, s22, 2", "s_add_u32 s24, s24, s20", f"s_mul_i32 s24, s24, {WFR*1024}", f"s_add_u32 s24, s24, {hx(WS_W)}")
    k("s_lshl_b32 s43, s20, 10")
    k("s_waitcnt lgkmcnt(0)")
    k("s_add_u32 s12, s36, s24", "s_addc_u32 s13, s37, 0"); srd_fill(k, 12, WFR * 1024)
    k("s_cmp_ge_u32 s21, 21", "s_cbranch_scc1 prep_isB")
    k("s_mov_b32 s4, s32", "s_mov_b32 s5, s33", "s_mov_b32 s8, s34", "s_mov_b32 s9, s35")
    srd_fill(k, 4, D * F * 2); srd_fill(k, 8, D * F * 2)
    k("s_and_b32 s25, s20, 1", "s_lshl_b32 s25, s25, 1", "v_add_u32 v11, s25, v8", "v_lshlrev_b32 v11, 1, v11", "v_xor_b32 v11, v11, v5", "v_lshlrev_b32 v11, 4, v11")
    k("v_mul_u32_u24 v12, 9216, v15", "v_add_u32 v11, v11, v12")
    k("v_lshl_add_u32 v12, v2, 10, v10")
    k("s_lshl_b32 s26, s21, 3", "s_sub_u32 s27, 162, s26", "s_min_u32 s27, s27, 8")
    k("s_mul_i32 s28, s26, 3641", "s_lshr_b32 s28, s28, 16", "s_mul_i32 s29, s28, 18", "s_sub_u32 s29, s26, s29")
    k("s_lshl_b32 s30, s28, 7", "s_mul_i32 s31, s22, 1152", "s_add_u32 s30, s30, s31", f"s_mul_i32 s31, s29, {32*9216}", "s_add_u32 s30, s30, s31")
    k("s_mov_b32 s44, s27")
    k.label("prep_ldA")
    k("s_mov_b32 m0, s43", "s_add_u32 s43, s43, 4096")
    k("buffer_load_dwordx4 v11, s[4:7], s30 offen lds")
    k("s_mov_b32 m0, s43", "s_add_u32 s43, s43, 4096")
    k("buffer_load_dwordx4 v11, s[8:11], s30 offen lds")
    k(f"s_add_u32 s30, s30, {32*9216}", "s_add_u32 s29, s29, 1", "s_cmp_eq_u32 s29, 18", f"s_cselect_b32 s45, {hx(128 - 18*32*9216)}, 0", "s_cselect_b32 s29, 0, s29", "s_add_u32 s30, s30, s45")
    k("s_sub_u32 s44, s44, 1", "s_cmp_lg_u32 s44, 0", "s_cbranch_scc1 prep_ldA")
    k("s_lshl_b32 s46, s26, 11")
    k("s_waitcnt vmcnt(0)", "s_barrier")
    k.label("prep_stA")
    k("ds_read_b64_tr_b16 v[16:17], v12", "ds_read_b64_tr_b16 v[18:19], v12 offset:512")
    k("ds_read_b64_tr_b16 v[20:21], v12 offset:4096", "ds_read_b64_tr_b16 v[22:23], v12 offset:4608")
    k("v_add_u32 v12, 8192, v12")
    k("s_waitcnt lgkmcnt(2)")
    k("buffer_store_dwordx4 v[16:19], v13, s[12:15], s46 offen sc1")
    k("s_waitcnt lgkmcnt(0)")
    k("buffer_store_dwordx4 v[20:23], v13, s[12:15], s46 offen offset:1024 sc1")
    k("s_add_u32 s46, s46, 2048", "s_sub_u32 s27, s27, 1", "s_cmp_lg_u32 s27, 0", "s_cbranch_scc1 prep_stA")
    k("s_endpgm")
    k.label("prep_isB")
    srd_fill(k, 8, D * F * 2)
    k("v_lshlrev_b32 v11, 1, v2", "v_xor_b32 v11, v11, v5", "v_lshlrev_b32 v11, 4, v11")
    k("v_mul_u32_u24 v12, 1152, v15", "v_add_u32 v11, v11, v12")
    k("v_lshl_add_u32 v12, v2, 9, v10")
    k("s_sub_u32 s26, s21, 21", "s_lshl_b32 s26, s26, 4", "s_sub_u32 s27, 162, s26", "s_min_u32 s27, s27, 16")
    k("s_mul_i32 s28, s26, 3641", "s_lshr_b32 s28, s28, 16", "s_mul_i32 s29, s28, 18", "s_sub_u32 s29, s26, s29")
    k("s_lshl_b32 s30, s28, 7", f"s_mul_i32 s31, s22, {576*1152}", "s_add_u32 s30, s30, s31", f"s_mul_i32 s31, s29, {32*1152}", "s_add_u32 s30, s30, s31")
    k("s_mov_b32 s44, s27")
    k.label("prep_ldB")
    k("s_mov_b32 m0, s43", "s_add_u32 s43, s43, 4096")
    k("buffer_load_dwordx4 v11, s[8:11], s30 offen lds")
    k(f"s_add_u32 s30, s30, {32*1152}", "s_add_u32 s29, s29, 1", "s_cmp_eq_u32 s29, 18", f"s_cselect_b32 s45, {hx(128 - 18*32*1152)}, 0", "s_cselect_b32 s29, 0, s29", "s_add_u32 s30, s30, s45")
    k("s_sub_u32 s44, s44, 1", "s_cmp_lg_u32 s44, 0", "s_cbranch_scc1 prep_ldB")
    k("s_add_u32 s46, s26, 324", "s_lshl_b32 s46, s46, 10")
    k("s_waitcnt vmcnt(0)", "s_barrier")
    k.label("prep_stB")
    k("ds_read_b64_tr_b16 v[16:17], v12", "ds_read_b64_tr_b16 v[18:19], v12 offset:2048")
    k("v_add_u32 v12, 4096, v12")
    k("s_waitcnt lgkmcnt(0)")
    k("buffer_store_dwordx4 v[16:19], v13, s[12:15], s46 offen sc1")
    k("s_add_u32 s46, s46, 1024", "s_sub_u32 s27, s27, 1", "s_cmp_lg_u32 s27, 0", "s_cbranch_scc1 prep_stB")
    k.label("prep_done")
    k("s_endpgm")
    return k
if __name__ == "__main__":
    k = gen_prep()
    for e in check(k, TRIPS): print(e)
    for u in range(0,176,8): assert (u*3641)>>16 == u//18
```

```python
from common import *
NS = 8; SLOT = 17920
LDS = NS * SLOT
V_TR = 1
V_TT = 4
V_DM = 7
V_XL = 11
V_SQ, V_SV, V_S8, V_STL, V_TS = 12, 13, 14, 15, 16
V_LT = 18
V_AC = 36
V_X = 92
NV = 164; NA = 112
TRIPS = [{}]
UNIT = [0, 1, 2, 3, 4, 5, 6, 7, None, 10, 11, 12, 13, 14]
def dma(step):
    sl = step % NS
    o = [[f"s_add_u32 m0, s26, {sl*SLOT}", "s_nop 0", f"buffer_load_dwordx4 v{V_DM}, s[4:7], s23 offen lds"]]
    for i in range(1, 4): o.append([f"buffer_load_dwordx4 v{V_DM+i}, s[4:7], s23 offen offset:{1088*i} lds"])
    o[3].append(f"s_add_u32 s23, s23, {32*3456}")
    return o
def trreads(step):
    sl = step % NS; win = sl // 3; base = (sl % 3) * SLOT; o = []
    for ht in range(14):
        for e in range(2):
            d = a(56 * (step & 1) + 4 * ht + 2 * e, 2)
            if UNIT[ht] is None: o.append(f"ds_read_b64_tr_b16 {d}, v{V_TT+win} offset:{base + e*2176}")
            else: o.append(f"ds_read_b64_tr_b16 {d}, v{V_TR+win} offset:{base + e*2176 + 32*UNIT[ht]}")
    return o
def gen_qkv(sc=""):
    k = Kern("qkv")
    k.label("qkv_body")
    stamp(k, 0)
    k("s_cmp_ge_u32 s2, 256", "s_cbranch_scc1 qkv_done")
    k(f"s_load_dwordx4 s[32:35], s[0:1], {A_X*8}", f"s_load_dwordx2 s[36:37], s[0:1], {A_WS*8}")
    k("v_lshrrev_b32 v1, 6, v0", "v_and_b32 v0, 63, v0", "v_readfirstlane_b32 s20, v1")
    k("s_and_b32 s22, s2, 7", "s_lshr_b32 s21, s2, 3", "s_mov_b32 s29, 0x3f803f80")
    q4, tk, t2, t3, t4, t5, t6, t7 = range(40, 48)
    k(f"v_lshrrev_b32 v{q4}, 4, v0", f"v_and_b32 v{tk}, 15, v0", "s_lshl_b32 s38, s20, 4", f"v_add_u32 v{t2}, s38, v{tk}")
    k(f"v_mul_u32_u24 v{t3}, 1152, v{t2}", f"v_lshl_add_u32 v{t3}, v{q4}, 4, v{t3}")
    k(f"v_lshlrev_b32 v{t4}, 10, v{q4}", f"v_lshl_add_u32 v{t4}, v{t2}, 4, v{t4}")
    k("s_cmp_eq_u32 s4, 0", "s_cselect_b64 vcc, -1, 0", "s_cselect_b32 s41, 64, 0x1000", f"v_cndmask_b32 v{V_XL}, v{t4}, v{t3}, vcc")
    k(f"s_mul_i32 s39, s21, {TILE}", "s_mov_b32 s40, 0")
    srd_fill(k, 12, TILE)
    k("s_waitcnt lgkmcnt(0)")
    k(f"s_add_u32 s42, s36, {hx(WS_X2)}", "s_addc_u32 s43, s37, 0", "s_cmp_eq_u32 s4, 0", "s_cselect_b32 s12, s32, s42", "s_cselect_b32 s13, s33, s43")
    k("s_add_u32 s12, s12, s39", "s_addc_u32 s13, s13, 0")
    for i in range(18):
        k(f"buffer_load_dwordx4 {v(V_X+4*i,4)}, v{V_XL}, s[12:15], s40 offen")
        if i < 17: k("s_add_u32 s40, s40, s41")
    stamp(k, 1)
    k("s_mov_b32 s4, s34", "s_mov_b32 s5, s35"); srd_fill(k, 4, D * 3 * D * 2)
    hi, c, u, h, col, tmp = t3, t4, t5, t6, t7, 48
    k(f"v_lshrrev_b32 v{hi}, 5, v0", f"v_and_b32 v{c}, 31, v0", f"v_lshlrev_b32 v{tmp}, 1, v{hi}", f"v_sub_u32 v{c}, v{c}, v{tmp}")
    k(f"v_lshrrev_b32 v{u}, 1, v{c}", f"v_and_b32 v{h}, 1, v{c}")
    k(f"v_and_b32 v{col}, 3, v{u}", f"v_mul_u32_u24 v{col}, 36, v{col}", f"v_and_b32 v{tmp}, 1, v{u}", f"v_lshl_add_u32 v{col}, v{tmp}, 2, v{col}", f"v_lshl_add_u32 v{col}, v{h}, 4, v{col}")
    k(f"v_lshrrev_b32 v{tmp}, 2, v{u}", f"v_mul_u32_u24 v{tmp}, 1152, v{tmp}", f"v_add_u32 v{col}, v{col}, v{tmp}")
    k(f"v_subrev_u32 v{tmp}, 8, v{u}", f"v_mul_u32_u24 v{tmp}, 1152, v{tmp}", f"v_mul_u32_u24 v49, 72, v{h}", f"v_add3_u32 v{tmp}, v{tmp}, v49, 32")
    k(f"v_cmp_lt_u32 vcc, 7, v{u}", "s_nop 1", f"v_cndmask_b32 v{col}, v{col}, v{tmp}, vcc")
    k(f"v_lshlrev_b32 v{tmp}, 4, v{c}", f"v_add_u32 v{tmp}, {2304 - 320}, v{tmp}")
    k(f"v_cmp_lt_u32 vcc, 9, v{u}", "s_nop 1", f"v_cndmask_b32 v{col}, v{col}, v{tmp}, vcc")
    k(f"v_mul_u32_u24 v{tmp}, 3456, v{hi}", f"s_mul_i32 s42, s20, {8*3456}", f"v_add3_u32 v{col}, v{col}, v{tmp}, s42")
    k(f"v_mov_b32 v{tmp}, 0x80000000", f"v_cmp_gt_u32 vcc, 29, v{c}", "s_nop 1", f"v_cndmask_b32 v{V_DM}, v{tmp}, v{col}, vcc")
    for i in range(1, 4): k(f"v_add_u32 v{V_DM+i}, {i*(6912-1088)}, v{V_DM}")
    k("s_mul_i32 s23, s22, 144", "s_mul_i32 s26, s20, 4480")
    k(f"v_lshrrev_b32 v{t3}, 2, v{tk}", f"v_and_b32 v{t4}, 3, v0")
    k(f"v_mul_u32_u24 v{V_TR}, 4480, v{q4}", f"v_mul_u32_u24 v{t3}, 544, v{t3}", f"v_add_u32 v{V_TR}, v{V_TR}, v{t3}", f"v_lshl_add_u32 v{V_TR}, v{t4}, 3, v{V_TR}")
    k(f"v_lshl_add_u32 v{V_TT}, v{t4}, 3, v{V_TR}", f"v_add_u32 v{V_TT}, 256, v{V_TT}")
    for w_ in (1, 2): k(f"v_add_u32 v{V_TR+w_}, {3*SLOT*w_}, v{V_TR}", f"v_add_u32 v{V_TT+w_}, {3*SLOT*w_}, v{V_TT}")
    k(f"s_mul_i32 s42, s2, {KVB}", "s_add_u32 s42, s42, s3", "s_add_u32 s16, s36, s42", "s_addc_u32 s17, s37, 0")
    srd_fill(k, 16, KVB)
    r1, r2 = t3, t4
    k(f"v_and_b32 v{r1}, 1, v{q4}", f"v_lshrrev_b32 v{r2}, 1, v{q4}")
    k(f"v_and_b32 v{t5}, 31, v{t2}", f"v_lshlrev_b32 v{V_SQ}, 4, v{t5}", f"v_lshl_add_u32 v{V_SQ}, v{r2}, 9, v{V_SQ}", f"v_lshl_add_u32 v{V_SQ}, v{r1}, 11, v{V_SQ}")
    k("s_lshr_b32 s42, s20, 1", "s_lshl_b32 s42, s42, 10", f"v_add_u32 v{V_SQ}, s42, v{V_SQ}")
    k(f"v_lshl_add_u32 v{t5}, v{r1}, 1, v{r2}", f"v_lshlrev_b32 v{t6}, 2, v{t5}", f"v_xor_b32 v{t6}, v{t6}, v{t2}", f"v_lshlrev_b32 v{t6}, 4, v{t6}", f"v_lshl_add_u32 v{V_SV}, v{t5}, 10, v{t6}")
    k(f"v_add_u32 v{V_SV}, {KV_V}, v{V_SV}")
    k(f"v_lshlrev_b32 v{t5}, 4, v{t2}", f"v_lshl_add_u32 v{t5}, v{q4}, 3, v{t5}", f"v_add_u32 v{t5}, {KV_V + 8192}, v{t5}")
    k(f"v_mov_b32 v{t6}, 0x80000000", f"v_cmp_gt_u32 vcc, 2, v{q4}", f"v_mov_b32 v{t7}, {fl(QSCALE)}", "s_nop 0", f"v_cndmask_b32 v{V_S8}, v{t6}, v{t5}, vcc", f"v_cndmask_b32 v{V_TS}, 1.0, v{t7}, vcc")
    k(f"v_lshlrev_b32 v{t5}, 9, v{q4}", f"v_lshl_add_u32 v{t5}, v{t2}, 3, v{t5}", f"v_add_u32 v{V_STL}, {KV_QT}, v{t5}")
    k(f"s_mov_b32 s28, {fl(QSCALE)}")
    ln_stats_norm(k, V_X, V_LT, 29)
    dm = [g for st in range(NS) for g in dma(st)]
    di = 0
    stamp(k, 2)
    for i in range(18):
        k(f"s_waitcnt vmcnt({17 - i + di})")
        k(ln_acc(V_X, V_LT, 29, i))
        if i >= 6: k(dm[di]); di += 1
    stamp(k, 3)
    ln_finish(k, V_LT)
    for i in range(18):
        ops = ln_apply(V_X, V_LT, i)
        k(ops[:8])
        if di < len(dm): k(dm[di]); di += 1
        k(ops[8:])
        if di < len(dm) and i % 8 == 0: k(dm[di]); di += 1
    while di < len(dm): k(dm[di]); di += 1
    stamp(k, 4)
    k(f"s_waitcnt vmcnt({4*(NS-1)}) lgkmcnt(0)", "s_barrier")
    tr = trreads(0)
    k(tr[:14], "s_waitcnt lgkmcnt(6)", tr[14:])
    for st in range(18):
        if st < 17:
            k(f"s_waitcnt vmcnt({4 * max(0, min(17, st + NS - 1) - (st + 1))}) lgkmcnt(0)", "s_barrier")
        else: k("s_waitcnt lgkmcnt(0)")
        tr = trreads(st + 1) if st < 17 else []
        d = dma(st + NS) if st + NS <= 17 else []
        for ht in range(14):
            ac = v(V_AC + 4 * ht, 4)
            k(f"v_mfma_f32_16x16x32_bf16 {ac}, {a(56*(st&1) + 4*ht, 4)}, {v(V_X+4*st,4)}, {'0' if st == 0 else ac}")
            k(tr[2*ht: 2*ht+2])
            if ht == 6 and tr: k("s_waitcnt lgkmcnt(6)")
            if d and ht % 3 == 1 and ht // 3 < 4: k(d[ht // 3])
    stamp(k, 5)
    k("s_nop 3")
    for ht in range(4):
        for i in range(4): k(f"v_mul_f32 v{V_AC+4*ht+i}, s28, v{V_AC+4*ht+i}")
    P = V_X
    for ht in range(14):
        if ht == 8:
            for i in range(4): k(f"v_mul_f32 v{V_AC+32+i}, v{V_TS}, v{V_AC+32+i}")
    order = [0, 1, 2, 3, 4, 5, 6, 7, 9, 10, 11, 12, 13, 8]
    for n, ht in enumerate(order):
        for d_ in range(2): k(f"v_cvt_pk_bf16_f32 v{P+2*n+d_}, v{V_AC+4*ht+2*d_}, v{V_AC+4*ht+2*d_+1}")
    for pr in range(6):
        for d_ in range(2): k(f"v_permlane16_swap_b32 v{P+4*pr+d_}, v{P+4*pr+2+d_}")
    k(f"buffer_store_dwordx4 {v(P+8,4)}, v{V_SQ}, s[16:19], s30 offen {sc}".replace("s30", "s51"))
    k.L.insert(len(k.L) - 1, f"s_mov_b32 s51, {KV_KM}"); k.L.insert(len(k.L) - 1, f"s_mov_b32 s52, {KV_KM + 4096}"); k.L.insert(len(k.L) - 1, "s_movk_i32 s53, 0x1000")
    k(f"buffer_store_dwordx4 {v(P+12,4)}, v{V_SQ}, s[16:19], s52 offen {sc}")
    k(f"buffer_store_dwordx4 {v(P+16,4)}, v{V_SV}, s[16:19], 0 offen {sc}")
    k(f"buffer_store_dwordx4 {v(P+20,4)}, v{V_SV}, s[16:19], s53 offen {sc}")
    k(f"buffer_store_dwordx2 {v(P+24,2)}, v{V_S8}, s[16:19], 0 offen {sc}")
    k(f"buffer_store_dwordx2 {v(P+26,2)}, v{V_STL}, s[16:19], 0 offen {sc}")
    k(f"buffer_store_dwordx4 {v(P,4)}, v{V_SQ}, s[16:19], 0 offen {sc}")
    k(f"buffer_store_dwordx4 {v(P+4,4)}, v{V_SQ}, s[16:19], s53 offen {sc}")
    if STAMP[0]:
        k("s_waitcnt vmcnt(0)"); stamp(k, 6); stamp_out(k, "qkv")
    k.label("qkv_done")
    k("s_endpgm")
    return k
if __name__ == "__main__":
    k = gen_qkv()
    for e in check(k, TRIPS): print(e)
    print(len(k.L))
```

```python
from common import *
def gen_red():
    k = Kern("red")
    k.label("red_body")
    k("s_cmp_ge_u32 s2, 256", "s_cbranch_scc1 red_done")
    k(f"s_load_dwordx2 s[36:37], s[0:1], {A_WS*8}", f"s_load_dwordx2 s[38:39], s[0:1], {A_OUT*8}")
    k("s_lshr_b32 s21, s2, 3", "s_and_b32 s22, s2, 7")
    k("v_lshrrev_b32 v1, 3, v0", "v_and_b32 v2, 7, v0", "s_lshl_b32 s23, s22, 3", "v_add_u32 v2, s23, v2")
    k("v_lshlrev_b32 v3, 10, v1", "v_lshl_add_u32 v3, v2, 4, v3")
    k(f"s_mul_i32 s24, s21, {TILE}", "s_add_u32 s24, s24, s3")
    k("s_waitcnt lgkmcnt(0)")
    k("s_add_u32 s8, s36, s24", "s_addc_u32 s9, s37, 0")
    srd_fill(k, 8, LSTR - 31 * TILE)
    k(f"s_mov_b32 s25, {hx(WS_P)}")
    for j in range(8):
        k(f"buffer_load_dwordx4 {v(8+4*j,4)}, v3, s[8:11], s25 offen")
        if j < 7: k(f"s_add_u32 s25, s25, {hx(ACT)}")
    k(f"s_mov_b32 s25, {hx(WS_X1)}")
    k(f"buffer_load_dwordx4 {v(40,4)}, v3, s[8:11], s25 offen")
    k(f"s_add_u32 s12, s8, {hx(WS_X2)}", "s_addc_u32 s13, s9, 0", f"s_mov_b32 s14, {TILE}")
    k(f"s_mul_i32 s26, s21, {64*1152}", "s_add_u32 s40, s38, s26", "s_addc_u32 s41, s39, 0")
    k("s_cmp_eq_u32 s4, 1", "s_cselect_b32 s12, s40, s12", "s_cselect_b32 s13, s41, s13", "s_mov_b32 s15, 0x00020000")
    k("v_mul_u32_u24 v4, 1152, v2", "v_lshl_add_u32 v4, v1, 4, v4")
    k("s_cselect_b64 vcc, -1, 0", "v_cndmask_b32 v4, v3, v4, vcc")
    k("s_mov_b32 s30, 0x00003f80", "s_mov_b32 s31, 0x3f800000")
    for i in range(8): k(f"v_mov_b32 v{44+i}, 0")
    for j in range(9):
        k(f"s_waitcnt vmcnt({8-j})")
        for d in range(4):
            k(f"v_dot2c_f32_bf16 v{44+2*d}, s30, v{8+4*j+d}", f"v_dot2c_f32_bf16 v{45+2*d}, s31, v{8+4*j+d}")
    k("s_nop 2")
    for d in range(4): k(f"v_cvt_pk_bf16_f32 v{8+d}, v{44+2*d}, v{45+2*d}")
    k("buffer_store_dwordx4 v[8:11], v4, s[12:15], 0 offen")
    k.label("red_done")
    k("s_endpgm")
    return k
if __name__ == "__main__":
    k = gen_red()
    for e in check(k): print(e)
```

```python
from common import *
LDS = 576 * 160
TRIPS = [{"wo_notail": 0}, {"wo_notail": 1}]
V_XL, V_TR0, V_TR1, V_RL, V_SP, V_S8 = 1, 2, 3, 4, 5, 6
V_DM = 8
V_T = 20
V_AC = 36
V_R = 56
V_AF = 68
V_B = 108
NV = 180
def trreads(ks):
    ar = V_TR1 if ks >= 12 else V_TR0; base = ks * 5120 - (61440 if ks >= 12 else 0)
    return [f"ds_read_b64_tr_b16 {v(V_AF + 20*(ks&1) + 4*ht + 2*e, 2)}, v{ar} offset:{base + e*1280 + ht*32}" for ht in range(5) for e in range(2)]
def dmagrp(vb, sm0, soff):
    return [f"s_mov_b32 m0, s{sm0}", "s_nop 0",
            f"buffer_load_dwordx4 v{vb}, s[4:7], s{soff} offen lds", f"buffer_load_dwordx4 v{vb+1}, s[4:7], s{soff} offen offset:1024 lds",
            f"buffer_load_dwordx4 v{vb+2}, s[4:7], s{soff} offen offset:2048 lds",
            f"s_add_u32 m0, s{sm0}, 3072", "s_nop 0",
            f"buffer_load_dwordx4 v{vb+3}, s[4:7], s{soff} offen lds", f"buffer_load_dwordx4 v{vb+4}, s[4:7], s{soff} offen offset:1024 lds"]
def gen_wo(sc=""):
    k = Kern("wo")
    k.label("wo_body")
    stamp(k, 0)
    k("s_cmp_ge_u32 s2, 256", "s_cbranch_scc1 wo_done")
    k(f"s_load_dwordx2 s[32:33], s[0:1], {A_X*8}", f"s_load_dwordx2 s[34:35], s[0:1], {A_WO*8}", f"s_load_dwordx2 s[36:37], s[0:1], {A_WS*8}")
    k("v_lshrrev_b32 v1, 6, v0", "v_and_b32 v0, 63, v0", "v_readfirstlane_b32 s20, v1")
    k("s_and_b32 s22, s2, 7", "s_lshr_b32 s21, s2, 3")
    T = V_T; q4, tk, tok = T, T+1, T+2
    k(f"v_lshrrev_b32 v{q4}, 4, v0", f"v_and_b32 v{tk}, 15, v0", "s_lshl_b32 s38, s20, 4", f"v_add_u32 v{tok}, s38, v{tk}")
    k(f"v_lshlrev_b32 v{V_XL}, 10, v{q4}", f"v_lshl_add_u32 v{V_XL}, v{tok}, 4, v{V_XL}")
    n, lam, c, t1, t2 = T+3, T+4, T+5, T+6, T+7
    k(f"v_mov_b32 v{T+8}, 0x80000000", "s_movk_i32 s40, 6554")
    for i in range(5):
        imm = (0, 1024, 2048, 0, 1024)[i]
        k(f"v_add_u32 v{n}, {64*i}, v0", f"v_mul_u32_u24 v{lam}, s40, v{n}", f"v_lshrrev_b32 v{lam}, 16, v{lam}", f"v_mul_u32_u24 v{c}, 10, v{lam}", f"v_sub_u32 v{c}, v{n}, v{c}")
        k(f"v_cmp_gt_u32 vcc, 9, v{c}", f"v_lshlrev_b32 v{c}, 4, v{c}", f"v_subrev_u32 v{c}, {imm}, v{c}")
        k(f"v_lshrrev_b32 v{t1}, 4, v{lam}", f"v_lshl_add_u32 v{t1}, v{t1}, 2, v{lam}", f"v_mul_u32_u24 v{t1}, 1152, v{t1}", f"v_add_u32 v{t1}, v{t1}, v{c}", f"v_cndmask_b32 v{V_DM+i}, v{T+8}, v{t1}, vcc")
        k(f"v_lshrrev_b32 v{t1}, 4, v{lam}", f"v_bfe_u32 v{t2}, v{lam}, 2, 1", f"v_lshl_add_u32 v{t1}, v{t1}, 1, v{t2}", f"v_mul_u32_u24 v{t1}, 72, v{t1}")
        k(f"v_bfe_u32 v{t2}, v{lam}, 3, 1", f"v_mul_u32_u24 v{t2}, 36, v{t2}", f"v_add3_u32 v{t1}, v{t1}, v{t2}, 16", f"v_and_b32 v{t2}, 3, v{lam}", f"v_add_u32 v{t1}, v{t1}, v{t2}")
        k(f"v_mul_u32_u24 v{t1}, 1152, v{t1}", f"v_add_u32 v{t1}, v{t1}, v{c}", f"v_cndmask_b32 v{V_DM+5+i}, v{T+8}, v{t1}, vcc")
    k(f"s_mul_i32 s39, s21, {TILE}", "s_add_u32 s41, s39, s3", f"s_add_u32 s42, s41, {hx(WS_O)}")
    srd_fill(k, 12, TILE); srd_fill(k, 4, D * D * 2)
    k("s_mul_i32 s23, s22, 144", f"s_mul_i32 s24, s20, {36*1152}", "s_add_u32 s24, s24, s23", "s_mul_i32 s26, s20, 5120", "s_mov_b32 s40, 0")
    k("s_waitcnt lgkmcnt(0)")
    k("s_mov_b32 s4, s34", "s_mov_b32 s5, s35")
    k("s_add_u32 s12, s36, s42", "s_addc_u32 s13, s37, 0")
    def oload(i): return [f"buffer_load_dwordx4 {v(V_B+4*i,4)}, v{V_XL}, s[12:15], s40 offen", "s_add_u32 s40, s40, 0x1000"]
    for rd in range(4):
        k(dmagrp(V_DM, 26, 24), f"s_add_u32 s24, s24, {4*36*1152}", "s_add_u32 s26, s26, 20480")
        for i in range(4): k(oload(4 * rd + i))
    k("s_cmp_ge_u32 s20, 2", "s_cbranch_scc1 wo_notail")
    k(f"s_mul_i32 s24, s20, {4*72*1152}", "s_add_u32 s24, s24, s23")
    k(dmagrp(V_DM + 5, 26, 24))
    k.label("wo_notail")
    k(oload(16), oload(17))
    stamp(k, 1)
    k(f"s_add_u32 s42, s36, {hx(WS_X2)}", "s_addc_u32 s43, s37, 0", "s_cmp_eq_u32 s4, s4", "s_cmp_eq_u32 s3, 0", "s_cselect_b32 s8, s32, s42", "s_cselect_b32 s9, s33, s43", "s_cselect_b64 vcc, -1, 0", "s_cselect_b32 s44, 32, 2048")
    k("s_mul_i32 s45, s22, 9216", "s_cselect_b32 s45, s23, s45")
    k("s_add_u32 s8, s8, s39", "s_addc_u32 s9, s9, 0"); srd_fill(k, 8, TILE)
    k(f"v_mul_u32_u24 v{t1}, 1152, v{tok}", f"v_lshl_add_u32 v{t1}, v{q4}, 3, v{t1}")
    k(f"v_lshrrev_b32 v{n}, 1, v{q4}", f"v_and_b32 v{lam}, 1, v{q4}")
    k(f"v_lshlrev_b32 v{t2}, 4, v{tok}", f"v_lshl_add_u32 v{c}, v{lam}, 3, v{t2}", f"v_lshl_add_u32 v{c}, v{n}, 10, v{c}")
    k(f"v_cndmask_b32 v{V_RL}, v{c}, v{t1}, vcc")
    for ht in range(5):
        k(f"buffer_load_dwordx2 {v(V_R+2*ht,2)}, v{V_RL}, s[8:11], s45 offen")
        if ht < 4: k("s_add_u32 s45, s45, s44")
    k(f"v_bfe_u32 v{t1}, v0, 2, 2", f"v_lshl_add_u32 v{t1}, v{lam}, 2, v{t1}", f"v_lshl_add_u32 v{t1}, v{n}, 4, v{t1}", f"v_mul_u32_u24 v{t1}, 160, v{t1}")
    k(f"v_and_b32 v{c}, 3, v0", f"v_lshl_add_u32 v{V_TR0}, v{c}, 3, v{t1}", f"v_add_u32 v{V_TR1}, 61440, v{V_TR0}")
    k(f"v_lshl_add_u32 v{t1}, v{lam}, 1, v{n}", f"v_lshl_add_u32 v{V_SP}, v{t1}, 10, v{t2}")
    k(f"v_lshl_add_u32 v{t1}, v{q4}, 3, v{t2}", f"v_add_u32 v{t1}, 8192, v{t1}", f"v_cmp_gt_u32 vcc, 2, v{q4}", "s_nop 1", f"v_cndmask_b32 v{V_S8}, v{T+8}, v{t1}, vcc")
    k(f"s_add_u32 s42, s41, {hx(WS_X1)}", "s_add_u32 s16, s36, s42", "s_addc_u32 s17, s37, 0"); srd_fill(k, 16, TILE)
    k("s_mul_i32 s46, s22, 9216", "s_add_u32 s47, s46, 4096")
    stamp(k, 2)
    def after(rd): return 9 * (3 - rd) + 7
    k(f"s_waitcnt vmcnt({after(0)}) lgkmcnt(0)", "s_barrier")
    stamp(k, 3)
    k(trreads(0))
    for ks in range(18):
        nx = ks + 1
        if nx < 18 and nx % 4 == 0:
            k(f"s_waitcnt vmcnt({after(nx // 4) if nx < 16 else 5}) lgkmcnt(0)", "s_barrier")
        else: k("s_waitcnt lgkmcnt(0)")
        tr = trreads(nx) if nx < 18 else []
        for ht in range(5):
            ac = v(V_AC + 4 * ht, 4)
            k(f"v_mfma_f32_16x16x32_bf16 {ac}, {v(V_AF + 20*(ks&1) + 4*ht, 4)}, {v(V_B+4*ks,4)}, {'0' if ks == 0 else ac}")
            k(tr[2*ht: 2*ht+2])
    stamp(k, 4)
    k("s_waitcnt vmcnt(0)")
    for ht in range(5):
        for d in range(2):
            k(f"v_lshlrev_b32 v{T+4*(ht&1)+2*d}, 16, v{V_R+2*ht+d}", f"v_and_b32 v{T+4*(ht&1)+2*d+1}, 0xffff0000, v{V_R+2*ht+d}")
        if ht == 0: k("s_nop 3")
        for i in range(4): k(f"v_add_f32 v{V_AC+4*ht+i}, v{V_AC+4*ht+i}, v{T+4*(ht&1)+i}")
    P = V_B
    for ht in range(5):
        for d in range(2): k(f"v_cvt_pk_bf16_f32 v{P+2*ht+d}, v{V_AC+4*ht+2*d}, v{V_AC+4*ht+2*d+1}")
    for pr in range(2):
        for d in range(2): k(f"v_permlane16_swap_b32 v{P+4*pr+d}, v{P+4*pr+2+d}")
    k(f"buffer_store_dwordx2 {v(P+8,2)}, v{V_S8}, s[16:19], s46 offen {sc}")
    k(f"buffer_store_dwordx4 {v(P,4)}, v{V_SP}, s[16:19], s46 offen {sc}")
    k(f"buffer_store_dwordx4 {v(P+4,4)}, v{V_SP}, s[16:19], s47 offen {sc}")
    if STAMP[0]:
        stamp(k, 5); k("s_waitcnt vmcnt(0)"); stamp(k, 6); stamp_out(k, "wo")
    k.label("wo_done")
    k("s_endpgm")
    return k
if __name__ == "__main__":
    k = gen_wo()
    for e in check(k, TRIPS): print(e)
    print(len(k.L))
    for n in range(320): assert (n*6554)>>16 == n//10
```

```python
import sys, os
from common import *
import k_red, k_ffn3, k_prep
def entry(name, setup, body, fall=False):
    t = f".p2align 8\n.globl {name}\n.type {name},@function\n{name}:\n" + "".join(f"  {x}\n" for x in setup)
    if not fall: t += f"  s_branch {body}\n"
    return t
def build(launches, opts={}):
    txt = []; descs = []
    STAMP[0] = int(opts.get("stamp", 0))
    hdr = "".join(f"; @launch kernel={n} grid=({g},1,1) block=({b},1,1) lds={l}\n" for n, g, b, l in launches)
    names = {n for n, *_ in launches}
    def two(base, k, trips, vg, ag, s0, s1):
        errs = check(k, trips)
        for e in errs: print("HAZARD", e, file=sys.stderr)
        if errs: raise SystemExit(1)
        txt.append(entry(f"{base}1_kernel", s1, f"{base}_body"))
        txt.append(entry(f"{base}0_kernel", s0, f"{base}_body", fall=True) + k.text())
        descs.append(desc(f"{base}0_kernel", vg, ag)); descs.append(desc(f"{base}1_kernel", vg, ag))
    L0 = ["s_mov_b32 s3, 0", "s_mov_b32 s4, 0"]; L1 = [f"s_mov_b32 s3, {hx(LSTR)}", "s_mov_b32 s4, 1"]
    try:
        import k_qkv; two("qkv", k_qkv.gen_qkv(), k_qkv.TRIPS, k_qkv.NV, k_qkv.NA, L0, L1)
    except ImportError: pass
    try:
        import k_att; two("att", k_att.gen_att(), k_att.TRIPS, k_att.NV, k_att.NA, L0, L1)
    except ImportError: pass
    try:
        import k_wo; two("wo", k_wo.gen_wo(), k_wo.TRIPS, k_wo.NV, 0, L0, L1)
    except ImportError: pass
    two("ffn", k_ffn3.gen_ffn(opts.get("sc", "sc1"), opts.get("stamp", 0), opts.get("map", 2), opts.get("late", 8), opts.get("wg", 1), opts.get("touch", 0)), k_ffn3.TRIPS, 256, 256, L0, L1)
    two("prep", k_prep.gen_prep(), k_prep.TRIPS, k_prep.NV, 0, L0, L1)
    two("red", k_red.gen_red(), [{}], 52, 0, L0, L1)
    return hdr + '.amdgcn_target "amdgcn-amd-amdhsa--gfx950"\n.text\n' + "\n".join(txt) + '\n.section .rodata,"a"\n' + "\n".join(descs) + "\n"
def LA(which, opts={}):
    d = {"ffn": (256, 256, k_ffn3.LDS), "red": (256, 576, 0), "prep": (256, 256, k_prep.LDS)}
    try:
        import k_qkv; d["qkv"] = (256, 256, k_qkv.LDS)
    except ImportError: pass
    try:
        import k_att; d["att"] = (256, 256, k_att.LDS)
    except ImportError: pass
    try:
        import k_wo; d["wo"] = (256, 256, k_wo.LDS)
    except ImportError: pass
    return [(f"{n}_kernel",) + d[n[:-1]] for n in which]
if __name__ == "__main__":
    out = sys.argv[1]; which = sys.argv[2].split(",")
    opts = dict(x.split("=") for x in sys.argv[3:])
    open(out, "w").write(build(LA(which, opts), opts))
```

```python
import re, struct

def f2u(x): return struct.unpack('<I', struct.pack('<f', x))[0]
def hx(x): return "0x%08x" % (x & 0xffffffff)
def fl(x): return hx(f2u(x))
def bf16u(x):
    u = f2u(x); return ((u + 0x7fff + ((u >> 16) & 1)) >> 16) & 0xffff

def v(n, c=1): return f"v{n}" if c == 1 else f"v[{n}:{n+c-1}]"
def a(n, c=1): return f"a{n}" if c == 1 else f"a[{n}:{n+c-1}]"
def s(n, c=1): return f"s{n}" if c == 1 else f"s[{n}:{n+c-1}]"

class Kern:
    def __init__(self, name):
        self.name = name; self.L = []
    def __call__(self, *lines):
        for x in lines:
            if isinstance(x, (list, tuple)): self(*x)
            else:
                for y in x.split("\n"):
                    y = y.strip()
                    m = re.match(r"s_cselect_b32 (\w+), (0x[0-9a-f]+|\d+), (0x[0-9a-f]+|\d+)$", y)
                    if m and int(m.group(2), 0) > 64 and int(m.group(3), 0) > 64:
                        self.L.append(f"s_mov_b32 {m.group(1)}, {m.group(3)}")
                        y = f"s_cselect_b32 {m.group(1)}, {m.group(2)}, {m.group(1)}"
                    if y: self.L.append(y)
    def label(self, n): self.L.append(n + ":")
    def text(self): return "\n".join((l if l.endswith(":") or l.startswith(".") else "  " + l) for l in self.L)

def desc(name, vgpr, agpr=0, sgpr=96):
    acc = (vgpr + 3) // 4 * 4
    nfv = acc + agpr if agpr else vgpr
    return f""".p2align 6
.amdhsa_kernel {name}
  .amdhsa_next_free_vgpr {nfv}
  .amdhsa_next_free_sgpr {sgpr}
  .amdhsa_accum_offset {acc}
  .amdhsa_group_segment_fixed_size 0
  .amdhsa_kernarg_size 80
  .amdhsa_user_sgpr_count 2
  .amdhsa_user_sgpr_kernarg_segment_ptr 1
  .amdhsa_system_sgpr_workgroup_id_x 1
  .amdhsa_float_denorm_mode_32 3
.end_amdhsa_kernel"""

def merge(main, fill, per=None, start=0):
    out = []; n = len(main); m = len(fill); k = 0
    for i, x in enumerate(main):
        out.append(x)
        if i < start: continue
        tgt = m if i == n - 1 and per is None else (min(m, (i - start + 1) * per) if per is not None else (m * (i - start + 1)) // (n - start))
        while k < tgt:
            out.append(fill[k]); k += 1
    while k < m:
        out.append(fill[k]); k += 1
    return out

REG = re.compile(r"\b([vas])(\d+)\b|\b([vas])\[(\d+):(\d+)\]")
def regs(op):
    r = set()
    for m in REG.finditer(op):
        if m.group(1): r.add((m.group(1), int(m.group(2))))
        else:
            for i in range(int(m.group(4)), int(m.group(5)) + 1): r.add((m.group(3), i))
    if re.search(r"\bvcc(_lo|_hi)?\b", op): r.add(("s", 106)); r.add(("s", 107))
    if re.search(r"\bm0\b", op): r.add(("s", 124))
    if re.search(r"\bexec\b", op): r.add(("s", 126)); r.add(("s", 127))
    return r
TRANS = ("v_exp_f32", "v_log_f32", "v_rcp_f32", "v_rsq_f32", "v_sqrt_f32", "v_sin_f32", "v_cos_f32")
class I:
    pass
def parse(line):
    t = line.split(";")[0].strip()
    i = I(); i.text = t
    if not t or t.endswith(":") or t.startswith("."):
        i.kind = "label" if t.endswith(":") else "dir"; return i
    p = t.split(None, 1); op = p[0]; rest = p[1] if len(p) > 1 else ""
    ops = [x.strip() for x in rest.split(",")] if rest else []
    i.op = op; i.w = set(); i.r = set(); i.ws = 1; i.kind = "other"; i.passes = 0
    i.cregs = set(); i.abregs = set(); i.vm = False; i.lgkm = False; i.lds_dma = False; i.wide_store = False; i.ldst = set()
    def R(x): return regs(x)
    if op == "s_nop": i.kind = "nop"; i.ws = int(ops[0], 0) + 1
    elif op.startswith("v_mfma"):
        i.kind = "mfma"; i.passes = 8 if "32x32x16" in op else 4
        i.w = R(ops[0]); i.abregs = R(ops[1]) | R(ops[2]); i.cregs = R(ops[3]); i.r = i.abregs | i.cregs
    elif op.startswith("v_"):
        i.kind = "valu"; i.trans = any(op.startswith(x) for x in TRANS)
        i.dpp = ("dpp" in op) or ("row_" in rest) or ("quad_perm" in rest)
        if op.startswith("v_cmp"):
            i.w = R(ops[0]); i.r = set().union(*[R(x) for x in ops[1:]])
        elif op.startswith("v_permlane") and "swap" in op:
            i.w = R(ops[0]) | R(ops[1]); i.r = set(i.w); i.kind = "valu"; i.perm = True
        elif op.startswith("v_readfirstlane") or op.startswith("v_readlane"):
            i.w = R(ops[0]); i.r = set().union(*[R(x) for x in ops[1:]]); i.rdlane = True
        elif op.startswith(("v_add_co", "v_sub_co", "v_addc_co", "v_subb_co")):
            i.w = R(ops[0]) | R(ops[1]); i.r = set().union(*[R(x) for x in ops[2:]])
        else:
            i.w = R(ops[0]); i.r = set().union(*[R(x) for x in ops[1:]]) if len(ops) > 1 else set()
            if op.startswith(("v_fmac", "v_dot2c", "v_mac", "v_pk_fmac")) : i.r |= i.w
            if op.startswith("v_cndmask") and len(ops) == 3: i.r |= {("s", 106), ("s", 107)}
    elif op.startswith("ds_"):
        i.kind = "ds"; i.lgkm = True
        if op.startswith(("ds_read", "ds_bpermute", "ds_permute", "ds_swizzle")):
            i.w = R(ops[0]); i.r = set().union(*[R(x) for x in ops[1:]]); i.ldst = set(i.w)
        else:
            i.r = set().union(*[R(x) for x in ops])
    elif op.startswith(("buffer_", "global_")):
        i.kind = "vmem"; i.vm = True
        if op in ("buffer_inv", "buffer_wbl2"): pass
        elif re.search(r"\blds\b", rest) or "load_lds" in op:
            i.lds_dma = True; i.r = set().union(*[R(x) for x in ops]) | {("s", 124)}
        elif "load" in op:
            i.w = R(ops[0]); i.r = set().union(*[R(x) for x in ops[1:]]); i.ldst = set(i.w)
        elif "atomic" in op and re.search(r"\bsc0\b", rest):
            i.w = R(ops[0]); i.r = set().union(*[R(x) for x in ops]); i.ldst = set(i.w)
        else:
            i.r = set().union(*[R(x) for x in ops])
            if "x4" in op or "x3" in op:
                i.wide_store = True; i.sdata = R(ops[0]) if op.startswith("buffer_") else R(ops[1])
    elif op.startswith(("s_load", "s_buffer_load", "s_memtime", "s_memrealtime")):
        i.kind = "smem"; i.lgkm = True; i.w = R(ops[0]); i.r = set().union(*[R(x) for x in ops[1:]]) if len(ops) > 1 else set(); i.ldst = set(i.w)
    elif op == "s_waitcnt":
        i.kind = "wait"
        m = re.search(r"vmcnt\((\d+)\)", rest); i.vmc = int(m.group(1)) if m else None
        m = re.search(r"lgkmcnt\((\d+)\)", rest); i.lgc = int(m.group(1)) if m else None
    elif op.startswith(("s_cbranch", "s_branch")):
        i.kind = "branch"; i.target = ops[0]
    elif op.startswith("s_"):
        i.kind = "salu"
        if op.startswith(("s_cmp", "s_barrier", "s_endpgm", "s_setprio", "s_sleep", "s_bitcmp")):
            i.r = set().union(*[R(x) for x in ops]) if ops else set()
        else:
            i.w = R(ops[0]); i.r = set().union(*[R(x) for x in ops[1:]]) if len(ops) > 1 else set()
            if "saveexec" in op: i.w |= {("s", 126), ("s", 127)}
            if op.startswith(("s_addk","s_mulk")): i.r |= i.w
    else:
        raise ValueError("unknown op " + t)
    return i

def isv(r): return r[0] in "va"
def check_trace(tr, name, errs):
    ins = [x for x in tr if x.kind not in ("label", "dir")]
    vmq = []; lgq = []
    for n, c in enumerate(ins):
        dist = 0; k = n - 1
        while k >= 0 and dist < 24:
            p = ins[k]; need = 0; why = ""
            def req(cond, nn, w):
                nonlocal need, why
                if cond and nn > need: need = nn; why = w
            if p.kind == "valu":
                pw_v = {x for x in p.w if isv(x)}; pw_s = {x for x in p.w if x[0] == "s"}
                if c.kind == "mfma": req(pw_v & c.r, 2, "valu->mfma")
                if c.kind == "valu":
                    req(getattr(p, "trans", False) and not getattr(c, "trans", False) and (pw_v & c.r), 1, "trans->valu")
                    req(pw_s & c.r, 2, "valu sgpr->valu")
                    req(getattr(c, "rdlane", False) and (pw_v & c.r), 1, "valu->readlane")
                    req(getattr(c, "rdlane", False) and (pw_s & c.r), 4, "valu sgpr->lanesel")
                    req(getattr(c, "dpp", False) and (pw_v & c.r), 2, "valu->dpp")
                    req(getattr(c, "perm", False) and (pw_v & c.r), 2, "valu->permlane")
                if p.op.startswith("v_dot"):
                    if c.kind == "valu" and c.op == p.op:
                        srcs = c.r - c.w if c.op.startswith("v_dot2c") else c.r
                        req((pw_v & c.r) and not (pw_v & c.w), 3, "dot->dot AB")
                    elif c.kind in ("valu", "mfma", "ds", "vmem"): req(pw_v & (c.r | c.w), 3, "dot->other")
                if c.kind == "vmem": req(pw_s & c.r, 5, "valu sgpr->vmem")
                if c.kind == "salu" or c.kind == "smem": req(pw_s & c.r, 1, "valu sgpr->salu(pad)")
            if p.kind == "mfma":
                big = 12 if p.passes == 8 else 8
                if c.kind == "mfma":
                    req(p.w & c.abregs, big, "mfma D->AB")
                    if p.w & c.cregs and not (p.w == c.cregs and p.passes == c.passes): req(True, big - 2, "mfma D->C partial")
                    if p.w & c.w and not (p.w == c.cregs): req(True, big - 2, "mfma WAW")
                if c.kind == "valu":
                    req(p.w & (c.r | c.w), big, "mfma D->valu")
                    req(p.cregs & c.w, 7 if p.passes == 8 else 3, "mfma C WAR")
                if c.kind in ("ds", "vmem"): req(p.w & (c.r | c.w), big, "mfma D->mem")
            if p.kind == "salu" and c.kind == "vmem" and c.lds_dma: req(("s", 124) in p.w, 1, "m0->dma")
            if p.kind == "vmem" and p.wide_store and c.kind in ("valu",): req(p.sdata & c.w, 2, "store data WAR")
            if p.kind == "vmem" and p.wide_store and c.kind in ("ds", "vmem", "mfma"): req(p.sdata & c.w, 1, "store data WAR")
            if need > dist:
                errs.append(f"{name}: hazard {why}: need {need} have {dist}: [{p.text}] -> [{c.text}]")
            dist += p.ws; k -= 1
        if c.kind == "wait":
            if c.vmc is not None:
                while len(vmq) > c.vmc: vmq.pop(0)
            if c.lgc is not None:
                if c.lgc == 0: lgq = []
                else:
                    if any(x.kind == "smem" for x in lgq): errs.append(f"{name}: counted lgkmcnt with smem outstanding: {c.text}")
                    while len(lgq) > c.lgc: lgq.pop(0)
        else:
            touched = getattr(c, "r", set()) | getattr(c, "w", set())
            for q in vmq + lgq:
                if q.ldst & touched and not (getattr(c,'junk',False) or 'JUNK' in getattr(c,'cm','')):
                    if c.kind==q.kind and not (q.ldst & c.r) and getattr(c,'okwaw',False): continue
                    errs.append(f"{name}: use of outstanding load dest: [{q.text}] -> [{c.text}]")
            if c.vm:
                vmq.append(c)
                if len(vmq) > 63: errs.append(f"{name}: vmcnt overflow ({len(vmq)}) at {c.text}")
            if c.lgkm: lgq.append(c)

def build_trace(lines, trips):
    P = []
    for l in lines:
        i = parse(l); i.cm = l.split(";", 1)[1] if ";" in l else ""
        if 'WAWOK' in i.cm: i.okwaw = True
        P.append(i)
    lab = {i.text[:-1]: n for n, i in enumerate(P) if i.kind == "label"}
    tr = []; pc = 0; cnt = {}
    while pc < len(P):
        i = P[pc]; tr.append(i)
        if i.kind == "branch":
            key = (pc)
            if i.op == "s_branch": pc = lab[i.target]; continue
            spec = trips.get(i.target, 0)
            c = cnt.get(key, 0); cnt[key] = c + 1
            taken = spec[c] if isinstance(spec, (list, tuple)) else (c < spec)
            if i.op == "s_cbranch_vccz": taken = True
            if taken: pc = lab[i.target]; continue
        if i.kind == "salu" and i.op == "s_endpgm": break
        pc += 1
        if len(tr) > 400000: raise RuntimeError("trace too long")
    return tr

def check(k, trips_list=({},)):
    errs = []
    for trips in trips_list:
        check_trace(build_trace(k.L, trips), k.name, errs)
    seen = set(); out = []
    for e in errs:
        if e not in seen: seen.add(e); out.append(e)
    return out
```

```python
from asmlib import *
S, D, F, H, DH, WIN = 2048, 576, 4608, 32, 18, 256
TILE = 73728
ACT = 32 * TILE
A_X, A_WQKV, A_WO, A_BX, A_WG, A_WU, A_WD, A_OUT, A_DBG, A_WS = range(10)
LSTR = 40 << 20
WS_KV = 0
KVB = 27648
WS_O = 8 << 20
WS_X1 = 11 << 20
WS_X2 = 14 << 20
WS_P = 17 << 20
assert WS_P + 8 * ACT <= LSTR

def srd_fill(k, reg, nbytes):
    k(f"s_mov_b32 s{reg+2}, {hx(nbytes)}", f"s_mov_b32 s{reg+3}, 0x00020000")

def ln_stats_norm(k, X, T, sOnes, nq=18):
    S0, S1, Q0, Q1 = T, T+1, T+2, T+3
    k(f"v_mov_b32 v{S0}, 0", f"v_mov_b32 v{S1}, 0", f"v_mov_b32 v{Q0}, 0", f"v_mov_b32 v{Q1}, 0")
    return S0, S1, Q0, Q1

def ln_acc(X, T, sOnes, i):
    S0, S1, Q0, Q1 = T, T+1, T+2, T+3
    o = []
    for d in range(4):
        x = X + 4*i + d
        o.append(f"v_dot2c_f32_bf16 v{S0 + (d&1)}, s{sOnes}, v{x}")
        o.append(f"v_dot2c_f32_bf16 v{Q0 + (d&1)}, v{x}, v{x}")
    return o

def ln_finish(k, T):
    S0, S1, Q0, Q1 = T, T+1, T+2, T+3
    k("s_nop 2")
    k(f"v_add_f32 v{S0}, v{S0}, v{S1}", f"v_add_f32 v{Q0}, v{Q0}, v{Q1}")
    for sw in ("v_permlane16_swap_b32", "v_permlane32_swap_b32"):
        k(f"v_mov_b32 v{S1}, v{S0}", f"v_mov_b32 v{Q1}, v{Q0}", "s_nop 1")
        k(f"{sw} v{S0}, v{S1}", f"{sw} v{Q0}, v{Q1}", "s_nop 1")
        k(f"v_add_f32 v{S0}, v{S0}, v{S1}", f"v_add_f32 v{Q0}, v{Q0}, v{Q1}")
    k(f"v_mul_f32 v{S0}, {fl(1.0/D)}, v{S0}")
    k(f"v_mul_f32 v{Q0}, {fl(1.0/D)}, v{Q0}")
    k(f"v_fma_f32 v{Q0}, -v{S0}, v{S0}, v{Q0}")
    k(f"v_max_f32 v{Q0}, 0, v{Q0}")
    k(f"v_add_f32 v{Q0}, {fl(1e-5)}, v{Q0}")
    k(f"v_rsq_f32 v{T+4}, v{Q0}", "s_nop 0")
    k(f"v_mul_f32 v{T+6}, v{S0}, v{T+4}")
    k(f"v_sub_f32 v{T+6}, 0, v{T+6}")

def ln_apply(X, T, i):
    o = []
    for d in range(4):
        x = X + 4*i + d; t = T + 8 + 2*d
        o.append(f"v_lshlrev_b32 v{t}, 16, v{x}")
        o.append(f"v_and_b32 v{t+1}, 0xffff0000, v{x}")
    for d in range(4):
        t = T + 8 + 2*d
        o.append(f"v_pk_fma_f32 v[{t}:{t+1}], v[{t}:{t+1}], v[{T+4}:{T+5}], v[{T+6}:{T+7}] op_sel_hi:[1,0,0]")
    for d in range(4):
        x = X + 4*i + d; t = T + 8 + 2*d
        o.append(f"v_cvt_pk_bf16_f32 v{x}, v{t}, v{t+1}")
    return o
WS_W = 2 * LSTR
WFR = 486
KV_QM, KV_KM, KV_V, KV_QT, KV_KT = 0, 8192, 16384, 25600, 26624
QSCALE = DH ** -0.5 * 1.4426950408889634
def stamp_out(k, name, n=7):
    k(f"s_load_dwordx2 s[44:45], s[0:1], {A_DBG*8}", "s_waitcnt lgkmcnt(0)")
    srd_fill(k, 44, 256)
    k("s_cmp_lg_u32 s20, 0", f"s_cbranch_scc1 {name}_done", "s_cmp_ge_u32 s2, 4", f"s_cbranch_scc1 {name}_done")
    k("s_lshl_b32 s48, s2, 6", "v_mov_b32 v2, s48")
    for i in range(n):
        k(f"s_sub_u32 s50, s{60+2*i}, s60", "v_mov_b32 v4, s50", "v_mov_b32 v5, 0", f"buffer_store_dwordx2 v[4:5], v2, s[44:47], 0 offen offset:{8*i}")
STAMP = [0]
def stamp(k, i):
    if STAMP[0] == 1: k(f"s_memtime s[{60+2*i}:{61+2*i}]")
    if STAMP[0] == 3: k(f"s_memrealtime s[{60+2*i}:{61+2*i}]")

def wgmap(k, mp, sr=21, sj=22):
    if mp == 1: k(f"s_and_b32 s{sj}, s2, 7", f"s_lshr_b32 s{sr}, s2, 3", f"s_mov_b32 s44, s{sr}")
    elif mp == 8:
        k(f"s_bfe_u32 s{sj}, s2, 0x30003", f"s_and_b32 s45, s2, 7", f"s_lshr_b32 s44, s2, 6", f"s_lshl_b32 s{sr}, s45, 2", f"s_add_u32 s{sr}, s{sr}, s44")
    else:
        lg = {2: 1, 4: 2}[mp]
        k("s_and_b32 s45, s2, 7", "s_lshr_b32 s46, s2, 3")
        k(f"s_lshr_b32 s{sj}, s45, {lg}", f"s_lshl_b32 s{sj}, s{sj}, {lg}", f"s_and_b32 s47, s46, {mp-1}", f"s_add_u32 s{sj}, s{sj}, s47")
        k(f"s_lshr_b32 s44, s46, {lg}", f"s_lshl_b32 s{sr}, s44, {lg}", f"s_and_b32 s47, s45, {mp-1}", f"s_add_u32 s{sr}, s{sr}, s47")
OPT = {}
WS_WQ = WS_W + (16 << 20)
WS_WO = WS_WQ + (3 << 20)
WS_F = WS_WO + (1 << 20)
WS_ST = WS_F + (1 << 20)
```

```python
from common import *
VT = 10240
LDS = 5 * VT
TRIPS = [{}]
V_L16, V_KT, V_QT, V_V0, V_V1, V_SO, V_ST, V_D4 = 1, 2, 3, 4, 5, 6, 7, 8
KORDER = korder = [0, 8, 1, 9, 2, 3, 4, 5, 6, 7]
V_MX = 16
V_MK = 216
V_Q = 24
V_NM = 40
V_O = 72
V_S = 104
V_P = 168
V_T = 200
NV = 216
A_K = 0
A_V = 60
NA = 92
MSK = 28
NEG = bf16u(-1e30)
def mf(d, A, B, c): return f"v_mfma_f32_32x32x16_bf16 {d}, {A}, {B}, {c}"
def qk(t, b, sb, c):
    S_ = v(V_S + 16 * sb, 16)
    return [mf(S_, a(A_K + 6*b + 2, 4), v(V_Q + 8*t + 4, 4), c), mf(S_, a(A_K + 6*b, 4), v(V_Q + 8*t, 4), S_)]
def vread(b, vb):
    return [f"ds_read_b64_tr_b16 {a(A_V + 8*vb + 4*s_ + 2*e, 2)}, v{V_V0+e} offset:{(b//2)*VT + (32*(b%2) + 16*s_)*16}" for s_ in range(2) for e in range(2)]
def cost(x): return 2 if x.startswith(("v_exp", "v_rcp")) else 1
def inter(k, main, side, lead=0, tail=0):
    tot = sum(cost(x) for x in main); span = max(1, tot - lead - tail); c = 0; si = 0
    for x in main:
        while si < len(side) and c >= lead + si * span / len(side):
            k(side[si]); si += 1
        k(x); c += cost(x)
    while si < len(side): k(side[si]); si += 1

def body(k, nV, sidefn, st, after_p1=None):
    T = V_T
    units = [(0, (0, 8)), (1, (1, 9)), (1, (8,)), (0, (1,))] + [(t, (b,)) for b in range(2, 8) for t in range(2)]
    side0 = sidefn() if sidefn else []
    nside = sum('buffer' in str(x_) for x_ in side0); issued = [0]
    def kwait(bs):
        last = max(korder.index(b) for b in bs)
        return f"s_waitcnt vmcnt({nV + 2 * (9 - last) + issued[0]})"
    free = [0, 1, 2, 3]; sb = {}
    def m1(i, c):
        t, bs = units[i]; sb[i] = [free.pop(0) for _ in bs]; o = []
        for b, s_ in zip(bs, sb[i]): o += qk(t, b, s_, c(t))
        return o
    def merge_ops(i):
        lo, hi = [V_S + 16 * x for x in sb[i]]
        return [f"v_cndmask_b32 v{lo+n}, v{lo+n}, v{hi+n}, s[{MSK+2*n}:{MSK+2*n+1}]" for n in range(16)]
    zero = lambda t: "0"
    k(kwait(units[0][1])); k(m1(0, zero))
    k(kwait(units[1][1])); k(m1(1, zero)); k("s_nop 7")
    seen = set(korder[:4]); nxt = [2]
    def issue_next():
        o = []
        if nxt[0] < 16 and free:
            nb = units[nxt[0]][1]
            if not set(nb) <= seen: o.append(kwait(nb)); seen.update(nb)
            o += m1(nxt[0], zero); nxt[0] += 1
        return o
    pend = []
    for i in range(16):
        t, bs = units[i]; S_ = V_S + 16 * sb[i][0]
        mx = [f"v_max3_f32 v{V_MX+2*t+(n&1)}, v{S_+2*n}, v{S_+2*n+1}, v{V_MX+2*t+(n&1)}" for n in range(8)]
        if len(bs) == 2:
            inter(k, merge_ops(i), pend); free.append(sb[i][1]); pend = issue_next()
        if i == 15: k("s_nop 3")
        inter(k, mx, pend); free.append(sb[i][0])
        if i >= 9:
            for _ in range(4):
                if side0:
                    x_ = side0.pop(0); k(x_)
                    if 'buffer' in str(x_): issued[0] += 1
        pend = issue_next()
    k(side0)
    if after_p1: after_p1()
    st(k, "att_p1")
    for t in range(2):
        m = V_MX + 2 * t
        k(f"v_max_f32 v{m}, v{m}, v{m+1}")
    for t in range(2): k(f"v_mov_b32 v{V_MX+2*t+1}, v{V_MX+2*t}")
    k("s_nop 1")
    for t in range(2): k(f"v_permlane32_swap_b32 v{V_MX+2*t}, v{V_MX+2*t+1}")
    k("s_nop 1")
    for t in range(2): k(f"v_max_f32 v{V_MX+2*t}, v{V_MX+2*t}, v{V_MX+2*t+1}")
    for t in range(2):
        for n in range(16): k(f"v_sub_f32 v{V_NM+16*t+n}, 0, v{V_MX+2*t}")
    k(f"s_waitcnt vmcnt({nside}) lgkmcnt(0)", "s_barrier")
    units = [(0, (0, 8)), (1, (8,)), (1, (1, 9)), (0, (1,))] + [(t, (b,)) for b in range(2, 8) for t in range(2)]
    free = [0, 1, 2, 3]; sb = {}; pfree = [0, 1, 2, 3]; pb = {}; vfree = [0, 1, 2, 3]; vb = {}
    nmc = lambda t: v(V_NM + 16 * t, 16)
    lastuse = {}
    for i, (t, bs) in enumerate(units):
        for b in bs: lastuse[b] = i
    def vloads(i):
        o = []
        for b in units[i][1]:
            if b not in vb: vb[b] = vfree.pop(0); o += vread(b, vb[b])
        return o
    ostarted = set()
    def m2(i):
        t, bs = units[i]; o = []; O_ = v(V_O + 16 * t, 16)
        for b, p_ in zip(bs, pb[i]):
            for s_ in range(2):
                c = O_ if t in ostarted else "0"; ostarted.add(t)
                o.append(mf(O_, a(A_V + 8*vb[b] + 4*s_, 4), v(V_P + 8*p_ + 4*s_, 4), c))
        return o
    def release2(i):
        for p_ in pb[i]: pfree.append(p_)
        for b in units[i][1]:
            if lastuse[b] == i: vfree.append(vb[b])
    k(vloads(0)); k(m1(0, nmc)); k("s_nop 11")
    for i in range(16):
        t, bs = units[i]; S_ = V_S + 16 * sb[i][0]
        side = []
        if i + 1 < 16: side += m1(i + 1, nmc)
        m2ops = m2(i - 1) if i >= 1 else []
        pb[i] = [pfree.pop(0) for _ in bs]
        P0 = V_P + 8 * pb[i][0]
        x = merge_ops(i) if len(bs) == 2 else []
        for n in range(8): x += [f"v_exp_f32 v{S_+2*n}, v{S_+2*n}", f"v_exp_f32 v{S_+2*n+1}, v{S_+2*n+1}"] + ([f"v_cvt_pk_bf16_f32 v{P0+n-1}, v{S_+2*n-2}, v{S_+2*n-1}"] if n else [])
        x += ["s_nop 0", f"v_cvt_pk_bf16_f32 v{P0+7}, v{S_+14}, v{S_+15}"]
        if len(bs) == 2:
            P1 = V_P + 8 * pb[i][1]
            for n in range(8): x.append(f"v_and_b32 v{P1+n}, v{P0+n}, v{V_MK+n}")
            for n in range(8): x.append(f"v_xor_b32 v{P0+n}, v{P0+n}, v{P1+n}")
        if i >= 1: release2(i - 1)
        sd = []
        if m2ops: sd.append("s_waitcnt lgkmcnt(0)")
        vl = vloads(i + 1) if i + 1 < 16 else []
        seq = []; a_, b_ = list(side), list(vl)
        while a_ or b_:
            if a_: seq.append([a_.pop(0)] + b_[:2]); b_ = b_[2:]
            else: seq.append(b_[:2]); b_ = b_[2:]
        if sd and seq: seq[0] = sd + seq[0]
        elif sd: seq = [sd]
        inter(k, x, seq + m2ops, 1, 3)
        for s_ in sb[i]: free.append(s_)
    k("s_waitcnt lgkmcnt(0)", "s_nop 0")
    k(m2(15))
    st(k, "att_p2")
    k("s_nop 7", "s_bitcmp1_b32 s20, 0", "s_cselect_b64 vcc, -1, 0")
    for t in range(2):
        O_ = V_O + 16 * t
        if t == 1: k("s_nop 3")
        k(f"v_rcp_f32 v{T+2*t}, v{O_+12}")
        k(f"v_cndmask_b32 v{O_+8}, v{O_+8}, v{O_+10}, vcc", f"v_cndmask_b32 v{O_+9}, v{O_+9}, v{O_+11}, vcc")
        for n in range(10): k(f"v_mul_f32 v{O_+n}, v{O_+n}, v{T+2*t}")
        for n in range(5): k(f"v_cvt_pk_bf16_f32 v{V_S+8*t+n}, v{O_+2*n}, v{O_+2*n+1}")
        k(f"buffer_store_dwordx4 {v(V_S+8*t,4)}, v{V_SO}, s[16:19], s88 offen offset:{512*t} sc1")
        k(f"buffer_store_dword v{V_S+8*t+4}, v{V_ST}, s[16:19], s89 offen offset:{512*t} sc1")
```

```python
from common import *
import k_ffn3 as FF
LDS = 163840
SC = "sc1"
S_WS, S_X, S_OUT, S_NON, S_FL = 96, 98, 100, 90, 92
S_FO = 19
S_FO = 75 + 0
V_L16, V_PD, V_PT0, V_PT1, V_STAMP = 1, 12, 13, 14, 15
F_P0, F_QKV, F_ATT, F_WO, F_FFN, F_RED, F_PF = 0, 1, 2, 3, 4, 5, 11
STG_Q, STG_O, STG_F = 73728, 91648, (96768, 121344, 145920)
WOIMG = 51200
NST = [0]
def st(k, name=""):
    if STAMP[0]:
        k("s_memrealtime s[0:1]", "s_waitcnt lgkmcnt(0)", f"v_writelane_b32 v{V_STAMP}, s0, {NST[0]}" + f" ; {name}")
        NAMES.append(name); NST[0] += 1
NAMES = []
def add64(k, d, base, off_s):
    k(f"s_add_u32 s{d}, s{base}, s{off_s}", f"s_addc_u32 s{d+1}, s{base+1}, 0")
LBL = [0]
def publish(k, fid, layered=True, vm=0, idx="task", extra=None):
    LBL[0] += 1; L = f"pub{LBL[0]}"
    k(f"s_waitcnt vmcnt({vm})", "s_barrier", "s_cmp_lg_u32 s20, 0", f"s_cbranch_scc1 {L}")
    if idx == "task": k("s_lshl_b32 s23, s21, 3", "s_add_u32 s23, s23, s22", "s_lshl_b32 s23, s23, 3")
    else: k("s_lshl_b32 s23, s2, 3")
    k(f"s_add_u32 s23, s23, {fid*2048}")
    if layered: k("s_add_u32 s23, s23, s14")
    k("s_mov_b64 exec, 1", "v_mov_b32 v9, 0", f"v_mov_b32 v10, s{S_NON}", f"v_mov_b32 v11, s{S_NON+1}")
    k(f"buffer_store_dwordx2 v[10:11], v9, s[{S_FL}:{S_FL+3}], s23 offen {SC}")
    if extra is not None:
        k("s_lshl_b32 s23, s2, 3", f"s_add_u32 s23, s23, {extra*2048}", f"buffer_store_dwordx2 v[10:11], v9, s[{S_FL}:{S_FL+3}], s23 offen {SC}")
    k("s_mov_b64 exec, -1")
    k.label(L)
def wait(k, setup):
    LBL[0] += 1; L = f"wt{LBL[0]}"
    k("s_cmp_lg_u32 s20, 0", f"s_cbranch_scc1 {L}_d")
    k(setup, "s_mov_b32 s23, 0x10000")
    k.label(f"{L}_l")
    k(f"buffer_load_dwordx2 v[10:11], v9, s[{S_FL}:{S_FL+3}], 0 offen {SC}", "s_waitcnt vmcnt(0)")
    k(f"v_cmp_ne_u64 vcc, s[{S_NON}:{S_NON+1}], v[10:11]", "s_sub_u32 s23, s23, 1", "s_cselect_b64 s[24:25], 0, -1", "s_nop 1", "s_and_b64 vcc, vcc, s[24:25]", f"s_cbranch_vccnz {L}_l")
    k.label(f"{L}_d")
    k("s_barrier")
def tile_flags(fid, prev_layer=False):
    o = ["v_and_b32 v9, 7, v0", "s_lshl_b32 s23, s21, 3", "v_add_u32 v9, s23, v9", "v_lshlrev_b32 v9, 3, v9", f"s_add_u32 s23, s14, {hx(fid*2048 - (5*2048 if prev_layer else 0))}", "v_add_u32 v9, s23, v9"]
    return o

def prep_units(k, rd):
    k(f"s_lshl_b32 s77, {rd}, s73", "s_add_u32 s76, s72, s77", "s_add_u32 s77, s76, s73")
def prep_soff(k, su, so):
    k(f"s_mul_i32 s{so}, s{su}, 3641", f"s_lshr_b32 s{so}, s{so}, 16", f"s_mul_i32 s79, s{so}, 18", f"s_sub_u32 s79, s{su}, s79", f"s_mul_i32 s79, s79, s75",
      f"s_lshl_b32 s{so}, s{so}, 7", f"s_add_u32 s{so}, s{so}, s79", f"s_add_u32 s{so}, s{so}, s74")
def prepF_dma(k, rounds, stg):
    k("s_lshl_b32 s80, s20, 10")
    for i, rd in enumerate(rounds):
        prep_units(k, rd); prep_soff(k, 76, 78); prep_soff(k, 77, 81)
        k(f"s_add_u32 m0, s80, {stg + 8192*i}", "s_nop 0", f"buffer_load_dwordx4 v{V_PD}, s[60:63], s78 offen lds")
        k(f"s_add_u32 m0, s80, {stg + 8192*i + 4096}", "s_nop 0", f"buffer_load_dwordx4 v{V_PD}, s[64:67], s81 offen lds")
def prepF_store(k, rounds, stg, T, TA):
    k(f"v_add_u32 v{TA}, {stg}, v{V_PT0}", f"v_add_u32 v{TA+1}, {stg}, v{V_PT1}")
    for i, rd in enumerate(rounds):
        for u in range(2):
            for e in range(2): k(f"ds_read_b64_tr_b16 {v(T + 8*i + 4*u + 2*e, 2)}, v{TA+e} offset:{8192*i + 4096*u}")
    for i, rd in enumerate(rounds):
        prep_units(k, rd)
        k("s_lshl_b32 s78, s76, 1", "s_add_u32 s79, s76, 324", "s_cmp_eq_u32 s73, 0", "s_cselect_b32 s78, s78, s79", "s_lshl_b32 s78, s78, 10", "s_cmp_lt_u32 s76, 162", f"s_cselect_b32 s70, {WFR*1024}, 0")
        k(f"s_waitcnt lgkmcnt({4*(len(rounds)-1-i)})")
        k(f"buffer_store_dwordx4 {v(T+8*i,4)}, v{V_L16}, s[68:71], s78 offen {SC}", f"buffer_store_dwordx4 {v(T+8*i+4,4)}, v{V_L16}, s[68:71], s78 offen offset:1024 {SC}")

Q_XL, Q_SQ, Q_S8, Q_STL, Q_TS, Q_BR1, Q_XW = 2, 3, 4, 5, 6, 7, 8
Q_A2 = 160
Q_AC, Q_B, Q_LT, Q_T, Q_X = 48, 112, 144, 161, 184
BREG = FF.BREG
def q_aload(n):
    o = [f"buffer_load_dwordx4 {BREG(n)}, v{Q_A2 if n % 4 >= 2 else V_L16}, s[4:7], s26 offen" + (f" offset:{(n%4)*1024}" if n % 4 else "") + f" {SC}"]
    if n % 4 == 3: o.append("s_add_u32 s26, s26, 0x1000")
    return o
def q_setup(k):
    q4, tk, r1, r2, t5, t6 = range(Q_T, Q_T + 6)
    k(f"v_lshrrev_b32 v{q4}, 4, v0", f"v_and_b32 v{tk}, 15, v0", f"v_and_b32 v{r1}, 1, v{q4}", f"v_lshrrev_b32 v{r2}, 1, v{q4}")
    k("s_lshl_b32 s38, s20, 10", f"v_add_u32 v{Q_XW}, s38, v{V_L16}", f"v_add_u32 v{Q_BR1}, 36864, v{V_L16}")
    k(f"v_lshlrev_b32 v{t5}, 4, v{tk}", f"v_lshl_add_u32 v{t6}, v{r2}, 9, v{t5}", f"v_lshl_add_u32 v{Q_SQ}, v{r1}, 11, v{t6}")
    k(f"v_lshl_add_u32 v{t6}, v{r1}, 1, v{r2}", f"v_lshlrev_b32 v{r1}, 2, v{t6}", f"v_xor_b32 v{r1}, v{r1}, v{tk}", f"v_lshlrev_b32 v{r1}, 4, v{r1}", f"v_lshl_add_u32 v{t6}, v{t6}, 10, v{r1}")
    k("s_cmp_eq_u32 s20, 2", "s_cselect_b64 vcc, -1, 0", "s_cselect_b32 s39, 512, 0x400", f"v_cndmask_b32 v{Q_SQ}, v{Q_SQ}, v{t6}, vcc")
    k("s_lshl_b32 s40, s20, 13", "s_add_u32 s41, s40, s39", "s_add_u32 s42, s40, 0x1000", "s_add_u32 s43, s41, 0x1000")
    k(f"v_lshl_add_u32 v{t6}, v{q4}, 3, v{t5}", f"v_add_u32 v{t6}, {KV_V + 8192}, v{t6}", f"v_mov_b32 v{r1}, 0x80000000", f"v_cmp_gt_u32 vcc, 2, v{q4}", f"v_mov_b32 v{r2}, {fl(QSCALE)}", "s_nop 0")
    k(f"v_cndmask_b32 v{Q_S8}, v{r1}, v{t6}, vcc", f"v_cndmask_b32 v{Q_TS}, 1.0, v{r2}, vcc")
    k(f"v_lshlrev_b32 v{t6}, 9, v{q4}", f"v_lshl_add_u32 v{t6}, v{tk}, 3, v{t6}", f"v_add_u32 v{Q_STL}, {KV_QT}, v{t6}")
    k("s_cmp_eq_u32 s20, 3", "s_cselect_b64 vcc, -1, 0", f"v_cndmask_b32 v{Q_A2}, v{V_L16}, v{r1}, vcc")
    k("s_lshl_b32 s38, s22, 2", "s_add_u32 s38, s38, s20", f"s_mul_i32 s38, s38, {72*1024}", f"s_add_u32 s38, s38, {hx(WS_WQ)}"); add64(k, 4, S_WS, 38); srd_fill(k, 4, 72 * 1024)
    k("s_lshl_b32 s38, s21, 3", "s_add_u32 s38, s38, s22", f"s_mul_i32 s38, s38, {KVB}", "s_add_u32 s38, s38, s3"); add64(k, 16, S_WS, 38); srd_fill(k, 16, KVB)
    k("s_mov_b32 s26, 0", "s_mov_b32 s29, 0x3f803f80", f"s_mov_b32 s28, {fl(QSCALE)}")
def ln_write(k, i, X, XW):
    off = i * 4096
    if i == 16: k(f"v_add_u32 v{XW}, 0x10000, v{XW}")
    k(f"ds_write_b128 v{XW}, {v(X+4*i,4)} offset:{off if off < 65536 else off - 65536}")
def q_bread(ks): return [f"ds_read_b128 {v(Q_B + 16*(ks&1) + 4*tb, 4)}, v{Q_BR1 if ks >= 9 else V_L16} offset:{((4*ks+tb) % 36)*1024}" for tb in range(4)]
def q_main(k, young):
    k(q_bread(0))
    for ks in range(18):
        k(f"s_waitcnt vmcnt({min(63, 72 - 4*(ks+1) + young)}) lgkmcnt(0)")
        br = q_bread(ks + 1) if ks < 17 else []
        for tb in range(4):
            for ht in range(4):
                ac = v(Q_AC + 16*ht + 4*tb, 4)
                k(f"v_mfma_f32_16x16x32_bf16 {ac}, {BREG(4*ks+ht)}, {v(Q_B + 16*(ks&1) + 4*tb, 4)}, {'0' if ks == 0 else ac}")
                if ht == 0 and br: k(br[tb])
    st(k, "qkv_mfma")
    P = Q_X
    k("s_cmp_eq_u32 s20, 3", "s_cbranch_scc1 q_epi3", "s_cmp_lg_u32 s20, 0", "s_cbranch_scc1 q_noscale", "s_nop 3")
    for i in range(64): k(f"v_mul_f32 v{Q_AC+i}, s28, v{Q_AC+i}")
    k.label("q_noscale")
    k("s_nop 3")
    for pr in range(2):
        for tb in range(4):
            O = P + 16 * pr + 4 * tb
            for h in range(2):
                for d in range(2): k(f"v_cvt_pk_bf16_f32 v{O+2*h+d}, v{Q_AC+16*(2*pr+h)+4*tb+2*d}, v{Q_AC+16*(2*pr+h)+4*tb+2*d+1}")
        for tb in range(4):
            O = P + 16 * pr + 4 * tb
            for d in range(2): k(f"v_permlane16_swap_b32 v{O+d}, v{O+2+d}")
        for tb in range(4):
            k(f"buffer_store_dwordx4 {v(P+16*pr+4*tb,4)}, v{Q_SQ}, s[16:19], s{40 + 2*pr + (tb>>1)} offen offset:{256*(tb&1)} {SC}")
    k("s_branch q_epid")
    k.label("q_epi3")
    k("s_nop 7")
    for tb in range(4):
        for i in range(4): k(f"v_mul_f32 v{Q_AC+16+4*tb+i}, v{Q_TS}, v{Q_AC+16+4*tb+i}")
    for h in range(2):
        for tb in range(4):
            for d in range(2): k(f"v_cvt_pk_bf16_f32 v{P+8*h+2*tb+d}, v{Q_AC+16*h+4*tb+2*d}, v{Q_AC+16*h+4*tb+2*d+1}")
    for tb in range(4):
        k(f"buffer_store_dwordx2 {v(P+2*tb,2)}, v{Q_S8}, s[16:19], 0 offen offset:{256*tb} {SC}", f"buffer_store_dwordx2 {v(P+8+2*tb,2)}, v{Q_STL}, s[16:19], 0 offen offset:{128*tb} {SC}")
    k.label("q_epid")

def startup(k):
    k("s_cmp_ge_u32 s2, 256", "s_cbranch_scc1 mega_done")
    k(f"s_load_dwordx4 s[28:31], s[0:1], 0", f"s_load_dwordx2 s[32:33], s[0:1], {A_WO*8}", f"s_load_dwordx4 s[60:63], s[0:1], {A_WG*8}",
      f"s_load_dwordx4 s[48:51], s[0:1], {A_WD*8}", f"s_load_dwordx4 s[52:55], s[0:1], {A_DBG*8}")
    k("v_lshrrev_b32 v1, 6, v0", "v_and_b32 v0, 63, v0", "v_readfirstlane_b32 s20, v1", f"v_lshlrev_b32 v{V_L16}, 4, v0", "s_mov_b32 s3, 0")
    if STAMP[0]: k(f"v_mov_b32 v{V_STAMP}, 0")
    wgmap(k, 8)
    T = 16
    q4, tk, tok, t3, t4, t5, t6, t7, tmp, t9 = range(T, T + 10)
    DQ, DO, TQ, TO = 32, 36, 38, 42
    k(f"v_lshrrev_b32 v{q4}, 4, v0", f"v_and_b32 v{tk}, 15, v0", "s_lshl_b32 s38, s20, 4", f"v_add_u32 v{tok}, s38, v{tk}")
    k(f"v_mul_u32_u24 v{Q_XL}, 1152, v{tok}", f"v_lshl_add_u32 v{Q_XL}, v{q4}, 4, v{Q_XL}")
    hi, c, u, h, col = t3, t4, t5, t6, t7
    k(f"v_lshrrev_b32 v{hi}, 5, v0", f"v_and_b32 v{c}, 31, v0", f"v_lshlrev_b32 v{tmp}, 1, v{hi}", f"v_sub_u32 v{c}, v{c}, v{tmp}")
    k(f"v_lshrrev_b32 v{u}, 1, v{c}", f"v_and_b32 v{h}, 1, v{c}")
    k(f"v_and_b32 v{col}, 3, v{u}", f"v_mul_u32_u24 v{col}, 36, v{col}", f"v_and_b32 v{tmp}, 1, v{u}", f"v_lshl_add_u32 v{col}, v{tmp}, 2, v{col}", f"v_lshl_add_u32 v{col}, v{h}, 4, v{col}")
    k(f"v_lshrrev_b32 v{tmp}, 2, v{u}", f"v_mul_u32_u24 v{tmp}, 1152, v{tmp}", f"v_add_u32 v{col}, v{col}, v{tmp}")
    k(f"v_subrev_u32 v{tmp}, 8, v{u}", f"v_mul_u32_u24 v{tmp}, 1152, v{tmp}", f"v_mul_u32_u24 v{t9}, 72, v{h}", f"v_add3_u32 v{tmp}, v{tmp}, v{t9}, 32")
    k(f"v_cmp_lt_u32 vcc, 7, v{u}", "s_nop 1", f"v_cndmask_b32 v{col}, v{col}, v{tmp}, vcc")
    k(f"v_lshlrev_b32 v{tmp}, 4, v{c}", f"v_add_u32 v{tmp}, {2304 - 320}, v{tmp}")
    k(f"v_cmp_lt_u32 vcc, 9, v{u}", "s_nop 1", f"v_cndmask_b32 v{col}, v{col}, v{tmp}, vcc")
    k(f"v_mul_u32_u24 v{tmp}, 3456, v{hi}", f"s_mul_i32 s42, s20, {8*3456}", f"v_add3_u32 v{col}, v{col}, v{tmp}, s42")
    k(f"v_mov_b32 v{t9}, 0x80000000", f"v_cmp_gt_u32 vcc, 29, v{c}", "s_nop 1", f"v_cndmask_b32 v{DQ}, v{t9}, v{col}, vcc")
    for i in range(1, 4): k(f"v_add_u32 v{DQ+i}, {i*(6912-1088)}, v{DQ}")
    k("s_sub_u32 s34, s2, 112", "s_lshr_b32 s35, s34, 3", "s_and_b32 s34, s34, 7", "s_movk_i32 s40, 6554")
    n_, lam, cc, t1, t2 = t3, t4, t5, t6, t7
    for x in range(2):
        if x == 0: k("s_lshl_b32 s41, s20, 6", f"v_add_u32 v{n_}, s41, v0")
        else: k(f"v_add_u32 v{n_}, 256, v0")
        k(f"v_mul_u32_u24 v{lam}, s40, v{n_}", f"v_lshrrev_b32 v{lam}, 16, v{lam}", f"v_mul_u32_u24 v{cc}, 10, v{lam}", f"v_sub_u32 v{cc}, v{n_}, v{cc}")
        k(f"v_lshrrev_b32 v{t1}, 4, v{lam}", f"v_lshl_add_u32 v{n_}, v{t1}, 2, v{lam}")
        k(f"v_bfe_u32 v{t2}, v{lam}, 2, 1", f"v_lshl_add_u32 v{t1}, v{t1}, 1, v{t2}", f"v_mul_u32_u24 v{t1}, 72, v{t1}")
        k(f"v_bfe_u32 v{t2}, v{lam}, 3, 1", f"v_mul_u32_u24 v{t2}, 36, v{t2}", f"v_add3_u32 v{t1}, v{t1}, v{t2}, 16", f"v_and_b32 v{t2}, 3, v{lam}", f"v_add_u32 v{t1}, v{t1}, v{t2}")
        k("s_cmp_lt_u32 s35, 16", "s_cselect_b64 vcc, -1, 0", f"v_cndmask_b32 v{t1}, v{t1}, v{n_}, vcc")
        k(f"v_mul_u32_u24 v{t1}, 1152, v{t1}", f"v_lshl_add_u32 v{t1}, v{cc}, 4, v{t1}", f"v_cmp_gt_u32 vcc, 9, v{cc}", "s_nop 1", f"v_cndmask_b32 v{DO+x}, v{t9}, v{t1}, vcc")
    k("s_cmp_eq_u32 s20, 0", "s_cselect_b64 vcc, -1, 0", f"v_cndmask_b32 v{DO+1}, v{t9}, v{DO+1}, vcc")
    k(f"s_mul_i32 s36, s35, {36*1152}", "s_sub_u32 s37, s35, 16", f"s_mul_i32 s37, s37, {288*1152}", "s_cmp_lt_u32 s35, 16", "s_cselect_b32 s36, s36, s37", "s_mul_i32 s37, s34, 144", "s_add_u32 s36, s36, s37")
    k("s_and_b32 s37, s2, 7", "s_mul_i32 s37, s37, 144", "s_lshr_b32 s39, s2, 3", f"s_mul_i32 s39, s39, {32*3456}", "s_add_u32 s37, s37, s39")
    srd_fill(k, 12, TILE)
    k(f"s_mul_i32 s39, s21, {TILE}")
    k("s_waitcnt lgkmcnt(0)")
    st(k, "kernarg")
    k(f"s_mov_b32 s{S_WS}, s54", f"s_mov_b32 s{S_WS+1}, s55", f"s_mov_b32 s{S_X}, s28", f"s_mov_b32 s{S_X+1}, s29", f"s_mov_b32 s{S_OUT}, s50", f"s_mov_b32 s{S_OUT+1}, s51")
    k("s_mov_b32 s4, s30", "s_mov_b32 s5, s31", "s_cmp_lt_u32 s2, 144", f"s_cselect_b32 s6, {D*3*D*2}, 0", "s_mov_b32 s7, 0x00020000")
    k("s_mov_b32 s8, s32", "s_mov_b32 s9, s33", "s_cmp_ge_u32 s2, 112", f"s_cselect_b32 s10, {D*D*2}, 0", "s_mov_b32 s11, 0x00020000")
    k("s_mul_i32 s40, s20, 4480", f"s_add_u32 m0, s40, {STG_Q}", "s_nop 0")
    for i in range(4): k(f"buffer_load_dwordx4 v{DQ+i}, s[4:7], s37 offen offset:{1088*i} lds")
    k("s_lshl_b32 s40, s20, 10", f"s_add_u32 m0, s40, {STG_O}", "s_nop 0", f"buffer_load_dwordx4 v{DO}, s[8:11], s36 offen lds")
    k("s_cmp_eq_u32 s20, 0", f"s_cselect_b32 m0, {STG_O + 4096}, {STG_F[2]}", "s_nop 0", f"buffer_load_dwordx4 v{DO+1}, s[8:11], s36 offen lds")
    add64(k, 12, S_X, 39)
    for i in range(18): k(f"buffer_load_dwordx4 {v(Q_X+4*i,4)}, v{Q_XL}, s[12:15], 0 offen offset:{64*i}")
    k("s_mov_b32 s56, s52", "s_mov_b32 s57, s53"); srd_fill(k, 56, 256)
    k("s_or_b32 s38, s2, s20", "s_cmp_lg_u32 s38, 0", "s_cbranch_scc1 no_nonce")
    k("s_memrealtime s[38:39]", "s_waitcnt lgkmcnt(0)", "s_or_b32 s38, s38, 1", "s_mov_b64 exec, 1", "v_mov_b32 v9, 0", "v_mov_b32 v10, s38", "v_mov_b32 v11, s39")
    k(f"buffer_store_dwordx2 v[10:11], v9, s[56:59], 0 offen {SC}", "s_waitcnt vmcnt(0)", "s_mov_b64 exec, -1")
    k.label("no_nonce")
    k(f"s_add_u32 s{S_FL}, s{S_WS}, {hx(WS_F)}", f"s_addc_u32 s{S_FL+1}, s{S_WS+1}, 0"); srd_fill(k, S_FL, 12 * 2048)
    r4, c4 = t3, t4
    k(f"v_bfe_u32 v{r4}, v0, 2, 2", f"v_and_b32 v{c4}, 3, v0")
    k(f"v_mul_u32_u24 v{t5}, 4480, v{q4}", f"v_mul_u32_u24 v{t6}, 544, v{r4}", f"v_add3_u32 v{t5}, v{t5}, v{t6}, {STG_Q}".replace(f", {STG_Q}", ", 0"), f"v_add_u32 v{t5}, {STG_Q}, v{t5}", f"v_lshl_add_u32 v{t5}, v{c4}, 3, v{t5}")
    k("s_lshl_b32 s40, s20, 7", "s_cmp_ge_u32 s20, 2", "s_cselect_b32 s41, 64, 0", "s_add_u32 s40, s40, s41")
    k(f"v_add_u32 v{TQ}, s40, v{t5}", f"v_add_u32 v{TQ+1}, 32, v{TQ}", f"v_lshl_add_u32 v{t6}, v{c4}, 3, v{t5}", f"v_add_u32 v{t6}, 256, v{t6}")
    k("s_cmp_eq_u32 s20, 3", "s_cselect_b64 vcc, -1, 0", f"v_cndmask_b32 v{TQ+1}, v{TQ+1}, v{t6}, vcc")
    k(f"v_lshrrev_b32 v{t6}, 1, v{q4}", f"v_and_b32 v{t7}, 1, v{q4}", f"v_lshl_add_u32 v{tmp}, v{t7}, 2, v{r4}", f"v_lshl_add_u32 v{tmp}, v{t6}, 4, v{tmp}", f"v_mul_u32_u24 v{tmp}, 160, v{tmp}")
    k(f"v_lshl_add_u32 v{tmp}, v{c4}, 3, v{tmp}", f"v_add_u32 v{TO+1}, {STG_O + 128}, v{tmp}", "s_lshl_b32 s40, s20, 5", f"s_add_u32 s40, s40, {STG_O}", f"v_add_u32 v{TO}, s40, v{tmp}")
    k("s_and_b32 s40, s2, 7", "s_lshl_b32 s40, s40, 2", "s_add_u32 s40, s40, s20", f"s_mul_i32 s40, s40, {72*1024}", f"s_add_u32 s40, s40, {hx(WS_WQ)}")
    k("s_lshr_b32 s41, s2, 3", "s_lshl_b32 s41, s41, 12", "s_add_u32 s42, s41, 0x800", "s_cmp_eq_u32 s20, 3", "s_cselect_b64 vcc, -1, 0", f"v_cndmask_b32 v44, v{V_L16}, v{t9}, vcc")
    k(f"s_mul_i32 s43, s34, {90*1024}", f"s_add_u32 s43, s43, {hx(WS_WO)}", "s_mul_i32 s45, s35, 5120", "s_lshl_b32 s46, s20, 10", "s_add_u32 s46, s46, s45", "s_add_u32 s45, s45, 4096", "s_cmp_eq_u32 s20, 0", "s_cselect_b64 vcc, -1, 0", f"v_cndmask_b32 v45, v{t9}, v{V_L16}, vcc")
    k("s_mov_b32 s64, s62", "s_mov_b32 s65, s63", "s_lshr_b32 s72, s2, 3", "s_cmp_ge_u32 s72, 21", "s_cselect_b32 s73, 1, 0")
    k("s_cselect_b32 s60, s48, s60", "s_cselect_b32 s61, s49, s61", "s_cselect_b32 s64, s48, s64", "s_cselect_b32 s65, s49, s65", f"s_cselect_b32 s75, {32*1152}, {32*9216}", f"s_cselect_b32 s74, {576*1152}, 1152", "s_cselect_b64 vcc, -1, 0")
    k("s_sub_u32 s76, s72, 21", "s_lshl_b32 s76, s76, 4", "s_lshl_b32 s72, s72, 3", "s_cmp_eq_u32 s73, 1", "s_cselect_b32 s72, s76, s72", "s_and_b32 s76, s2, 7", "s_mul_i32 s74, s74, s76")
    srd_fill(k, 60, D * F * 2); srd_fill(k, 64, D * F * 2)
    k("s_lshl_b32 s76, s76, 2", "s_add_u32 s76, s76, s20", f"s_mul_i32 s76, s76, {WFR*1024}", f"s_add_u32 s76, s76, {hx(WS_W)}"); add64(k, 68, S_WS, 76); srd_fill(k, 68, WFR * 1024)
    l8, l7 = t5, t6
    k(f"v_lshrrev_b32 v{l8}, 3, v0", f"v_and_b32 v{l7}, 7, v0", "s_lshl_b32 s76, s20, 3", f"v_add_u32 v{l8}, s76, v{l8}")
    k("s_and_b32 s76, s20, 1", "s_lshl_b32 s76, s76, 1", f"v_add_u32 v{tmp}, s76, v{t7}", f"v_cndmask_b32 v{tmp}, v{tmp}, v{q4}, vcc", f"v_lshlrev_b32 v{tmp}, 1, v{tmp}", f"v_xor_b32 v{tmp}, v{tmp}, v{l7}", f"v_lshlrev_b32 v{tmp}, 4, v{tmp}")
    k(f"v_mul_u32_u24 v{l7}, 9216, v{l8}", f"v_mul_u32_u24 v{l8}, 1152, v{l8}", f"v_cndmask_b32 v{l8}, v{l7}, v{l8}, vcc", f"v_add_u32 v{V_PD}, v{tmp}, v{l8}")
    k(f"v_lshrrev_b32 v{tmp}, 1, v{r4}", f"v_lshl_add_u32 v{tmp}, v{t7}, 1, v{tmp}", f"v_xor_b32 v{tmp}, s20, v{tmp}", f"v_lshlrev_b32 v{tmp}, 5, v{tmp}", f"v_lshl_add_u32 v{tmp}, v{c4}, 3, v{tmp}", f"v_lshl_add_u32 v{tmp}, v{r4}, 7, v{tmp}")
    k(f"v_lshl_add_u32 v{l7}, v{q4}, 10, v{tmp}", f"v_lshl_add_u32 v{l8}, v{q4}, 9, v{tmp}", f"v_cndmask_b32 v{V_PT0}, v{l7}, v{l8}, vcc")
    k("s_cmp_eq_u32 s73, 1", "s_cselect_b32 s76, 0x800, 0x200", f"v_add_u32 v{V_PT1}, s76, v{V_PT0}")
    st(k, "p0_issued")
    k("s_waitcnt vmcnt(18)", "s_barrier")
    PT = Q_AC
    for ht in range(4):
        for e in range(2):
            k(f"ds_read_b64_tr_b16 {v(PT+4*ht+2*e,2)}, v{TQ+1 if ht == 1 else TQ} offset:{e*2176 + (0 if ht == 1 else 32*ht)}")
    for x in range(2):
        for e in range(2): k(f"ds_read_b64_tr_b16 {v(PT+16+4*x+2*e,2)}, v{TO+x} offset:{e*1280}")
    add64(k, 4, S_WS, 40); k("s_cmp_lt_u32 s2, 144", f"s_cselect_b32 s6, {72*1024}, 0")
    add64(k, 8, S_WS, 43); k("s_cmp_ge_u32 s2, 112", f"s_cselect_b32 s10, {90*1024}, 0")
    k("s_waitcnt lgkmcnt(0)")
    for ht in range(4): k(f"buffer_store_dwordx4 {v(PT+4*ht,4)}, v{44 if ht >= 2 else V_L16}, s[4:7], s{41 + ht//2} offen offset:{1024*(ht&1)} {SC}")
    k(f"buffer_store_dwordx4 {v(PT+16,4)}, v{V_L16}, s[8:11], s46 offen {SC}", f"buffer_store_dwordx4 {v(PT+20,4)}, v45, s[8:11], s45 offen {SC}")
    st(k, "p0_prepst")
    q_setup(k)
    ln_stats_norm(k, Q_X, Q_LT, 29)
    for i in range(18):
        k(f"s_waitcnt vmcnt({17 - i + 6})"); k(ln_acc(Q_X, Q_LT, 29, i))
    st(k, "p0_stats")
    k("s_cmp_lg_u32 s20, 0", "s_cbranch_scc1 non_d", "v_mov_b32 v9, 0", "s_mov_b32 s23, 0x10000")
    k.label("non_l")
    k(f"buffer_load_dwordx2 v[10:11], v9, s[56:59], 0 offen {SC}", "s_waitcnt vmcnt(0)", f"v_readfirstlane_b32 s{S_NON}, v10", f"v_readfirstlane_b32 s{S_NON+1}, v11",
      "s_sub_u32 s23, s23, 1", "s_cselect_b32 s24, 1, 0", f"s_or_b32 s24, s24, s{S_NON}", "s_cmp_eq_u32 s24, 0", "s_cbranch_scc1 non_l")
    k.label("non_d")
    publish(k, F_P0, layered=False, idx="phys")
    prepF_dma(k, [0, 1, 2], STG_F[0])
    ln_finish(k, Q_LT)
    for i in range(18):
        k(ln_apply(Q_X, Q_LT, i)); ln_write(k, i, Q_X, Q_XW)
    st(k, "p0_ln")
    k("s_waitcnt vmcnt(0) lgkmcnt(0)")
    wait(k, ["v_and_b32 v9, 31, v0", "v_min_u32 v9, 17, v9", "v_lshlrev_b32 v9, 3, v9", "v_add_u32 v9, s22, v9", "v_lshrrev_b32 v10, 5, v0", "v_mul_u32_u24 v10, 112, v10", "v_add_u32 v9, v9, v10", "v_lshlrev_b32 v9, 3, v9"])
    st(k, "p0_flags")
    for n in range(72):
        k(q_aload(n))
        if n == 55: k("s_waitcnt vmcnt(40)")
    k("s_waitcnt vmcnt(48)")
    prepF_store(k, [0, 1, 2], STG_F[0], Q_X, Q_T)
    prepF_dma(k, [3, 4, 5], STG_F[1])
    k("s_mov_b32 s14, 0", "s_branch q_main0")

def phase_qkv1(k):
    wgmap(k, 8)
    q_setup(k)
    q4, tk = Q_T, Q_T + 1
    k("s_lshl_b32 s38, s20, 8", f"v_lshlrev_b32 v{Q_XL}, 10, v{q4}", f"v_lshl_add_u32 v{Q_XL}, v{tk}, 4, v{Q_XL}", f"v_add_u32 v{Q_XL}, s38, v{Q_XL}")
    k(f"s_mul_i32 s38, s21, {TILE}", f"s_add_u32 s38, s38, {hx(WS_X2)}"); add64(k, 8, S_WS, 38); srd_fill(k, 8, TILE)
    k("s_mov_b32 s27, 0")
    ln_stats_norm(k, Q_X, Q_LT, 29)
    wait(k, tile_flags(F_RED, prev_layer=True))
    st(k, "q1_flags")
    for i in range(18):
        k(f"buffer_load_dwordx4 {v(Q_X+4*i,4)}, v{Q_XL}, s[8:11], s27 offen {SC}")
        if i < 17: k("s_add_u32 s27, s27, 0x1000")
    na = 0
    for i in range(18):
        k(f"s_waitcnt vmcnt({17 - i + na})"); k(ln_acc(Q_X, Q_LT, 29, i))
        if i >= 8:
            for _ in range(2): k(q_aload(na)); na += 1
    st(k, "q1_stats")
    ln_finish(k, Q_LT)
    for i in range(18):
        ops = ln_apply(Q_X, Q_LT, i)
        for part in (ops[:5], ops[5:10], ops[10:]):
            k(part)
            if na < 72:
                if na == 60: k("s_waitcnt vmcnt(44)")
                k(q_aload(na)); na += 1
        ln_write(k, i, Q_X, Q_XW)
    assert na == 72
    st(k, "q1_ln")
    k("s_waitcnt lgkmcnt(0)", "s_barrier")

import k_att as AT
def phase_att(k):
    A = AT; T = A.V_T
    wgmap(k, 1)
    k(f"v_and_b32 v{T}, 31, v0", f"v_lshrrev_b32 v{T+1}, 5, v0")
    SO, SB = 82, 36
    SO, SB = 82, 4
    for i in range(5):
        k(f"s_add_i32 s23, s21, {i-4}", f"s_cmp_lt_i32 s23, 0", f"s_cselect_b32 s{[8,9,10,11,87][i]}, {A.NEG}, 0", "s_max_i32 s23, s23, 0",
          "s_lshl_b32 s23, s23, 3", "s_add_u32 s23, s23, s22", f"s_mul_i32 s{SO+i}, s23, {KVB}")
    bias = [8, 9, 10, 11, 87]
    k("s_lshl_b32 s15, s20, 11", f"v_add_u32 v{T+2}, s15, v{V_L16}")
    k("s_lshr_b32 s25, s20, 1", "s_lshl_b32 s25, s25, 9", "s_and_b32 s26, s20, 1", "s_lshl_b32 s27, s26, 2", "s_add_u32 s25, s25, s27")
    k(f"v_lshlrev_b32 v{A.V_KT}, 3, v{T}", f"v_add_u32 v{A.V_KT}, s25, v{A.V_KT}")
    k(f"v_mov_b32 v{T+3}, 0x80000000", f"v_cmp_gt_u32 vcc, 32, v0", f"v_add_u32 v{T+4}, {KV_QT}, v{A.V_KT}", f"v_add_u32 v{A.V_KT}, {KV_KT}, v{A.V_KT}")
    k(f"v_cndmask_b32 v{A.V_QT}, v{T+3}, v{T+4}, vcc", f"v_cndmask_b32 v{A.V_ST}, v{T+3}, v{V_L16}, vcc")
    add64(k, 4, S_WS, 3); srd_fill(k, 4, 256 * KVB)
    k(f"v_add_u32 v{T+4}, {KV_KM}, v{T+2}", f"v_add_u32 v{T+5}, {KV_V}, v{T+2}")
    k("s_lshl_b32 s27, s20, 8", f"v_lshlrev_b32 v{T+6}, 2, v0", f"v_add_u32 v{T+6}, s27, v{T+6}", f"v_add_u32 v{T+8}, 9216, v{T+6}", f"v_add_u32 v{T+6}, {KV_V+8192}, v{T+6}")
    k(f"v_mov_b32 v{T+7}, 0x3f803f80")
    for i in range(5): k(f"ds_write_b32 v{T+8}, v{T+7} offset:{i*A.VT}")
    for b in range(10):
        if b % 2 == 0: k(f"v_mov_b32 v{T+9}, s{bias[b//2]}")
        k(f"v_accvgpr_write_b32 {a(A.A_K+6*b+1)}, v{T+9}")
    k(f"v_mov_b32 v{T+9}, 0x3f80")
    for t in range(2): k(f"v_mov_b32 v{A.V_Q+8*t+2}, 0", f"v_mov_b32 v{A.V_Q+8*t+3}, 0", f"v_cndmask_b32 v{A.V_Q+8*t+1}, 0, v{T+9}, vcc")
    k(f"v_lshlrev_b32 v{A.V_D4}, 2, v{T+1}", f"v_sub_u32 v{A.V_D4}, v{T}, v{A.V_D4}")
    for i in range(16): k(f"v_cmp_le_i32 s[{A.MSK+2*i}:{A.MSK+2*i+1}], {8*(i//4) + i%4}, v{A.V_D4}")
    k(f"v_mov_b32 v{T+9}, 0xffff")
    for d in range(8): k(f"v_cndmask_b32 v{A.V_MK+d}, 0, v{T+9}, s[{A.MSK+4*d}:{A.MSK+4*d+1}]")
    for d in range(8): k(f"v_cndmask_b32 v{A.V_MK+d}, v{A.V_MK+d}, -1, s[{A.MSK+4*d+2}:{A.MSK+4*d+3}]")
    q_, r4, c_, m_, pl = T+9, T+10, T+11, T+12, T+13
    k(f"v_bfe_u32 v{q_}, v0, 4, 1", f"v_bfe_u32 v{r4}, v0, 2, 2", f"v_and_b32 v{c_}, 3, v0")
    k("s_mul_i32 s23, s20, 9", "s_add_u32 s23, s23, 1", "s_lshr_b32 s23, s23, 1")
    k("s_lshr_b32 s24, s20, 1", "s_mul_i32 s24, s24, 9", "s_add_u32 s24, s24, 4")
    k(f"v_add_u32 v{m_}, s23, v{c_}", f"v_mov_b32 v{pl}, s24", f"v_cmp_eq_u32 vcc, 1, v{q_}", "s_nop 1", f"v_cndmask_b32 v{m_}, v{m_}, v{pl}, vcc")
    k(f"v_lshrrev_b32 v{pl}, 1, v{m_}", f"v_and_b32 v{m_}, 1, v{m_}", f"v_and_b32 v{T+14}, 3, v{pl}")
    k(f"v_mul_u32_u24 v{c_}, v{c_}, v{q_}", "s_lshl_b32 s24, s26, 1", "s_sub_u32 s24, 3, s24", f"v_cmp_lt_u32 vcc, 0, v{c_}", f"v_mov_b32 v{q_}, s24", "s_nop 0")
    k(f"v_cndmask_b32 v{pl}, v{pl}, 9, vcc", f"v_cndmask_b32 v{m_}, v{m_}, 0, vcc", f"v_cndmask_b32 v{T+14}, v{T+14}, v{q_}, vcc")
    k(f"v_lshl_add_u32 v{r4}, v{T+1}, 2, v{r4}", f"v_lshlrev_b32 v{T+14}, 2, v{T+14}", f"v_xor_b32 v{r4}, v{r4}, v{T+14}")
    k(f"v_lshlrev_b32 v{pl}, 10, v{pl}", f"v_lshl_add_u32 v{pl}, v{m_}, 3, v{pl}")
    k(f"v_lshl_add_u32 v{A.V_V0}, v{r4}, 4, v{pl}", f"v_xor_b32 v{A.V_V1}, 128, v{A.V_V0}")
    k(f"s_mul_i32 s23, s21, {TILE}", "s_add_u32 s23, s23, s3", f"s_add_u32 s23, s23, {hx(WS_O)}"); add64(k, 16, S_WS, 23); srd_fill(k, 16, TILE)
    k("s_lshl_b32 s88, s22, 13", "s_add_u32 s88, s88, s15")
    k(f"v_lshlrev_b32 v{A.V_SO}, 4, v{T}", f"v_lshl_add_u32 v{A.V_SO}, v{T+1}, 10, v{A.V_SO}")
    k("s_add_u32 s89, s22, 64", "s_lshl_b32 s89, s89, 10", "s_lshl_b32 s23, s20, 2", "s_add_u32 s89, s89, s23")
    for i in range(4): k(f"v_mov_b32 v{A.V_MX+i}, 0xff7fffff")
    k("s_bfe_u32 s23, s2, 0x30003", f"s_mul_i32 s23, s23, {90*1024}", f"s_add_u32 s23, s23, {hx(WS_WO)}"); add64(k, 8, S_WS, 23); srd_fill(k, 8, 90 * 1024)
    st(k, "att_setup")
    wait(k, ["v_min_u32 v9, 4, v0", "s_sub_u32 s23, s21, 4", "v_add_u32 v9, s23, v9", "v_max_i32 v9, 0, v9", "v_lshlrev_b32 v9, 3, v9", "v_add_u32 v9, s22, v9", "v_lshlrev_b32 v9, 3, v9",
             f"s_add_u32 s23, s14, {F_QKV*2048}", "v_add_u32 v9, s23, v9"])
    st(k, "att_flags")
    for t in range(2):
        k(f"buffer_load_dwordx4 {v(A.V_Q+8*t+4,4)}, v{T+2}, s[4:7], s{SO+4} offen offset:{1024*t} {SC}", f"buffer_load_dword v{A.V_Q+8*t}, v{A.V_QT}, s[4:7], s{SO+4} offen offset:{256*t} {SC}")
    for b in A.KORDER:
        k(f"buffer_load_dwordx4 {a(A.A_K+6*b+2,4)}, v{T+4}, s[4:7], s{SO+b//2} offen offset:{1024*(b%2)} {SC}",
          f"buffer_load_dword {a(A.A_K+6*b)}, v{A.V_KT}, s[4:7], s{SO+b//2} offen offset:{256*(b%2)} {SC}")
    for i in [0, 4, 1, 2, 3]:
        k(f"s_add_u32 m0, s15, {i*A.VT}", "s_nop 0")
        k(f"buffer_load_dwordx4 v{T+5}, s[4:7], s{SO+i} offen {SC} lds", f"buffer_load_dwordx4 v{T+5}, s[4:7], s{SO+i} offen offset:1024 {SC} lds")
        k(f"s_add_u32 m0, s27, {i*A.VT+8192}", "s_nop 0", f"buffer_load_dword v{T+6}, s[4:7], s{SO+i} offen {SC} lds")
    k("s_cmp_lg_u32 s3, 0", "s_cbranch_scc1 att_noprep")
    prepF_store(k, [3, 4, 5], STG_F[1], A.V_NM, T + 9)
    k("s_barrier")
    k.label("att_noprep")
    st(k, "att_issued")
    def after_p1():
        k("s_cmp_lg_u32 s3, 0", "s_cbranch_scc1 att_noprep2")
        prepF_dma(k, [6, 7], STG_F[2])
        k.label("att_noprep2")
    return A.body(k, 15, lambda: wo_dma(k), st, after_p1)
def wo_dma(k):
    o = ["s_mul_i32 s23, s20, 23552", f"s_add_u32 s24, s23, {WOIMG}"]
    for g in range(6):
        o.append(["s_mov_b32 m0, s24", "s_add_u32 s24, s24, 0x1000", f"buffer_load_dwordx4 v{V_L16}, s[8:11], s23 offen {SC} lds"])
        for i in range(1, 4 if g < 5 else 3): o.append(f"buffer_load_dwordx4 v{V_L16}, s[8:11], s23 offen offset:{1024*i} {SC} lds")
        o[-1] = [o[-1], "s_add_u32 s23, s23, 0x1000"]
    return o

W_XL, W_A0, W_A1, W_RL, W_SP, W_S8, W_T, W_AC, W_R, W_AF, W_B = 2, 3, 4, 5, 6, 7, 16, 36, 56, 68, 108
def phase_wo(k):
    wgmap(k, 8)
    T = W_T; q4, tk, tok, n, lam, c, t1, t2 = range(T, T + 8)
    k(f"v_lshrrev_b32 v{q4}, 4, v0", f"v_and_b32 v{tk}, 15, v0", "s_lshl_b32 s38, s20, 4", f"v_add_u32 v{tok}, s38, v{tk}")
    k(f"v_lshlrev_b32 v{W_XL}, 10, v{q4}", f"v_lshl_add_u32 v{W_XL}, v{tok}, 4, v{W_XL}")
    k(f"s_mul_i32 s39, s21, {TILE}", "s_add_u32 s41, s39, s3", f"s_add_u32 s42, s41, {hx(WS_O)}"); add64(k, 4, S_WS, 42); srd_fill(k, 4, TILE)
    k(f"s_add_u32 s42, s{S_WS}, {hx(WS_X2)}", f"s_addc_u32 s43, s{S_WS+1}, 0", "s_cmp_eq_u32 s3, 0", f"s_cselect_b32 s8, s{S_X}, s42", f"s_cselect_b32 s9, s{S_X+1}, s43", "s_cselect_b64 vcc, -1, 0", "s_cselect_b32 s36, 32, 2048")
    k("s_mul_i32 s46, s22, 9216", "s_mul_i32 s37, s22, 144", "s_cselect_b32 s45, s37, s46")
    k("s_add_u32 s8, s8, s39", "s_addc_u32 s9, s9, 0"); srd_fill(k, 8, TILE)
    k(f"v_mul_u32_u24 v{t1}, 1152, v{tok}", f"v_lshl_add_u32 v{t1}, v{q4}, 3, v{t1}")
    k(f"v_lshrrev_b32 v{n}, 1, v{q4}", f"v_and_b32 v{lam}, 1, v{q4}")
    k(f"v_lshlrev_b32 v{t2}, 4, v{tok}", f"v_lshl_add_u32 v{c}, v{lam}, 3, v{t2}", f"v_lshl_add_u32 v{c}, v{n}, 10, v{c}")
    k(f"v_cndmask_b32 v{W_RL}, v{c}, v{t1}, vcc")
    for ht in range(5):
        k(f"buffer_load_dwordx2 {v(W_R+2*ht,2)}, v{W_RL}, s[8:11], s45 offen {SC}")
        if ht < 4: k("s_add_u32 s45, s45, s36")
    k(f"v_add_u32 v{W_A0}, {WOIMG}, v{V_L16}", f"v_add_u32 v{W_A1}, {WOIMG + 61440}, v{V_L16}")
    k(f"v_lshl_add_u32 v{t1}, v{lam}, 1, v{n}", f"v_lshl_add_u32 v{W_SP}, v{t1}, 10, v{t2}")
    k(f"v_lshl_add_u32 v{t1}, v{q4}, 3, v{t2}", f"v_add_u32 v{t1}, 8192, v{t1}", f"v_mov_b32 v{c}, 0x80000000", f"v_cmp_gt_u32 vcc, 2, v{q4}", "s_nop 1", f"v_cndmask_b32 v{W_S8}, v{c}, v{t1}, vcc")
    k(f"s_add_u32 s42, s41, {hx(WS_X1)}"); add64(k, 16, S_WS, 42); srd_fill(k, 16, TILE)
    k("s_add_u32 s47, s46, 4096", "s_mov_b32 s40, 0")
    def aread(ks): return [f"ds_read_b128 {v(W_AF + 20*(ks&1) + 4*ht, 4)}, v{W_A1 if ks >= 12 else W_A0} offset:{(5*ks+ht)*1024 - (61440 if ks >= 12 else 0)}" for ht in range(5)]
    k(aread(0))
    st(k, "wo_setup")
    wait(k, tile_flags(F_ATT))
    st(k, "wo_flags")
    for i in range(18):
        k(f"buffer_load_dwordx4 {v(W_B+4*i,4)}, v{W_XL}, s[4:7], s40 offen {SC}")
        if i < 17: k("s_add_u32 s40, s40, 0x1000")
    k("s_cmp_lg_u32 s3, 0", "s_cbranch_scc1 wo_l1")
    prepF_store(k, [6, 7], STG_F[2], 184, T + 8)
    for extra, lab in ((4, None), (0, "wo_l1")):
        if lab: k("s_branch wo_epi"); k.label(lab)
        for ks in range(18):
            k(f"s_waitcnt vmcnt({17 - ks + extra}) lgkmcnt(0)")
            ar = aread(ks + 1) if ks < 17 else []
            for ht in range(5):
                ac = v(W_AC + 4 * ht, 4)
                k(f"v_mfma_f32_16x16x32_bf16 {ac}, {v(W_AF + 20*(ks&1) + 4*ht, 4)}, {v(W_B+4*ks,4)}, {'0' if ks == 0 else ac}")
                if ar: k(ar[ht])
    k.label("wo_epi")
    st(k, "wo_mfma")
    for ht in range(5):
        for d in range(2):
            k(f"v_lshlrev_b32 v{T+4*(ht&1)+2*d}, 16, v{W_R+2*ht+d}", f"v_and_b32 v{T+4*(ht&1)+2*d+1}, 0xffff0000, v{W_R+2*ht+d}")
        if ht == 0: k("s_nop 3")
        for i in range(4): k(f"v_add_f32 v{W_AC+4*ht+i}, v{W_AC+4*ht+i}, v{T+4*(ht&1)+i}")
    P = W_B
    for ht in range(5):
        for d in range(2): k(f"v_cvt_pk_bf16_f32 v{P+2*ht+d}, v{W_AC+4*ht+2*d}, v{W_AC+4*ht+2*d+1}")
    for pr in range(2):
        for d in range(2): k(f"v_permlane16_swap_b32 v{P+4*pr+d}, v{P+4*pr+2+d}")
    k(f"buffer_store_dwordx2 {v(P+8,2)}, v{W_S8}, s[16:19], s46 offen {SC}")
    k(f"buffer_store_dwordx4 {v(P,4)}, v{W_SP}, s[16:19], s46 offen {SC}", f"buffer_store_dwordx4 {v(P+4,4)}, v{W_SP}, s[16:19], s47 offen {SC}")
    publish(k, F_WO, extra=F_PF)
    st(k, "wo_pub")

def phase_ffn(k):
    F_ = FF; mp = int(OPT.get("map", 2)); late = int(OPT.get("late", 8))
    wgmap(k, mp)
    k("s_mov_b32 s29, 0x3f803f80")
    t0, t1, t2, t5, t6 = 64, 65, 66, 67, 68
    k(f"v_lshrrev_b32 v{t0}, 4, v0", f"v_and_b32 v{t1}, 15, v0", "s_lshl_b32 s38, s20, 8")
    k(f"v_lshlrev_b32 v{t2}, 10, v{t0}", f"v_lshl_add_u32 v{t2}, v{t1}, 4, v{t2}", f"v_add_u32 v{F_.V_XL}, s38, v{t2}")
    k(f"s_mul_i32 s39, s21, {TILE}", "s_add_u32 s39, s39, s3", f"s_add_u32 s39, s39, {hx(WS_X1)}"); add64(k, 8, S_WS, 39); srd_fill(k, 8, TILE)
    k("s_lshl_b32 s24, s22, 2", "s_add_u32 s24, s24, s20", f"s_mul_i32 s24, s24, {WFR*1024}", f"s_add_u32 s24, s24, {hx(WS_W)}"); add64(k, 4, S_WS, 24); srd_fill(k, 4, WFR * 1024)
    k("s_lshl_b32 s41, s22, 5", "s_add_u32 s41, s41, s21", f"s_mul_i32 s41, s41, {TILE}", "s_add_u32 s41, s41, s3", f"s_add_u32 s41, s41, {hx(WS_P)}"); add64(k, 16, S_WS, 41); srd_fill(k, 16, TILE)
    k("s_mov_b32 s27, 0", "s_mov_b32 s40, 0")
    k(f"v_and_b32 v{t6}, 1, v{t0}", f"v_lshrrev_b32 v{t5}, 1, v{t0}", f"v_add_u32 v{F_.V_XR1}, 36864, v{V_L16}")
    k("s_lshr_b32 s41, s20, 1", "s_lshl_b32 s41, s41, 12", "s_and_b32 s42, s20, 1", "s_lshl_b32 s42, s42, 3", "s_add_u32 s41, s41, s42", f"s_add_u32 s41, s41, {8*8192}")
    k(f"v_add_u32 v{F_.V_HW}, s41, v{V_L16}", f"s_mov_b32 s28, {hx(-8*8192)}")
    k("s_lshl_b32 s41, s20, 10", f"v_add_u32 v{F_.V_XW}, s41, v{V_L16}")
    k(f"v_lshlrev_b32 v{F_.V_ST}, 10, v{t5}", f"v_lshl_add_u32 v{F_.V_ST}, v{t6}, 8, v{F_.V_ST}", f"v_lshl_add_u32 v{F_.V_ST}, v{t1}, 4, v{F_.V_ST}")
    k("s_lshl_b32 s41, s20, 11", f"v_add_u32 v{F_.V_ST}, s41, v{F_.V_ST}", f"v_mov_b32 v{F_.V_C2}, {fl(F_.C2)}")
    ln_stats_norm(k, F_.V_X, F_.V_LT, 29)
    wait(k, tile_flags(F_WO) + ["v_and_b32 v10, 31, v0", "v_lshlrev_b32 v10, 3, v10", "v_add_u32 v10, s22, v10", "v_lshlrev_b32 v10, 3, v10", f"v_add_u32 v10, {F_PF*2048}, v10",
                               "v_cmp_gt_u32 vcc, 32, v0", "s_nop 1", "v_cndmask_b32 v9, v10, v9, vcc"])
    st(k, "ffn_flags")
    k("s_mov_b32 s23, 0")
    for i in range(18):
        k(f"buffer_load_dwordx4 {v(F_.V_X+4*i,4)}, v{F_.V_XL}, s[8:11], s40 offen {SC}")
        if i < 17: k("s_add_u32 s40, s40, 0x1000")
    for i in range(18):
        k(f"s_waitcnt vmcnt({17 - i + (F_.NB if i > late else 0)})")
        k(ln_acc(F_.V_X, F_.V_LT, 29, i))
        if i == late:
            for c in range(F_.NB): k(F_.wload(c))
    st(k, "ffn_stats")
    ln_finish(k, F_.V_LT)
    for i in range(18):
        k(ln_apply(F_.V_X, F_.V_LT, i)); ln_write(k, i, F_.V_X, F_.V_XW)
    k("s_waitcnt lgkmcnt(0)", "s_barrier")
    for n in range(72):
        k(F_.fread(n))
        if n % 8 == 7 and n < 64: k("s_waitcnt lgkmcnt(6)")
    k("s_waitcnt lgkmcnt(0)", "s_barrier")
    st(k, "ffn_pro")
    k("s_mov_b32 s25, 4")
    k.label("ffn_loopA")
    F_.groupA(k, 0); F_.groupA(k, 1)
    k("s_sub_u32 s25, s25, 1", "s_cmp_lg_u32 s25, 0", "s_cbranch_scc1 ffn_loopA")
    F_.groupA(k, 0, last=True)
    st(k, "ffn_A")
    F_.groupB(k, "first", SC, 0); F_.groupB(k, "mid", SC, 1)
    k("s_mov_b32 s25, 3")
    k.label("ffn_loopB")
    F_.groupB(k, "mid", SC, 0); F_.groupB(k, "mid", SC, 1)
    k("s_sub_u32 s25, s25, 1", "s_cmp_lg_u32 s25, 0", "s_cbranch_scc1 ffn_loopB")
    F_.groupB(k, "last", SC, 0)
    st(k, "ffn_B")
    publish(k, F_FFN)

def phase_red(k):
    R = 16; ACC = 100
    pm4, pm1, rm4, rm1, t0, t1 = 2, 3, 4, 5, 6, 7
    k("s_lshl_b32 s23, s22, 3", f"v_and_b32 v{t0}, 7, v0", f"v_add_u32 v{t0}, s23, v{t0}")
    k(f"v_lshrrev_b32 v{t1}, 3, v0", "s_lshl_b32 s24, s20, 3", f"v_add_u32 v{t1}, s24, v{t1}")
    k(f"v_lshlrev_b32 v{pm4}, 4, v{t0}", f"v_lshl_add_u32 v{pm4}, v{t1}, 10, v{pm4}", f"v_mul_u32_u24 v{rm4}, 1152, v{t0}", f"v_lshl_add_u32 v{rm4}, v{t1}, 4, v{rm4}")
    k(f"v_bfe_u32 v{t0}, v0, 2, 3", f"v_add_u32 v{t0}, s23, v{t0}", f"v_lshrrev_b32 v{t1}, 5, v0", "s_lshl_b32 s24, s20, 1", "s_add_u32 s24, s24, 64", f"v_add_u32 v{t1}, s24, v{t1}")
    k(f"v_lshlrev_b32 v{pm1}, 4, v{t0}", f"v_lshl_add_u32 v{pm1}, v{t1}, 10, v{pm1}", f"v_mul_u32_u24 v{rm1}, 1152, v{t0}", f"v_lshl_add_u32 v{rm1}, v{t1}, 4, v{rm1}")
    k(f"v_and_b32 v{t0}, 3, v0", f"v_lshl_add_u32 v{pm1}, v{t0}, 2, v{pm1}", f"v_lshl_add_u32 v{rm1}, v{t0}, 2, v{rm1}")
    k(f"s_mul_i32 s24, s21, {TILE}", "s_add_u32 s25, s24, s3"); add64(k, 4, S_WS, 25); srd_fill(k, 4, LSTR - 31 * TILE)
    k(f"s_add_u32 s8, s4, {hx(WS_X2)}", "s_addc_u32 s9, s5, 0"); add64(k, 26, S_OUT, 24)
    k("s_cmp_eq_u32 s3, 0", "s_cselect_b32 s8, s8, s26", "s_cselect_b32 s9, s9, s27", "s_cselect_b32 s28, 0x8000, 512", "s_cselect_b64 vcc, -1, 0"); srd_fill(k, 8, TILE)
    k(f"v_cndmask_b32 v{rm4}, v{rm4}, v{pm4}, vcc", f"v_cndmask_b32 v{rm1}, v{rm1}, v{pm1}, vcc")
    def loads(j, so):
        return [f"buffer_load_dwordx4 {v(R+10*j,4)}, v{pm4}, s[4:7], s{so} offen {SC}", f"s_add_u32 s26, s{so}, 0x8000",
                f"buffer_load_dwordx4 {v(R+10*j+4,4)}, v{pm4}, s[4:7], s26 offen {SC}", f"buffer_load_dword v{R+10*j+8}, v{pm1}, s[4:7], s{so} offen {SC}"]
    ACCB = 110
    k(f"s_mov_b32 s25, {hx(WS_X1)}"); k(loads(8, 25))
    k("s_mov_b32 s30, 0x00003f80", "s_mov_b32 s31, 0x3f800000")
    for i in range(18): k(f"v_mov_b32 v{ACCB+i}, 0")
    wait(k, tile_flags(F_FFN))
    st(k, "red_flags")
    k(f"s_mov_b32 s25, {hx(WS_P)}")
    for j in range(8):
        k(loads(j, 25))
        if j < 7: k(f"s_add_u32 s25, s25, {hx(ACT)}")
    for n, j in enumerate([8, 0, 1, 2, 3, 4, 5, 6, 7]):
        k(f"s_waitcnt vmcnt({3*(8-n)})")
        for d in range(9): k(f"v_dot2c_f32_bf16 v{ACCB+2*d}, s30, v{R+10*j+d}", f"v_dot2c_f32_bf16 v{ACCB+2*d+1}, s31, v{R+10*j+d}")
    k("s_nop 2")
    for d in range(9): k(f"v_cvt_pk_bf16_f32 v{R+d}, v{ACCB+2*d}, v{ACCB+2*d+1}")
    k(f"buffer_store_dwordx4 {v(R,4)}, v{rm4}, s[8:11], 0 offen {SC}", f"buffer_store_dwordx4 {v(R+4,4)}, v{rm4}, s[8:11], s28 offen {SC}", f"buffer_store_dword v{R+8}, v{rm1}, s[8:11], 0 offen {SC}")

def gen():
    k = Kern("mega")
    NST[0] = 0; NAMES.clear(); LBL[0] = 0
    FF.STAMP = 0; FF.WG = int(OPT.get("wg", 1)); FF.TOUCH = 0
    st0 = len(k.L)
    startup(k)
    k.label("q_main0")
    q_main_young0 = 12
    k2 = k
    k("s_branch q_main")
    k.label("layer1")
    base = NST[0]
    phase_qkv1(k)
    k.label("q_main")
    q_main(k, 0)
    publish(k, F_QKV)
    st(k, "qkv_pub")
    phase_att(k)
    publish(k, F_ATT)
    st(k, "att_pub")
    phase_wo(k)
    phase_ffn(k)
    phase_red(k)
    k("s_cmp_lg_u32 s3, 0", "s_cbranch_scc1 mega_end")
    publish(k, F_RED)
    st(k, "red_pub")
    if STAMP[0]: dump(k, 0)
    k(f"s_mov_b32 s3, {hx(LSTR)}", f"s_mov_b32 s14, {5*2048}", "s_branch layer1")
    k.label("mega_end")
    if STAMP[0]:
        k("s_waitcnt vmcnt(0)"); st(k, "end"); dump(k, 1)
    k.label("mega_done")
    k("s_endpgm")
    return k
def dump(k, L):
    LBL[0] += 1
    k("s_cmp_lg_u32 s20, 0", f"s_cbranch_scc1 dmp{LBL[0]}", f"s_lshl_b32 s23, s2, 9", f"s_add_u32 s23, s23, {hx(WS_ST + 256*L)}"); add64(k, 4, S_WS, 23); srd_fill(k, 4, 256)
    k("v_lshlrev_b32 v9, 2, v0", f"buffer_store_dword v{V_STAMP}, v9, s[4:7], 0 offen", "s_waitcnt vmcnt(0)")
    k.label(f"dmp{LBL[0]}")
def trips(w):
    d = {"ffn_loopA": [1, 1, 1, 0] * 2, "ffn_loopB": [1, 1, 0] * 2, "mega_end": [0, 1], "att_noprep": [0, 1], "att_noprep2": [0, 1], "wo_l1": [0, 1],
         "q_epi3": 9 if w == 3 else 0, "q_noscale": 9 if w else 0, "no_nonce": 9 if w else 0, "non_d": 9 if w else 0}
    for i in range(1, 40):
        for n in (f"pub{i}", f"wt{i}_d", f"dmp{i}"): d[n] = 9 if w else 0
    return d
```

```python
import sys
from common import *
import mega
NAME = "interleave_layers__sliding_block__glu_gated_geglu__prompt_kernel"
def build(opts):
    STAMP[0] = int(opts.get("stamp", 0)); OPT.update(opts)
    k = mega.gen()
    errs = check(k, [mega.trips(w) for w in (0, 1, 2, 3)])
    for e in errs: print("HAZARD", e, file=sys.stderr)
    if errs: raise SystemExit(1)
    hdr = f"; @launch grid=(256,1,1) block=(256,1,1) lds={mega.LDS}\n"
    if STAMP[0]: hdr += "; stamps: " + ",".join(mega.NAMES) + "\n"
    return hdr + '.amdgcn_target "amdgcn-amd-amdhsa--gfx950"\n.text\n' + f".globl {NAME}\n.p2align 8\n.type {NAME},@function\n{NAME}:\n" + k.text() + '\n.section .rodata,"a"\n' + desc(NAME, 256, 256, 102) + "\n"
if __name__ == "__main__":
    opts = dict(x.split("=") for x in sys.argv[2:])
    open(sys.argv[1], "w").write(build(opts))
```

```python
from asmlib import *
S, D, F, H, DH, WIN = 2048, 576, 4608, 32, 18, 256
TILE = 73728
ACT = 32 * TILE
A_X, A_WQKV, A_WO, A_BX, A_WG, A_WU, A_WD, A_OUT, A_DBG, A_WS = range(10)
LSTR = 40 << 20
WS_KV = 0
KVB = 28672
WS_O = 8 << 20
WS_X1 = 11 << 20
WS_X2 = 14 << 20
WS_P = 17 << 20
assert WS_P + 8 * ACT <= LSTR

def srd_fill(k, reg, nbytes):
    k(f"s_mov_b32 s{reg+2}, {hx(nbytes)}", f"s_mov_b32 s{reg+3}, 0x00020000")

def ln_stats_norm(k, X, T, sOnes, nq=18):
    S0, S1, Q0, Q1 = T, T+1, T+2, T+3
    k(f"v_mov_b32 v{S0}, 0", f"v_mov_b32 v{S1}, 0", f"v_mov_b32 v{Q0}, 0", f"v_mov_b32 v{Q1}, 0")
    return S0, S1, Q0, Q1

def ln_acc(X, T, sOnes, i):
    S0, S1, Q0, Q1 = T, T+1, T+2, T+3
    o = []
    for d in range(4):
        x = X + 4*i + d
        o.append(f"v_dot2c_f32_bf16 v{S0 + (d&1)}, s{sOnes}, v{x}")
        o.append(f"v_dot2c_f32_bf16 v{Q0 + (d&1)}, v{x}, v{x}")
    return o

def ln_finish(k, T):
    S0, S1, Q0, Q1 = T, T+1, T+2, T+3
    k("s_nop 2")
    k(f"v_add_f32 v{S0}, v{S0}, v{S1}", f"v_add_f32 v{Q0}, v{Q0}, v{Q1}")
    for sw in ("v_permlane16_swap_b32", "v_permlane32_swap_b32"):
        k(f"v_mov_b32 v{S1}, v{S0}", f"v_mov_b32 v{Q1}, v{Q0}", "s_nop 1")
        k(f"{sw} v{S0}, v{S1}", f"{sw} v{Q0}, v{Q1}", "s_nop 1")
        k(f"v_add_f32 v{S0}, v{S0}, v{S1}", f"v_add_f32 v{Q0}, v{Q0}, v{Q1}")
    k(f"v_mul_f32 v{S0}, {fl(1.0/D)}, v{S0}")
    k(f"v_mul_f32 v{Q0}, {fl(1.0/D)}, v{Q0}")
    k(f"v_fma_f32 v{Q0}, -v{S0}, v{S0}, v{Q0}")
    k(f"v_max_f32 v{Q0}, 0, v{Q0}")
    k(f"v_add_f32 v{Q0}, {fl(1e-5)}, v{Q0}")
    k(f"v_rsq_f32 v{T+4}, v{Q0}", "s_nop 0")
    k(f"v_mul_f32 v{T+6}, v{S0}, v{T+4}")
    k(f"v_sub_f32 v{T+6}, 0, v{T+6}")

def ln_apply(X, T, i, pk=True):
    o = []
    for d in range(4):
        x = X + 4*i + d; t = T + 8 + 2*d
        o.append(f"v_lshlrev_b32 v{t}, 16, v{x}")
        o.append(f"v_and_b32 v{t+1}, 0xffff0000, v{x}")
    for d in range(4):
        t = T + 8 + 2*d
        if pk: o.append(f"v_pk_fma_f32 v[{t}:{t+1}], v[{t}:{t+1}], v[{T+4}:{T+5}], v[{T+6}:{T+7}] op_sel_hi:[1,0,0]")
        else: o += [f"v_fma_f32 v{t}, v{t}, v{T+4}, v{T+6}", f"v_fma_f32 v{t+1}, v{t+1}, v{T+4}, v{T+6}"]
    for d in range(4):
        x = X + 4*i + d; t = T + 8 + 2*d
        o.append(f"v_cvt_pk_bf16_f32 v{x}, v{t}, v{t+1}")
    return o
WS_W = 2 * LSTR
WFR = 486
KV_QM, KV_KM, KV_V, KV_QT, KV_KT = 0, 8192, 16384, 26624, 27648
QSCALE = DH ** -0.5 * 1.4426950408889634
def stamp_out(k, name, n=7):
    k(f"s_load_dwordx2 s[44:45], s[0:1], {A_DBG*8}", "s_waitcnt lgkmcnt(0)")
    srd_fill(k, 44, 256)
    k("s_cmp_lg_u32 s20, 0", f"s_cbranch_scc1 {name}_done", "s_cmp_ge_u32 s2, 4", f"s_cbranch_scc1 {name}_done")
    k("s_lshl_b32 s48, s2, 6", "v_mov_b32 v2, s48")
    for i in range(n):
        k(f"s_sub_u32 s50, s{60+2*i}, s60", "v_mov_b32 v4, s50", "v_mov_b32 v5, 0", f"buffer_store_dwordx2 v[4:5], v2, s[44:47], 0 offen offset:{8*i}")
STAMP = [0]
def stamp(k, i):
    if STAMP[0] == 1: k(f"s_memtime s[{60+2*i}:{61+2*i}]")
    if STAMP[0] == 3: k(f"s_memrealtime s[{60+2*i}:{61+2*i}]")

def wgmap(k, mp, sr=21, sj=22):
    if mp == 1: k(f"s_and_b32 s{sj}, s2, 7", f"s_lshr_b32 s{sr}, s2, 3", f"s_mov_b32 s44, s{sr}")
    elif mp == 8:
        k(f"s_bfe_u32 s{sj}, s2, 0x30003", f"s_and_b32 s45, s2, 7", f"s_lshr_b32 s44, s2, 6", f"s_lshl_b32 s{sr}, s45, 2", f"s_add_u32 s{sr}, s{sr}, s44")
    else:
        lg = {2: 1, 4: 2}[mp]
        k("s_and_b32 s45, s2, 7", "s_lshr_b32 s46, s2, 3")
        k(f"s_lshr_b32 s{sj}, s45, {lg}", f"s_lshl_b32 s{sj}, s{sj}, {lg}", f"s_and_b32 s47, s46, {mp-1}", f"s_add_u32 s{sj}, s{sj}, s47")
        k(f"s_lshr_b32 s44, s46, {lg}", f"s_lshl_b32 s{sr}, s44, {lg}", f"s_and_b32 s47, s45, {mp-1}", f"s_add_u32 s{sr}, s{sr}, s47")
OPT = {}
WS_WQ = WS_W + (16 << 20)
WS_WO = WS_WQ + (3 << 20)
WS_F = WS_WO + (1 << 20)
WS_ST = WS_F + (1 << 20)

WS_XN = 36 << 20
WS_SS = 39 << 20
assert WS_P + 8 * ACT <= WS_XN and WS_XN + ACT <= WS_SS
def ln_fin2(k, T):
    S0, Q0 = T, T + 2
    k(f"v_mul_f32 v{S0}, {fl(1.0/D)}, v{S0}", f"v_mul_f32 v{Q0}, {fl(1.0/D)}, v{Q0}", f"v_fma_f32 v{Q0}, -v{S0}, v{S0}, v{Q0}", f"v_max_f32 v{Q0}, 0, v{Q0}",
      f"v_add_f32 v{Q0}, {fl(1e-5)}, v{Q0}", f"v_rsq_f32 v{T+4}, v{Q0}", "s_nop 0", f"v_mul_f32 v{T+6}, v{S0}, v{T+4}", f"v_sub_f32 v{T+6}, 0, v{T+6}")
def xlane(k, T, kinds):
    S0, S1, Q0, Q1 = T, T+1, T+2, T+3
    for sw in kinds:
        if sw == 8:
            k("s_nop 1", f"v_add_f32_dpp v{S0}, v{S0}, v{S0} row_ror:8 row_mask:0xf bank_mask:0xf", f"v_add_f32_dpp v{Q0}, v{Q0}, v{Q0} row_ror:8 row_mask:0xf bank_mask:0xf")
        else:
            op = f"v_permlane{sw}_swap_b32"
            k(f"v_mov_b32 v{S1}, v{S0}", f"v_mov_b32 v{Q1}, v{Q0}", "s_nop 1", f"{op} v{S0}, v{S1}", f"{op} v{Q0}, v{Q1}", "s_nop 1", f"v_add_f32 v{S0}, v{S0}, v{S1}", f"v_add_f32 v{Q0}, v{Q0}, v{Q1}")
```

```python
from common import *
VT = 10240
LDS = 5 * VT
TRIPS = [{}]
V_L16, V_KT, V_QT, V_V0, V_V1, V_SO, V_ST, V_D4 = 1, 2, 3, 4, 5, 6, 7, 8
KORDER = korder = [0, 8, 1, 9, 2, 3, 4, 5, 6, 7]
V_MX = 16
V_MK = 216
V_Q = 24
V_NM = 40
V_O = 72
V_S = 104
V_P = 168
V_T = 200
NV = 216
A_K = 0
A_V = 60
NA = 92
MSK = 28
NEG = bf16u(-1e30)
def mf(d, A, B, c): return f"v_mfma_f32_32x32x16_bf16 {d}, {A}, {B}, {c}"
def qk(t, b, sb, c):
    S_ = v(V_S + 16 * sb, 16)
    return [mf(S_, a(A_K + 6*b + 2, 4), v(V_Q + 8*t + 4, 4), c), mf(S_, a(A_K + 6*b, 4), v(V_Q + 8*t, 4), S_)]
def vread(b, vb):
    return [f"ds_read_b64_tr_b16 {a(A_V + 8*vb + 4*s_ + 2*e, 2)}, v{V_V0+e} offset:{(b//2)*VT + (32*(b%2) + 16*s_)*16}" for s_ in range(2) for e in range(2)]
def cost(x): return 2 if x.startswith(("v_exp", "v_rcp")) else 1
def inter(k, main, side, lead=0, tail=0):
    tot = sum(cost(x) for x in main); span = max(1, tot - lead - tail); c = 0; si = 0
    for x in main:
        while si < len(side) and c >= lead + si * span / len(side):
            k(side[si]); si += 1
        k(x); c += cost(x)
    while si < len(side): k(side[si]); si += 1

def body(k, side0, st, after_p1=None, side2=(), f2=None):
    side2 = list(side2)
    nV = 0
    T = V_T
    units = [(0, (0, 8)), (1, (1, 9)), (1, (8,)), (0, (1,))] + [(t, (b,)) for b in range(2, 8) for t in range(2)]
    issued = [0]
    def kwait(bs):
        last = max(korder.index(b) for b in bs)
        return f"s_waitcnt vmcnt({nV + 2 * (9 - last) + issued[0]})"
    free = [0, 1, 2, 3]; sb = {}
    def m1(i, c):
        t, bs = units[i]; sb[i] = [free.pop(0) for _ in bs]; o = []
        for b, s_ in zip(bs, sb[i]): o += qk(t, b, s_, c(t))
        return o
    def merge_ops(i):
        lo, hi = [V_S + 16 * x for x in sb[i]]
        return [f"v_cndmask_b32 v{lo+n}, v{lo+n}, v{hi+n}, s[{MSK+2*n}:{MSK+2*n+1}]" for n in range(16)]
    zero = lambda t: "0"
    k(kwait(units[0][1])); k(m1(0, zero))
    k(kwait(units[1][1])); k(m1(1, zero)); k("s_nop 7")
    seen = set(korder[:4]); nxt = [2]
    def issue_next():
        o = []
        if nxt[0] < 16 and free:
            nb = units[nxt[0]][1]
            if not set(nb) <= seen: o.append(kwait(nb)); seen.update(nb)
            o += m1(nxt[0], zero); nxt[0] += 1
        return o
    pend = []
    for i in range(16):
        t, bs = units[i]; S_ = V_S + 16 * sb[i][0]
        mx = [f"v_max3_f32 v{V_MX+2*t+(n&1)}, v{S_+2*n}, v{S_+2*n+1}, v{V_MX+2*t+(n&1)}" for n in range(8)]
        if len(bs) == 2:
            inter(k, merge_ops(i), pend); free.append(sb[i][1]); pend = issue_next()
        if i == 15: k("s_nop 3")
        inter(k, mx, pend); free.append(sb[i][0])
        if i >= 1:
            for _ in range(2):
                if side0:
                    x_ = side0.pop(0); k(x_)
                    if 'buffer' in str(x_): issued[0] += 1
        pend = issue_next()
    k(side0)
    st(k, "att_p1")
    for t in range(2):
        m = V_MX + 2 * t
        k(f"v_max_f32 v{m}, v{m}, v{m+1}")
    for t in range(2): k(f"v_mov_b32 v{V_MX+2*t+1}, v{V_MX+2*t}")
    k("s_nop 1")
    for t in range(2): k(f"v_permlane32_swap_b32 v{V_MX+2*t}, v{V_MX+2*t+1}")
    k("s_nop 1")
    for t in range(2): k(f"v_max_f32 v{V_MX+2*t}, v{V_MX+2*t}, v{V_MX+2*t+1}")
    for t in range(2):
        for n in range(16): k(f"v_sub_f32 v{V_NM+16*t+n}, 0, v{V_MX+2*t}")
    if after_p1: after_p1()
    k("s_waitcnt lgkmcnt(0)", "s_barrier")
    units = [(0, (0, 8)), (1, (8,)), (1, (1, 9)), (0, (1,))] + [(t, (b,)) for b in range(2, 8) for t in range(2)]
    free = [0, 1, 2, 3]; sb = {}; pfree = [0, 1, 2, 3]; pb = {}; vfree = [0, 1, 2, 3]; vb = {}
    nmc = lambda t: v(V_NM + 16 * t, 16)
    lastuse = {}
    for i, (t, bs) in enumerate(units):
        for b in bs: lastuse[b] = i
    def vloads(i):
        o = []
        for b in units[i][1]:
            if b not in vb: vb[b] = vfree.pop(0); o += vread(b, vb[b])
        return o
    ostarted = set()
    def m2(i):
        t, bs = units[i]; o = []; O_ = v(V_O + 16 * t, 16)
        for b, p_ in zip(bs, pb[i]):
            for s_ in range(2):
                c = O_ if t in ostarted else "0"; ostarted.add(t)
                o.append(mf(O_, a(A_V + 8*vb[b] + 4*s_, 4), v(V_P + 8*p_ + 4*s_, 4), c))
        return o
    def release2(i):
        for p_ in pb[i]: pfree.append(p_)
        for b in units[i][1]:
            if lastuse[b] == i: vfree.append(vb[b])
    k(vloads(0)); k(m1(0, nmc)); k("s_nop 11")
    for i in range(16):
        t, bs = units[i]; S_ = V_S + 16 * sb[i][0]
        side = []
        if i + 1 < 16: side += m1(i + 1, nmc)
        m2ops = m2(i - 1) if i >= 1 else []
        pb[i] = [pfree.pop(0) for _ in bs]
        P0 = V_P + 8 * pb[i][0]
        x = merge_ops(i) if len(bs) == 2 else []
        for n in range(8): x += [f"v_exp_f32 v{S_+2*n}, v{S_+2*n}", f"v_exp_f32 v{S_+2*n+1}, v{S_+2*n+1}"] + ([f"v_cvt_pk_bf16_f32 v{P0+n-1}, v{S_+2*n-2}, v{S_+2*n-1}"] if n else [])
        x += ["s_nop 0", f"v_cvt_pk_bf16_f32 v{P0+7}, v{S_+14}, v{S_+15}"]
        if len(bs) == 2:
            P1 = V_P + 8 * pb[i][1]
            for n in range(8): x.append(f"v_and_b32 v{P1+n}, v{P0+n}, v{V_MK+n}")
            for n in range(8): x.append(f"v_xor_b32 v{P0+n}, v{P0+n}, v{P1+n}")
        if i >= 1: release2(i - 1)
        sd = []
        if m2ops: sd.append("s_waitcnt lgkmcnt(0)")
        vl = vloads(i + 1) if i + 1 < 16 else []
        seq = []; a_, b_ = list(side), list(vl)
        while a_ or b_:
            if a_: seq.append([a_.pop(0)] + b_[:2]); b_ = b_[2:]
            else: seq.append(b_[:2]); b_ = b_[2:]
        if sd and seq: seq[0] = sd + seq[0]
        elif sd: seq = [sd]
        nex = -(-len(side2) // (15 - i)) if i < 15 else len(side2)
        ex = side2[:nex]; side2 = side2[nex:]
        mm = []; m_ = list(m2ops)
        while ex or m_:
            if ex: mm.append(ex.pop(0))
            if m_: mm.append(m_.pop(0))
        inter(k, x, seq + mm, 1, 3)
        if i == 14 and f2: f2()
        for s_ in sb[i]: free.append(s_)
    assert not side2
    k("s_waitcnt lgkmcnt(0)", "s_nop 0")
    k(m2(15))
    st(k, "att_p2")
    k("s_nop 7", "s_bitcmp1_b32 s20, 0", "s_cselect_b64 vcc, -1, 0")
    for t in range(2):
        O_ = V_O + 16 * t
        if t == 1: k("s_nop 3")
        k(f"v_rcp_f32 v{T+2*t}, v{O_+12}")
        k(f"v_cndmask_b32 v{O_+8}, v{O_+8}, v{O_+10}, vcc", f"v_cndmask_b32 v{O_+9}, v{O_+9}, v{O_+11}, vcc")
        for n in range(10): k(f"v_mul_f32 v{O_+n}, v{O_+n}, v{T+2*t}")
        for n in range(5): k(f"v_cvt_pk_bf16_f32 v{V_S+8*t+n}, v{O_+2*n}, v{O_+2*n+1}")
        k(f"buffer_store_dwordx4 {v(V_S+8*t,4)}, v{V_SO}, s[16:19], s88 offen offset:{512*t} sc1")
        k(f"buffer_store_dword v{V_S+8*t+4}, v{V_ST}, s[16:19], s89 offen offset:{512*t} sc1")
```

```python
from common import *
IMG = 0
LDS = TILE
V_WO = 1
V_XR1, V_HW, V_ST, V_XW, V_XL, V_C2 = 3, 6, 7, 8, 2, 4
V_XR0 = V_WO
V_PF = 11; V_JK = 12
def touch(): return [f"buffer_load_dword v{V_JK}, v{V_PF}, s[4:7], s49 offen ; WAWOK", f"s_add_u32 s49, s49, {TILE}"]
V_BF = 16; V_AC = 48; V_RG = 112; V_T = 184; V_HP = 192
V_X = 184; V_LT = 80
NB = 18
def BREG(n): return a(4*n, 4) if n < 64 else v(V_BF + 4*(n-64), 4)
C1 = -2.0 * 1.4426950408889634 * 0.7978845608028654
C2 = C1 * 0.044715
STAMP = 0; MAP = 1; WG = 1
LPOS = 3
def stamp(k, i, lvl=1):
    if STAMP == 3:
        if lvl == 1: k(f"s_memrealtime s[{60+2*i}:{61+2*i}]")
    elif STAMP == lvl or (STAMP and i == 0): k(f"s_memtime s[{60+2*i}:{61+2*i}]")
def wload(c):
    o = [f"buffer_load_dwordx4 {v(V_RG + 4*(c % NB), 4)}, v{V_WO}, s[4:7], s23 offen" + (f" offset:{(c%3)*1024}" if c % 3 else "") + OPT.get("wnt", "")]
    if c % 3 == 2: o.append("s_add_u32 s23, s23, 0xc00")
    return o
def fread(n):
    return f"ds_read_b128 {BREG(n)}, v{V_XR1 if n >= 36 else V_XR0} offset:{(n % 36) * 1024}"
def gelu_ops(acc):
    o = []
    for tb in range(4):
        g = [acc + 4*tb + i for i in range(4)]
        u = [x + 16 for x in g]
        t = [V_T + 4*(tb & 1) + i for i in range(4)]
        for i in range(4): o.append(f"v_mul_f32 v{t[i]}, v{g[i]}, v{g[i]}")
        for i in range(4): o.append(f"v_fmaak_f32 v{t[i]}, v{t[i]}, v{V_C2}, {fl(C1)}")
        for i in range(4): o.append(f"v_mul_f32 v{t[i]}, v{t[i]}, v{g[i]}")
        for i in range(4):
            o.append(f"v_exp_f32 v{t[i]}, v{t[i]}")
            o.append(f"v_mul_f32 v{g[i]}, v{g[i]}, v{u[i]}")
        for i in range(4): o.append(f"v_add_f32 v{t[i]}, 1.0, v{t[i]}")
        for i in range(4): o.append(f"v_rcp_f32 v{t[i]}, v{t[i]}")
        for i in range(4): o.append(f"v_mul_f32 v{g[i]}, v{g[i]}, v{t[i]}")
        for i in range(2): o.append(f"v_cvt_pk_bf16_f32 v{V_HP + 2*tb + i}, v{g[2*i]}, v{g[2*i+1]}")
        o.append(f"ds_write_b64 v{V_HW}, {v(V_HP + 2*tb, 2)} offset:{1024*tb}")
    return o
def cost(x): return 2 if x.startswith(("v_exp", "v_rcp", "ds_write")) else 1
def place(fill, ops, g0, g1, cap3=0):
    gaps = list(range(g0, g1)); wts = [cap3 if g % 4 == LPOS else 2 for g in gaps]
    W = sum(wts); tot = sum(cost(x) for x in ops); c = 0; gi = 0; acc_w = wts[0]
    for x in ops:
        while (c + 0.5 * cost(x)) * W > acc_w * tot and gi < len(gaps) - 1:
            gi += 1; acc_w += wts[gi]
        fill[gaps[gi]].append(x); c += cost(x)
def waits(k, n, extra=lambda n: 0, base=None):
    if n % WG == 0:
        m = n + WG - 1
        k(f"s_waitcnt vmcnt({(NB - 1 - (WG - 1) + min(extra(i) for i in range(n, m + 1))) if base is None else base(m) + min(extra(i) for i in range(n, m + 1))})")

def groupA(k, par, last=False):
    acc = V_AC + 32 * par
    gl = gelu_ops(V_AC + 32 * (1 - par))
    gl += [f"v_add_u32 v{V_HW}, 0x2000, v{V_HW}"]
    fill = [[] for _ in range(144)]
    place(fill, gl, 6, 142)
    if last:
        k("s_waitcnt lgkmcnt(0)", "s_barrier")
        for f in range(56):
            g = 4 * (2 * (f // 4) + 2) + (f % 4) * 2
            fill[g].append(fread(f))
            if f % 8 == 7: fill[g + 1].append("s_waitcnt lgkmcnt(4)")
    tch = TOUCH and par == 0
    if tch: fill[1] += touch()
    for n in range(36):
        rg = v(V_RG + 4 * (n % NB), 4); ks, m = n // 2, n % 2
        waits(k, n, (lambda i: 1 if 1 <= i <= 17 else 0) if tch else (lambda i: 0))
        for q_ in range(4):
            tb = 3 - q_ if m else q_
            d = v(acc + 16*m + 4*tb, 4)
            k(f"v_mfma_f32_16x16x32_bf16 {d}, {rg}, {BREG(4*ks+tb)}, {'0' if ks == 0 else d}")
            if q_ == 3: k(wload(n))
            k(fill[4*n + q_])

def group0(k, lnq):
    acc = V_AC
    for i in range(6): k(lnq(i))
    k("s_waitcnt lgkmcnt(0)", "s_barrier")
    for f in range(24):
        k(fread(f))
        if f == 11: k("s_waitcnt lgkmcnt(6)")
    fill = [[] for _ in range(144)]
    for c in (1, 2):
        g0 = 48 * (c - 1)
        ops = [x for i in range(6 * c, 6 * c + 6) for x in lnq(i)]
        place(fill, ops, g0 + 1, g0 + 36, 1)
        fill[g0 + 36] += ["s_waitcnt lgkmcnt(0)", "s_barrier"]
        for f in range(24): fill[g0 + 37 + f * 10 // 24].append(fread(24 * c + f))
        fill[g0 + 42].append("s_waitcnt lgkmcnt(6)")
    for n in range(36):
        rg = v(V_RG + 4 * (n % NB), 4); ks, m = n // 2, n % 2
        lw = ""
        if n in (0, 12, 24): lw = " lgkmcnt(8)"
        if n in (6, 18, 30): lw = " lgkmcnt(0)" if n == 30 else ""
        k(f"s_waitcnt vmcnt({NB-1})")
        if n % 12 == 0: k("s_waitcnt lgkmcnt(8)")
        if n % 12 == 1: k("s_waitcnt lgkmcnt(0)") if not fill_has_ds(fill, 4 * n - 4, 4 * n) else k("s_waitcnt lgkmcnt(1)")
        for q_ in range(4):
            tb = 3 - q_ if m else q_
            d = v(acc + 16*m + 4*tb, 4)
            k(f"v_mfma_f32_16x16x32_bf16 {d}, {rg}, {BREG(4*ks+tb)}, {'0' if ks == 0 else d}")
            if q_ == 3: k(wload(n))
            k(fill[4*n + q_])
    k("s_barrier")
def fill_has_ds(fill, a_, b_): return any(x.startswith("ds_") for g in fill[a_:b_] for x in g)

def epiB_cvt(acc, O):
    return [f"v_cvt_pk_bf16_f32 v{O+2*tb+d}, v{acc+4*tb+2*d}, v{acc+4*tb+2*d+1}" for tb in range(4) for d in range(2)]
def epiB_swap(O):
    return [f"v_permlane16_swap_b32 v{O}, v{O+2}", f"v_permlane16_swap_b32 v{O+1}, v{O+3}",
            f"v_permlane16_swap_b32 v{O+4}, v{O+6}", f"v_permlane16_swap_b32 v{O+5}, v{O+7}"]
def epiB_store(O, sc):
    if sc == "none": return ["buffer_load_dword v255, v1, s[4:7], 0 offen ; WAWOK", "buffer_load_dword v255, v1, s[4:7], 0 offen ; WAWOK", "s_add_u32 s27, s27, 0x2000"]
    return [f"buffer_store_dwordx4 {v(O,4)}, v{V_ST}, s[16:19], s27 offen {sc}",
            f"buffer_store_dwordx4 {v(O+4,4)}, v{V_ST}, s[16:19], s27 offen offset:512 {sc}", "s_add_u32 s27, s27, 0x2000"]
def groupB(k, mode, sc, par, hook=None):
    acc = V_AC + 32 + 16 * par; prev = V_AC + 32 + 16 * (1 - par); O = V_HP
    fill = [[] for _ in range(72)]
    if mode == "first":
        place(fill, gelu_ops(V_AC), 4, 44, 1)
        fill[44] += ["s_waitcnt lgkmcnt(0)", "s_barrier"]
        for i in range(16): fill[45 + i // 2].append(fread(56 + i))
        fill[55] += ["s_waitcnt lgkmcnt(0)"]
        k("s_waitcnt lgkmcnt(0)")
    else:
        place(fill, epiB_cvt(prev, O), 4, 10)
        place(fill, epiB_swap(O), 12, 15)
        st = epiB_store(O, sc)
        fill[17].append(st[0]); fill[21] += st[1:]
    if hook: fill[4 * 6 + 1] += hook
    ex = (lambda n: 0) if mode == "first" else (lambda n: 0 if n <= 4 else (1 if n == 5 else 2))
    for n in range(18):
        rg = v(V_RG + 4 * n, 4)
        waits(k, n, ex, (lambda m: 17 - m) if mode == "last" else None)
        for tb in range(4):
            d = v(acc + 4*tb, 4)
            k(f"v_mfma_f32_16x16x32_bf16 {d}, {rg}, {BREG(4*n+tb)}, {'0' if n == 0 else d}")
            if tb == 3 and mode != "last": k(wload(n))
            k(fill[4*n + tb])
    if mode == "last":
        k("s_nop 7")
        k(epiB_cvt(acc, O)); k("s_nop 1"); k(epiB_swap(O)); k(epiB_store(O, sc))

TRIPS = [{"ffn_loopA": 3, "ffn_loopB": 2}]
TOUCH = 0
def gen_ffn(sc="sc1", st=0, mp=2, late=8, wg=1, tch_=0):
    global STAMP, MAP, WG, TOUCH
    TOUCH = int(tch_)
    STAMP, MAP, late, WG = int(st), int(mp), int(late), int(wg)
    if sc == "plain": sc = ""
    k = Kern("ffn")
    k.label("ffn_body")
    stamp(k, 0)
    k("s_cmp_ge_u32 s2, 256", "s_cbranch_scc1 ffn_done")
    k(f"s_load_dwordx2 s[36:37], s[0:1], {A_WS*8}")
    k("v_lshrrev_b32 v1, 6, v0", "v_and_b32 v0, 63, v0", "v_readfirstlane_b32 s20, v1")
    if MAP == 1:
        k("s_and_b32 s22, s2, 7", "s_lshr_b32 s21, s2, 3", "s_mov_b32 s44, s21")
    else:
        lg = {2: 1, 4: 2}[MAP]
        k("s_and_b32 s45, s2, 7", "s_lshr_b32 s46, s2, 3")
        k(f"s_lshr_b32 s22, s45, {lg}", f"s_lshl_b32 s22, s22, {lg}", f"s_and_b32 s47, s46, {MAP-1}", "s_add_u32 s22, s22, s47")
        k(f"s_lshr_b32 s44, s46, {lg}", f"s_lshl_b32 s21, s44, {lg}", f"s_and_b32 s47, s45, {MAP-1}", "s_add_u32 s21, s21, s47")
    k("s_mov_b32 s29, 0x3f803f80")
    t0, t1, t2, t5, t6 = 64, 65, 66, 67, 68
    k(f"v_lshrrev_b32 v{t0}, 4, v0", f"v_and_b32 v{t1}, 15, v0", "s_lshl_b32 s38, s20, 8")
    k(f"v_lshlrev_b32 v{t2}, 10, v{t0}", f"v_lshl_add_u32 v{t2}, v{t1}, 4, v{t2}", f"v_add_u32 v{V_XL}, s38, v{t2}")
    k(f"s_mul_i32 s39, s21, {TILE}", "s_add_u32 s39, s39, s3", f"s_add_u32 s39, s39, {hx(WS_X1)}")
    k("s_lshl_b32 s24, s22, 2", "s_add_u32 s24, s24, s20", f"s_mul_i32 s24, s24, {WFR*1024}", f"s_add_u32 s24, s24, {hx(WS_W)}")
    k(f"v_lshlrev_b32 v{V_WO}, 4, v0")
    srd_fill(k, 12, TILE); srd_fill(k, 4, WFR * 1024)
    k("s_mov_b32 s40, 0", "s_mov_b32 s23, 0")
    k("s_waitcnt lgkmcnt(0)")
    stamp(k, 1, 2)
    k("s_add_u32 s12, s36, s39", "s_addc_u32 s13, s37, 0")
    for i in range(18):
        k(f"buffer_load_dwordx4 {v(V_X+4*i,4)}, v{V_XL}, s[12:15], s40 offen")
        if i < 17: k("s_add_u32 s40, s40, 0x1000")
    k("s_add_u32 s4, s36, s24", "s_addc_u32 s5, s37, 0")
    if late < 0:
        for c in range(NB): k(wload(c))
    k("s_lshl_b32 s41, s22, 5", "s_add_u32 s41, s41, s21", f"s_mul_i32 s41, s41, {TILE}", "s_add_u32 s41, s41, s3", f"s_add_u32 s41, s41, {hx(WS_P)}")
    k("s_add_u32 s16, s36, s41", "s_addc_u32 s17, s37, 0")
    srd_fill(k, 16, TILE)
    k("s_mov_b32 s27, 0")
    k(f"v_and_b32 v{t6}, 1, v{t0}", f"v_lshrrev_b32 v{t5}, 1, v{t0}")
    k(f"v_add_u32 v{V_XR1}, 36864, v{V_XR0}")
    k("s_lshr_b32 s41, s20, 1", "s_lshl_b32 s41, s41, 12", "s_and_b32 s42, s20, 1", "s_lshl_b32 s42, s42, 3", "s_add_u32 s41, s41, s42", f"s_add_u32 s41, s41, {8*8192}")
    k(f"v_add_u32 v{V_HW}, s41, v{V_XR0}")
    k(f"s_mov_b32 s28, {hx(-8*8192)}")
    k("s_lshl_b32 s41, s20, 10", f"v_add_u32 v{V_XW}, s41, v{V_XR0}")
    k(f"v_lshlrev_b32 v{V_ST}, 10, v{t5}", f"v_lshl_add_u32 v{V_ST}, v{t6}, 8, v{V_ST}", f"v_lshl_add_u32 v{V_ST}, v{t1}, 4, v{V_ST}")
    k("s_lshl_b32 s41, s20, 11", f"v_add_u32 v{V_ST}, s41, v{V_ST}")
    k(f"v_mov_b32 v{V_C2}, {fl(C2)}")
    if TOUCH:
        k(f"s_mul_i32 s41, s44, {18*MAP}", f"v_add_u32 v{V_PF}, s41, v0", f"v_lshlrev_b32 v{V_PF}, 7, v{V_PF}")
        k(f"v_cmp_gt_u32 vcc, {18*MAP}, v0", f"v_mov_b32 v{V_JK}, 0x80000000", "s_mov_b32 s49, 0", f"v_cndmask_b32 v{V_PF}, v{V_JK}, v{V_PF}, vcc")
    ln_stats_norm(k, V_X, V_LT, 29)
    stamp(k, 2, 2)
    for i in range(18):
        k(f"s_waitcnt vmcnt({17 - i + (NB + (2 if TOUCH else 0) if i > late else 0)})")
        if i == 0: stamp(k, 3, 2)
        k(ln_acc(V_X, V_LT, 29, i))
        if i == late:
            if TOUCH: k(touch(), touch())
            for c in range(NB): k(wload(c))
    stamp(k, 4, 2)
    ln_finish(k, V_LT)
    for i in range(18):
        k(ln_apply(V_X, V_LT, i))
        off = i * 4096
        if off < 65536: k(f"ds_write_b128 v{V_XW}, {v(V_X+4*i,4)} offset:{off}")
        else:
            if i == 16: k(f"v_add_u32 v{V_XW}, 0x10000, v{V_XW}")
            k(f"ds_write_b128 v{V_XW}, {v(V_X+4*i,4)} offset:{off - 65536}")
    stamp(k, 5, 2)
    k("s_waitcnt lgkmcnt(0)", "s_barrier")
    for n in range(72):
        k(fread(n))
        if n % 8 == 7 and n < 64: k("s_waitcnt lgkmcnt(6)")
    k("s_waitcnt lgkmcnt(0)", "s_barrier")
    stamp(k, 1); stamp(k, 6, 2)
    k("s_mov_b32 s25, 4")
    k.label("ffn_loopA")
    groupA(k, 0); groupA(k, 1)
    k("s_sub_u32 s25, s25, 1", "s_cmp_lg_u32 s25, 0", "s_cbranch_scc1 ffn_loopA")
    stamp(k, 2)
    groupA(k, 0, last=True)
    stamp(k, 3)
    groupB(k, "first", sc, 0)
    groupB(k, "mid", sc, 1)
    stamp(k, 4)
    k("s_mov_b32 s25, 3")
    k.label("ffn_loopB")
    groupB(k, "mid", sc, 0); groupB(k, "mid", sc, 1)
    k("s_sub_u32 s25, s25, 1", "s_cmp_lg_u32 s25, 0", "s_cbranch_scc1 ffn_loopB")
    groupB(k, "last", sc, 0)
    if STAMP:
        stamp(k, 5)
        k("s_waitcnt vmcnt(0)")
        stamp(k, 6)
        k(f"s_load_dwordx2 s[44:45], s[0:1], {A_DBG*8}", "s_waitcnt lgkmcnt(0)")
        srd_fill(k, 44, 256)
        k("s_cmp_lg_u32 s20, 0", "s_cbranch_scc1 ffn_done", "s_cmp_ge_u32 s2, 4", "s_cbranch_scc1 ffn_done")
        k("s_lshl_b32 s48, s2, 6", "v_mov_b32 v2, s48")
        for i in range(7):
            k(f"s_sub_u32 s50, s{60+2*i}, s60", "v_mov_b32 v4, s50", "v_mov_b32 v5, 0", f"buffer_store_dwordx2 v[4:5], v2, s[44:47], 0 offen offset:{8*i}")
    k.label("ffn_done")
    k("s_endpgm")
    return k
if __name__ == "__main__":
    for wg in (1, 2, 3):
        k = gen_ffn(wg=wg)
        for e in check(k, TRIPS): print(e)
        print(len(k.L), "lines")
```

```python
from common import *
from k_ffn3 import BREG, fread, gelu_ops, place, epiB_cvt, epiB_swap, epiB_store, V_WO, V_HW, V_AC, V_RG, V_HP, V_T, V_X, V_LT, V_XL, V_XW, V_ST, V_XR1, V_C2, C2, fill_has_ds
NPRE = 18
def cfg(): return int(OPT.get("na", 18)), int(OPT.get("nbb", 18))
def sreg(s): return V_RG + 4 * s if s < 18 else (200 + 4 * (s - 18) if s < 32 else 48 + 4 * (s - 32))
def slot(f):
    NA, NBB = cfg()
    if f < 324: return f % NA
    b = (f - 324) % NBB
    return (324 + b) % NA if b < NA else b
class Stream:
    def __init__(s, nxt, q): s.n = nxt; s.q = list(q)
    def load(s, k):
        f = s.n
        k(f"buffer_load_dwordx4 {v(sreg(slot(f)), 4)}, v{V_WO}, s[4:7], s23 offen" + (f" offset:{(f%3)*1024}" if f % 3 else ""))
        if f % 3 == 2: k("s_add_u32 s23, s23, 0xc00")
        s.q.append(f); s.n += 1
    def wait(s, k, f):
        if f in s.q:
            i = s.q.index(f); k(f"s_waitcnt vmcnt({len(s.q) - 1 - i})"); s.q = s.q[i + 1:]
    def emit(s, k, ops):
        for x in ops:
            if x.startswith("XW"): x = f"s_waitcnt vmcnt({17 - int(x[3:]) + s.n - NPRE})"
            k(x)
            if x.startswith("buffer_") and "COND" not in x: s.q.append("x")
def preload(k):
    st = Stream(0, [])
    for _ in range(NPRE): st.load(k)
def posA(k, st, f, acc, fill, allow):
    n = f % 36; ks, m = n // 2, n % 2
    st.wait(k, f)
    for q_ in range(4):
        tb = 3 - q_ if m else q_
        d = v(acc + 16*m + 4*tb, 4)
        k(f"v_mfma_f32_16x16x32_bf16 {d}, {v(sreg(slot(f)), 4)}, {BREG(4*ks+tb)}, {'0' if ks == 0 else d}")
        if q_ == 3 and st.n <= allow(f) and st.n < 486: st.load(k)
        if q_ == 1 and st.n <= allow(f - 1) and st.n < 486: st.load(k)
        st.emit(k, fill[4*n + q_])
def group0(k, lnq):
    NA, _ = cfg()
    st = Stream(NPRE, range(NPRE))
    for i in range(6): st.emit(k, [f"XW {i}"] + lnq(i))
    k("s_waitcnt lgkmcnt(0)", "s_barrier")
    for f in range(24):
        k(fread(f))
        if f == 11: k("s_waitcnt lgkmcnt(6)")
    fill = [[] for _ in range(144)]
    for c in (1, 2):
        g0 = 48 * (c - 1)
        ops = [x for i in range(6 * c, 6 * c + 6) for x in [f"XW {i}"] + lnq(i)]
        place(fill, ops, g0 + 1, g0 + 36, 1)
        fill[g0 + 36] += ["s_waitcnt lgkmcnt(0)", "s_barrier"]
        for f in range(24): fill[g0 + 37 + f * 10 // 24].append(fread(24 * c + f))
        fill[g0 + 42].append("s_waitcnt lgkmcnt(6)")
    allow = (lambda f: f + NA if f >= 10 else (f + NA if NA == 18 else -1))
    for n in range(36):
        if n % 12 == 0: k("s_waitcnt lgkmcnt(8)")
        if n % 12 == 1: k("s_waitcnt lgkmcnt(0)") if not fill_has_ds(fill, 4 * n - 4, 4 * n) else k("s_waitcnt lgkmcnt(1)")
        posA(k, st, n, V_AC, fill, allow)
    k("s_barrier")
    assert st.n == 36 + NA and st.q == list(range(36, 36 + NA)), (st.n, st.q)
def groupA(k, g, extra=None):
    NA, _ = cfg(); par = g & 1; last = g == 8
    st = Stream(36 * g + NA, range(36 * g, 36 * g + NA))
    gl = gelu_ops(V_AC + 32 * (1 - par)) + [f"v_add_u32 v{V_HW}, 0x2000, v{V_HW}"]
    fill = [[] for _ in range(144)]
    place(fill, gl, 6, 142)
    if int(OPT.get("touch", 0)) and par == 1:
        fill[1] += ["buffer_load_dword v5, v11, s[4:7], s49 offen ; WAWOK", f"s_add_u32 s49, s49, {TILE}"]
        if int(OPT.get("touch", 0)) == 2: fill[73] += ["buffer_load_dword v5, v11, s[4:7], s49 offen ; WAWOK", f"s_add_u32 s49, s49, {TILE}"]
    if last:
        k("s_waitcnt lgkmcnt(0)", "s_barrier")
        for f in range(56):
            gp = 4 * (2 * (f // 4) + 2) + (f % 4) * 2
            fill[gp].append(fread(f))
            if f % 8 == 7: fill[gp + 1].append("s_waitcnt lgkmcnt(4)")
    for gp, ops in (extra or {}).items(): fill[gp] = fill[gp] + ops
    for n in range(36): posA(k, st, 36 * g + n, V_AC + 32 * par, fill, lambda f: f + NA)
def phaseB(k, sc, midhook, stp=None, midhook2=None):
    NA, NBB = cfg()
    st = Stream(324 + NA, range(324, 324 + NA))
    def allow(f):
        p = f - 324
        if p < 12: return min(f + NBB, 324 + 31)
        return f + NBB
    O = V_HP
    for g in range(9):
        acc = V_AC + 32 + 16 * (g & 1); prev = V_AC + 32 + 16 * (1 - (g & 1))
        fill = [[] for _ in range(72)]
        if stp and g in (1, 2, 5, 8): stp(k, f"B_g{g}")
        if g == 0:
            place(fill, gelu_ops(V_AC), 4, 44, 1)
            fill[44] += ["s_waitcnt lgkmcnt(0)", "s_barrier"]
            for i in range(16): fill[45 + i // 2].append(fread(56 + i))
            fill[55] += ["s_waitcnt lgkmcnt(0)"]
            k("s_waitcnt lgkmcnt(0)")
        else:
            place(fill, epiB_cvt(prev, O), 4, 10); place(fill, epiB_swap(O), 12, 15)
            s_ = epiB_store(O, sc); fill[17].append(s_[0]); fill[21] += s_[1:]
        for n in range(18):
            f = 324 + 18 * g + n
            st.wait(k, f)
            if midhook and "mid" not in st.__dict__ and g >= 5 and st.q.count("x") <= (2 * (g - 4) if n > 5 else 2 * (g - 5) + (1 if n == 5 else 0)):
                st.mid = True; st.emit(k, midhook); print("mid flag at B pos", 18 * g + n, file=__import__("sys").stderr)
            if midhook2 and "mid2" not in st.__dict__ and g == 8 and n > 5 and st.q.count("x") <= 2:
                st.mid2 = True; st.emit(k, midhook2); print("mid2 flag at B pos", 18 * g + n, file=__import__("sys").stderr)
            for tb in range(4):
                d = v(acc + 4*tb, 4)
                k(f"v_mfma_f32_16x16x32_bf16 {d}, {v(sreg(slot(f)), 4)}, {BREG(4*n+tb)}, {'0' if n == 0 else d}")
                if tb == 3 and st.n <= allow(f) and st.n < 486: st.load(k)
                if tb == 1 and st.n <= allow(f - 1) and st.n < 486: st.load(k)
                st.emit(k, fill[4*n + tb])
    k("s_nop 7")
    k(epiB_cvt(acc, O)); k("s_nop 1"); k(epiB_swap(O)); k(epiB_store(O, sc))
```

```python
from common import *
import k_ffn3 as FF
import k_ffn4 as F4
LDS = 163840
SC = "sc1"
S_WS, S_X, S_OUT, S_NON, S_FL = 96, 98, 100, 90, 92
S_FO = 19
S_FO = 75 + 0
V_L16, V_PD, V_PT0, V_PT1, V_STAMP = 1, 12, 13, 14, 15
F_P0, F_QKV, F_ATT, F_WO, F_FFN, F_RED, F_PF = 0, 1, 2, 3, 4, 5, 11
STG_Q, STG_O, STG_F, STG_J = 73728, 91648, 96768, 73728
F_PJ = 12 * 2048 + 2 * 8192
WOIMG = 51200
NST = [0]
def st(k, name=""):
    if STAMP[0]:
        k("s_memtime s[0:1]" if STAMP[0] == 2 else "s_memrealtime s[0:1]", "s_waitcnt lgkmcnt(0)", f"v_writelane_b32 v{V_STAMP}, s0, {NST[0]}" + f" ; {name}")
        NAMES.append(name); NST[0] += 1
NAMES = []
def add64(k, d, base, off_s):
    k(f"s_add_u32 s{d}, s{base}, s{off_s}", f"s_addc_u32 s{d+1}, s{base+1}, 0")
LBL = [0]
def publish(k, fid, layered=True, vm=0, idx="task", extra=None, keep=False):
    LBL[0] += 1; L = f"pub{LBL[0]}"
    k(f"s_waitcnt vmcnt({vm})", "s_barrier", "s_cmp_lg_u32 s20, 0", f"s_cbranch_scc1 {L}")
    if idx == "task": k("s_lshl_b32 s23, s21, 3", "s_add_u32 s23, s23, s22", "s_lshl_b32 s23, s23, 3")
    else: k("s_lshl_b32 s23, s2, 3")
    k(f"s_add_u32 s23, s23, {fid*2048}")
    if layered: k("s_add_u32 s23, s23, s14")
    k("s_mov_b64 exec, 1", "v_mov_b32 v9, 0", f"v_mov_b32 v10, s{S_NON}", f"v_mov_b32 v11, s{S_NON+1}")
    k(f"buffer_store_dwordx2 v[10:11], v9, s[{S_FL}:{S_FL+3}], s23 offen {SC}")
    if extra is not None:
        k("s_cmp_lg_u32 s3, 0", f"s_cbranch_scc1 {L}_x")
        k("s_lshl_b32 s23, s2, 3", f"s_add_u32 s23, s23, {extra*2048}", f"buffer_store_dwordx2 v[10:11], v9, s[{S_FL}:{S_FL+3}], s23 offen {SC}")
        k.label(f"{L}_x")
    k("s_mov_b64 exec, -1")
    k.label(L)
def wait(k, setup):
    LBL[0] += 1; L = f"wt{LBL[0]}"
    k("s_cmp_lg_u32 s20, 0", f"s_cbranch_scc1 {L}_d")
    k(setup, "s_mov_b32 s23, 0x10000")
    k.label(f"{L}_l")
    k(f"buffer_load_dwordx2 v[10:11], v9, s[{S_FL}:{S_FL+3}], 0 offen {SC}", "s_waitcnt vmcnt(0)")
    k(f"v_cmp_ne_u64 vcc, s[{S_NON}:{S_NON+1}], v[10:11]", "s_sub_u32 s23, s23, 1", "s_cselect_b64 s[24:25], 0, -1", "s_nop 1", "s_and_b64 vcc, vcc, s[24:25]", f"s_cbranch_vccnz {L}_l")
    k.label(f"{L}_d")
    k("s_barrier")
def tile_flags(fid, prev_layer=False):
    o = ["v_and_b32 v9, 7, v0", "s_lshl_b32 s23, s21, 3", "v_add_u32 v9, s23, v9", "v_lshlrev_b32 v9, 3, v9", f"s_add_u32 s23, s14, {hx(fid*2048 - (5*2048 if prev_layer else 0))}", "v_add_u32 v9, s23, v9"]
    return o

def div18(su, sq, sr): return [f"s_mul_i32 s{sq}, s{su}, 3641", f"s_lshr_b32 s{sq}, s{sq}, 16", f"s_mul_i32 s{sr}, s{sq}, 18", f"s_sub_u32 s{sr}, s{su}, s{sr}"]
def soffA(rd): return [f"s_add_u32 s76, s74, {32*rd}"] + div18(76, 78, 79) + [f"s_mul_i32 s79, s79, {32*9216}", "s_lshl_b32 s78, s78, 7", "s_add_u32 s78, s78, s79", "s_mul_i32 s79, s75, 1152", "s_add_u32 s78, s78, s79"]
def soffB(rd, d): return [f"s_add_u32 s76, s74, {hx(32*rd - 162)}", "s_lshl_b32 s76, s76, 1"] + div18(76, d, 79) + [f"s_mul_i32 s79, s79, {32*1152}", f"s_lshl_b32 s{d}, s{d}, 7", f"s_add_u32 s{d}, s{d}, s79", f"s_mul_i32 s79, s75, {576*1152}", f"s_add_u32 s{d}, s{d}, s79"]
J_PD, J_T0, J_T1 = 240, 243, 246
def dma_round(rd, lds):
    if rd <= 4: pre, s1, s2, o2, vd = soffA(rd), 60, 64, 78, V_PD
    elif rd == 5:
        pre = soffB(5, 77) + soffA(5) + ["s_cmp_lt_u32 s74, 2", "s_cselect_b32 s78, s78, s77", f"s_cselect_b32 s79, 0, {32*1152}", "s_add_u32 s77, s78, s79"]
        s1, s2, o2, vd = 80, 84, 77, J_PD + 2
    else: pre, s1, s2, o2, vd = soffB(rd, 78) + [f"s_add_u32 s77, s78, {32*1152}"], 36, 36, 77, J_PD + 1
    return [pre + [f"s_add_u32 m0, s88, {lds}", "s_nop 0", f"buffer_load_dwordx4 v{vd}, s[{s1}:{s1+3}], s78 offen lds"],
            [f"s_add_u32 m0, s88, {lds + 4096}", "s_nop 0", f"buffer_load_dwordx4 v{vd}, s[{s2}:{s2+3}], s{o2} offen lds"]]
def tr_round(T, t0, t1, off): return [f"ds_read_b64_tr_b16 {v(T + 4*u + 2*e, 2)}, v{(t0, t1)[e]} offset:{off + 4096*u}" for u in range(2) for e in range(2)]
def st_round(rd, T):
    pre = [f"s_add_u32 s76, s74, {32*rd}", "s_lshl_b32 s78, s76, 11"]
    if rd == 7: pre += ["s_cmp_lt_u32 s76, 243", f"s_cselect_b32 s70, {WFR*1024}, 0"]
    return [pre + [f"buffer_store_dwordx4 {v(T,4)}, v{V_L16}, s[68:71], s78 offen {SC}"], [f"buffer_store_dwordx4 {v(T+4,4)}, v{V_L16}, s[68:71], s78 offen offset:1024 {SC}"]]
def jit_setup():
    q4, r4, c4, t, l8 = 250, 251, 252, 253, 254
    o = [f"v_lshrrev_b32 v{q4}, 4, v0", f"v_bfe_u32 v{r4}, v0, 2, 2", f"v_and_b32 v{c4}, 7, v0", f"v_lshlrev_b32 v{t}, 1, v{q4}", f"v_xor_b32 v{t}, v{t}, v{c4}", f"v_lshlrev_b32 v{t}, 4, v{t}",
         f"v_lshrrev_b32 v{l8}, 3, v0", "s_lshl_b32 s76, s20, 3", f"v_add_u32 v{l8}, s76, v{l8}", f"v_mul_u32_u24 v{l8}, 1152, v{l8}", f"v_add_u32 v{J_PD+1}, v{t}, v{l8}",
         f"v_add_u32 v{J_T0}, {STG_J}, v{V_PT0}", f"v_add_u32 v{J_T1}, 512, v{J_T0}", f"v_lshlrev_b32 v{t}, 9, v{q4}", f"v_sub_u32 v{J_T0+1}, v{J_T0}, v{t}", f"v_add_u32 v{J_T1+1}, 2048, v{J_T0+1}",
         "s_cmp_lt_u32 s74, 2", "s_cselect_b64 vcc, -1, 0", "s_cselect_b64 s[80:81], s[60:61], s[72:73]", "s_cselect_b64 s[84:85], s[64:65], s[72:73]", "s_mov_b64 s[36:37], s[72:73]",
         f"v_cndmask_b32 v{J_PD+2}, v{J_PD+1}, v{V_PD}, vcc", f"v_cndmask_b32 v{J_T0+2}, v{J_T0+1}, v{J_T0}, vcc", f"v_cndmask_b32 v{J_T1+2}, v{J_T1+1}, v{J_T1}, vcc", "s_lshl_b32 s88, s20, 10"]
    for r_ in (36, 80, 84): o += [f"s_mov_b32 s{r_+2}, {hx(D*F*2)}", f"s_mov_b32 s{r_+3}, 0x00020000"]
    return o

Q_XL, Q_SQ, Q_S8, Q_STL, Q_TS, Q_BR1, Q_XW = 2, 3, 4, 5, 6, 7, 8
Q_A2 = 160
Q_AC, Q_B, Q_LT, Q_T, Q_X = 48, 112, 144, 161, 184
BREG = FF.BREG
def q_aload(n):
    o = [f"buffer_load_dwordx4 {BREG(n)}, v{Q_A2 if n % 4 >= 2 else V_L16}, s[4:7], s26 offen" + (f" offset:{(n%4)*1024}" if n % 4 else "") + f" {SC}"]
    if n % 4 == 3: o.append("s_add_u32 s26, s26, 0x1000")
    return o
def q_setup(k):
    q4, tk, r1, r2, t5, t6 = range(Q_T, Q_T + 6)
    k(f"v_lshrrev_b32 v{q4}, 4, v0", f"v_and_b32 v{tk}, 15, v0", f"v_and_b32 v{r1}, 1, v{q4}", f"v_lshrrev_b32 v{r2}, 1, v{q4}")
    k("s_lshl_b32 s38, s20, 10", f"v_add_u32 v{Q_XW}, s38, v{V_L16}", f"v_add_u32 v{Q_BR1}, 36864, v{V_L16}")
    k(f"v_lshlrev_b32 v{t5}, 4, v{tk}", f"v_lshl_add_u32 v{t6}, v{r2}, 9, v{t5}", f"v_lshl_add_u32 v{Q_SQ}, v{r1}, 11, v{t6}")
    k(f"v_lshl_add_u32 v{t6}, v{r1}, 1, v{r2}", f"v_lshlrev_b32 v{r1}, 2, v{t6}", f"v_xor_b32 v{r1}, v{r1}, v{tk}", f"v_lshlrev_b32 v{r1}, 4, v{r1}", f"v_lshl_add_u32 v{t6}, v{t6}, 10, v{r1}")
    k("s_cmp_eq_u32 s20, 2", "s_cselect_b64 vcc, -1, 0", "s_cselect_b32 s39, 512, 0x400", f"v_cndmask_b32 v{Q_SQ}, v{Q_SQ}, v{t6}, vcc")
    k("s_lshl_b32 s40, s20, 13", "s_add_u32 s41, s40, s39", "s_add_u32 s42, s40, 0x1000", "s_add_u32 s43, s41, 0x1000")
    k(f"v_lshl_add_u32 v{t6}, v{q4}, 3, v{t5}", f"v_add_u32 v{t6}, {KV_V + 8192}, v{t6}", f"v_mov_b32 v{r1}, 0x80000000", f"v_cmp_gt_u32 vcc, 2, v{q4}", f"v_mov_b32 v{r2}, {fl(QSCALE)}", "s_nop 0")
    k(f"v_cndmask_b32 v{Q_S8}, v{r1}, v{t6}, vcc", f"v_cndmask_b32 v{Q_TS}, 1.0, v{r2}, vcc")
    k(f"v_lshlrev_b32 v{t6}, 9, v{q4}", f"v_lshl_add_u32 v{t6}, v{tk}, 3, v{t6}", f"v_add_u32 v{Q_STL}, {KV_QT}, v{t6}")
    k("s_cmp_eq_u32 s20, 3", "s_cselect_b64 vcc, -1, 0", f"v_cndmask_b32 v{Q_A2}, v{V_L16}, v{r1}, vcc")
    k("s_lshl_b32 s38, s22, 2", "s_add_u32 s38, s38, s20", f"s_mul_i32 s38, s38, {72*1024}", f"s_add_u32 s38, s38, {hx(WS_WQ)}"); add64(k, 4, S_WS, 38); srd_fill(k, 4, 72 * 1024)
    k("s_lshl_b32 s38, s21, 3", "s_add_u32 s38, s38, s22", f"s_mul_i32 s38, s38, {KVB}", "s_add_u32 s38, s38, s3"); add64(k, 16, S_WS, 38); srd_fill(k, 16, KVB)
    k("s_mov_b32 s26, 0", "s_mov_b32 s29, 0x3f803f80", f"s_mov_b32 s28, {fl(QSCALE)}")
def ln_write(k, i, X, XW):
    off = i * 4096
    if i == 16: k(f"v_add_u32 v{XW}, 0x10000, v{XW}")
    k(f"ds_write_b128 v{XW}, {v(X+4*i,4)} offset:{off if off < 65536 else off - 65536}")
def q_bread(ks): return [f"ds_read_b128 {v(Q_B + 16*(ks&1) + 4*tb, 4)}, v{Q_BR1 if ks >= 9 else V_L16} offset:{((4*ks+tb) % 36)*1024}" for tb in range(4)]
def q_lnq(i, pk):
    kk = Kern("t"); kk(ln_apply(Q_X, Q_LT, i, pk=pk)); ln_write(kk, i, Q_X, Q_XW); return kk.L
def q_loop(k, na, q, extra, chunk=True):
    k(q_bread(0))
    fill = [[] for _ in range(18 * 16)]
    for c in ((1, 2) if chunk is True else ()):
        ops = [x for i in range(6 * c, 6 * c + 6) for x in q_lnq(i, False)]
        g0 = 96 * (c - 1)
        gaps = [g for g in range(g0, g0 + 80) if g % 4 in (1, 3)]
        for n, x in enumerate(ops): fill[gaps[n * len(gaps) // len(ops)]].append(x)
    for ks in range(18):
        need = 4 * ks + 3
        assert need < na, (ks, na)
        if chunk == "dma" and ks in (5, 11) and f"X{ks+6}" in q and (need not in q or q.index(need) < q.index(f"X{ks+6}")): need = f"X{ks+6}"
        if need in q:
            w = len(q) - 1 - q.index(need); q = q[q.index(need) + 1:]
            k(f"s_waitcnt vmcnt({min(63, w)}) lgkmcnt(0)")
        else: k("s_waitcnt lgkmcnt(0)")
        if ks in (5, 11) and chunk: k("s_barrier")
        br = q_bread(ks + 1) if ks < 17 else []
        for tb in range(4):
            for ht in range(4):
                ac = v(Q_AC + 16*ht + 4*tb, 4)
                k(f"v_mfma_f32_16x16x32_bf16 {ac}, {BREG(4*ks+ht)}, {v(Q_B + 16*(ks&1) + 4*tb, 4)}, {'0' if ks == 0 else ac}")
                if tb < 2 and ht in (0, 1) and br: k(br[2 * tb + ht])
                if ht == 2 and na < 72 and len(q) < 44: k(q_aload(na)); q.append(na); na += 1
                k(fill[16 * ks + 4 * tb + ht])
        for fn, nv in extra.get(ks, []):
            fn(); q += ["x"] * nv
def q_epi(k):
    st(k, "qkv_mfma")
    P = Q_X
    k("s_cmp_eq_u32 s20, 3", "s_cbranch_scc1 q_epi3", "s_cmp_lg_u32 s20, 0", "s_cbranch_scc1 q_noscale", "s_nop 3")
    for i in range(64): k(f"v_mul_f32 v{Q_AC+i}, s28, v{Q_AC+i}")
    k.label("q_noscale")
    k("s_nop 3")
    for pr in range(2):
        for tb in range(4):
            O = P + 16 * pr + 4 * tb
            for h in range(2):
                for d in range(2): k(f"v_cvt_pk_bf16_f32 v{O+2*h+d}, v{Q_AC+16*(2*pr+h)+4*tb+2*d}, v{Q_AC+16*(2*pr+h)+4*tb+2*d+1}")
        for tb in range(4):
            O = P + 16 * pr + 4 * tb
            for d in range(2): k(f"v_permlane16_swap_b32 v{O+d}, v{O+2+d}")
        for tb in range(4):
            k(f"buffer_store_dwordx4 {v(P+16*pr+4*tb,4)}, v{Q_SQ}, s[16:19], s{40 + 2*pr + (tb>>1)} offen offset:{256*(tb&1)} {SC}")
    k("s_branch q_epid")
    k.label("q_epi3")
    k("s_nop 7")
    for tb in range(4):
        for i in range(4): k(f"v_mul_f32 v{Q_AC+16+4*tb+i}, v{Q_TS}, v{Q_AC+16+4*tb+i}")
    for h in range(2):
        for tb in range(4):
            for d in range(2): k(f"v_cvt_pk_bf16_f32 v{P+8*h+2*tb+d}, v{Q_AC+16*h+4*tb+2*d}, v{Q_AC+16*h+4*tb+2*d+1}")
    for tb in range(4):
        k(f"buffer_store_dwordx2 {v(P+2*tb,2)}, v{Q_S8}, s[16:19], 0 offen offset:{256*tb} {SC}", f"buffer_store_dwordx2 {v(P+8+2*tb,2)}, v{Q_STL}, s[16:19], 0 offen offset:{128*tb} {SC}")
    k.label("q_epid")

def startup(k):
    k("s_cmp_ge_u32 s2, 256", "s_cbranch_scc1 mega_done")
    k(f"s_load_dwordx4 s[28:31], s[0:1], 0", f"s_load_dwordx2 s[32:33], s[0:1], {A_WO*8}", f"s_load_dwordx4 s[60:63], s[0:1], {A_WG*8}",
      f"s_load_dwordx4 s[48:51], s[0:1], {A_WD*8}", f"s_load_dwordx4 s[52:55], s[0:1], {A_DBG*8}")
    k("v_lshrrev_b32 v1, 6, v0", "v_and_b32 v0, 63, v0", "v_readfirstlane_b32 s20, v1", f"v_lshlrev_b32 v{V_L16}, 4, v0", "s_mov_b32 s3, 0")
    if STAMP[0]: k(f"v_mov_b32 v{V_STAMP}, 0")
    if int(OPT.get("cpf", 1)):
        k("s_cmp_lg_u32 s20, 3", "s_cbranch_scc1 no_cpf", "s_getpc_b64 s[34:35]")
        k.label("cpf_base")
        k("s_lshr_b32 s36, s2, 3", "s_lshl_b32 s36, s36, 4", "v_add_u32 v4, s36, v0", "v_and_b32 v4, 511, v4", "v_lshlrev_b32 v4, 7, v4", "v_mov_b32 v7, s35")
        k("v_min_u32 v6, mega_done-cpf_base, v4", "v_add_co_u32 v2, vcc, s34, v6", "s_nop 1", "v_addc_co_u32 v3, vcc, 0, v7, vcc", "global_load_dword v5, v[2:3], off ; WAWOK")
        k.label("no_cpf")
    wgmap(k, int(OPT.get("q0map", 2)))
    T = 16
    q4, tk, tok, t3, t4, t5, t6, t7, tmp, t9 = range(T, T + 10)
    DQ, DO, TQ, TO = 32, 36, 38, 42
    k(f"v_lshrrev_b32 v{q4}, 4, v0", f"v_and_b32 v{tk}, 15, v0", "s_lshl_b32 s38, s20, 4", f"v_add_u32 v{tok}, s38, v{tk}")
    k(f"v_mul_u32_u24 v{Q_XL}, 1152, v{tok}", f"v_lshl_add_u32 v{Q_XL}, v{q4}, 4, v{Q_XL}")
    hi, c, u, h, col = t3, t4, t5, t6, t7
    k(f"v_lshrrev_b32 v{hi}, 5, v0", f"v_and_b32 v{c}, 31, v0", f"v_lshlrev_b32 v{tmp}, 1, v{hi}", f"v_sub_u32 v{c}, v{c}, v{tmp}")
    k(f"v_lshrrev_b32 v{u}, 1, v{c}", f"v_and_b32 v{h}, 1, v{c}")
    k(f"v_and_b32 v{col}, 3, v{u}", f"v_mul_u32_u24 v{col}, 36, v{col}", f"v_and_b32 v{tmp}, 1, v{u}", f"v_lshl_add_u32 v{col}, v{tmp}, 2, v{col}", f"v_lshl_add_u32 v{col}, v{h}, 4, v{col}")
    k(f"v_lshrrev_b32 v{tmp}, 2, v{u}", f"v_mul_u32_u24 v{tmp}, 1152, v{tmp}", f"v_add_u32 v{col}, v{col}, v{tmp}")
    k(f"v_subrev_u32 v{tmp}, 8, v{u}", f"v_mul_u32_u24 v{tmp}, 1152, v{tmp}", f"v_mul_u32_u24 v{t9}, 72, v{h}", f"v_add3_u32 v{tmp}, v{tmp}, v{t9}, 32")
    k(f"v_cmp_lt_u32 vcc, 7, v{u}", "s_nop 1", f"v_cndmask_b32 v{col}, v{col}, v{tmp}, vcc")
    k(f"v_lshlrev_b32 v{tmp}, 4, v{c}", f"v_add_u32 v{tmp}, {2304 - 320}, v{tmp}")
    k(f"v_cmp_lt_u32 vcc, 9, v{u}", "s_nop 1", f"v_cndmask_b32 v{col}, v{col}, v{tmp}, vcc")
    k(f"v_mul_u32_u24 v{tmp}, 3456, v{hi}", f"s_mul_i32 s42, s20, {8*3456}", f"v_add3_u32 v{col}, v{col}, v{tmp}, s42")
    k(f"v_mov_b32 v{t9}, 0x80000000", f"v_cmp_gt_u32 vcc, 29, v{c}", "s_nop 1", f"v_cndmask_b32 v{DQ}, v{t9}, v{col}, vcc")
    for i in range(1, 4): k(f"v_add_u32 v{DQ+i}, {i*(6912-1088)}, v{DQ}")
    k("s_sub_u32 s34, s2, 112", "s_lshr_b32 s35, s34, 3", "s_and_b32 s34, s34, 7", "s_movk_i32 s40, 6554")
    n_, lam, cc, t1, t2 = t3, t4, t5, t6, t7
    for x in range(2):
        if x == 0: k("s_lshl_b32 s41, s20, 6", f"v_add_u32 v{n_}, s41, v0")
        else: k(f"v_add_u32 v{n_}, 256, v0")
        k(f"v_mul_u32_u24 v{lam}, s40, v{n_}", f"v_lshrrev_b32 v{lam}, 16, v{lam}", f"v_mul_u32_u24 v{cc}, 10, v{lam}", f"v_sub_u32 v{cc}, v{n_}, v{cc}")
        k(f"v_lshrrev_b32 v{t1}, 4, v{lam}", f"v_lshl_add_u32 v{n_}, v{t1}, 2, v{lam}")
        k(f"v_bfe_u32 v{t2}, v{lam}, 2, 1", f"v_lshl_add_u32 v{t1}, v{t1}, 1, v{t2}", f"v_mul_u32_u24 v{t1}, 72, v{t1}")
        k(f"v_bfe_u32 v{t2}, v{lam}, 3, 1", f"v_mul_u32_u24 v{t2}, 36, v{t2}", f"v_add3_u32 v{t1}, v{t1}, v{t2}, 16", f"v_and_b32 v{t2}, 3, v{lam}", f"v_add_u32 v{t1}, v{t1}, v{t2}")
        k("s_cmp_lt_u32 s35, 16", "s_cselect_b64 vcc, -1, 0", f"v_cndmask_b32 v{t1}, v{t1}, v{n_}, vcc")
        k(f"v_mul_u32_u24 v{t1}, 1152, v{t1}", f"v_lshl_add_u32 v{t1}, v{cc}, 4, v{t1}", f"v_cmp_gt_u32 vcc, 9, v{cc}", "s_nop 1", f"v_cndmask_b32 v{DO+x}, v{t9}, v{t1}, vcc")
    k("s_cmp_eq_u32 s20, 0", "s_cselect_b64 vcc, -1, 0", f"v_cndmask_b32 v{DO+1}, v{t9}, v{DO+1}, vcc")
    k(f"s_mul_i32 s36, s35, {36*1152}", "s_sub_u32 s37, s35, 16", f"s_mul_i32 s37, s37, {288*1152}", "s_cmp_lt_u32 s35, 16", "s_cselect_b32 s36, s36, s37", "s_mul_i32 s37, s34, 144", "s_add_u32 s36, s36, s37")
    k("s_and_b32 s37, s2, 7", "s_mul_i32 s37, s37, 144", "s_lshr_b32 s39, s2, 3", f"s_mul_i32 s39, s39, {32*3456}", "s_add_u32 s37, s37, s39")
    srd_fill(k, 12, TILE)
    k(f"s_mul_i32 s39, s21, {TILE}")
    k("s_waitcnt lgkmcnt(0)")
    st(k, "kernarg")
    k(f"s_mov_b32 s{S_WS}, s54", f"s_mov_b32 s{S_WS+1}, s55", f"s_mov_b32 s{S_X}, s28", f"s_mov_b32 s{S_X+1}, s29", f"s_mov_b32 s{S_OUT}, s50", f"s_mov_b32 s{S_OUT+1}, s51")
    k("s_mov_b32 s4, s30", "s_mov_b32 s5, s31", "s_cmp_lt_u32 s2, 144", f"s_cselect_b32 s6, {D*3*D*2}, 0", "s_mov_b32 s7, 0x00020000")
    k("s_mov_b32 s8, s32", "s_mov_b32 s9, s33", "s_cmp_ge_u32 s2, 112", f"s_cselect_b32 s10, {D*D*2}, 0", "s_mov_b32 s11, 0x00020000")
    k("s_mul_i32 s40, s20, 4480", f"s_add_u32 m0, s40, {STG_Q}", "s_nop 0")
    for i in range(4): k(f"buffer_load_dwordx4 v{DQ+i}, s[4:7], s37 offen offset:{1088*i} lds")
    k("s_lshl_b32 s40, s20, 10", f"s_add_u32 m0, s40, {STG_O}", "s_nop 0", f"buffer_load_dwordx4 v{DO}, s[8:11], s36 offen lds")
    k("s_cmp_eq_u32 s20, 0", f"s_cselect_b32 m0, {STG_O + 4096}, 145920", "s_nop 0", f"buffer_load_dwordx4 v{DO+1}, s[8:11], s36 offen lds")
    add64(k, 12, S_X, 39)
    for i in range(18): k(f"buffer_load_dwordx4 {v(Q_X+4*i,4)}, v{Q_XL}, s[12:15], 0 offen offset:{64*i}")
    k("s_mov_b32 s56, s52", "s_mov_b32 s57, s53"); srd_fill(k, 56, 256)
    k("s_or_b32 s38, s2, s20", "s_cmp_lg_u32 s38, 0", "s_cbranch_scc1 no_nonce")
    k("s_memrealtime s[38:39]", "s_waitcnt lgkmcnt(0)", "s_or_b32 s38, s38, 1", "s_mov_b64 exec, 1", "v_mov_b32 v9, 0", "v_mov_b32 v10, s38", "v_mov_b32 v11, s39")
    k(f"buffer_store_dwordx2 v[10:11], v9, s[56:59], 0 offen {SC}", "s_waitcnt vmcnt(0)", "s_mov_b64 exec, -1")
    k.label("no_nonce")
    k(f"s_add_u32 s{S_FL}, s{S_WS}, {hx(WS_F)}", f"s_addc_u32 s{S_FL+1}, s{S_WS+1}, 0"); srd_fill(k, S_FL, 12 * 2048 + 3 * 8192)
    r4, c4 = t3, t4
    k(f"v_bfe_u32 v{r4}, v0, 2, 2", f"v_and_b32 v{c4}, 3, v0")
    k(f"v_mul_u32_u24 v{t5}, 4480, v{q4}", f"v_mul_u32_u24 v{t6}, 544, v{r4}", f"v_add3_u32 v{t5}, v{t5}, v{t6}, {STG_Q}".replace(f", {STG_Q}", ", 0"), f"v_add_u32 v{t5}, {STG_Q}, v{t5}", f"v_lshl_add_u32 v{t5}, v{c4}, 3, v{t5}")
    k("s_lshl_b32 s40, s20, 7", "s_cmp_ge_u32 s20, 2", "s_cselect_b32 s41, 64, 0", "s_add_u32 s40, s40, s41")
    k(f"v_add_u32 v{TQ}, s40, v{t5}", f"v_add_u32 v{TQ+1}, 32, v{TQ}", f"v_lshl_add_u32 v{t6}, v{c4}, 3, v{t5}", f"v_add_u32 v{t6}, 256, v{t6}")
    k("s_cmp_eq_u32 s20, 3", "s_cselect_b64 vcc, -1, 0", f"v_cndmask_b32 v{TQ+1}, v{TQ+1}, v{t6}, vcc")
    k(f"v_lshrrev_b32 v{t6}, 1, v{q4}", f"v_and_b32 v{t7}, 1, v{q4}", f"v_lshl_add_u32 v{tmp}, v{t7}, 2, v{r4}", f"v_lshl_add_u32 v{tmp}, v{t6}, 4, v{tmp}", f"v_mul_u32_u24 v{tmp}, 160, v{tmp}")
    k(f"v_lshl_add_u32 v{tmp}, v{c4}, 3, v{tmp}", f"v_add_u32 v{TO+1}, {STG_O + 128}, v{tmp}", "s_lshl_b32 s40, s20, 5", f"s_add_u32 s40, s40, {STG_O}", f"v_add_u32 v{TO}, s40, v{tmp}")
    k("s_and_b32 s40, s2, 7", "s_lshl_b32 s40, s40, 2", "s_add_u32 s40, s40, s20", f"s_mul_i32 s40, s40, {72*1024}", f"s_add_u32 s40, s40, {hx(WS_WQ)}")
    k("s_lshr_b32 s41, s2, 3", "s_lshl_b32 s41, s41, 12", "s_add_u32 s42, s41, 0x800", "s_cmp_eq_u32 s20, 3", "s_cselect_b64 vcc, -1, 0", f"v_cndmask_b32 v44, v{V_L16}, v{t9}, vcc")
    k(f"s_mul_i32 s43, s34, {90*1024}", f"s_add_u32 s43, s43, {hx(WS_WO)}", "s_mul_i32 s45, s35, 5120", "s_lshl_b32 s46, s20, 10", "s_add_u32 s46, s46, s45", "s_add_u32 s45, s45, 4096", "s_cmp_eq_u32 s20, 0", "s_cselect_b64 vcc, -1, 0", f"v_cndmask_b32 v45, v{t9}, v{V_L16}, vcc")
    k("s_mov_b32 s64, s62", "s_mov_b32 s65, s63", "s_mov_b64 s[72:73], s[48:49]", "s_lshr_b32 s74, s2, 3", "s_and_b32 s75, s2, 7")
    srd_fill(k, 60, D * F * 2); srd_fill(k, 64, D * F * 2)
    k("s_lshl_b32 s76, s75, 2", "s_add_u32 s76, s76, s20", f"s_mul_i32 s76, s76, {WFR*1024}", f"s_add_u32 s76, s76, {hx(WS_W)}"); add64(k, 68, S_WS, 76); srd_fill(k, 68, WFR * 1024)
    l8, l7 = t5, t6
    k(f"v_lshrrev_b32 v{l8}, 3, v0", f"v_and_b32 v{l7}, 7, v0", "s_lshl_b32 s76, s20, 3", f"v_add_u32 v{l8}, s76, v{l8}")
    k("s_and_b32 s76, s20, 1", "s_lshl_b32 s76, s76, 1", f"v_add_u32 v{tmp}, s76, v{t7}", f"v_lshlrev_b32 v{tmp}, 1, v{tmp}", f"v_xor_b32 v{tmp}, v{tmp}, v{l7}", f"v_lshlrev_b32 v{tmp}, 4, v{tmp}")
    k(f"v_mul_u32_u24 v{l8}, 9216, v{l8}", f"v_add_u32 v{V_PD}, v{tmp}, v{l8}")
    k(f"v_lshrrev_b32 v{tmp}, 1, v{r4}", f"v_lshl_add_u32 v{tmp}, v{t7}, 1, v{tmp}", f"v_xor_b32 v{tmp}, s20, v{tmp}", f"v_lshlrev_b32 v{tmp}, 5, v{tmp}", f"v_lshl_add_u32 v{tmp}, v{c4}, 3, v{tmp}", f"v_lshl_add_u32 v{tmp}, v{r4}, 7, v{tmp}")
    k(f"v_lshl_add_u32 v{V_PT0}, v{q4}, 10, v{tmp}")
    st(k, "p0_issued")
    k("s_waitcnt vmcnt(18)", "s_barrier")
    PT = Q_AC
    for ht in range(4):
        for e in range(2):
            k(f"ds_read_b64_tr_b16 {v(PT+4*ht+2*e,2)}, v{TQ+1 if ht == 1 else TQ} offset:{e*2176 + (0 if ht == 1 else 32*ht)}")
    for x in range(2):
        for e in range(2): k(f"ds_read_b64_tr_b16 {v(PT+16+4*x+2*e,2)}, v{TO+x} offset:{e*1280}")
    add64(k, 4, S_WS, 40); k("s_cmp_lt_u32 s2, 144", f"s_cselect_b32 s6, {72*1024}, 0")
    add64(k, 8, S_WS, 43); k("s_cmp_ge_u32 s2, 112", f"s_cselect_b32 s10, {90*1024}, 0")
    k("s_waitcnt lgkmcnt(0)")
    for ht in range(4): k(f"buffer_store_dwordx4 {v(PT+4*ht,4)}, v{44 if ht >= 2 else V_L16}, s[4:7], s{41 + ht//2} offen offset:{1024*(ht&1)} {SC}")
    k(f"buffer_store_dwordx4 {v(PT+16,4)}, v{V_L16}, s[8:11], s46 offen {SC}", f"buffer_store_dwordx4 {v(PT+20,4)}, v45, s[8:11], s45 offen {SC}")
    st(k, "p0_prepst")
    q_setup(k)
    ln_stats_norm(k, Q_X, Q_LT, 29)
    for i in range(18):
        k(f"s_waitcnt vmcnt({17 - i + 6})"); k(ln_acc(Q_X, Q_LT, 29, i))
    st(k, "p0_stats")
    k("v_mov_b32 v9, 0", "s_mov_b32 s23, 0x10000")
    k.label("non_l")
    k(f"buffer_load_dwordx2 v[10:11], v9, s[56:59], 0 offen {SC}", "s_waitcnt vmcnt(0)", f"v_readfirstlane_b32 s{S_NON}, v10", f"v_readfirstlane_b32 s{S_NON+1}, v11",
      "s_sub_u32 s23, s23, 1", "s_cselect_b32 s24, 1, 0", f"s_or_b32 s24, s24, s{S_NON}", "s_cmp_eq_u32 s24, 0", "s_cbranch_scc1 non_l")
    k.label("non_d")
    publish(k, F_P0, layered=False, idx="phys")
    k("s_lshl_b32 s88, s20, 10")
    for rd in range(4): k(dma_round(rd, STG_F + 8192 * rd))
    ln_finish(k, Q_LT)
    for i in range(18): k(q_lnq(i, True))
    st(k, "p0_ln")
    k("s_waitcnt vmcnt(0) lgkmcnt(0)")
    wait(k, ["v_and_b32 v9, 31, v0", "v_min_u32 v9, 17, v9", "v_lshlrev_b32 v9, 3, v9", "s_bfe_u32 s23, s2, 0x30003", "s_add_u32 s23, s23, 112", "v_add_u32 v10, s23, v9", "v_add_u32 v9, s22, v9", "v_cmp_gt_u32 vcc, 32, v0", "s_nop 1", "v_cndmask_b32 v9, v10, v9, vcc", "v_lshlrev_b32 v9, 3, v9"])
    st(k, "p0_flags")
    N0 = int(OPT.get("n0", 12))
    for n in range(N0): k(q_aload(n))
    k("s_mov_b32 s14, 0")
    e1, e2 = int(OPT.get("e1", 17)), int(OPT.get("e2", 17))
    ex = {}
    FD = Q_X + 32
    def f0tr():
        k(f"v_add_u32 v{Q_T}, {STG_F}, v{V_PT0}", f"v_add_u32 v{Q_T+1}, 512, v{Q_T}")
        for rd in range(4):
            k(tr_round(FD + 8 * rd, Q_T, Q_T + 1, 8192 * rd))
            if rd == 1: k("s_waitcnt lgkmcnt(4)")
    ex.setdefault(12, []).append((f0tr, 0))
    for rd in range(4): ex.setdefault(e1 - 3 + rd, []).append((lambda rd=rd: k(st_round(rd, FD + 8 * rd)), 2))
    q_loop(k, N0, list(range(N0)), ex, chunk=False)
    k("s_branch q_epi")

def phase_qkv1(k):
    wgmap(k, int(OPT.get("q1map", 4)))
    q_setup(k)
    q4, tk = Q_T, Q_T + 1
    k("s_lshl_b32 s38, s20, 8", f"v_lshlrev_b32 v{Q_XL}, 10, v{q4}", f"v_lshl_add_u32 v{Q_XL}, v{tk}, 4, v{Q_XL}", f"v_add_u32 v{Q_XL}, s38, v{Q_XL}")
    k(f"s_mul_i32 s38, s21, {TILE}", f"s_add_u32 s38, s38, {hx(WS_XN)}"); add64(k, 8, S_WS, 38); srd_fill(k, 8, TILE)
    k("s_mov_b32 s27, 0", "s_lshl_b32 s38, s20, 10")
    NE = int(OPT.get("qne", 20))
    for n in range(NE): k(q_aload(n))
    wait(k, tile_flags(F_RED, prev_layer=True))
    st(k, "q1_flags")
    for i in range(18):
        k(f"s_add_u32 m0, s38, {4096*i}", "s_nop 0" if i == 0 else "s_add_u32 s27, s27, 0x1000", f"buffer_load_dwordx4 v{Q_XL}, s[8:11], s27 offen {SC} lds")
    k("s_waitcnt vmcnt(12)", "s_barrier")
    st(k, "q1_x0")
    q_loop(k, NE, [f"X{i}" for i in range(6, 18)], {}, chunk="dma")

import k_att as AT
def phase_att(k):
    A = AT; T = A.V_T
    wgmap(k, 1)
    k(f"v_and_b32 v{T}, 31, v0", f"v_lshrrev_b32 v{T+1}, 5, v0")
    SO, SB = 82, 36
    SO, SB = 82, 4
    for i in range(5):
        k(f"s_add_i32 s23, s21, {i-4}", f"s_cmp_lt_i32 s23, 0", f"s_cselect_b32 s{[8,9,10,11,87][i]}, {A.NEG}, 0", "s_max_i32 s23, s23, 0",
          "s_lshl_b32 s23, s23, 3", "s_add_u32 s23, s23, s22", f"s_mul_i32 s{SO+i}, s23, {KVB}")
    bias = [8, 9, 10, 11, 87]
    k("s_lshl_b32 s15, s20, 11", f"v_add_u32 v{T+2}, s15, v{V_L16}")
    k("s_lshr_b32 s25, s20, 1", "s_lshl_b32 s25, s25, 9", "s_and_b32 s26, s20, 1", "s_lshl_b32 s27, s26, 2", "s_add_u32 s25, s25, s27")
    k(f"v_lshlrev_b32 v{A.V_KT}, 3, v{T}", f"v_add_u32 v{A.V_KT}, s25, v{A.V_KT}")
    k(f"v_mov_b32 v{T+3}, 0x80000000", f"v_cmp_gt_u32 vcc, 32, v0", f"v_add_u32 v{T+4}, {KV_QT}, v{A.V_KT}", f"v_add_u32 v{A.V_KT}, {KV_KT}, v{A.V_KT}")
    k(f"v_cndmask_b32 v{A.V_QT}, v{T+3}, v{T+4}, vcc", f"v_cndmask_b32 v{A.V_ST}, v{T+3}, v{V_L16}, vcc")
    add64(k, 4, S_WS, 3); srd_fill(k, 4, 256 * KVB)
    k(f"v_add_u32 v{T+4}, {KV_KM}, v{T+2}", f"v_add_u32 v{T+5}, {KV_V}, v{T+2}")
    k("s_lshl_b32 s27, s20, 8", f"v_lshlrev_b32 v{T+6}, 2, v0", f"v_add_u32 v{T+6}, s27, v{T+6}", f"v_add_u32 v{T+8}, 9216, v{T+6}", f"v_add_u32 v{T+6}, {KV_V+8192}, v{T+6}")
    k(f"v_mov_b32 v{T+7}, 0x3f803f80")
    for i in range(5): k(f"ds_write_b32 v{T+8}, v{T+7} offset:{i*A.VT}")
    for b in range(10):
        if b % 2 == 0: k(f"v_mov_b32 v{T+9}, s{bias[b//2]}")
        k(f"v_accvgpr_write_b32 {a(A.A_K+6*b+1)}, v{T+9}")
    k(f"v_mov_b32 v{T+9}, 0x3f80")
    for t in range(2): k(f"v_mov_b32 v{A.V_Q+8*t+2}, 0", f"v_mov_b32 v{A.V_Q+8*t+3}, 0", f"v_cndmask_b32 v{A.V_Q+8*t+1}, 0, v{T+9}, vcc")
    k(f"v_lshlrev_b32 v{A.V_D4}, 2, v{T+1}", f"v_sub_u32 v{A.V_D4}, v{T}, v{A.V_D4}")
    for i in range(16): k(f"v_cmp_le_i32 s[{A.MSK+2*i}:{A.MSK+2*i+1}], {8*(i//4) + i%4}, v{A.V_D4}")
    k(f"v_mov_b32 v{T+9}, 0xffff")
    for d in range(8): k(f"v_cndmask_b32 v{A.V_MK+d}, 0, v{T+9}, s[{A.MSK+4*d}:{A.MSK+4*d+1}]")
    for d in range(8): k(f"v_cndmask_b32 v{A.V_MK+d}, v{A.V_MK+d}, -1, s[{A.MSK+4*d+2}:{A.MSK+4*d+3}]")
    q_, r4, c_, m_, pl = T+9, T+10, T+11, T+12, T+13
    k(f"v_bfe_u32 v{q_}, v0, 4, 1", f"v_bfe_u32 v{r4}, v0, 2, 2", f"v_and_b32 v{c_}, 3, v0")
    k("s_mul_i32 s23, s20, 9", "s_add_u32 s23, s23, 1", "s_lshr_b32 s23, s23, 1")
    k("s_lshr_b32 s24, s20, 1", "s_mul_i32 s24, s24, 9", "s_add_u32 s24, s24, 4")
    k(f"v_add_u32 v{m_}, s23, v{c_}", f"v_mov_b32 v{pl}, s24", f"v_cmp_eq_u32 vcc, 1, v{q_}", "s_nop 1", f"v_cndmask_b32 v{m_}, v{m_}, v{pl}, vcc")
    k(f"v_lshrrev_b32 v{pl}, 1, v{m_}", f"v_and_b32 v{m_}, 1, v{m_}", f"v_and_b32 v{T+14}, 3, v{pl}")
    k(f"v_mul_u32_u24 v{c_}, v{c_}, v{q_}", "s_lshl_b32 s24, s26, 1", "s_sub_u32 s24, 3, s24", f"v_cmp_lt_u32 vcc, 0, v{c_}", f"v_mov_b32 v{q_}, s24", "s_nop 0")
    k(f"v_cndmask_b32 v{pl}, v{pl}, 9, vcc", f"v_cndmask_b32 v{m_}, v{m_}, 0, vcc", f"v_cndmask_b32 v{T+14}, v{T+14}, v{q_}, vcc")
    k(f"v_lshl_add_u32 v{r4}, v{T+1}, 2, v{r4}", f"v_lshlrev_b32 v{T+14}, 2, v{T+14}", f"v_xor_b32 v{r4}, v{r4}, v{T+14}")
    k(f"v_lshlrev_b32 v{pl}, 10, v{pl}", f"v_lshl_add_u32 v{pl}, v{m_}, 3, v{pl}")
    k(f"v_lshl_add_u32 v{A.V_V0}, v{r4}, 4, v{pl}", f"v_xor_b32 v{A.V_V1}, 128, v{A.V_V0}")
    k(f"s_mul_i32 s23, s21, {TILE}", "s_add_u32 s23, s23, s3", f"s_add_u32 s23, s23, {hx(WS_O)}"); add64(k, 16, S_WS, 23); srd_fill(k, 16, TILE)
    k("s_lshl_b32 s88, s22, 13", "s_add_u32 s88, s88, s15")
    k(f"v_lshlrev_b32 v{A.V_SO}, 4, v{T}", f"v_lshl_add_u32 v{A.V_SO}, v{T+1}, 10, v{A.V_SO}")
    k("s_add_u32 s89, s22, 64", "s_lshl_b32 s89, s89, 10", "s_lshl_b32 s23, s20, 2", "s_add_u32 s89, s89, s23")
    for i in range(4): k(f"v_mov_b32 v{A.V_MX+i}, 0xff7fffff")
    k("s_bfe_u32 s23, s2, 0x30003", f"s_mul_i32 s23, s23, {90*1024}", f"s_add_u32 s23, s23, {hx(WS_WO)}"); add64(k, 8, S_WS, 23); srd_fill(k, 8, 90 * 1024)
    k("s_waitcnt lgkmcnt(0)")
    st(k, "att_setup")
    wait(k, ["v_min_u32 v9, 4, v0", "s_sub_u32 s23, s21, 4", "v_add_u32 v9, s23, v9", "v_max_i32 v9, 0, v9", "v_lshlrev_b32 v9, 3, v9", "v_add_u32 v9, s22, v9", "v_lshlrev_b32 v9, 3, v9",
             f"s_add_u32 s23, s14, {F_QKV*2048}", "v_add_u32 v9, s23, v9"])
    st(k, "att_flags")
    for t in range(2):
        k(f"buffer_load_dwordx4 {v(A.V_Q+8*t+4,4)}, v{T+2}, s[4:7], s{SO+4} offen offset:{1024*t} {SC}", f"buffer_load_dword v{A.V_Q+8*t}, v{A.V_QT}, s[4:7], s{SO+4} offen offset:{256*t} {SC}")
    for b in A.KORDER:
        k(f"buffer_load_dwordx4 {a(A.A_K+6*b+2,4)}, v{T+4}, s[4:7], s{SO+b//2} offen offset:{1024*(b%2)} {SC}",
          f"buffer_load_dword {a(A.A_K+6*b)}, v{A.V_KT}, s[4:7], s{SO+b//2} offen offset:{256*(b%2)} {SC}")
    vd = []
    for i in [0, 4, 1, 2, 3]:
        vd.append([f"s_add_u32 m0, s15, {i*A.VT}", "s_nop 0", f"buffer_load_dwordx4 v{T+5}, s[4:7], s{SO+i} offen {SC} lds"])
        vd.append(f"buffer_load_dwordx4 v{T+5}, s[4:7], s{SO+i} offen offset:1024 {SC} lds")
        vd.append([f"s_add_u32 m0, s27, {i*A.VT+8192}", "s_nop 0", f"buffer_load_dword v{T+6}, s[4:7], s{SO+i} offen {SC} lds"])
    st(k, "att_issued")
    def after_p1():
        k("s_waitcnt vmcnt(0)")
        if not int(OPT.get("jt", 1)): return
        k("s_cmp_lg_u32 s3, 0", "s_cbranch_scc1 att_notouch")
        k("s_lshl_b32 s76, s20, 5", "s_add_u32 s76, s76, s74", "s_add_u32 s76, s76, 128", "s_sub_u32 s77, s76, 162", "s_lshl_b32 s77, s77, 1", "s_cmp_lt_u32 s76, 162", "s_cselect_b32 s76, s76, s77",
          f"s_cselect_b32 s77, 9216, 1152", f"s_cselect_b32 s80, 1152, {576*1152}", f"s_cselect_b32 s81, 0, {32*1152}", "s_cselect_b64 s[24:25], s[60:61], s[72:73]", "s_cselect_b64 s[12:13], s[64:65], s[72:73]")
        k(div18(76, 78, 79), "s_lshl_b32 s79, s79, 5", "s_mul_i32 s79, s79, s77", "s_lshl_b32 s78, s78, 7", "s_add_u32 s78, s78, s79", "s_mul_i32 s79, s75, s80", "s_add_u32 s78, s78, s79", "s_add_u32 s81, s81, s78")
        k(f"v_and_b32 v9, 31, v0", f"v_mul_u32_u24 v9, s77, v9", f"s_mov_b32 s26, {hx(D*F*2)}", "s_mov_b32 s27, 0x00020000")
        k("buffer_load_dword v10, v9, s[24:27], s78 offen", "s_mov_b64 s[24:25], s[12:13]", "buffer_load_dword v11, v9, s[24:27], s81 offen")
        k.label("att_notouch")
    return A.body(k, vd, st, after_p1, [], None)
def wo_dma(k):
    o = [["s_mul_i32 s26, s20, 23552", f"s_add_u32 s27, s26, {WOIMG}"]]
    for g in range(6):
        o.append(["s_mov_b32 m0, s27", "s_add_u32 s27, s27, 0x1000", f"buffer_load_dwordx4 v{V_L16}, s[8:11], s26 offen lds"])
        for i in range(1, 4 if g < 5 else 3): o.append(f"buffer_load_dwordx4 v{V_L16}, s[8:11], s26 offen offset:{1024*i} lds")
        o[-1] = [o[-1], "s_add_u32 s26, s26, 0x1000"]
    return o

W_XL, W_A0, W_A1, W_RL, W_SP, W_S8, W_T, W_AC, W_R, W_AF, W_B = 2, 3, 4, 5, 6, 7, 16, 36, 56, 184, 108
def phase_wo(k):
    wgmap(k, 8)
    T = W_T; q4, tk, tok, n, lam, c, t1, t2 = range(T, T + 8)
    k(f"v_lshrrev_b32 v{q4}, 4, v0", f"v_and_b32 v{tk}, 15, v0", "s_lshl_b32 s38, s20, 4", f"v_add_u32 v{tok}, s38, v{tk}")
    k(f"v_lshlrev_b32 v{W_XL}, 10, v{q4}", f"v_lshl_add_u32 v{W_XL}, v{tok}, 4, v{W_XL}")
    k(f"s_mul_i32 s39, s21, {TILE}", "s_add_u32 s41, s39, s3", f"s_add_u32 s42, s41, {hx(WS_O)}"); add64(k, 4, S_WS, 42); srd_fill(k, 4, TILE)
    k(f"s_add_u32 s42, s{S_WS}, {hx(WS_X2)}", f"s_addc_u32 s43, s{S_WS+1}, 0", "s_cmp_eq_u32 s3, 0", f"s_cselect_b32 s8, s{S_X}, s42", f"s_cselect_b32 s9, s{S_X+1}, s43", "s_cselect_b64 vcc, -1, 0", "s_cselect_b32 s36, 32, 2048")
    k("s_mul_i32 s46, s22, 9216", "s_mul_i32 s37, s22, 144", "s_cselect_b32 s45, s37, s46")
    k("s_add_u32 s8, s8, s39", "s_addc_u32 s9, s9, 0"); srd_fill(k, 8, TILE)
    k(f"v_mul_u32_u24 v{t1}, 1152, v{tok}", f"v_lshl_add_u32 v{t1}, v{q4}, 3, v{t1}")
    k(f"v_lshrrev_b32 v{n}, 1, v{q4}", f"v_and_b32 v{lam}, 1, v{q4}")
    k(f"v_lshlrev_b32 v{t2}, 4, v{tok}", f"v_lshl_add_u32 v{c}, v{lam}, 3, v{t2}", f"v_lshl_add_u32 v{c}, v{n}, 10, v{c}")
    k(f"v_cndmask_b32 v{W_RL}, v{c}, v{t1}, vcc")
    for ht in range(5):
        k(f"buffer_load_dwordx2 {v(W_R+2*ht,2)}, v{W_RL}, s[8:11], s45 offen {SC}")
        if ht < 4: k("s_add_u32 s45, s45, s36")
    k(f"v_add_u32 v{W_A0}, {WOIMG}, v{V_L16}", f"v_add_u32 v{W_A1}, {WOIMG + 61440}, v{V_L16}")
    k(f"v_lshl_add_u32 v{t1}, v{lam}, 1, v{n}", f"v_lshl_add_u32 v{W_SP}, v{t1}, 10, v{t2}")
    k(f"v_lshl_add_u32 v{t1}, v{q4}, 3, v{t2}", f"v_add_u32 v{t1}, 8192, v{t1}", f"v_mov_b32 v{c}, 0x80000000", f"v_cmp_gt_u32 vcc, 2, v{q4}", "s_nop 1", f"v_cndmask_b32 v{W_S8}, v{c}, v{t1}, vcc")
    k(f"s_add_u32 s42, s41, {hx(WS_X1)}"); add64(k, 16, S_WS, 42); srd_fill(k, 16, TILE)
    k("s_add_u32 s47, s46, 4096", "s_mov_b32 s40, 0", "s_mov_b32 s29, 0x3f803f80", f"v_cndmask_b32 v{W_T+12}, 0, -1, vcc")
    k(f"v_lshlrev_b32 v{t1}, 3, v{tok}", f"v_cmp_gt_u32 vcc, 16, v0", "s_lshl_b32 s42, s21, 3", "s_add_u32 s42, s42, s22", "s_lshl_b32 s42, s42, 9", "s_add_u32 s42, s42, s3", f"s_add_u32 s42, s42, {hx(WS_SS)}", f"v_cndmask_b32 v{W_T+13}, v{c}, v{t1}, vcc")
    add64(k, 8, S_WS, 42); srd_fill(k, 8, 512)
    def aread(ks): return [f"ds_read_b128 {v(W_AF + 20*(ks%3) + 4*ht, 4)}, v{W_A1 if ks >= 12 else W_A0} offset:{(5*ks+ht)*1024 - (61440 if ks >= 12 else 0)}" for ht in range(5)]
    st(k, "wo_setup")
    k("s_waitcnt vmcnt(0)")
    kk = Kern("t"); wgmap(kk, int(OPT.get("map", 4)), 34, 35)
    kk.L = [x.replace("s44", "s30").replace("s45", "s31").replace("s46", "s32").replace("s47", "s33") for x in kk.L]
    wait(k, tile_flags(F_ATT) + kk.L + ["v_and_b32 v10, 31, v0", "v_lshlrev_b32 v10, 3, v10", "v_add_u32 v10, s35, v10", "v_lshlrev_b32 v10, 3, v10", f"v_add_u32 v10, {F_PF*2048}, v10",
                               "v_cmp_gt_u32 vcc, 32, v0", "s_nop 1", "v_cndmask_b32 v9, v10, v9, vcc"])
    st(k, "wo_flags")
    for i in range(18):
        k(f"buffer_load_dwordx4 {v(W_B+4*i,4)}, v{W_XL}, s[4:7], s40 offen {SC}")
        if i < 17: k("s_add_u32 s40, s40, 0x1000")
    k("s_waitcnt lgkmcnt(0)")
    k(aread(0), aread(1))
    for ks in range(18):
        k(f"s_waitcnt vmcnt({17 - ks}) lgkmcnt({5 if ks < 17 else 0})")
        ar = aread(ks + 2) if ks < 16 else []
        for ht in range(5):
            ac = v(W_AC + 4 * ht, 4)
            k(f"v_mfma_f32_16x16x32_bf16 {ac}, {v(W_AF + 20*(ks%3) + 4*ht, 4)}, {v(W_B+4*ks,4)}, {'0' if ks == 0 else ac}")
            if ar: k(ar[ht])
    k.label("wo_epi")
    st(k, "wo_mfma")
    for ht in range(5):
        for d in range(2):
            k(f"v_lshlrev_b32 v{T+4*(ht&1)+2*d}, 16, v{W_R+2*ht+d}", f"v_and_b32 v{T+4*(ht&1)+2*d+1}, 0xffff0000, v{W_R+2*ht+d}")
        if ht == 0: k("s_nop 3")
        for i in range(4): k(f"v_add_f32 v{W_AC+4*ht+i}, v{W_AC+4*ht+i}, v{T+4*(ht&1)+i}")
    P = W_B
    WO_STATS(k)
    for ht in range(0):
        for d in range(2): k(f"v_cvt_pk_bf16_f32 v{P+2*ht+d}, v{W_AC+4*ht+2*d}, v{W_AC+4*ht+2*d+1}")
    publish(k, F_WO)
    st(k, "wo_pub")

def WO_STATS(k):
    P = W_B; T = W_T + 8
    for ht in range(5):
        for d in range(2): k(f"v_cvt_pk_bf16_f32 v{P+2*ht+d}, v{W_AC+4*ht+2*d}, v{W_AC+4*ht+2*d+1}")
    k(f"v_and_b32 v{P+12}, v{P+8}, v{W_T+12}", f"v_and_b32 v{P+13}, v{P+9}, v{W_T+12}", f"v_mov_b32 v{T}, 0", f"v_mov_b32 v{T+2}, 0")
    for pr in range(2):
        for d in range(2): k(f"v_permlane16_swap_b32 v{P+4*pr+d}, v{P+4*pr+2+d}")
    k(f"buffer_store_dwordx4 {v(P,4)}, v{W_SP}, s[16:19], s46 offen {SC}", f"buffer_store_dwordx4 {v(P+4,4)}, v{W_SP}, s[16:19], s47 offen {SC}")
    k(f"buffer_store_dwordx2 {v(P+8,2)}, v{W_S8}, s[16:19], s46 offen {SC}")
    for x in list(range(P, P + 8)) + [P + 12, P + 13]:
        k(f"v_dot2c_f32_bf16 v{T}, s29, v{x}", f"v_dot2c_f32_bf16 v{T+2}, v{x}, v{x}")
    k("s_nop 2")
    xlane(k, T, (16, 32))
    k(f"v_mov_b32 v{T+1}, v{T+2}", f"buffer_store_dwordx2 {v(T,2)}, v{W_T+13}, s[8:11], 0 offen {SC}")
def phase_ffn(k):
    F_ = FF; mp = int(OPT.get("map", 4)); late = int(OPT.get("late", 8))
    wgmap(k, mp)
    k("s_mov_b32 s29, 0x3f803f80")
    t0, t1, t2, t5, t6 = 64, 65, 66, 67, 68
    k(f"v_lshrrev_b32 v{t0}, 4, v0", f"v_and_b32 v{t1}, 15, v0", "s_lshl_b32 s38, s20, 8")
    k(f"v_lshlrev_b32 v{t2}, 10, v{t0}", f"v_lshl_add_u32 v{t2}, v{t1}, 4, v{t2}", f"v_add_u32 v{F_.V_XL}, s38, v{t2}")
    k(f"s_mul_i32 s39, s21, {TILE}", "s_add_u32 s39, s39, s3", f"s_add_u32 s39, s39, {hx(WS_X1)}"); add64(k, 8, S_WS, 39); srd_fill(k, 8, TILE)
    k("s_lshl_b32 s24, s22, 2", "s_add_u32 s24, s24, s20", f"s_mul_i32 s24, s24, {WFR*1024}", f"s_add_u32 s24, s24, {hx(WS_W)}"); add64(k, 4, S_WS, 24); srd_fill(k, 4, WFR * 1024)
    k("s_lshl_b32 s41, s22, 5", "s_add_u32 s41, s41, s21", f"s_mul_i32 s41, s41, {TILE}", "s_add_u32 s41, s41, s3", f"s_add_u32 s41, s41, {hx(WS_P)}"); add64(k, 16, S_WS, 41); srd_fill(k, 16, TILE)
    k("s_mov_b32 s27, 0", "s_mov_b32 s40, 0")
    k(f"v_and_b32 v{t6}, 1, v{t0}", f"v_lshrrev_b32 v{t5}, 1, v{t0}", f"v_add_u32 v{F_.V_XR1}, 36864, v{V_L16}")
    k("s_lshr_b32 s41, s20, 1", "s_lshl_b32 s41, s41, 12", "s_and_b32 s42, s20, 1", "s_lshl_b32 s42, s42, 3", "s_add_u32 s41, s41, s42")
    k(f"v_add_u32 v{F_.V_HW}, s41, v{V_L16}")
    k("s_lshl_b32 s41, s20, 10", f"v_add_u32 v{F_.V_XW}, s41, v{V_L16}")
    k(f"v_lshlrev_b32 v{F_.V_ST}, 10, v{t5}", f"v_lshl_add_u32 v{F_.V_ST}, v{t6}, 8, v{F_.V_ST}", f"v_lshl_add_u32 v{F_.V_ST}, v{t1}, 4, v{F_.V_ST}")
    k("s_lshl_b32 s41, s20, 11", f"v_add_u32 v{F_.V_ST}, s41, v{F_.V_ST}", f"v_mov_b32 v{F_.V_C2}, {fl(F_.C2)}")
    k("s_cmp_eq_u32 s3, 0", "s_cselect_b32 s31, 0, 0x2000", "s_lshl_b32 s30, s21, 8", "s_add_u32 s31, s31, s30", f"s_add_u32 s31, s31, {12*2048}")
    k("s_lshl_b32 s30, s22, 2", "s_add_u32 s30, s30, s20", "s_lshl_b32 s30, s30, 3", "s_add_u32 s30, s30, s31")
    k("s_lshl_b32 s42, s21, 12", "s_add_u32 s42, s42, s3", f"s_add_u32 s42, s42, {hx(WS_SS)}"); add64(k, 32, S_WS, 42); srd_fill(k, 32, 4096)
    k("s_lshl_b32 s42, s20, 7", f"v_lshlrev_b32 v{t2}, 3, v{t1}", f"v_lshl_add_u32 v{t2}, v{t0}, 10, v{t2}", f"v_add_u32 v{t2}, s42, v{t2}")
    k("s_mov_b32 s23, 0")
    F4.preload(k)
    k("s_mov_b32 s26, s23")
    wait(k, tile_flags(F_WO))
    st(k, "ffn_flags")
    if int(OPT.get("touch", 0)):
        per = 18 * mp * (1 if int(OPT["touch"]) == 1 else 1)
        k(f"s_mul_i32 s41, s44, {per}", "v_add_u32 v11, s41, v0", "v_lshlrev_b32 v11, 7, v11", f"v_cmp_gt_u32 vcc, {per}, v0", "v_mov_b32 v5, 0x80000000", f"s_mov_b32 s49, {int(OPT.get('tch0', 3)) * TILE}", "v_cndmask_b32 v11, v5, v11, vcc")
    k("s_mov_b32 s23, s26")
    LT = F_.V_LT
    k(f"buffer_load_dwordx2 {v(LT+8,2)}, v{t2}, s[32:35], 0 offen {SC}", f"buffer_load_dwordx2 {v(LT+10,2)}, v{t2}, s[32:35], 0 offen offset:512 {SC}")
    for i in range(18):
        k(f"buffer_load_dwordx4 {v(F_.V_X+4*i,4)}, v{F_.V_XL}, s[8:11], s40 offen {SC}")
        if i < 17: k("s_add_u32 s40, s40, 0x1000")
    k("s_waitcnt vmcnt(18)", f"v_add_f32 v{LT}, v{LT+8}, v{LT+10}", f"v_add_f32 v{LT+2}, v{LT+9}, v{LT+11}")
    xlane(k, LT, (16, 32)); ln_fin2(k, LT)
    st(k, "ffn_stats")
    def lnq(i):
        kk = Kern("t"); kk(ln_apply(F_.V_X, F_.V_LT, i, pk=(i < 6))); ln_write(kk, i, F_.V_X, F_.V_XW); return kk.L
    F4.group0(k, lnq)
    st(k, "ffn_g0")
    k("s_mov_b32 s25, 4", "s_mov_b32 s26, 99", "s_cmp_lg_u32 s3, 0", "s_cbranch_scc1 ffn_loopA_odd")
    JD = 200
    x1 = {2: jit_setup()}
    for n_, rd in enumerate(range(4, 8)):
        g_ = dma_round(rd, STG_J + 8192 * n_); x1[4 * (6 + 7 * n_) + 1] = g_[0]; x1[4 * (9 + 7 * n_) + 1] = g_[1]
    F4.groupA(k, 1, x1)
    x2 = {4 * 13 + 1: ["s_barrier"]}
    for n_, rd in enumerate(range(4, 8)):
        sel = 0 if rd == 4 else (2 if rd == 5 else 1)
        for e_, op in enumerate(tr_round(JD + 8 * n_, J_T0 + sel, J_T1 + sel, 8192 * n_)): x2[4 * (14 + 2 * n_ + e_ // 2) + 2 * (e_ % 2)] = [op]
        g_ = st_round(rd, JD + 8 * n_); x2[4 * (24 + 3 * n_) + 1] = (["s_waitcnt lgkmcnt(0)"] if n_ == 0 else []) + g_[0]; x2[4 * (25 + 3 * n_) + 1] = g_[1]
    F4.groupA(k, 2, x2)
    x3 = {4 * 18 + 1: ["s_lshl_b32 s76, s2, 2", "s_add_u32 s76, s76, s20", "s_lshl_b32 s76, s76, 3", f"s_add_u32 s76, s76, {F_PJ}", "s_mov_b64 exec, 1", "v_mov_b32 v9, 0", f"v_mov_b32 v10, s{S_NON}", f"v_mov_b32 v11, s{S_NON+1}",
                        f"buffer_store_dwordx2 v[10:11], v9, s[{S_FL}:{S_FL+3}], s76 offen {SC}", "s_mov_b64 exec, -1"]}
    F4.groupA(k, 3, x3)
    k("s_mov_b32 s25, 2", "s_mov_b32 s26, 2", "v_and_b32 v9, 31, v0", "v_lshlrev_b32 v9, 3, v9", "v_add_u32 v9, s22, v9", "v_lshlrev_b32 v9, 2, v9", "v_add_u32 v9, s20, v9", "v_lshlrev_b32 v9, 3, v9", f"v_add_u32 v9, {F_PJ}, v9")
    k.label("ffn_loopA")
    F4.groupA(k, 2)
    k.label("ffn_loopA_odd")
    pl = f"buffer_load_dwordx2 v[10:11], v9, s[{S_FL}:{S_FL+3}], 0 offen {SC}"
    xo = {1: ["s_cmp_lg_u32 s25, s26", "s_cbranch_scc1 jit_p0", pl + " ; COND", "jit_p0:"],
          4 * 22 + 1: ["s_cmp_lg_u32 s25, s26", "s_cbranch_scc1 jit_p1", "s_mov_b32 s76, 0x10000", "jit_l:", f"v_cmp_ne_u64 vcc, s[{S_NON}:{S_NON+1}], v[10:11]", "s_sub_u32 s76, s76, 1", "s_cselect_b64 s[78:79], 0, -1", "s_nop 1",
                       "s_and_b64 vcc, vcc, s[78:79]", "s_cbranch_vccz jit_p1", pl + " ; COND", "s_waitcnt vmcnt(0)", "s_branch jit_l", "jit_p1:"]}
    F4.groupA(k, 1, xo)
    k("s_sub_u32 s25, s25, 1", "s_cmp_lg_u32 s25, 0", "s_cbranch_scc1 ffn_loopA")
    F4.groupA(k, 8)
    st(k, "ffn_A")
    hook = ["s_mov_b64 exec, 1", "v_mov_b32 v9, 0", f"v_mov_b32 v10, s{S_NON}", f"v_mov_b32 v11, s{S_NON+1}",
            f"buffer_store_dwordx2 v[10:11], v9, s[{S_FL}:{S_FL+3}], s30 offen {SC}", "s_mov_b64 exec, -1"]
    F4.phaseB(k, OPT.get("bsc", SC), hook, st if OPT.get("bst") else None)
    st(k, "ffn_B")

def phase_red(k):
    R = 16; ACC = 100
    pm4, pm1, rm4, rm1, t0, t1 = 2, 3, 4, 5, 6, 7
    k("s_lshl_b32 s23, s22, 3", f"v_and_b32 v{t0}, 7, v0", f"v_add_u32 v{t0}, s23, v{t0}")
    k(f"v_lshrrev_b32 v{t1}, 3, v0", "s_lshl_b32 s24, s20, 3", f"v_add_u32 v{t1}, s24, v{t1}")
    k(f"v_lshlrev_b32 v{pm4}, 4, v{t0}", f"v_lshl_add_u32 v{pm4}, v{t1}, 10, v{pm4}", f"v_mul_u32_u24 v{rm4}, 1152, v{t0}", f"v_lshl_add_u32 v{rm4}, v{t1}, 4, v{rm4}")
    k(f"v_lshrrev_b32 v{t1}, 5, v0", "s_lshl_b32 s24, s20, 1", "s_add_u32 s24, s24, 64", f"v_add_u32 v{t1}, s24, v{t1}")
    k(f"v_lshlrev_b32 v{pm1}, 4, v{t0}", f"v_lshl_add_u32 v{pm1}, v{t1}, 10, v{pm1}", f"v_mul_u32_u24 v{rm1}, 1152, v{t0}", f"v_lshl_add_u32 v{rm1}, v{t1}, 4, v{rm1}")
    k(f"v_bfe_u32 v{t0}, v0, 3, 2", f"v_lshl_add_u32 v{pm1}, v{t0}, 2, v{pm1}", f"v_lshl_add_u32 v{rm1}, v{t0}, 2, v{rm1}")
    k(f"s_mul_i32 s24, s21, {TILE}", "s_add_u32 s25, s24, s3"); add64(k, 4, S_WS, 25); srd_fill(k, 4, LSTR - 31 * TILE)
    k(f"s_add_u32 s8, s4, {hx(WS_X2)}", "s_addc_u32 s9, s5, 0"); add64(k, 26, S_OUT, 24)
    k("s_cmp_eq_u32 s3, 0", "s_cselect_b32 s8, s8, s26", "s_cselect_b32 s9, s9, s27", "s_cselect_b32 s28, 0x8000, 512", "s_cselect_b64 vcc, -1, 0"); srd_fill(k, 8, TILE)
    k(f"v_cndmask_b32 v{rm4}, v{rm4}, v{pm4}, vcc", f"v_cndmask_b32 v{rm1}, v{rm1}, v{pm1}, vcc")
    ACCB = 110
    def ld0(j, srd=4): return [f"buffer_load_dwordx4 {v(R+10*j,4)}, v{pm4}, s[{srd}:{srd+3}], s25 offen {SC}"]
    def ld12(j): return ["s_add_u32 s26, s25, 0x8000", f"buffer_load_dwordx4 {v(R+10*j+4,4)}, v{pm4}, s[4:7], s26 offen {SC}", f"buffer_load_dword v{R+10*j+8}, v{pm1}, s[4:7], s25 offen {SC}"]
    def over(fn):
        k(f"s_mov_b32 s25, {hx(WS_P)}")
        for j in range(8):
            k(fn(j))
            if j < 7: k(f"s_add_u32 s25, s25, {hx(ACT)}")
    k("v_and_b32 v9, 31, v0", "v_lshlrev_b32 v9, 3, v9", f"buffer_load_dwordx2 v[10:11], v9, s[{S_FL}:{S_FL+3}], s31 offen {SC}")
    k("s_mov_b32 s32, 0x00003f80", "s_mov_b32 s33, 0x3f800000")
    for i in range(18): k(f"v_mov_b32 v{ACCB+i}, 0")
    k("s_waitcnt vmcnt(0)", f"v_cmp_ne_u64 vcc, s[{S_NON}:{S_NON+1}], v[10:11]", "s_nop 3", "s_cmp_eq_u64 vcc, 0", "s_cselect_b32 s34, 1, 0")
    publish(k, F_FFN)
    k("s_cmp_eq_u32 s34, 0", "s_cbranch_scc1 red_noearly")
    over(ld0)
    k.label("red_noearly")
    k(f"s_mov_b32 s25, {hx(WS_X1)}"); k(ld0(8), ld12(8))
    wait(k, tile_flags(F_FFN))
    st(k, "red_flags")
    k("s_cmp_lg_u32 s34, 0", "s_cbranch_scc1 red_haveearly")
    over(ld0)
    k.label("red_haveearly")
    over(ld12)
    k("s_waitcnt vmcnt(16)")
    for j in range(9):
        for d in range(4): k(f"v_dot2c_f32_bf16 v{ACCB+2*d}, s32, v{R+10*j+d}", f"v_dot2c_f32_bf16 v{ACCB+2*d+1}, s33, v{R+10*j+d}")
    for n, j in enumerate([8, 0, 1, 2, 3, 4, 5, 6, 7]):
        if n: k(f"s_waitcnt vmcnt({2*(8-n)})")
        for d in range(4, 9): k(f"v_dot2c_f32_bf16 v{ACCB+2*d}, s32, v{R+10*j+d}", f"v_dot2c_f32_bf16 v{ACCB+2*d+1}, s33, v{R+10*j+d}")
    k("s_nop 2")
    for d in range(9): k(f"v_cvt_pk_bf16_f32 v{R+d}, v{ACCB+2*d}, v{ACCB+2*d+1}")
    k(f"buffer_store_dwordx4 {v(R,4)}, v{rm4}, s[8:11], 0 offen {SC}", f"buffer_store_dwordx4 {v(R+4,4)}, v{rm4}, s[8:11], s28 offen {SC}", f"buffer_store_dword v{R+8}, v{rm1}, s[8:11], 0 offen {SC}")

def red_ln(k):
    R = 16; ACCB = 110; T = 130
    k(f"v_mov_b32 v{T}, 0", f"v_mov_b32 v{T+2}, 0", "s_mov_b32 s29, 0x3f803f80")
    for d in range(9): k(f"v_dot2c_f32_bf16 v{T}, s29, v{R+d}", f"v_dot2c_f32_bf16 v{T+2}, v{R+d}, v{R+d}")
    k("s_nop 1")
    xlane(k, T, (8, 16, 32))
    k(f"v_and_b32 v{T+8}, 7, v0", f"v_lshlrev_b32 v{T+8}, 3, v{T+8}", f"v_add_u32 v{T+8}, {TILE}, v{T+8}", "s_lshl_b32 s23, s20, 6", f"v_add_u32 v{T+9}, s23, v{T+8}", f"v_mov_b32 v{T+1}, v{T+2}")
    k(f"ds_write_b64 v{T+9}, {v(T,2)}", "s_waitcnt lgkmcnt(0)", "s_barrier")
    for w_ in range(4): k(f"ds_read_b64 {v(T+10+2*w_,2)}, v{T+8} offset:{64*w_}")
    k(f"s_add_u32 s8, s4, {hx(WS_XN)}", "s_addc_u32 s9, s5, 0")
    for d in range(9): k(f"v_lshlrev_b32 v{ACCB+2*d}, 16, v{R+d}", f"v_and_b32 v{ACCB+2*d+1}, 0xffff0000, v{R+d}")
    k("s_waitcnt lgkmcnt(0)")
    k(f"v_add_f32 v{T}, v{T+10}, v{T+12}", f"v_add_f32 v{T+2}, v{T+11}, v{T+13}", f"v_add_f32 v{T+14}, v{T+14}, v{T+16}", f"v_add_f32 v{T+15}, v{T+15}, v{T+17}", f"v_add_f32 v{T}, v{T}, v{T+14}", f"v_add_f32 v{T+2}, v{T+2}, v{T+15}")
    ln_fin2(k, T)
    for d in range(9): k(f"v_pk_fma_f32 {v(ACCB+2*d,2)}, {v(ACCB+2*d,2)}, {v(T+4,2)}, {v(T+6,2)} op_sel_hi:[1,0,0]")
    for d in range(9): k(f"v_cvt_pk_bf16_f32 v{R+12+d}, v{ACCB+2*d}, v{ACCB+2*d+1}")
    k(f"buffer_store_dwordx4 {v(R+12,4)}, v4, s[8:11], 0 offen {SC}", f"buffer_store_dwordx4 {v(R+16,4)}, v4, s[8:11], s28 offen {SC}", f"buffer_store_dword v{R+20}, v5, s[8:11], 0 offen {SC}")
def gen():
    k = Kern("mega")
    NST[0] = 0; NAMES.clear(); LBL[0] = 0
    FF.STAMP = 0; FF.WG = int(OPT.get("wg", 1)); FF.TOUCH = 0
    st0 = len(k.L)
    startup(k)
    k.label("layer1")
    phase_qkv1(k)
    k.label("q_epi")
    q_epi(k)
    publish(k, F_QKV, extra=F_PF)
    st(k, "qkv_pub")
    phase_att(k)
    wd = wo_dma(k); n1 = int(OPT.get("wd1", 8))
    k(wd[:n1 + 1])
    publish(k, F_ATT, vm=n1, keep=True)
    k(wd[n1 + 1:])
    st(k, "att_pub")
    phase_wo(k)
    phase_ffn(k)
    phase_red(k)
    k("s_cmp_lg_u32 s3, 0", "s_cbranch_scc1 mega_end")
    red_ln(k)
    publish(k, F_RED)
    st(k, "red_pub")
    if STAMP[0]: dump(k, 0)
    k(f"s_mov_b32 s3, {hx(LSTR)}", f"s_mov_b32 s14, {5*2048}", "s_branch layer1")
    k.label("mega_end")
    if STAMP[0]:
        k("s_waitcnt vmcnt(0)"); st(k, "end"); dump(k, 1)
    k.label("mega_done")
    k("s_endpgm")
    return k
def dump(k, L):
    LBL[0] += 1
    k("s_cmp_lg_u32 s20, 0", f"s_cbranch_scc1 dmp{LBL[0]}", f"s_lshl_b32 s23, s2, 9", f"s_add_u32 s23, s23, {hx(WS_ST + 256*L)}"); add64(k, 4, S_WS, 23); srd_fill(k, 4, 256)
    k("v_lshlrev_b32 v9, 2, v0", f"buffer_store_dword v{V_STAMP}, v9, s[4:7], 0 offen", "s_waitcnt vmcnt(0)")
    k.label(f"dmp{LBL[0]}")
class JP(list):
    def __init__(s): super().__init__([0, 1, 1, 1, 1, 1])
def trips(w):
    d = {"ffn_loopA": [1, 0, 1, 1, 1, 0], "ffn_loopA_odd": [0, 1], "jit_p0": [0, 1, 1, 1, 1, 1], "jit_p1": JP(), "ffn_loopB": [1, 1, 0] * 2, "mega_end": [0, 1], "ffn_nomid": [1, 0, 1] * 2, "red_noearly": [0, 1], "red_haveearly": [1, 0], "att_notouch": [0, 1], "att_sk0": [0, 1], "att_sk1": [0, 1], "att_sk2": [0, 1], "q_nof": [0, 1], "att_noprep2": [0, 1], "ffn_noring": [1, 0], "ffn_ring2": [0, 1], "wo_l1": [0, 1],
         "q_epi3": 9 if w == 3 else 0, "no_cpf": 0 if w == 3 else 9, "no_touch": 0 if w == 3 else 9, "q_noscale": 9 if w else 0, "no_nonce": 9 if w else 0}
    for i in range(1, 40):
        for n in (f"pub{i}", f"wt{i}_d", f"dmp{i}"): d[n] = 9 if w else 0
        d[f"pub{i}_x"] = [0, 1]
    return d
```

```python
from common import *
V_KM, V_KT, V_QT, V_VV, V_SO, V_ST, V_D4, V_QMO = 2, 3, 4, 5, 6, 7, 8, 22
V_MX = 16; V_MK = 216; V_QM = 24; V_Q1 = 224; V_QTT = 240
V_NM = 40; V_O = 72; V_S = 104; V_P = 168; V_T = 200
A_K = 0; A_V = 60
MSK = 28; SO = 82
NEG = bf16u(-1e30)
def mf(d, A, B, c): return f"v_mfma_f32_32x32x16_bf16 {d}, {A}, {B}, {c}"
def kmain(b): return a(A_K + 12 * (b // 2) + 4 + 4 * (b % 2), 4)
def ktail(b): return a(A_K + 12 * (b // 2), 4)
def qk(t, b, sb, c):
    S_ = v(V_S + 16 * sb, 16)
    return [mf(S_, kmain(b), v(V_QM + 4*t, 4), c), mf(S_, ktail(b), v(V_Q1 + 8*t + 4*(b % 2), 4), S_)]
def cost(x): return 2 if isinstance(x, str) and x.startswith(("v_exp", "v_rcp")) else 1
class VM:
    def __init__(s, k, loads): s.k = k; s.todo = list(loads); s.q = []; s.done = set()
    def issue(s, n=1):
        for _ in range(n):
            if s.todo:
                tag, op = s.todo.pop(0); s.k(op); s.q.append(tag)
    def need(s, tags):
        tags = [t for t in tags if t not in s.done]
        while any(t in [x[0] for x in s.todo] for t in tags): s.issue()
        if tags:
            i = max(s.q.index(t) for t in tags); s.k(f"s_waitcnt vmcnt({len(s.q) - 1 - i})"); s.done.update(s.q[:i + 1]); s.q = s.q[i + 1:]
    def __call__(s, x):
        if isinstance(x, (list, tuple)) and not (len(x) == 2 and x[0] in ("NEED", "ISSUE")):
            for y in x: s(y)
        elif isinstance(x, tuple): s.need(x[1]) if x[0] == "NEED" else s.issue(x[1])
        else:
            s.k(x)
            if x.startswith("buffer_") and "COND" not in x: s.q.append("x")
def inter(E, main, side, lead=0, tail=0):
    tot = sum(cost(x) for x in main); span = max(1, tot - lead - tail); c = 0; si = 0
    for x in main:
        while si < len(side) and c >= lead + si * span / len(side):
            E(side[si]); si += 1
        E(x); c += cost(x)
    while si < len(side): E(side[si]); si += 1
def body(k, st, SC, after_p1=()):
    T = V_T
    L = []
    L.append(("Q0", f"buffer_load_dwordx4 {v(V_QM,4)}, v{V_QMO}, s[4:7], s{SO+4} offen {SC}"))
    L.append(("QT", f"buffer_load_dwordx2 {v(V_QTT,2)}, v{V_QT}, s[4:7], s{SO+4} offen {SC}"))
    def km(b): return (f"K{b}", f"buffer_load_dwordx4 {kmain(b)}, v{V_KM}, s[4:7], s{SO+b//2} offen offset:{1024*(b%2)} {SC}")
    def kt(i): return (f"T{i}", f"buffer_load_dwordx2 {a(A_K+12*i,2)}, v{V_KT}, s[4:7], s{SO+i} offen {SC}")
    L += [km(0), kt(0), km(8), kt(4), ("Q1", f"buffer_load_dwordx4 {v(V_QM+4,4)}, v{V_QMO}, s[4:7], s{SO+4} offen offset:1024 {SC}"), km(1), km(9)]
    for i in (1, 2, 3): L += [km(2*i), kt(i), km(2*i+1)]
    for b in (0, 8, 1, 9, 2, 3, 4, 5, 6, 7):
        for s_ in range(2): L.append((f"V{b}", f"buffer_load_dwordx4 {a(A_V+8*b+4*s_,4)}, v{V_VV}, s[4:7], s{SO+b//2} offen offset:{(2*(b%2)+s_)*512} {SC}") if s_ else
                                     (f"v{b}", f"buffer_load_dwordx4 {a(A_V+8*b,4)}, v{V_VV}, s[4:7], s{SO+b//2} offen offset:{(2*(b%2))*512} {SC}"))
    E = VM(k, L)
    kn = lambda bs: ("NEED", [f"K{b}" for b in bs] + [f"T{b//2}" for b in bs])
    E.issue(int(OPT.get("an0", 9)))
    units = [(0, (0, 8)), (1, (1, 9)), (1, (8,)), (0, (1,))] + [(t, (b,)) for b in range(2, 8) for t in range(2)]
    free = [0, 1, 2, 3]; sb = {}
    def m1(i, c):
        t, bs = units[i]; sb[i] = [free.pop(0) for _ in bs]; o = []
        for b, s_ in zip(bs, sb[i]): o += qk(t, b, s_, c(t))
        return o
    def merge_ops(i):
        lo, hi = [V_S + 16 * x for x in sb[i]]
        return [f"v_cndmask_b32 v{lo+n}, v{lo+n}, v{hi+n}, s[{MSK+2*n}:{MSK+2*n+1}]" for n in range(16)]
    zero = lambda t: "0"
    E(("NEED", ["QT"]))
    for t in range(2): k(f"v_mov_b32 v{V_Q1+8*t}, v{V_QTT+t}", f"v_mov_b32 v{V_Q1+8*t+5}, v{V_QTT+t}")
    st(k, "att_first")
    E(kn(units[0][1])); E(m1(0, zero)); E(("ISSUE", 2))
    E(("NEED", ["Q1", "K1", "K9"])); E(m1(1, zero)); E(("ISSUE", 2)); k("s_nop 2")
    nxt = [2]
    def issue_next():
        if nxt[0] < 16 and free:
            o = [kn(units[nxt[0]][1])] + m1(nxt[0], zero); nxt[0] += 1
            return o
        return []
    pend = []
    for i in range(16):
        t, bs = units[i]; S_ = V_S + 16 * sb[i][0]
        mx = [f"v_max3_f32 v{V_MX+2*t+(n&1)}, v{S_+2*n}, v{S_+2*n+1}, v{V_MX+2*t+(n&1)}" for n in range(8)]
        if len(bs) == 2:
            inter(E, merge_ops(i), pend); free.append(sb[i][1]); pend = issue_next()
        if i == 15: k("s_nop 3")
        inter(E, mx, pend + [("ISSUE", 1)]); free.append(sb[i][0])
        pend = issue_next()
    st(k, "att_p1")
    for t in range(2): k(f"v_max_f32 v{V_MX+2*t}, v{V_MX+2*t}, v{V_MX+2*t+1}")
    for t in range(2): k(f"v_mov_b32 v{V_MX+2*t+1}, v{V_MX+2*t}")
    E(("ISSUE", 1)); k("s_nop 0")
    for t in range(2): k(f"v_permlane32_swap_b32 v{V_MX+2*t}, v{V_MX+2*t+1}")
    E(("ISSUE", 1)); k("s_nop 0")
    for t in range(2): k(f"v_max_f32 v{V_MX+2*t}, v{V_MX+2*t}, v{V_MX+2*t+1}")
    units = [(0, (0, 8)), (1, (8,)), (1, (1, 9)), (0, (1,))] + [(t, (b,)) for b in range(2, 8) for t in range(2)]
    free = [0, 1, 2, 3]; sb = {}; pfree = [0, 1, 2, 3]; pb = {}
    nmc = lambda t: v(V_NM + 16 * t, 16)
    for n in range(16): k(f"v_sub_f32 v{V_NM+n}, 0, v{V_MX}")
    k("s_nop 0")
    inter(E, [f"v_sub_f32 v{V_NM+16+n}, 0, v{V_MX+2}" for n in range(16)], m1(0, nmc), 1, 4)
    E(("ISSUE", 2)); k("s_nop 3")
    ostarted = set()
    def m2(i):
        t, bs = units[i]; o = []; O_ = v(V_O + 16 * t, 16)
        for b, p_ in zip(bs, pb[i]):
            for s_ in range(2):
                c = O_ if t in ostarted else "0"; ostarted.add(t)
                o.append([("NEED", [f"V{b}"]), mf(O_, a(A_V + 8*b + 4*s_, 4), v(V_P + 8*p_ + 4*s_, 4), c)])
        return o
    carry = []
    for i in range(16):
        t, bs = units[i]; S_ = V_S + 16 * sb[i][0]
        side = m1(i + 1, nmc) if i + 1 < 16 else []
        m2ops = m2(i - 1) if i >= 1 else []
        pb[i] = [pfree.pop(0) for _ in bs]
        P0 = V_P + 8 * pb[i][0]
        x = merge_ops(i) if len(bs) == 2 else []
        for n in range(8):
            x += [f"v_exp_f32 v{S_+2*n}, v{S_+2*n}", f"v_exp_f32 v{S_+2*n+1}, v{S_+2*n+1}"]
            if n >= 1: x.append(f"v_cvt_pk_bf16_f32 v{P0+n-1}, v{S_+2*n-2}, v{S_+2*n-1}")
        last = f"v_cvt_pk_bf16_f32 v{P0+7}, v{S_+14}, v{S_+15}"
        x[-1], x[-2] = x[-2], x[-1]
        x = x[:-2] + [x[-1], x[-2]]
        if len(bs) == 2:
            P1 = V_P + 8 * pb[i][1]
            x += [f"v_and_b32 v{P1}, v{P0}, v{V_MK}", last]
            for n in range(1, 8): x.append(f"v_and_b32 v{P1+n}, v{P0+n}, v{V_MK+n}")
            for n in range(8): x.append(f"v_xor_b32 v{P0+n}, v{P0+n}, v{P1+n}")
        else: x.append(last)
        if i >= 1:
            for p_ in pb[i - 1]: pfree.append(p_)
        ex = [("ISSUE", 2)]
        if after_p1 and not E.todo: ex = [list(after_p1)]; after_p1 = None
        inter(E, x, side + ex + m2ops, 1, 3)
        for s_ in sb[i]: free.append(s_)
    k("s_nop 1")
    E(m2(15))
    st(k, "att_p2")
    for t in range(2):
        O_ = V_O + 16 * t
        k("s_nop 7" if t == 0 else "s_nop 3")
        k(f"v_mov_b32 v{T+1}, v{O_+10}", "s_nop 1", f"v_permlane32_swap_b32 v{O_+10}, v{T+1}", "s_nop 1", f"v_rcp_f32 v{T}, v{O_+10}", "s_nop 0")
        for n in range(10): k(f"v_mul_f32 v{O_+n}, v{O_+n}, v{T}")
        for n in range(5): k(f"v_cvt_pk_bf16_f32 v{V_S+8*t+n}, v{O_+2*n}, v{O_+2*n+1}")
        k(f"buffer_store_dwordx4 {v(V_S+8*t,4)}, v{V_SO}, s[16:19], s88 offen offset:{512*t} {SC}")
        k(f"buffer_store_dword v{V_S+8*t+4}, v{V_ST}, s[16:19], s89 offen offset:{128*t} {SC}")
```

```python
from common import *
import k_ffn3 as FF
import k_ffn4 as F4
LDS = 163840
SC = "sc1"
S_WS, S_X, S_OUT, S_NON, S_FL = 96, 98, 100, 90, 92
S_FO = 19
S_FO = 75 + 0
V_L16, V_PD, V_PT0, V_PT1, V_STAMP = 1, 12, 13, 14, 15
F_P0, F_QKV, F_ATT, F_WO, F_FFN, F_RED, F_PF = 0, 1, 2, 3, 4, 5, 11
STG_Q, STG_O, STG_F, STG_J = 73728, 91648, 96768, 73728
FS = [3]
def FT(): return 256 << FS[0]
def FPJ(): return 12 * FT() + 4 * 8192
F_PJ = 0
WOIMG = 51200
NST = [0]
def st(k, name=""):
    if STAMP[0]:
        k("s_memtime s[0:1]" if STAMP[0] == 2 else "s_memrealtime s[0:1]", "s_waitcnt lgkmcnt(0)", f"v_writelane_b32 v{V_STAMP}, s0, {NST[0]}" + f" ; {name}")
        NAMES.append(name); NST[0] += 1
NAMES = []
def add64(k, d, base, off_s):
    k(f"s_add_u32 s{d}, s{base}, s{off_s}", f"s_addc_u32 s{d+1}, s{base+1}, 0")
LBL = [0]
POLLW = {}
def publish(k, fid, layered=True, vm=0, idx="task", extra=None, keep=False):
    LBL[0] += 1; L = f"pub{LBL[0]}"
    k(f"s_waitcnt vmcnt({vm})", "s_barrier", "s_cmp_lg_u32 s20, 0", f"s_cbranch_scc1 {L}")
    if idx == "task": k("s_lshl_b32 s23, s21, 3", "s_add_u32 s23, s23, s22", f"s_lshl_b32 s23, s23, {FS[0]}")
    else: k(f"s_lshl_b32 s23, s2, {FS[0]}")
    k(f"s_add_u32 s23, s23, {fid*FT()}")
    if layered: k("s_add_u32 s23, s23, s14")
    k("s_mov_b64 exec, 1", "v_mov_b32 v9, 0", f"v_mov_b32 v10, s{S_NON}", f"v_mov_b32 v11, s{S_NON+1}")
    k(f"buffer_store_dwordx2 v[10:11], v9, s[{S_FL}:{S_FL+3}], s23 offen {SC}")
    if extra is not None:
        k("s_cmp_lg_u32 s3, 0", f"s_cbranch_scc1 {L}_x")
        k("s_lshl_b32 s23, s75, 5", "s_add_u32 s23, s23, s74", "s_lshl_b32 s23, s23, 3", f"s_add_u32 s23, s23, {extra*FT()}", f"buffer_store_dwordx2 v[10:11], v9, s[{S_FL}:{S_FL+3}], s23 offen {SC}")
        k.label(f"{L}_x")
    k("s_mov_b64 exec, -1")
    k.label(L)
def wait(k, setup, pw=0):
    LBL[0] += 1; L = f"wt{LBL[0]}"; POLLW[L] = pw
    k(f"s_cmp_lg_u32 s20, {pw}", f"s_cbranch_scc1 {L}_d")
    k(setup, "s_mov_b32 s23, 0x10000")
    if int(OPT.get("pre", 0)): k(f"s_sleep {OPT['pre']}")
    k.label(f"{L}_l")
    if int(OPT.get("slp", 0)): k(f"s_sleep {OPT['slp']}")
    k(f"buffer_load_dwordx2 v[10:11], v9, s[{S_FL}:{S_FL+3}], 0 offen {SC}", "s_waitcnt vmcnt(0)")
    k(f"v_cmp_ne_u64 vcc, s[{S_NON}:{S_NON+1}], v[10:11]", "s_sub_u32 s23, s23, 1", "s_cselect_b64 s[24:25], 0, -1", "s_nop 1", "s_and_b64 vcc, vcc, s[24:25]", f"s_cbranch_vccnz {L}_l")
    k.label(f"{L}_d")
    k("s_barrier")
def tile_flags(fid, prev_layer=False):
    o = ["v_and_b32 v9, 7, v0", "s_lshl_b32 s23, s21, 3", "v_add_u32 v9, s23, v9", f"v_lshlrev_b32 v9, {FS[0]}, v9", f"s_add_u32 s23, s14, {hx(fid*FT() - (5*FT() if prev_layer else 0))}", "v_add_u32 v9, s23, v9"]
    return o

def div18(su, sq, sr): return [f"s_mul_i32 s{sq}, s{su}, 3641", f"s_lshr_b32 s{sq}, s{sq}, 16", f"s_mul_i32 s{sr}, s{sq}, 18", f"s_sub_u32 s{sr}, s{su}, s{sr}"]
def soffA(rd): return [f"s_add_u32 s76, s74, {32*rd}"] + div18(76, 78, 79) + [f"s_mul_i32 s79, s79, {32*9216}", "s_lshl_b32 s78, s78, 7", "s_add_u32 s78, s78, s79", "s_mul_i32 s79, s75, 1152", "s_add_u32 s78, s78, s79"]
def soffB(rd, d): return [f"s_add_u32 s76, s74, {hx(32*rd - 162)}", "s_lshl_b32 s76, s76, 1"] + div18(76, d, 79) + [f"s_mul_i32 s79, s79, {32*1152}", f"s_lshl_b32 s{d}, s{d}, 7", f"s_add_u32 s{d}, s{d}, s79", f"s_mul_i32 s79, s75, {576*1152}", f"s_add_u32 s{d}, s{d}, s79"]
J_PD, J_T0, J_T1 = 240, 243, 246
def dma_round(rd, lds):
    if rd <= 4: pre, s1, s2, o2, vd = soffA(rd), 60, 64, 78, V_PD
    elif rd == 5:
        pre = soffB(5, 77) + soffA(5) + ["s_cmp_lt_u32 s74, 2", "s_cselect_b32 s78, s78, s77", f"s_cselect_b32 s79, 0, {32*1152}", "s_add_u32 s77, s78, s79"]
        s1, s2, o2, vd = 80, 84, 77, J_PD + 2
    else: pre, s1, s2, o2, vd = soffB(rd, 78) + [f"s_add_u32 s77, s78, {32*1152}"], 36, 36, 77, J_PD + 1
    return [pre + [f"s_add_u32 m0, s88, {lds}", "s_nop 0", f"buffer_load_dwordx4 v{vd}, s[{s1}:{s1+3}], s78 offen lds"],
            [f"s_add_u32 m0, s88, {lds + 4096}", "s_nop 0", f"buffer_load_dwordx4 v{vd}, s[{s2}:{s2+3}], s{o2} offen lds"]]
def tr_round(T, t0, t1, off): return [f"ds_read_b64_tr_b16 {v(T + 4*u + 2*e, 2)}, v{(t0, t1)[e]} offset:{off + 4096*u}" for u in range(2) for e in range(2)]
def st_round(rd, T):
    pre = [f"s_add_u32 s76, s74, {32*rd}", "s_lshl_b32 s78, s76, 11"]
    if rd == 7: pre += ["s_cmp_lt_u32 s76, 243", f"s_cselect_b32 s70, {WFR*1024}, 0"]
    return [pre + [f"buffer_store_dwordx4 {v(T,4)}, v{V_L16}, s[68:71], s78 offen {SC}"], [f"buffer_store_dwordx4 {v(T+4,4)}, v{V_L16}, s[68:71], s78 offen offset:1024 {SC}"]]
def jit_setup():
    q4, r4, c4, t, l8 = 250, 251, 252, 253, 254
    o = [f"v_lshrrev_b32 v{q4}, 4, v0", f"v_bfe_u32 v{r4}, v0, 2, 2", f"v_and_b32 v{c4}, 7, v0", f"v_lshlrev_b32 v{t}, 1, v{q4}", f"v_xor_b32 v{t}, v{t}, v{c4}", f"v_lshlrev_b32 v{t}, 4, v{t}",
         f"v_lshrrev_b32 v{l8}, 3, v0", "s_lshl_b32 s76, s20, 3", f"v_add_u32 v{l8}, s76, v{l8}", f"v_mul_u32_u24 v{l8}, 1152, v{l8}", f"v_add_u32 v{J_PD+1}, v{t}, v{l8}",
         f"v_add_u32 v{J_T0}, {STG_J}, v{V_PT0}", f"v_add_u32 v{J_T1}, 512, v{J_T0}", f"v_lshlrev_b32 v{t}, 9, v{q4}", f"v_sub_u32 v{J_T0+1}, v{J_T0}, v{t}", f"v_add_u32 v{J_T1+1}, 2048, v{J_T0+1}",
         "s_cmp_lt_u32 s74, 2", "s_cselect_b64 vcc, -1, 0", "s_cselect_b64 s[80:81], s[60:61], s[72:73]", "s_cselect_b64 s[84:85], s[64:65], s[72:73]", "s_mov_b64 s[36:37], s[72:73]",
         f"v_cndmask_b32 v{J_PD+2}, v{J_PD+1}, v{V_PD}, vcc", f"v_cndmask_b32 v{J_T0+2}, v{J_T0+1}, v{J_T0}, vcc", f"v_cndmask_b32 v{J_T1+2}, v{J_T1+1}, v{J_T1}, vcc", "s_lshl_b32 s88, s20, 10"]
    for r_ in (36, 80, 84): o += [f"s_mov_b32 s{r_+2}, {hx(D*F*2)}", f"s_mov_b32 s{r_+3}, 0x00020000"]
    return o

Q_XL, Q_SQ, Q_S8, Q_STL, Q_TS, Q_BR1, Q_XW = 2, 3, 4, 5, 6, 7, 8
Q_A2 = 160
Q_VW, Q_VR, Q_VA = 172, 173, 174
Q_AC, Q_B, Q_LT, Q_T, Q_X = 48, 112, 144, 161, 184
BREG = FF.BREG
def q_aload(n):
    o = [f"buffer_load_dwordx4 {BREG(n)}, v{Q_A2 if n % 4 >= 2 else V_L16}, s[4:7], s26 offen" + (f" offset:{(n%4)*1024}" if n % 4 else "") + f" {SC}"]
    if n % 4 == 3: o.append("s_add_u32 s26, s26, 0x1000")
    return o
def q_setup(k):
    q4, tk, r1, r2, t5, t6 = range(Q_T, Q_T + 6)
    k(f"v_lshrrev_b32 v{q4}, 4, v0", f"v_and_b32 v{tk}, 15, v0", f"v_and_b32 v{r1}, 1, v{q4}", f"v_lshrrev_b32 v{r2}, 1, v{q4}")
    k("s_lshl_b32 s38, s20, 10", f"v_add_u32 v{Q_XW}, s38, v{V_L16}", f"v_add_u32 v{Q_BR1}, 36864, v{V_L16}")
    k(f"v_lshlrev_b32 v{t5}, 4, v{tk}", f"v_lshl_add_u32 v{t6}, v{r2}, 9, v{t5}", f"v_lshl_add_u32 v{Q_SQ}, v{r1}, 11, v{t6}")
    k("s_lshl_b32 s40, s20, 13", "s_add_u32 s41, s40, 0x400", "s_add_u32 s42, s40, 0x1000", "s_add_u32 s43, s41, 0x1000")
    k("s_and_b32 s39, s20, 1", "s_mul_i32 s39, s39, 9216", f"s_add_u32 s39, s39, {STG_Q}")
    k(f"v_mul_u32_u24 v{t6}, 144, v{tk}", f"v_lshl_add_u32 v{t6}, v{q4}, 3, v{t6}", f"v_add_u32 v{Q_VW}, s39, v{t6}")
    k(f"v_bfe_u32 v{t6}, v0, 2, 2", f"v_lshl_add_u32 v{t6}, v{r1}, 2, v{t6}", f"v_lshl_add_u32 v{t6}, v{r2}, 4, v{t6}", f"v_mul_u32_u24 v{t6}, 144, v{t6}", f"v_and_b32 v{Q_VR}, 3, v0", f"v_lshl_add_u32 v{t6}, v{Q_VR}, 3, v{t6}", f"v_add_u32 v{Q_VR}, s39, v{t6}")
    k(f"v_lshlrev_b32 v{t6}, 4, v{tk}", f"v_lshl_add_u32 v{t6}, v{r1}, 8, v{t6}", f"v_lshl_add_u32 v{t6}, v{r2}, 9, v{t6}")
    k("s_and_b32 s39, s20, 1", "s_lshl_b32 s39, s39, 13", f"s_add_u32 s39, s39, {KV_V}", f"v_add_u32 v{Q_VA}, s39, v{t6}", f"v_add_u32 v{Q_VA+1}, 0x1000, v{Q_VA}")
    k(f"v_mov_b32 v{r1}, 0x80000000", f"v_cmp_gt_u32 vcc, 32, v0", f"v_mov_b32 v{r2}, {fl(QSCALE)}", "s_nop 0", f"v_cndmask_b32 v{Q_TS}, 1.0, v{r2}, vcc")
    k(f"v_lshlrev_b32 v{t6}, 9, v{q4}", f"v_lshl_add_u32 v{t6}, v{tk}, 3, v{t6}", f"v_add_u32 v{Q_STL}, {KV_QT}, v{t6}")
    k("s_cmp_eq_u32 s20, 3", "s_cselect_b64 vcc, -1, 0", f"v_cndmask_b32 v{Q_A2}, v{V_L16}, v{r1}, vcc")
    k("s_lshl_b32 s38, s22, 2", "s_add_u32 s38, s38, s20", f"s_mul_i32 s38, s38, {72*1024}", f"s_add_u32 s38, s38, {hx(WS_WQ)}"); add64(k, 4, S_WS, 38); srd_fill(k, 4, 72 * 1024)
    k("s_lshl_b32 s38, s21, 3", "s_add_u32 s38, s38, s22", f"s_mul_i32 s38, s38, {KVB}", "s_add_u32 s38, s38, s3"); add64(k, 16, S_WS, 38); srd_fill(k, 16, KVB)
    k("s_mov_b32 s26, 0", "s_mov_b32 s29, 0x3f803f80", f"s_mov_b32 s28, {fl(QSCALE)}")
def ln_write(k, i, X, XW):
    off = i * 4096
    if i == 16: k(f"v_add_u32 v{XW}, 0x10000, v{XW}")
    k(f"ds_write_b128 v{XW}, {v(X+4*i,4)} offset:{off if off < 65536 else off - 65536}")
def q_bread(ks): return [f"ds_read_b128 {v(Q_B + 16*(ks&1) + 4*tb, 4)}, v{Q_BR1 if ks >= 9 else V_L16} offset:{((4*ks+tb) % 36)*1024}" for tb in range(4)]
def q_lnq(i, pk):
    kk = Kern("t"); kk(ln_apply(Q_X, Q_LT, i, pk=pk)); ln_write(kk, i, Q_X, Q_XW); return kk.L
def q_loop(k, na, q, extra, chunk=True):
    k(q_bread(0))
    fill = [[] for _ in range(18 * 16)]
    for c in ((1, 2) if chunk is True else ()):
        ops = [x for i in range(6 * c, 6 * c + 6) for x in q_lnq(i, False)]
        g0 = 96 * (c - 1)
        gaps = [g for g in range(g0, g0 + 80) if g % 4 in (1, 3)]
        for n, x in enumerate(ops): fill[gaps[n * len(gaps) // len(ops)]].append(x)
    for ks in range(18):
        need = 4 * ks + 3
        assert need < na, (ks, na)
        if chunk == "dma" and ks in (5, 11) and f"X{ks+6}" in q and (need not in q or q.index(need) < q.index(f"X{ks+6}")): need = f"X{ks+6}"
        if need in q:
            w = len(q) - 1 - q.index(need); q = q[q.index(need) + 1:]
            k(f"s_waitcnt vmcnt({min(63, w)}) lgkmcnt(0)")
        else: k("s_waitcnt lgkmcnt(0)")
        if ks in (5, 11) and chunk: k("s_barrier")
        br = q_bread(ks + 1) if ks < 17 else []
        for tb in range(4):
            for ht in range(4):
                ac = v(Q_AC + 16*ht + 4*tb, 4)
                k(f"v_mfma_f32_16x16x32_bf16 {ac}, {BREG(4*ks+ht)}, {v(Q_B + 16*(ks&1) + 4*tb, 4)}, {'0' if ks == 0 else ac}")
                if tb < 2 and ht in (0, 1) and br: k(br[2 * tb + ht])
                if ht == 2 and na < 72 and len(q) < 44: k(q_aload(na)); q.append(na); na += 1
                k(fill[16 * ks + 4 * tb + ht])
        for fn, nv in extra.get(ks, []):
            fn(); q += ["x"] * nv
def q_epi(k):
    st(k, "qkv_mfma")
    P = Q_X
    k("s_cmp_ge_u32 s20, 2", "s_cbranch_scc1 q_epi2", "s_cmp_lg_u32 s20, 0", "s_cbranch_scc1 q_noscale", "s_nop 3")
    for i in range(64): k(f"v_mul_f32 v{Q_AC+i}, s28, v{Q_AC+i}")
    k.label("q_noscale")
    k("s_nop 3")
    for pr in range(2):
        for tb in range(4):
            O = P + 16 * pr + 4 * tb
            for h in range(2):
                for d in range(2): k(f"v_cvt_pk_bf16_f32 v{O+2*h+d}, v{Q_AC+16*(2*pr+h)+4*tb+2*d}, v{Q_AC+16*(2*pr+h)+4*tb+2*d+1}")
        for tb in range(4):
            O = P + 16 * pr + 4 * tb
            for d in range(2): k(f"v_permlane16_swap_b32 v{O+d}, v{O+2+d}")
        for tb in range(4):
            k(f"buffer_store_dwordx4 {v(P+16*pr+4*tb,4)}, v{Q_SQ}, s[16:19], s{40 + 2*pr + (tb>>1)} offen offset:{256*(tb&1)} {SC}")
    k("s_branch q_epid")
    k.label("q_epi2")
    k("s_cmp_eq_u32 s20, 3", "s_cbranch_scc1 q_epi3", "s_nop 5")
    def vtile(ht):
        for tb in range(4):
            O = P + 8 * ht + 2 * tb
            for d in range(2): k(f"v_cvt_pk_bf16_f32 v{O+d}, v{Q_AC+16*ht+4*tb+2*d}, v{Q_AC+16*ht+4*tb+2*d+1}")
            k(f"ds_write_b64 v{Q_VW}, {v(O,2)} offset:{tb*16*144 + 32*ht}")
    def vread(ht):
        for pr in range(2):
            for e in range(2): k(f"ds_read_b64_tr_b16 {v(Q_AC+8*ht+4*pr+2*e,2)}, v{Q_VR} offset:{pr*32*144 + e*8*144 + 32*ht}")
    def vstore(ht, va=None):
        for pr in range(2): k(f"buffer_store_dwordx4 {v(Q_AC+8*ht+4*pr,4)}, v{Q_VA + ht//2}, s[16:19], 0 offen offset:{(ht&1)*2048 + pr*1024} {SC}")
    for ht in range(4): vtile(ht)
    k("s_waitcnt lgkmcnt(0)")
    for ht in range(4):
        vread(ht)
        if ht == 1: k("s_waitcnt lgkmcnt(4)"); vstore(0, Q_VA)
    for ht in range(1, 4): k(f"s_waitcnt lgkmcnt({4*(3-ht)})"); vstore(ht, Q_VA + ht)
    k("s_branch q_epid")
    k.label("q_epi3")
    k("s_nop 5")
    vtile(0)
    for tb in range(4):
        for i in range(4): k(f"v_mul_f32 v{Q_AC+16+4*tb+i}, v{Q_TS}, v{Q_AC+16+4*tb+i}")
    k("s_waitcnt lgkmcnt(0)")
    vread(0)
    for a_ in range(2):
        for h in range(2):
            for x in range(2): k(f"v_cvt_pk_bf16_f32 v{P+8+4*a_+2*h+x}, v{Q_AC+16+4*(a_+2*x)+2*h}, v{Q_AC+16+4*(a_+2*x)+2*h+1}")
    k(f"v_mov_b32 v{P+16}, 0x3f803f80", f"v_and_b32 v{P+17}, 8, v0", f"v_cmp_eq_u32 vcc, 0, v{P+17}")
    for a_ in range(2):
        for h in range(2): k(f"buffer_store_dwordx2 {v(P+8+4*a_+2*h,2)}, v{Q_STL}, s[16:19], 0 offen offset:{256*h + 128*a_} {SC}")
    k("s_waitcnt lgkmcnt(0)")
    for i in range(8): k(f"v_cndmask_b32 v{Q_AC+i}, v{P+16}, v{Q_AC+i}, vcc")
    vstore(0)
    k.label("q_epid")

def startup(k):
    k("s_cmp_ge_u32 s2, 256", "s_cbranch_scc1 mega_done")
    k(f"s_load_dwordx4 s[28:31], s[0:1], 0", f"s_load_dwordx2 s[32:33], s[0:1], {A_WO*8}", f"s_load_dwordx4 s[60:63], s[0:1], {A_WG*8}",
      f"s_load_dwordx4 s[48:51], s[0:1], {A_WD*8}", f"s_load_dwordx4 s[52:55], s[0:1], {A_DBG*8}")
    k("v_lshrrev_b32 v1, 6, v0", "v_and_b32 v0, 63, v0", "v_readfirstlane_b32 s20, v1", f"v_lshlrev_b32 v{V_L16}, 4, v0", "s_mov_b32 s3, 0")
    if STAMP[0]: k(f"v_mov_b32 v{V_STAMP}, 0")
    if int(OPT.get("cpf", 1)):
        k("s_cmp_lg_u32 s20, 3", "s_cbranch_scc1 no_cpf", "s_getpc_b64 s[34:35]")
        k.label("cpf_base")
        k("s_lshr_b32 s36, s2, 3", "s_lshl_b32 s36, s36, 4", "v_add_u32 v4, s36, v0", "v_and_b32 v4, 511, v4", "v_lshlrev_b32 v4, 7, v4", "v_mov_b32 v7, s35")
        k("v_min_u32 v6, mega_done-cpf_base, v4", "v_add_co_u32 v2, vcc, s34, v6", "s_nop 1", "v_addc_co_u32 v3, vcc, 0, v7, vcc", "global_load_dword v5, v[2:3], off ; WAWOK")
        k.label("no_cpf")
    wgmap(k, int(OPT.get("q0map", 2)))
    T = 16
    q4, tk, tok, t3, t4, t5, t6, t7, tmp, t9 = range(T, T + 10)
    DQ, DO, TQ, TO = 32, 36, 38, 42
    k(f"v_lshrrev_b32 v{q4}, 4, v0", f"v_and_b32 v{tk}, 15, v0", "s_lshl_b32 s38, s20, 4", f"v_add_u32 v{tok}, s38, v{tk}")
    k(f"v_mul_u32_u24 v{Q_XL}, 1152, v{tok}", f"v_lshl_add_u32 v{Q_XL}, v{q4}, 4, v{Q_XL}")
    hi, c, u, h, col = t3, t4, t5, t6, t7
    k(f"v_lshrrev_b32 v{hi}, 5, v0", f"v_and_b32 v{c}, 31, v0", f"v_lshlrev_b32 v{tmp}, 1, v{hi}", f"v_sub_u32 v{c}, v{c}, v{tmp}")
    k(f"v_lshrrev_b32 v{u}, 1, v{c}", f"v_and_b32 v{h}, 1, v{c}")
    k(f"v_and_b32 v{col}, 3, v{u}", f"v_mul_u32_u24 v{col}, 36, v{col}", f"v_and_b32 v{tmp}, 1, v{u}", f"v_lshl_add_u32 v{col}, v{tmp}, 2, v{col}", f"v_lshl_add_u32 v{col}, v{h}, 4, v{col}")
    k(f"v_lshrrev_b32 v{tmp}, 2, v{u}", f"v_mul_u32_u24 v{tmp}, 1152, v{tmp}", f"v_add_u32 v{col}, v{col}, v{tmp}")
    k(f"v_subrev_u32 v{tmp}, 8, v{u}", f"v_mul_u32_u24 v{tmp}, 1152, v{tmp}", f"v_mul_u32_u24 v{t9}, 72, v{h}", f"v_add3_u32 v{tmp}, v{tmp}, v{t9}, 32")
    k(f"v_cmp_lt_u32 vcc, 7, v{u}", "s_nop 1", f"v_cndmask_b32 v{col}, v{col}, v{tmp}, vcc")
    k(f"v_lshlrev_b32 v{tmp}, 4, v{c}", f"v_add_u32 v{tmp}, {2304 - 320}, v{tmp}")
    k(f"v_cmp_lt_u32 vcc, 9, v{u}", "s_nop 1", f"v_cndmask_b32 v{col}, v{col}, v{tmp}, vcc")
    k(f"v_mul_u32_u24 v{tmp}, 3456, v{hi}", f"s_mul_i32 s42, s20, {8*3456}", f"v_add3_u32 v{col}, v{col}, v{tmp}, s42")
    k(f"v_mov_b32 v{t9}, 0x80000000", f"v_cmp_gt_u32 vcc, 29, v{c}", "s_nop 1", f"v_cndmask_b32 v{DQ}, v{t9}, v{col}, vcc")
    for i in range(1, 4): k(f"v_add_u32 v{DQ+i}, {i*(6912-1088)}, v{DQ}")
    k("s_sub_u32 s34, s2, 112", "s_lshr_b32 s35, s34, 3", "s_and_b32 s34, s34, 7", "s_movk_i32 s40, 6554")
    n_, lam, cc, t1, t2 = t3, t4, t5, t6, t7
    for x in range(2):
        if x == 0: k("s_lshl_b32 s41, s20, 6", f"v_add_u32 v{n_}, s41, v0")
        else: k(f"v_add_u32 v{n_}, 256, v0")
        k(f"v_mul_u32_u24 v{lam}, s40, v{n_}", f"v_lshrrev_b32 v{lam}, 16, v{lam}", f"v_mul_u32_u24 v{cc}, 10, v{lam}", f"v_sub_u32 v{cc}, v{n_}, v{cc}")
        k(f"v_lshrrev_b32 v{t1}, 4, v{lam}", f"v_lshl_add_u32 v{n_}, v{t1}, 1, v{lam}")
        k(f"v_bfe_u32 v{t2}, v{lam}, 2, 1", f"v_lshl_add_u32 v{t1}, v{t1}, 1, v{t2}", f"v_mul_u32_u24 v{t1}, 72, v{t1}")
        k(f"v_bfe_u32 v{t2}, v{lam}, 3, 1", f"v_mul_u32_u24 v{t2}, 36, v{t2}", f"v_add3_u32 v{t1}, v{t1}, v{t2}, 16", f"v_and_b32 v{t2}, 1, v{lam}", f"v_add_u32 v{t1}, v{t1}, v{t2}", f"v_bfe_u32 v{t2}, v{lam}, 1, 1", f"v_mul_u32_u24 v{t2}, 18, v{t2}", f"v_add_u32 v{t1}, v{t1}, v{t2}")
        k("s_cmp_lt_u32 s35, 16", "s_cselect_b64 vcc, -1, 0", f"v_cndmask_b32 v{t1}, v{t1}, v{n_}, vcc")
        k(f"v_mul_u32_u24 v{t1}, 1152, v{t1}", f"v_lshl_add_u32 v{t1}, v{cc}, 4, v{t1}", f"v_cmp_gt_u32 vcc, 9, v{cc}", "s_nop 1", f"v_cndmask_b32 v{DO+x}, v{t9}, v{t1}, vcc")
    k("s_cmp_eq_u32 s20, 0", "s_cselect_b64 vcc, -1, 0", f"v_cndmask_b32 v{DO+1}, v{t9}, v{DO+1}, vcc")
    k(f"s_mul_i32 s36, s35, {36*1152}", "s_sub_u32 s37, s35, 16", f"s_mul_i32 s37, s37, {288*1152}", "s_cmp_lt_u32 s35, 16", "s_cselect_b32 s36, s36, s37", "s_mul_i32 s37, s34, 144", "s_add_u32 s36, s36, s37")
    k("s_and_b32 s37, s2, 7", "s_mul_i32 s37, s37, 144", "s_lshr_b32 s39, s2, 3", f"s_mul_i32 s39, s39, {32*3456}", "s_add_u32 s37, s37, s39")
    srd_fill(k, 12, TILE)
    k(f"s_mul_i32 s39, s21, {TILE}")
    k("s_waitcnt lgkmcnt(0)")
    st(k, "kernarg")
    k(f"s_mov_b32 s{S_WS}, s54", f"s_mov_b32 s{S_WS+1}, s55", f"s_mov_b32 s{S_X}, s28", f"s_mov_b32 s{S_X+1}, s29", f"s_mov_b32 s{S_OUT}, s50", f"s_mov_b32 s{S_OUT+1}, s51")
    k("s_mov_b32 s4, s30", "s_mov_b32 s5, s31", "s_cmp_lt_u32 s2, 144", f"s_cselect_b32 s6, {D*3*D*2}, 0", "s_mov_b32 s7, 0x00020000")
    k("s_mov_b32 s8, s32", "s_mov_b32 s9, s33", "s_cmp_ge_u32 s2, 112", f"s_cselect_b32 s10, {D*D*2}, 0", "s_mov_b32 s11, 0x00020000")
    k("s_mul_i32 s40, s20, 4480", f"s_add_u32 m0, s40, {STG_Q}", "s_nop 0")
    for i in range(4): k(f"buffer_load_dwordx4 v{DQ+i}, s[4:7], s37 offen offset:{1088*i} lds")
    k("s_lshl_b32 s40, s20, 10", f"s_add_u32 m0, s40, {STG_O}", "s_nop 0", f"buffer_load_dwordx4 v{DO}, s[8:11], s36 offen lds")
    k("s_cmp_eq_u32 s20, 0", f"s_cselect_b32 m0, {STG_O + 4096}, 145920", "s_nop 0", f"buffer_load_dwordx4 v{DO+1}, s[8:11], s36 offen lds")
    if OPT.get("fine"): st(k, "p0_dmaq")
    add64(k, 12, S_X, 39)
    for i in range(18): k(f"buffer_load_dwordx4 {v(Q_X+4*i,4)}, v{Q_XL}, s[12:15], 0 offen offset:{64*i}")
    if OPT.get("fine"): st(k, "p0_xiss")
    k("s_mov_b32 s56, s52", "s_mov_b32 s57, s53"); srd_fill(k, 56, 256)
    k("s_or_b32 s38, s2, s20", "s_cmp_lg_u32 s38, 0", "s_cbranch_scc1 no_nonce")
    k("s_memrealtime s[38:39]", "s_waitcnt lgkmcnt(0)", "s_or_b32 s38, s38, 1", "s_mov_b64 exec, 1", "v_mov_b32 v9, 0", "v_mov_b32 v10, s38", "v_mov_b32 v11, s39")
    k(f"buffer_store_dwordx2 v[10:11], v9, s[56:59], 0 offen {SC}", "s_waitcnt vmcnt(0)", "s_mov_b64 exec, -1")
    k.label("no_nonce")
    k(f"s_add_u32 s{S_FL}, s{S_WS}, {hx(WS_F)}", f"s_addc_u32 s{S_FL+1}, s{S_WS+1}, 0"); srd_fill(k, S_FL, 12 * FT() + 5 * 8192)
    r4, c4 = t3, t4
    k(f"v_bfe_u32 v{r4}, v0, 2, 2", f"v_and_b32 v{c4}, 3, v0")
    k(f"v_mul_u32_u24 v{t5}, 4480, v{q4}", f"v_mul_u32_u24 v{t6}, 544, v{r4}", f"v_add3_u32 v{t5}, v{t5}, v{t6}, {STG_Q}".replace(f", {STG_Q}", ", 0"), f"v_add_u32 v{t5}, {STG_Q}, v{t5}", f"v_lshl_add_u32 v{t5}, v{c4}, 3, v{t5}")
    k("s_lshl_b32 s40, s20, 7", "s_cmp_ge_u32 s20, 2", "s_cselect_b32 s41, 64, 0", "s_add_u32 s40, s40, s41")
    k(f"v_add_u32 v{TQ}, s40, v{t5}", f"v_add_u32 v{TQ+1}, 32, v{TQ}", f"v_lshl_add_u32 v{t6}, v{c4}, 3, v{t5}", f"v_add_u32 v{t6}, 256, v{t6}")
    k("s_cmp_eq_u32 s20, 3", "s_cselect_b64 vcc, -1, 0", f"v_cndmask_b32 v{TQ+1}, v{TQ+1}, v{t6}, vcc")
    k(f"v_lshrrev_b32 v{t6}, 1, v{q4}", f"v_and_b32 v{t7}, 1, v{q4}", f"v_lshl_add_u32 v{tmp}, v{t7}, 2, v{r4}", f"v_lshl_add_u32 v{tmp}, v{t6}, 4, v{tmp}", f"v_mul_u32_u24 v{tmp}, 160, v{tmp}")
    k(f"v_lshl_add_u32 v{tmp}, v{c4}, 3, v{tmp}", f"v_add_u32 v{TO+1}, {STG_O + 128}, v{tmp}", "s_lshl_b32 s40, s20, 5", f"s_add_u32 s40, s40, {STG_O}", f"v_add_u32 v{TO}, s40, v{tmp}")
    k("s_and_b32 s40, s2, 7", "s_lshl_b32 s40, s40, 2", "s_add_u32 s40, s40, s20", f"s_mul_i32 s40, s40, {72*1024}", f"s_add_u32 s40, s40, {hx(WS_WQ)}")
    k("s_lshr_b32 s41, s2, 3", "s_lshl_b32 s41, s41, 12", "s_add_u32 s42, s41, 0x800", "s_cmp_eq_u32 s20, 3", "s_cselect_b64 vcc, -1, 0", f"v_cndmask_b32 v44, v{V_L16}, v{t9}, vcc")
    k(f"s_mul_i32 s43, s34, {90*1024}", f"s_add_u32 s43, s43, {hx(WS_WO)}", "s_mul_i32 s45, s35, 5120", "s_lshl_b32 s46, s20, 10", "s_add_u32 s46, s46, s45", "s_add_u32 s45, s45, 4096", "s_cmp_eq_u32 s20, 0", "s_cselect_b64 vcc, -1, 0", f"v_cndmask_b32 v45, v{t9}, v{V_L16}, vcc")
    k("s_mov_b32 s64, s62", "s_mov_b32 s65, s63", "s_mov_b64 s[72:73], s[48:49]", "s_lshr_b32 s74, s2, 3", "s_and_b32 s75, s2, 7")
    srd_fill(k, 60, D * F * 2); srd_fill(k, 64, D * F * 2)
    k("s_lshl_b32 s76, s75, 2", "s_add_u32 s76, s76, s20", f"s_mul_i32 s76, s76, {WFR*1024}", f"s_add_u32 s76, s76, {hx(WS_W)}"); add64(k, 68, S_WS, 76); srd_fill(k, 68, WFR * 1024)
    l8, l7 = t5, t6
    k(f"v_lshrrev_b32 v{l8}, 3, v0", f"v_and_b32 v{l7}, 7, v0", "s_lshl_b32 s76, s20, 3", f"v_add_u32 v{l8}, s76, v{l8}")
    k("s_and_b32 s76, s20, 1", "s_lshl_b32 s76, s76, 1", f"v_add_u32 v{tmp}, s76, v{t7}", f"v_lshlrev_b32 v{tmp}, 1, v{tmp}", f"v_xor_b32 v{tmp}, v{tmp}, v{l7}", f"v_lshlrev_b32 v{tmp}, 4, v{tmp}")
    k(f"v_mul_u32_u24 v{l8}, 9216, v{l8}", f"v_add_u32 v{V_PD}, v{tmp}, v{l8}")
    k(f"v_lshrrev_b32 v{tmp}, 1, v{r4}", f"v_lshl_add_u32 v{tmp}, v{t7}, 1, v{tmp}", f"v_xor_b32 v{tmp}, s20, v{tmp}", f"v_lshlrev_b32 v{tmp}, 5, v{tmp}", f"v_lshl_add_u32 v{tmp}, v{c4}, 3, v{tmp}", f"v_lshl_add_u32 v{tmp}, v{r4}, 7, v{tmp}")
    k(f"v_lshl_add_u32 v{V_PT0}, v{q4}, 10, v{tmp}")
    st(k, "p0_issued")
    k("s_waitcnt vmcnt(18)")
    if OPT.get("fine"): st(k, "p0_qland")
    k("s_barrier")
    if OPT.get("fine"): st(k, "p0_bar")
    PT = Q_AC
    for ht in range(4):
        for e in range(2):
            k(f"ds_read_b64_tr_b16 {v(PT+4*ht+2*e,2)}, v{TQ+1 if ht == 1 else TQ} offset:{e*2176 + (0 if ht == 1 else 32*ht)}")
    for x in range(2):
        for e in range(2): k(f"ds_read_b64_tr_b16 {v(PT+16+4*x+2*e,2)}, v{TO+x} offset:{e*1280}")
    add64(k, 4, S_WS, 40); k("s_cmp_lt_u32 s2, 144", f"s_cselect_b32 s6, {72*1024}, 0")
    add64(k, 8, S_WS, 43); k("s_cmp_ge_u32 s2, 112", f"s_cselect_b32 s10, {90*1024}, 0")
    k("s_waitcnt lgkmcnt(0)")
    for ht in range(4): k(f"buffer_store_dwordx4 {v(PT+4*ht,4)}, v{44 if ht >= 2 else V_L16}, s[4:7], s{41 + ht//2} offen offset:{1024*(ht&1)} {SC}")
    k(f"buffer_store_dwordx4 {v(PT+16,4)}, v{V_L16}, s[8:11], s46 offen {SC}", f"buffer_store_dwordx4 {v(PT+20,4)}, v45, s[8:11], s45 offen {SC}")
    st(k, "p0_prepst")
    q_setup(k)
    ln_stats_norm(k, Q_X, Q_LT, 29)
    if OPT.get("fine"): st(k, "p0_qsetup")
    for i in range(18):
        k(f"s_waitcnt vmcnt({17 - i + 6})"); k(ln_acc(Q_X, Q_LT, 29, i))
    st(k, "p0_stats")
    k("v_mov_b32 v9, 0", "s_mov_b32 s23, 0x10000")
    k.label("non_l")
    k(f"buffer_load_dwordx2 v[10:11], v9, s[56:59], 0 offen {SC}", "s_waitcnt vmcnt(0)", f"v_readfirstlane_b32 s{S_NON}, v10", f"v_readfirstlane_b32 s{S_NON+1}, v11",
      "s_sub_u32 s23, s23, 1", "s_cselect_b32 s24, 1, 0", f"s_or_b32 s24, s24, s{S_NON}", "s_cmp_eq_u32 s24, 0", "s_cbranch_scc1 non_l")
    k.label("non_d")
    publish(k, F_P0, layered=False, idx="phys")
    if OPT.get("fine"): st(k, "p0_pub")
    k("s_lshl_b32 s88, s20, 10")
    for rd in range(4): k(dma_round(rd, STG_F + 8192 * rd))
    if OPT.get("fine"): st(k, "p0_f0")
    ln_finish(k, Q_LT)
    for i in range(18): k(q_lnq(i, True))
    st(k, "p0_ln")
    k("s_waitcnt vmcnt(0) lgkmcnt(0)")
    wait(k, ["v_and_b32 v9, 31, v0", "v_min_u32 v9, 17, v9", "v_lshlrev_b32 v9, 3, v9", "s_bfe_u32 s23, s2, 0x30003", "s_add_u32 s23, s23, 112", "v_add_u32 v10, s23, v9", "v_add_u32 v9, s22, v9", "v_cmp_gt_u32 vcc, 32, v0", "s_nop 1", "v_cndmask_b32 v9, v10, v9, vcc", f"v_lshlrev_b32 v9, {FS[0]}, v9"])
    st(k, "p0_flags")
    N0 = int(OPT.get("n0", 12))
    for n in range(N0): k(q_aload(n))
    k("s_mov_b32 s14, 0")
    e1, e2 = int(OPT.get("e1", 17)), int(OPT.get("e2", 17))
    ex = {}
    FD = Q_X + 32
    def f0tr():
        k(f"v_add_u32 v{Q_T}, {STG_F}, v{V_PT0}", f"v_add_u32 v{Q_T+1}, 512, v{Q_T}")
        for rd in range(4):
            k(tr_round(FD + 8 * rd, Q_T, Q_T + 1, 8192 * rd))
            if rd == 1: k("s_waitcnt lgkmcnt(4)")
    ex.setdefault(12, []).append((f0tr, 0))
    for rd in range(4): ex.setdefault(e1 - 3 + rd, []).append((lambda rd=rd: k(st_round(rd, FD + 8 * rd)), 2))
    q_loop(k, N0, list(range(N0)), ex, chunk=False)
    k("s_branch q_epi")

def phase_qkv1(k):
    wgmap(k, int(OPT.get("q1map", 4)))
    q_setup(k)
    q4, tk = Q_T, Q_T + 1
    k("s_lshl_b32 s38, s20, 8", f"v_lshlrev_b32 v{Q_XL}, 10, v{q4}", f"v_lshl_add_u32 v{Q_XL}, v{tk}, 4, v{Q_XL}", f"v_add_u32 v{Q_XL}, s38, v{Q_XL}")
    k(f"s_mul_i32 s38, s21, {TILE}", f"s_add_u32 s38, s38, {hx(WS_XN)}"); add64(k, 8, S_WS, 38); srd_fill(k, 8, TILE)
    k("s_mov_b32 s27, 0", "s_lshl_b32 s38, s20, 10")
    NE = int(OPT.get("qne", 20))
    for n in range(NE): k(q_aload(n))
    wait(k, tile_flags(F_RED, prev_layer=True))
    st(k, "q1_flags")
    for i in range(18):
        k(f"s_add_u32 m0, s38, {4096*i}", "s_nop 0" if i == 0 else "s_add_u32 s27, s27, 0x1000", f"buffer_load_dwordx4 v{Q_XL}, s[8:11], s27 offen {SC} lds")
    k("s_waitcnt vmcnt(12)", "s_barrier")
    st(k, "q1_x0")
    q_loop(k, NE, [f"X{i}" for i in range(6, 18)], {}, chunk="dma")

import k_att2 as AT
def phase_att(k):
    A = AT; T = A.V_T; SO = A.SO
    wgmap(k, 1)
    k(f"v_and_b32 v{T}, 31, v0", f"v_lshrrev_b32 v{T+1}, 5, v0")
    bias = [8, 9, 10, 11, 87]
    for i in range(5):
        k(f"s_add_i32 s23, s21, {i-4}", f"s_cmp_lt_i32 s23, 0", f"s_cselect_b32 s{bias[i]}, {A.NEG}, 0", "s_max_i32 s23, s23, 0",
          "s_lshl_b32 s23, s23, 3", "s_add_u32 s23, s23, s22", f"s_mul_i32 s{SO+i}, s23, {KVB}")
    k("s_lshl_b32 s15, s20, 11", f"v_add_u32 v{A.V_QMO}, s15, v{V_L16}", f"v_add_u32 v{A.V_KM}, {KV_KM}, v{A.V_QMO}")
    k("s_lshl_b32 s25, s20, 8", f"v_lshlrev_b32 v{A.V_KT}, 3, v{T}", f"v_add_u32 v{A.V_KT}, s25, v{A.V_KT}")
    k(f"v_mov_b32 v{T+3}, 0x80000000", f"v_cmp_gt_u32 vcc, 32, v0", f"v_add_u32 v{T+4}, {KV_QT}, v{A.V_KT}", f"v_add_u32 v{A.V_KT}, {KV_KT}, v{A.V_KT}")
    k(f"v_cndmask_b32 v{A.V_QT}, v{T+3}, v{T+4}, vcc", f"v_lshlrev_b32 v{T+4}, 2, v0", f"v_cndmask_b32 v{A.V_ST}, v{T+3}, v{T+4}, vcc")
    add64(k, 4, S_WS, 3); srd_fill(k, 4, 256 * KVB)
    k(f"v_mov_b32 v{T+9}, 0x3f80", f"v_mov_b32 v{T+8}, 0")
    for t in range(2):
        for p_ in range(2):
            q = A.V_Q1 + 8 * t + 4 * p_
            k(f"v_mov_b32 v{q + 1 - p_}, 0", f"v_cndmask_b32 v{q+2}, 0, v{T+9}, vcc", f"v_mov_b32 v{q+3}, 0")
    for i in range(5): k(f"v_mov_b32 v{T+9}, s{bias[i]}", f"v_accvgpr_write_b32 {a(A.A_K+12*i+3)}, v{T+8}", f"v_accvgpr_write_b32 {a(A.A_K+12*i+2)}, v{T+9}")
    k("s_mul_i32 s25, s20, 18", f"v_add_u32 v{T+4}, s25, v{T}", f"v_cmp_eq_u32 vcc, 18, v{T}", f"v_mov_b32 v{T+5}, 72", "s_nop 0", f"v_cndmask_b32 v{T+4}, v{T+4}, v{T+5}, vcc")
    k(f"v_lshrrev_b32 v{T+5}, 4, v{T+4}", f"v_and_b32 v{T+4}, 15, v{T+4}", f"v_lshlrev_b32 v{T+4}, 4, v{T+4}", f"v_lshl_add_u32 v{T+4}, v{T+5}, 11, v{T+4}", f"v_lshl_add_u32 v{T+4}, v{T+1}, 8, v{T+4}", f"v_add_u32 v{T+4}, {KV_V}, v{T+4}", f"v_cmp_gt_u32 vcc, 19, v{T}")
    k(f"v_lshlrev_b32 v{A.V_D4}, 2, v{T+1}", f"v_sub_u32 v{A.V_D4}, v{T}, v{A.V_D4}", f"v_cndmask_b32 v{A.V_VV}, v{T+3}, v{T+4}, vcc")
    for i in range(16): k(f"v_cmp_le_i32 s[{A.MSK+2*i}:{A.MSK+2*i+1}], {8*(i//4) + i%4}, v{A.V_D4}")
    k(f"v_mov_b32 v{T+9}, 0xffff")
    for d in range(8): k(f"v_cndmask_b32 v{A.V_MK+d}, 0, v{T+9}, s[{A.MSK+4*d}:{A.MSK+4*d+1}]")
    for d in range(8): k(f"v_cndmask_b32 v{A.V_MK+d}, v{A.V_MK+d}, -1, s[{A.MSK+4*d+2}:{A.MSK+4*d+3}]")
    k(f"s_mul_i32 s23, s21, {TILE}", "s_add_u32 s23, s23, s3", f"s_add_u32 s23, s23, {hx(WS_O)}"); add64(k, 16, S_WS, 23); srd_fill(k, 16, TILE)
    k("s_lshl_b32 s88, s22, 13", "s_add_u32 s88, s88, s15")
    k(f"v_lshlrev_b32 v{A.V_SO}, 4, v{T}", f"v_lshl_add_u32 v{A.V_SO}, v{T+1}, 10, v{A.V_SO}")
    k("s_add_u32 s89, s22, 64", "s_lshl_b32 s89, s89, 10", "s_lshl_b32 s23, s20, 8", "s_add_u32 s89, s89, s23")
    for i in range(4): k(f"v_mov_b32 v{A.V_MX+i}, 0xff7fffff")
    k("s_bfe_u32 s23, s2, 0x30003", f"s_mul_i32 s23, s23, {90*1024}", f"s_add_u32 s23, s23, {hx(WS_WO)}"); add64(k, 8, S_WS, 23); srd_fill(k, 8, 90 * 1024)
    st(k, "att_setup")
    wait(k, ["v_min_u32 v9, 4, v0", "s_sub_u32 s23, s21, 4", "v_add_u32 v9, s23, v9", "v_max_i32 v9, 0, v9", "v_lshlrev_b32 v9, 3, v9", "v_add_u32 v9, s22, v9", f"v_lshlrev_b32 v9, {FS[0]}, v9",
             f"s_add_u32 s23, s14, {F_QKV*FT()}", "v_add_u32 v9, s23, v9"])
    st(k, "att_flags")
    kk = Kern("t")
    if int(OPT.get("jt", 1)):
        kk("s_mov_b32 s26, 0", "s_mov_b32 s27, 0x00020000", "s_mov_b64 s[24:25], s[60:61]", "s_mov_b64 s[12:13], s[60:61]", "s_cmp_lg_u32 s3, 0", "s_cbranch_scc1 att_notouch")
        kk("s_lshl_b32 s76, s20, 5", "s_add_u32 s76, s76, s74", "s_add_u32 s76, s76, 128", "s_sub_u32 s77, s76, 162", "s_lshl_b32 s77, s77, 1", "s_cmp_lt_u32 s76, 162", "s_cselect_b32 s76, s76, s77",
          f"s_cselect_b32 s77, 9216, 1152", f"s_cselect_b32 s80, 1152, {576*1152}", f"s_cselect_b32 s81, 0, {32*1152}", "s_cselect_b64 s[24:25], s[60:61], s[72:73]", "s_cselect_b64 s[12:13], s[64:65], s[72:73]")
        kk(div18(76, 78, 79), "s_lshl_b32 s79, s79, 5", "s_mul_i32 s79, s79, s77", "s_lshl_b32 s78, s78, 7", "s_add_u32 s78, s78, s79", "s_mul_i32 s79, s75, s80", "s_add_u32 s78, s78, s79", "s_add_u32 s81, s81, s78")
        kk(f"s_mov_b32 s26, {hx(D*F*2)}", "att_notouch:", "v_and_b32 v9, 31, v0", "v_mul_u32_u24 v9, s77, v9")
        kk("buffer_load_dword v10, v9, s[24:27], s78 offen", "s_mov_b64 s[24:25], s[12:13]", "buffer_load_dword v11, v9, s[24:27], s81 offen")
    A.body(k, st, SC, kk.L)
def wo_dma(k):
    o = [["s_mul_i32 s26, s20, 23552", f"s_add_u32 s27, s26, {WOIMG}"]]
    for g in range(6):
        o.append(["s_mov_b32 m0, s27", "s_add_u32 s27, s27, 0x1000", f"buffer_load_dwordx4 v{V_L16}, s[8:11], s26 offen lds"])
        for i in range(1, 4 if g < 5 else 3): o.append(f"buffer_load_dwordx4 v{V_L16}, s[8:11], s26 offen offset:{1024*i} lds")
        o[-1] = [o[-1], "s_add_u32 s26, s26, 0x1000"]
    return o

W_XL, W_A0, W_A1, W_RL, W_SP, W_S8, W_T, W_AC, W_R, W_AF, W_B = 2, 3, 4, 5, 6, 7, 16, 36, 56, 184, 108
def phase_wo(k):
    wgmap(k, 8)
    T = W_T; q4, tk, tok, n, lam, c, t1, t2 = range(T, T + 8)
    k(f"v_lshrrev_b32 v{q4}, 4, v0", f"v_and_b32 v{tk}, 15, v0", "s_lshl_b32 s38, s20, 4", f"v_add_u32 v{tok}, s38, v{tk}")
    k(f"v_lshlrev_b32 v{W_XL}, 10, v{q4}", f"v_lshl_add_u32 v8, v{tok}, 2, v{W_XL}", f"v_lshl_add_u32 v{W_XL}, v{tok}, 4, v{W_XL}")
    k(f"s_mul_i32 s39, s21, {TILE}", "s_add_u32 s41, s39, s3", f"s_add_u32 s42, s41, {hx(WS_O)}"); add64(k, 4, S_WS, 42); srd_fill(k, 4, TILE)
    k(f"s_add_u32 s42, s{S_WS}, {hx(WS_X2)}", f"s_addc_u32 s43, s{S_WS+1}, 0", "s_cmp_eq_u32 s3, 0", f"s_cselect_b32 s8, s{S_X}, s42", f"s_cselect_b32 s9, s{S_X+1}, s43", "s_cselect_b64 vcc, -1, 0", "s_cselect_b32 s36, 32, 2048")
    k("s_mul_i32 s46, s22, 9216", "s_mul_i32 s37, s22, 144", "s_cselect_b32 s45, s37, s46")
    k("s_add_u32 s8, s8, s39", "s_addc_u32 s9, s9, 0"); srd_fill(k, 8, TILE)
    k(f"v_mul_u32_u24 v{t1}, 1152, v{tok}", f"v_lshl_add_u32 v{t1}, v{q4}, 3, v{t1}")
    k(f"v_lshrrev_b32 v{n}, 1, v{q4}", f"v_and_b32 v{lam}, 1, v{q4}")
    k(f"v_lshlrev_b32 v{t2}, 4, v{tok}", f"v_lshl_add_u32 v{c}, v{lam}, 3, v{t2}", f"v_lshl_add_u32 v{c}, v{n}, 10, v{c}")
    k(f"v_cndmask_b32 v{W_RL}, v{c}, v{t1}, vcc")
    for ht in range(5):
        k(f"buffer_load_dwordx2 {v(W_R+2*ht,2)}, v{W_RL}, s[8:11], s45 offen {SC}")
        if ht < 4: k("s_add_u32 s45, s45, s36")
    k(f"v_add_u32 v{W_A0}, {WOIMG}, v{V_L16}", f"v_add_u32 v{W_A1}, {WOIMG + 61440}, v{V_L16}")
    k(f"v_lshl_add_u32 v{t1}, v{lam}, 1, v{n}", f"v_lshl_add_u32 v{W_SP}, v{t1}, 10, v{t2}")
    k(f"v_lshl_add_u32 v{t1}, v{q4}, 3, v{t2}", f"v_add_u32 v{t1}, 8192, v{t1}", f"v_mov_b32 v{c}, 0x80000000", f"v_cmp_gt_u32 vcc, 2, v{q4}", "s_nop 1", f"v_cndmask_b32 v{W_S8}, v{c}, v{t1}, vcc")
    k(f"s_add_u32 s42, s41, {hx(WS_X1)}"); add64(k, 16, S_WS, 42); srd_fill(k, 16, TILE)
    k("s_add_u32 s47, s46, 4096", "s_mov_b32 s40, 0", "s_mov_b32 s29, 0x3f803f80", f"v_cndmask_b32 v{W_T+12}, 0, -1, vcc")
    k(f"v_lshlrev_b32 v{t1}, 3, v{tok}", f"v_cmp_gt_u32 vcc, 16, v0", "s_lshl_b32 s42, s21, 3", "s_add_u32 s42, s42, s22", "s_lshl_b32 s42, s42, 9", "s_add_u32 s42, s42, s3", f"s_add_u32 s42, s42, {hx(WS_SS)}", f"v_cndmask_b32 v{W_T+13}, v{c}, v{t1}, vcc")
    add64(k, 8, S_WS, 42); srd_fill(k, 8, 512)
    def aread(ks): return [f"ds_read_b128 {v(W_AF + 20*(ks%3) + 4*ht, 4)}, v{W_A1 if ks >= 12 else W_A0} offset:{(5*ks+ht)*1024 - (61440 if ks >= 12 else 0)}" for ht in range(5)]
    st(k, "wo_setup")
    k("s_waitcnt vmcnt(0)")
    kk = Kern("t"); wgmap(kk, int(OPT.get("map", 4)), 34, 35)
    kk.L = [x.replace("s44", "s30").replace("s45", "s31").replace("s46", "s32").replace("s47", "s33") for x in kk.L]
    wait(k, tile_flags(F_ATT) + kk.L + ["v_and_b32 v10, 31, v0", "s_lshl_b32 s35, s35, 5", "v_add_u32 v10, s35, v10", "v_lshlrev_b32 v10, 3, v10", f"v_add_u32 v10, {F_PF*FT()}, v10",
                               "v_cmp_gt_u32 vcc, 32, v0", "s_nop 1", "v_cndmask_b32 v9, v10, v9, vcc"])
    st(k, "wo_flags")
    for i in range(18):
        if i < 16: k(f"buffer_load_dwordx4 {v(W_B+4*i,4)}, v{W_XL}, s[4:7], s40 offen {SC}")
        else:
            for d in range(4): k(f"buffer_load_dword v{W_B+4*i+d}, v8, s[4:7], s40 offen offset:{256*d} {SC}")
        if i < 17: k("s_add_u32 s40, s40, 0x1000")
    k("s_waitcnt lgkmcnt(0)")
    k(aread(0), aread(1))
    for ks in range(18):
        k(f"s_waitcnt vmcnt({15 - ks + 8 if ks < 16 else 4 * (17 - ks)}) lgkmcnt({5 if ks < 17 else 0})")
        ar = aread(ks + 2) if ks < 16 else []
        for ht in range(5):
            ac = v(W_AC + 4 * ht, 4)
            k(f"v_mfma_f32_16x16x32_bf16 {ac}, {v(W_AF + 20*(ks%3) + 4*ht, 4)}, {v(W_B+4*ks,4)}, {'0' if ks == 0 else ac}")
            if ar: k(ar[ht])
    k.label("wo_epi")
    st(k, "wo_mfma")
    for ht in range(5):
        for d in range(2):
            k(f"v_lshlrev_b32 v{T+4*(ht&1)+2*d}, 16, v{W_R+2*ht+d}", f"v_and_b32 v{T+4*(ht&1)+2*d+1}, 0xffff0000, v{W_R+2*ht+d}")
        if ht == 0: k("s_nop 3")
        for i in range(4): k(f"v_add_f32 v{W_AC+4*ht+i}, v{W_AC+4*ht+i}, v{T+4*(ht&1)+i}")
    P = W_B
    WO_STATS(k)
    for ht in range(0):
        for d in range(2): k(f"v_cvt_pk_bf16_f32 v{P+2*ht+d}, v{W_AC+4*ht+2*d}, v{W_AC+4*ht+2*d+1}")
    publish(k, F_WO)
    st(k, "wo_pub")

def WO_STATS(k):
    P = W_B; T = W_T + 8
    for ht in range(5):
        for d in range(2): k(f"v_cvt_pk_bf16_f32 v{P+2*ht+d}, v{W_AC+4*ht+2*d}, v{W_AC+4*ht+2*d+1}")
    k(f"v_and_b32 v{P+12}, v{P+8}, v{W_T+12}", f"v_and_b32 v{P+13}, v{P+9}, v{W_T+12}", f"v_mov_b32 v{T}, 0", f"v_mov_b32 v{T+2}, 0")
    for pr in range(2):
        for d in range(2): k(f"v_permlane16_swap_b32 v{P+4*pr+d}, v{P+4*pr+2+d}")
    k(f"buffer_store_dwordx4 {v(P,4)}, v{W_SP}, s[16:19], s46 offen {SC}", f"buffer_store_dwordx4 {v(P+4,4)}, v{W_SP}, s[16:19], s47 offen {SC}")
    k(f"buffer_store_dwordx2 {v(P+8,2)}, v{W_S8}, s[16:19], s46 offen {SC}")
    for x in list(range(P, P + 8)) + [P + 12, P + 13]:
        k(f"v_dot2c_f32_bf16 v{T}, s29, v{x}", f"v_dot2c_f32_bf16 v{T+2}, v{x}, v{x}")
    k("s_nop 2")
    xlane(k, T, (16, 32))
    k(f"v_mov_b32 v{T+1}, v{T+2}", f"buffer_store_dwordx2 {v(T,2)}, v{W_T+13}, s[8:11], 0 offen {SC}")
def phase_ffn(k):
    F_ = FF; mp = int(OPT.get("map", 4)); late = int(OPT.get("late", 8))
    wgmap(k, mp)
    k("s_mov_b32 s29, 0x3f803f80")
    t0, t1, t2, t5, t6 = 64, 65, 66, 67, 68
    k(f"v_lshrrev_b32 v{t0}, 4, v0", f"v_and_b32 v{t1}, 15, v0", "s_lshl_b32 s38, s20, 8")
    k(f"v_lshlrev_b32 v{t2}, 10, v{t0}", f"v_lshl_add_u32 v{t2}, v{t1}, 4, v{t2}", f"v_add_u32 v{F_.V_XL}, s38, v{t2}")
    k(f"s_mul_i32 s39, s21, {TILE}", "s_add_u32 s39, s39, s3", f"s_add_u32 s39, s39, {hx(WS_X1)}"); add64(k, 8, S_WS, 39); srd_fill(k, 8, TILE)
    k("s_lshl_b32 s24, s22, 2", "s_add_u32 s24, s24, s20", f"s_mul_i32 s24, s24, {WFR*1024}", f"s_add_u32 s24, s24, {hx(WS_W)}"); add64(k, 4, S_WS, 24); srd_fill(k, 4, WFR * 1024)
    k("s_lshl_b32 s41, s22, 5", "s_add_u32 s41, s41, s21", f"s_mul_i32 s41, s41, {TILE}", "s_add_u32 s41, s41, s3", f"s_add_u32 s41, s41, {hx(WS_P)}"); add64(k, 16, S_WS, 41); srd_fill(k, 16, TILE)
    k("s_mov_b32 s27, 0", "s_mov_b32 s40, 0")
    k(f"v_and_b32 v{t6}, 1, v{t0}", f"v_lshrrev_b32 v{t5}, 1, v{t0}", f"v_add_u32 v{F_.V_XR1}, 36864, v{V_L16}")
    k("s_lshr_b32 s41, s20, 1", "s_lshl_b32 s41, s41, 12", "s_and_b32 s42, s20, 1", "s_lshl_b32 s42, s42, 3", "s_add_u32 s41, s41, s42")
    k(f"v_add_u32 v{F_.V_HW}, s41, v{V_L16}")
    k("s_lshl_b32 s41, s20, 10", f"v_add_u32 v{F_.V_XW}, s41, v{V_L16}")
    k(f"v_lshlrev_b32 v{F_.V_ST}, 10, v{t5}", f"v_lshl_add_u32 v{F_.V_ST}, v{t6}, 8, v{F_.V_ST}", f"v_lshl_add_u32 v{F_.V_ST}, v{t1}, 4, v{F_.V_ST}")
    k("s_lshl_b32 s41, s20, 11", f"v_add_u32 v{F_.V_ST}, s41, v{F_.V_ST}", f"v_mov_b32 v{F_.V_C2}, {fl(F_.C2)}")
    k("s_cmp_eq_u32 s3, 0", "s_cselect_b32 s31, 0, 0x4000", "s_lshl_b32 s30, s21, 9", "s_add_u32 s31, s31, s30", f"s_add_u32 s31, s31, {12*FT()}")
    k("s_lshl_b32 s30, s22, 2", "s_add_u32 s30, s30, s20", "s_lshl_b32 s30, s30, 3", "s_add_u32 s30, s30, s31")
    k("s_lshl_b32 s42, s21, 12", "s_add_u32 s42, s42, s3", f"s_add_u32 s42, s42, {hx(WS_SS)}"); add64(k, 32, S_WS, 42); srd_fill(k, 32, 4096)
    k("s_lshl_b32 s42, s20, 7", f"v_lshlrev_b32 v{t2}, 3, v{t1}", f"v_lshl_add_u32 v{t2}, v{t0}, 10, v{t2}", f"v_add_u32 v{t2}, s42, v{t2}")
    k("s_mov_b32 s23, 0")
    F4.preload(k)
    k("s_mov_b32 s26, s23")
    wait(k, tile_flags(F_WO))
    st(k, "ffn_flags")
    if int(OPT.get("touch", 0)):
        per = 18 * mp * (1 if int(OPT["touch"]) == 1 else 1)
        k(f"s_mul_i32 s41, s44, {per}", "v_add_u32 v11, s41, v0", "v_lshlrev_b32 v11, 7, v11", f"v_cmp_gt_u32 vcc, {per}, v0", "v_mov_b32 v5, 0x80000000", f"s_mov_b32 s49, {int(OPT.get('tch0', 3)) * TILE}", "v_cndmask_b32 v11, v5, v11, vcc")
    k("s_mov_b32 s23, s26")
    LT = F_.V_LT
    k(f"buffer_load_dwordx2 {v(LT+8,2)}, v{t2}, s[32:35], 0 offen {SC}", f"buffer_load_dwordx2 {v(LT+10,2)}, v{t2}, s[32:35], 0 offen offset:512 {SC}")
    XS = int(OPT.get("xs", 8))
    def xl(i): return [f"buffer_load_dwordx4 {v(F_.V_X+4*i,4)}, v{F_.V_XL}, s[8:11], s40 offen {SC}"] + (["s_add_u32 s40, s40, 0x1000"] if i < 17 else [])
    for i in range(XS): k(xl(i))
    k(f"s_waitcnt vmcnt({XS})", f"v_add_f32 v{LT}, v{LT+8}, v{LT+10}", f"v_add_f32 v{LT+2}, v{LT+9}, v{LT+11}")
    kk = Kern("t"); xlane(kk, LT, (16, 32)); ln_fin2(kk, LT)
    k(merge(kk.L, [xl(i) for i in range(XS, 18)]))
    st(k, "ffn_stats")
    def lnq(i):
        kk = Kern("t"); kk(ln_apply(F_.V_X, F_.V_LT, i, pk=(i < 6))); ln_write(kk, i, F_.V_X, F_.V_XW); return kk.L
    F4.group0(k, lnq)
    st(k, "ffn_g0")
    k("s_mov_b32 s25, 4", "s_mov_b32 s26, 99", "s_cmp_lg_u32 s3, 0", "s_cbranch_scc1 ffn_loopA_odd")
    JD = 200
    x1 = {2: jit_setup()}
    for n_, rd in enumerate(range(4, 8)):
        g_ = dma_round(rd, STG_J + 8192 * n_); x1[4 * (6 + 7 * n_) + 1] = g_[0]; x1[4 * (9 + 7 * n_) + 1] = g_[1]
    F4.groupA(k, 1, x1)
    x2 = {4 * 13 + 1: ["s_barrier"]}
    for n_, rd in enumerate(range(4, 8)):
        sel = 0 if rd == 4 else (2 if rd == 5 else 1)
        for e_, op in enumerate(tr_round(JD + 8 * n_, J_T0 + sel, J_T1 + sel, 8192 * n_)): x2[4 * (14 + 2 * n_ + e_ // 2) + 2 * (e_ % 2)] = [op]
        g_ = st_round(rd, JD + 8 * n_); x2[4 * (24 + 3 * n_) + 1] = (["s_waitcnt lgkmcnt(0)"] if n_ == 0 else []) + g_[0]; x2[4 * (25 + 3 * n_) + 1] = g_[1]
    F4.groupA(k, 2, x2)
    x3 = {4 * 18 + 1: ["s_lshl_b32 s76, s2, 2", "s_add_u32 s76, s76, s20", "s_lshl_b32 s76, s76, 3", f"s_add_u32 s76, s76, {FPJ()}", "s_mov_b64 exec, 1", "v_mov_b32 v9, 0", f"v_mov_b32 v10, s{S_NON}", f"v_mov_b32 v11, s{S_NON+1}",
                        f"buffer_store_dwordx2 v[10:11], v9, s[{S_FL}:{S_FL+3}], s76 offen {SC}", "s_mov_b64 exec, -1"]}
    F4.groupA(k, 3, x3)
    k("s_mov_b32 s25, 2", "s_mov_b32 s26, 2", "v_and_b32 v9, 31, v0", "v_lshlrev_b32 v9, 3, v9", "v_add_u32 v9, s22, v9", "v_lshlrev_b32 v9, 2, v9", "v_add_u32 v9, s20, v9", "v_lshlrev_b32 v9, 3, v9", f"v_add_u32 v9, {FPJ()}, v9")
    k.label("ffn_loopA")
    F4.groupA(k, 2)
    k.label("ffn_loopA_odd")
    pl = f"buffer_load_dwordx2 v[10:11], v9, s[{S_FL}:{S_FL+3}], 0 offen {SC}"
    xo = {1: ["s_cmp_lg_u32 s25, s26", "s_cbranch_scc1 jit_p0", pl + " ; COND", "jit_p0:"],
          4 * 22 + 1: ["s_cmp_lg_u32 s25, s26", "s_cbranch_scc1 jit_p1", "s_mov_b32 s76, 0x10000", "jit_l:", f"v_cmp_ne_u64 vcc, s[{S_NON}:{S_NON+1}], v[10:11]", "s_sub_u32 s76, s76, 1", "s_cselect_b64 s[78:79], 0, -1", "s_nop 1",
                       "s_and_b64 vcc, vcc, s[78:79]", "s_cbranch_vccz jit_p1", pl + " ; COND", "s_waitcnt vmcnt(0)", "s_branch jit_l", "jit_p1:"]}
    F4.groupA(k, 1, xo)
    k("s_sub_u32 s25, s25, 1", "s_cmp_lg_u32 s25, 0", "s_cbranch_scc1 ffn_loopA")
    F4.groupA(k, 8)
    st(k, "ffn_A")
    hook = ["s_mov_b64 exec, 1", "v_mov_b32 v9, 0", f"v_mov_b32 v10, s{S_NON}", f"v_mov_b32 v11, s{S_NON+1}",
            f"buffer_store_dwordx2 v[10:11], v9, s[{S_FL}:{S_FL+3}], s30 offen {SC}", "s_mov_b64 exec, -1"]
    hook2 = [x.replace("s30 offen", "s30 offen offset:256") for x in hook] if int(OPT.get("mid2", 1)) else None
    F4.phaseB(k, OPT.get("bsc", SC), hook, st if OPT.get("bst") else None, hook2)
    st(k, "ffn_B")

def phase_red(k):
    R = 16; ACC = 100
    pm4, pm1, rm4, rm1, t0, t1 = 2, 3, 4, 5, 6, 7
    k("s_lshl_b32 s23, s22, 3", f"v_and_b32 v{t0}, 7, v0", f"v_add_u32 v{t0}, s23, v{t0}")
    k(f"v_lshrrev_b32 v{t1}, 3, v0", "s_lshl_b32 s24, s20, 3", f"v_add_u32 v{t1}, s24, v{t1}")
    k(f"v_lshlrev_b32 v{pm4}, 4, v{t0}", f"v_lshl_add_u32 v{pm4}, v{t1}, 10, v{pm4}", f"v_mul_u32_u24 v{rm4}, 1152, v{t0}", f"v_lshl_add_u32 v{rm4}, v{t1}, 4, v{rm4}")
    k(f"v_lshrrev_b32 v{t1}, 5, v0", "s_lshl_b32 s24, s20, 1", f"v_add_u32 v{t1}, s24, v{t1}", f"v_add_u32 v8, s23, v{t1}", "v_bfe_u32 v9, v0, 2, 3", "v_bfe_u32 v10, v0, 3, 2", "v_and_b32 v11, 3, v0")
    k("s_cmp_eq_u32 s3, 0", "s_cselect_b64 vcc, -1, 0", f"v_cndmask_b32 v{t0}, v8, v{t0}, vcc", f"v_cndmask_b32 v{t1}, v9, v{t1}, vcc", "v_cndmask_b32 v10, v11, v10, vcc", f"v_add_u32 v{t1}, 64, v{t1}")
    k(f"v_lshlrev_b32 v{pm1}, 4, v{t0}", f"v_lshl_add_u32 v{pm1}, v{t1}, 10, v{pm1}", f"v_mul_u32_u24 v{rm1}, 1152, v{t0}", f"v_lshl_add_u32 v{rm1}, v{t1}, 4, v{rm1}")
    k(f"v_lshl_add_u32 v{pm1}, v10, 2, v{pm1}", f"v_lshl_add_u32 v{rm1}, v10, 2, v{rm1}")
    k(f"s_mul_i32 s24, s21, {TILE}", "s_add_u32 s25, s24, s3"); add64(k, 4, S_WS, 25); srd_fill(k, 4, LSTR - 31 * TILE)
    k(f"s_add_u32 s8, s4, {hx(WS_X2)}", "s_addc_u32 s9, s5, 0"); add64(k, 26, S_OUT, 24)
    k("s_cmp_eq_u32 s3, 0", "s_cselect_b32 s8, s8, s26", "s_cselect_b32 s9, s9, s27", "s_cselect_b32 s28, 0x8000, 512", "s_cselect_b64 vcc, -1, 0"); srd_fill(k, 8, TILE)
    k(f"v_cndmask_b32 v{rm4}, v{rm4}, v{pm4}, vcc", f"v_cndmask_b32 v{rm1}, v{rm1}, v{pm1}, vcc")
    ACCB = 110
    def ld0(j, srd=4): return [f"buffer_load_dwordx4 {v(R+10*j,4)}, v{pm4}, s[{srd}:{srd+3}], s25 offen {SC}"]
    def ld1(j): return ["s_add_u32 s26, s25, 0x8000", f"buffer_load_dwordx4 {v(R+10*j+4,4)}, v{pm4}, s[4:7], s26 offen {SC}"]
    def ld2(j): return [f"buffer_load_dword v{R+10*j+8}, v{pm1}, s[4:7], s25 offen {SC}"]
    def over(fn):
        k(f"s_mov_b32 s25, {hx(WS_P)}")
        for j in range(8):
            k(fn(j))
            if j < 7: k(f"s_add_u32 s25, s25, {hx(ACT)}")
    k("v_lshlrev_b32 v9, 3, v0", f"buffer_load_dwordx2 v[10:11], v9, s[{S_FL}:{S_FL+3}], s31 offen {SC}")
    k("s_mov_b32 s32, 0x00003f80", "s_mov_b32 s33, 0x3f800000")
    for i in range(18): k(f"v_mov_b32 v{ACCB+i}, 0")
    k("s_waitcnt vmcnt(0)", f"v_cmp_ne_u64 vcc, s[{S_NON}:{S_NON+1}], v[10:11]", "s_nop 3", "s_cmp_eq_u32 vcc_lo, 0", "s_cselect_b32 s34, 1, 0", "s_cmp_eq_u32 vcc_hi, 0", "s_cselect_b32 s35, 1, 0", "s_cmp_eq_u32 s20, 3", "s_cselect_b32 s35, 0, s35")
    RP = int(OPT.get("rp", 2))
    if RP == 1: k("s_cselect_b32 s34, 0, s34")
    publish(k, F_FFN)
    k("s_cmp_eq_u32 s34, 0", "s_cbranch_scc1 red_noearly")
    over(ld0)
    k.label("red_noearly")
    k(f"s_mov_b32 s25, {hx(WS_X1)}"); k(ld0(8), ld1(8), ld2(8))
    k("s_cmp_eq_u32 s35, 0", "s_cbranch_scc1 red_noearly1")
    over(ld1)
    k.label("red_noearly1")
    wait(k, tile_flags(F_FFN), pw=3 if RP else 0)
    st(k, "red_flags")
    over(ld2)
    k("s_cmp_lg_u32 s35, 0", "s_cbranch_scc1 red_haveearly1")
    over(ld1)
    k.label("red_haveearly1")
    k("s_cmp_lg_u32 s34, 0", "s_cbranch_scc1 red_haveearly")
    over(ld0)
    k("s_waitcnt vmcnt(0)")
    k.label("red_haveearly")
    k("s_waitcnt vmcnt(16)")
    def acc(j, ds):
        for d in ds: k(f"v_dot2c_f32_bf16 v{ACCB+2*d}, s32, v{R+10*j+d}", f"v_dot2c_f32_bf16 v{ACCB+2*d+1}, s33, v{R+10*j+d}")
    k("s_cmp_eq_u32 s35, 0", "s_cbranch_scc1 red_w", "s_waitcnt vmcnt(8)")
    k.label("red_w")
    for j in range(9): acc(j, range(4))
    acc(8, range(4, 9))
    k("s_waitcnt vmcnt(0)")
    for j in range(8): acc(j, range(4, 9))
    k("s_nop 2")
    for d in range(9): k(f"v_cvt_pk_bf16_f32 v{R+d}, v{ACCB+2*d}, v{ACCB+2*d+1}")
    k(f"buffer_store_dwordx4 {v(R,4)}, v{rm4}, s[8:11], 0 offen {SC}", f"buffer_store_dwordx4 {v(R+4,4)}, v{rm4}, s[8:11], s28 offen {SC}", f"buffer_store_dword v{R+8}, v{rm1}, s[8:11], 0 offen {SC}")

def red_ln(k):
    R = 16; ACCB = 110; T = 130
    k(f"v_mov_b32 v{T}, 0", f"v_mov_b32 v{T+2}, 0", "s_mov_b32 s29, 0x3f803f80")
    for d in range(9): k(f"v_dot2c_f32_bf16 v{T}, s29, v{R+d}", f"v_dot2c_f32_bf16 v{T+2}, v{R+d}, v{R+d}")
    k("s_nop 1")
    xlane(k, T, (8, 16, 32))
    k(f"v_and_b32 v{T+8}, 7, v0", f"v_lshlrev_b32 v{T+8}, 3, v{T+8}", f"v_add_u32 v{T+8}, {TILE}, v{T+8}", "s_lshl_b32 s23, s20, 6", f"v_add_u32 v{T+9}, s23, v{T+8}", f"v_mov_b32 v{T+1}, v{T+2}")
    k(f"ds_write_b64 v{T+9}, {v(T,2)}", "s_waitcnt lgkmcnt(0)", "s_barrier")
    for w_ in range(4): k(f"ds_read_b64 {v(T+10+2*w_,2)}, v{T+8} offset:{64*w_}")
    k(f"s_add_u32 s8, s4, {hx(WS_XN)}", "s_addc_u32 s9, s5, 0")
    for d in range(9): k(f"v_lshlrev_b32 v{ACCB+2*d}, 16, v{R+d}", f"v_and_b32 v{ACCB+2*d+1}, 0xffff0000, v{R+d}")
    k("s_waitcnt lgkmcnt(0)")
    k(f"v_add_f32 v{T}, v{T+10}, v{T+12}", f"v_add_f32 v{T+2}, v{T+11}, v{T+13}", f"v_add_f32 v{T+14}, v{T+14}, v{T+16}", f"v_add_f32 v{T+15}, v{T+15}, v{T+17}", f"v_add_f32 v{T}, v{T}, v{T+14}", f"v_add_f32 v{T+2}, v{T+2}, v{T+15}")
    ln_fin2(k, T)
    for d in range(9): k(f"v_pk_fma_f32 {v(ACCB+2*d,2)}, {v(ACCB+2*d,2)}, {v(T+4,2)}, {v(T+6,2)} op_sel_hi:[1,0,0]")
    for d in range(9): k(f"v_cvt_pk_bf16_f32 v{R+12+d}, v{ACCB+2*d}, v{ACCB+2*d+1}")
    k(f"buffer_store_dwordx4 {v(R+12,4)}, v4, s[8:11], 0 offen {SC}", f"buffer_store_dwordx4 {v(R+16,4)}, v4, s[8:11], s28 offen {SC}", f"buffer_store_dword v{R+20}, v5, s[8:11], 0 offen {SC}")
def gen():
    k = Kern("mega")
    NST[0] = 0; NAMES.clear(); LBL[0] = 0; FS[0] = int(OPT.get("fs", 6))
    FF.STAMP = 0; FF.WG = int(OPT.get("wg", 1)); FF.TOUCH = 0
    st0 = len(k.L)
    startup(k)
    k.label("layer1")
    phase_qkv1(k)
    k.label("q_epi")
    q_epi(k)
    publish(k, F_QKV, extra=F_PF)
    st(k, "qkv_pub")
    phase_att(k)
    wd = wo_dma(k); n1 = int(OPT.get("wd1", 8))
    k(wd[:n1 + 1])
    publish(k, F_ATT, vm=n1, keep=True)
    k(wd[n1 + 1:])
    st(k, "att_pub")
    phase_wo(k)
    phase_ffn(k)
    phase_red(k)
    k("s_cmp_lg_u32 s3, 0", "s_cbranch_scc1 mega_end")
    red_ln(k)
    publish(k, F_RED)
    st(k, "red_pub")
    if STAMP[0]: dump(k, 0)
    k(f"s_mov_b32 s3, {hx(LSTR)}", f"s_mov_b32 s14, {5*FT()}", "s_branch layer1")
    k.label("mega_end")
    if STAMP[0]:
        k("s_waitcnt vmcnt(0)"); st(k, "end"); dump(k, 1)
    k.label("mega_done")
    k("s_endpgm")
    return k
def dump(k, L):
    LBL[0] += 1
    k("s_cmp_lg_u32 s20, 0", f"s_cbranch_scc1 dmp{LBL[0]}", f"s_lshl_b32 s23, s2, 9", f"s_add_u32 s23, s23, {hx(WS_ST + 256*L)}"); add64(k, 4, S_WS, 23); srd_fill(k, 4, 256)
    k("v_lshlrev_b32 v9, 2, v0", f"buffer_store_dword v{V_STAMP}, v9, s[4:7], 0 offen", "s_waitcnt vmcnt(0)")
    k.label(f"dmp{LBL[0]}")
class JP(list):
    def __init__(s): super().__init__([0, 1, 1, 1, 1, 1])
def trips(w):
    d = {"ffn_loopA": [1, 0, 1, 1, 1, 0], "ffn_loopA_odd": [0, 1], "jit_p0": [0, 1, 1, 1, 1, 1], "jit_p1": JP(), "ffn_loopB": [1, 1, 0] * 2, "mega_end": [0, 1], "ffn_nomid": [1, 0, 1] * 2, "red_noearly": [0, 1], "red_haveearly": [1, 0], "red_noearly1": [w & 1, 1], "red_haveearly1": [1 - (w & 1), 0], "red_w": [w & 1, 1], "att_notouch": [0, 1], "att_sk0": [0, 1], "att_sk1": [0, 1], "att_sk2": [0, 1], "q_nof": [0, 1], "att_noprep2": [0, 1], "ffn_noring": [1, 0], "ffn_ring2": [0, 1], "wo_l1": [0, 1],
         "q_epi2": 9 if w >= 2 else 0, "q_epi3": 9 if w == 3 else 0, "no_cpf": 0 if w == 3 else 9, "no_touch": 0 if w == 3 else 9, "q_noscale": 9 if w else 0, "no_nonce": 9 if w else 0}
    for i in range(1, 40):
        for n in (f"pub{i}", f"wt{i}_d", f"dmp{i}"): d[n] = 9 if w else 0
        d[f"pub{i}_x"] = [0, 1]
        d[f"wt{i}_d"] = 9 if w != POLLW.get(f"wt{i}", 0) else 0
    return d
```

```python
from common import *
import k_ffn3 as FF
import k_ffn4 as F4
LDS = 163840
SC = "sc1"
S_WS, S_X, S_OUT, S_NON, S_FL = 96, 98, 100, 90, 92
S_FO = 19
S_FO = 75 + 0
V_L16, V_PD, V_PT0, V_PT1, V_STAMP = 1, 12, 13, 14, 15
F_P0, F_QKV, F_ATT, F_WO, F_FFN, F_RED, F_PF = 0, 1, 2, 3, 4, 5, 11
STG_Q, STG_O, STG_F, STG_J = 73728, 91648, 96768, 73728
FS = [3]
def FT(): return 256 << FS[0]
def FPJ(): return 12 * FT() + 4 * 8192
F_PJ = 0
WOIMG = 51200
NST = [0]
def st(k, name=""):
    if STAMP[0]:
        k("s_memtime s[0:1]" if STAMP[0] == 2 else "s_memrealtime s[0:1]", "s_waitcnt lgkmcnt(0)", f"v_writelane_b32 v{V_STAMP}, s0, {NST[0]}" + f" ; {name}")
        NAMES.append(name); NST[0] += 1
NAMES = []
def add64(k, d, base, off_s):
    k(f"s_add_u32 s{d}, s{base}, s{off_s}", f"s_addc_u32 s{d+1}, s{base+1}, 0")
LBL = [0]
POLLW = {}
def publish(k, fid, layered=True, vm=0, idx="task", extra=None, keep=False):
    LBL[0] += 1; L = f"pub{LBL[0]}"
    k(f"s_waitcnt vmcnt({vm})", "s_barrier", "s_cmp_lg_u32 s20, 0", f"s_cbranch_scc1 {L}")
    if idx == "task": k("s_lshl_b32 s23, s21, 3", "s_add_u32 s23, s23, s22", f"s_lshl_b32 s23, s23, {FS[0]}")
    else: k(f"s_lshl_b32 s23, s2, {FS[0]}")
    k(f"s_add_u32 s23, s23, {fid*FT()}")
    if layered: k("s_add_u32 s23, s23, s14")
    k("s_mov_b64 exec, 1", "v_mov_b32 v9, 0", f"v_mov_b32 v10, s{S_NON}", f"v_mov_b32 v11, s{S_NON+1}")
    k(f"buffer_store_dwordx2 v[10:11], v9, s[{S_FL}:{S_FL+3}], s23 offen {SC}")
    if extra is not None:
        k("s_cmp_lg_u32 s3, 0", f"s_cbranch_scc1 {L}_x")
        k("s_lshl_b32 s23, s75, 5", "s_add_u32 s23, s23, s74", "s_lshl_b32 s23, s23, 3", f"s_add_u32 s23, s23, {extra*FT()}", f"buffer_store_dwordx2 v[10:11], v9, s[{S_FL}:{S_FL+3}], s23 offen {SC}")
        k.label(f"{L}_x")
    k("s_mov_b64 exec, -1")
    k.label(L)
def wait(k, setup, pw=0):
    LBL[0] += 1; L = f"wt{LBL[0]}"; POLLW[L] = pw
    k(f"s_cmp_lg_u32 s20, {pw}", f"s_cbranch_scc1 {L}_d")
    k(setup, "s_mov_b32 s23, 0x10000")
    if int(OPT.get("pre", 0)): k(f"s_sleep {OPT['pre']}")
    k.label(f"{L}_l")
    if int(OPT.get("slp", 0)): k(f"s_sleep {OPT['slp']}")
    k(f"buffer_load_dwordx2 v[10:11], v9, s[{S_FL}:{S_FL+3}], 0 offen {SC}", "s_waitcnt vmcnt(0)")
    k(f"v_cmp_ne_u64 vcc, s[{S_NON}:{S_NON+1}], v[10:11]", "s_sub_u32 s23, s23, 1", "s_cselect_b64 s[24:25], 0, -1", "s_nop 1", "s_and_b64 vcc, vcc, s[24:25]", f"s_cbranch_vccnz {L}_l")
    k.label(f"{L}_d")
    k("s_barrier")
def tile_flags(fid, prev_layer=False):
    o = ["v_and_b32 v9, 7, v0", "s_lshl_b32 s23, s21, 3", "v_add_u32 v9, s23, v9", f"v_lshlrev_b32 v9, {FS[0]}, v9", f"s_add_u32 s23, s14, {hx(fid*FT() - (5*FT() if prev_layer else 0))}", "v_add_u32 v9, s23, v9"]
    return o

def div18(su, sq, sr): return [f"s_mul_i32 s{sq}, s{su}, 3641", f"s_lshr_b32 s{sq}, s{sq}, 16", f"s_mul_i32 s{sr}, s{sq}, 18", f"s_sub_u32 s{sr}, s{su}, s{sr}"]
def soffA(rd): return [f"s_add_u32 s76, s74, {32*rd}"] + div18(76, 78, 79) + [f"s_mul_i32 s79, s79, {32*9216}", "s_lshl_b32 s78, s78, 7", "s_add_u32 s78, s78, s79", "s_mul_i32 s79, s75, 1152", "s_add_u32 s78, s78, s79"]
def soffB(rd, d): return [f"s_add_u32 s76, s74, {hx(32*rd - 162)}", "s_lshl_b32 s76, s76, 1"] + div18(76, d, 79) + [f"s_mul_i32 s79, s79, {32*1152}", f"s_lshl_b32 s{d}, s{d}, 7", f"s_add_u32 s{d}, s{d}, s79", f"s_mul_i32 s79, s75, {576*1152}", f"s_add_u32 s{d}, s{d}, s79"]
J_PD, J_T0, J_T1 = 240, 243, 246
def dma_round(rd, lds):
    if rd <= 4: pre, s1, s2, o2, vd = soffA(rd), 60, 64, 78, V_PD
    elif rd == 5:
        pre = soffB(5, 77) + soffA(5) + ["s_cmp_lt_u32 s74, 2", "s_cselect_b32 s78, s78, s77", f"s_cselect_b32 s79, 0, {32*1152}", "s_add_u32 s77, s78, s79"]
        s1, s2, o2, vd = 80, 84, 77, J_PD + 2
    else: pre, s1, s2, o2, vd = soffB(rd, 78) + [f"s_add_u32 s77, s78, {32*1152}"], 36, 36, 77, J_PD + 1
    return [pre + [f"s_add_u32 m0, s88, {lds}", "s_nop 0", f"buffer_load_dwordx4 v{vd}, s[{s1}:{s1+3}], s78 offen lds"],
            [f"s_add_u32 m0, s88, {lds + 4096}", "s_nop 0", f"buffer_load_dwordx4 v{vd}, s[{s2}:{s2+3}], s{o2} offen lds"]]
def tr_round(T, t0, t1, off): return [f"ds_read_b64_tr_b16 {v(T + 4*u + 2*e, 2)}, v{(t0, t1)[e]} offset:{off + 4096*u}" for u in range(2) for e in range(2)]
def st_round(rd, T):
    pre = [f"s_add_u32 s76, s74, {32*rd}", "s_lshl_b32 s78, s76, 11"]
    if rd == 7: pre += ["s_cmp_lt_u32 s76, 243", f"s_cselect_b32 s70, {WFR*1024}, 0"]
    return [pre + [f"buffer_store_dwordx4 {v(T,4)}, v{V_L16}, s[68:71], s78 offen {SC}"], [f"buffer_store_dwordx4 {v(T+4,4)}, v{V_L16}, s[68:71], s78 offen offset:1024 {SC}"]]
def jit_setup():
    q4, r4, c4, t, l8 = 250, 251, 252, 253, 254
    o = [f"v_lshrrev_b32 v{q4}, 4, v0", f"v_bfe_u32 v{r4}, v0, 2, 2", f"v_and_b32 v{c4}, 7, v0", f"v_lshlrev_b32 v{t}, 1, v{q4}", f"v_xor_b32 v{t}, v{t}, v{c4}", f"v_lshlrev_b32 v{t}, 4, v{t}",
         f"v_lshrrev_b32 v{l8}, 3, v0", "s_lshl_b32 s76, s20, 3", f"v_add_u32 v{l8}, s76, v{l8}", f"v_mul_u32_u24 v{l8}, 1152, v{l8}", f"v_add_u32 v{J_PD+1}, v{t}, v{l8}",
         f"v_add_u32 v{J_T0}, {STG_J}, v{V_PT0}", f"v_add_u32 v{J_T1}, 512, v{J_T0}", f"v_lshlrev_b32 v{t}, 9, v{q4}", f"v_sub_u32 v{J_T0+1}, v{J_T0}, v{t}", f"v_add_u32 v{J_T1+1}, 2048, v{J_T0+1}",
         "s_cmp_lt_u32 s74, 2", "s_cselect_b64 vcc, -1, 0", "s_cselect_b64 s[80:81], s[60:61], s[72:73]", "s_cselect_b64 s[84:85], s[64:65], s[72:73]", "s_mov_b64 s[36:37], s[72:73]",
         f"v_cndmask_b32 v{J_PD+2}, v{J_PD+1}, v{V_PD}, vcc", f"v_cndmask_b32 v{J_T0+2}, v{J_T0+1}, v{J_T0}, vcc", f"v_cndmask_b32 v{J_T1+2}, v{J_T1+1}, v{J_T1}, vcc", "s_lshl_b32 s88, s20, 10"]
    for r_ in (36, 80, 84): o += [f"s_mov_b32 s{r_+2}, {hx(D*F*2)}", f"s_mov_b32 s{r_+3}, 0x00020000"]
    return o

Q_XL, Q_SQ, Q_S8, Q_STL, Q_TS, Q_BR1, Q_XW = 2, 3, 4, 5, 6, 7, 8
Q_A2 = 160
Q_VW, Q_VR, Q_VA = 172, 173, 174
Q_AC, Q_B, Q_LT, Q_T, Q_X = 48, 112, 144, 161, 184
BREG = FF.BREG
def q_aload(n):
    o = [f"buffer_load_dwordx4 {BREG(n)}, v{Q_A2 if n % 4 >= 2 else V_L16}, s[4:7], s26 offen" + (f" offset:{(n%4)*1024}" if n % 4 else "") + f" {SC}"]
    if n % 4 == 3: o.append("s_add_u32 s26, s26, 0x1000")
    return o
def q_setup(k):
    q4, tk, r1, r2, t5, t6 = range(Q_T, Q_T + 6)
    k(f"v_lshrrev_b32 v{q4}, 4, v0", f"v_and_b32 v{tk}, 15, v0", f"v_and_b32 v{r1}, 1, v{q4}", f"v_lshrrev_b32 v{r2}, 1, v{q4}")
    k("s_lshl_b32 s38, s20, 10", f"v_add_u32 v{Q_XW}, s38, v{V_L16}", f"v_add_u32 v{Q_BR1}, 36864, v{V_L16}")
    k(f"v_lshlrev_b32 v{t5}, 4, v{tk}", f"v_lshl_add_u32 v{t6}, v{r2}, 9, v{t5}", f"v_lshl_add_u32 v{Q_SQ}, v{r1}, 11, v{t6}")
    k("s_lshl_b32 s40, s20, 13", "s_add_u32 s41, s40, 0x400", "s_add_u32 s42, s40, 0x1000", "s_add_u32 s43, s41, 0x1000")
    k("s_and_b32 s39, s20, 1", "s_mul_i32 s39, s39, 9216", f"s_add_u32 s39, s39, {STG_Q}")
    k(f"v_mul_u32_u24 v{t6}, 144, v{tk}", f"v_lshl_add_u32 v{t6}, v{q4}, 3, v{t6}", f"v_add_u32 v{Q_VW}, s39, v{t6}")
    k(f"v_bfe_u32 v{t6}, v0, 2, 2", f"v_lshl_add_u32 v{t6}, v{r1}, 2, v{t6}", f"v_lshl_add_u32 v{t6}, v{r2}, 4, v{t6}", f"v_mul_u32_u24 v{t6}, 144, v{t6}", f"v_and_b32 v{Q_VR}, 3, v0", f"v_lshl_add_u32 v{t6}, v{Q_VR}, 3, v{t6}", f"v_add_u32 v{Q_VR}, s39, v{t6}")
    k(f"v_lshlrev_b32 v{t6}, 4, v{tk}", f"v_lshl_add_u32 v{t6}, v{r1}, 8, v{t6}", f"v_lshl_add_u32 v{t6}, v{r2}, 9, v{t6}")
    k("s_and_b32 s39, s20, 1", "s_lshl_b32 s39, s39, 13", f"s_add_u32 s39, s39, {KV_V}", f"v_add_u32 v{Q_VA}, s39, v{t6}", f"v_add_u32 v{Q_VA+1}, 0x1000, v{Q_VA}")
    k(f"v_mov_b32 v{r1}, 0x80000000", f"v_cmp_gt_u32 vcc, 32, v0", f"v_mov_b32 v{r2}, {fl(QSCALE)}", "s_nop 0", f"v_cndmask_b32 v{Q_TS}, 1.0, v{r2}, vcc")
    k(f"v_lshlrev_b32 v{t6}, 9, v{q4}", f"v_lshl_add_u32 v{t6}, v{tk}, 3, v{t6}", f"v_add_u32 v{Q_STL}, {KV_QT}, v{t6}")
    k("s_cmp_eq_u32 s20, 3", "s_cselect_b64 vcc, -1, 0", f"v_cndmask_b32 v{Q_A2}, v{V_L16}, v{r1}, vcc")
    k("s_lshl_b32 s38, s22, 2", "s_add_u32 s38, s38, s20", f"s_mul_i32 s38, s38, {72*1024}", f"s_add_u32 s38, s38, {hx(WS_WQ)}"); add64(k, 4, S_WS, 38); srd_fill(k, 4, 72 * 1024)
    k("s_lshl_b32 s38, s21, 3", "s_add_u32 s38, s38, s22", f"s_mul_i32 s38, s38, {KVB}", "s_add_u32 s38, s38, s3"); add64(k, 16, S_WS, 38); srd_fill(k, 16, KVB)
    k("s_mov_b32 s26, 0", "s_mov_b32 s29, 0x3f803f80", f"s_mov_b32 s28, {fl(QSCALE)}")
def ln_write(k, i, X, XW):
    off = i * 4096
    if i == 16: k(f"v_add_u32 v{XW}, 0x10000, v{XW}")
    k(f"ds_write_b128 v{XW}, {v(X+4*i,4)} offset:{off if off < 65536 else off - 65536}")
def q_bread(ks): return [f"ds_read_b128 {v(Q_B + 16*(ks&1) + 4*tb, 4)}, v{Q_BR1 if ks >= 9 else V_L16} offset:{((4*ks+tb) % 36)*1024}" for tb in range(4)]
def q_lnq(i, pk):
    kk = Kern("t"); kk(ln_apply(Q_X, Q_LT, i, pk=pk)); ln_write(kk, i, Q_X, Q_XW); return kk.L
def q_loop(k, na, q, extra, chunk=True):
    k(q_bread(0))
    fill = [[] for _ in range(18 * 16)]
    for c in ((1, 2) if chunk is True else ()):
        ops = [x for i in range(6 * c, 6 * c + 6) for x in q_lnq(i, False)]
        g0 = 96 * (c - 1)
        gaps = [g for g in range(g0, g0 + 80) if g % 4 in (1, 3)]
        for n, x in enumerate(ops): fill[gaps[n * len(gaps) // len(ops)]].append(x)
    for ks in range(18):
        need = 4 * ks + 3
        assert need < na, (ks, na)
        if chunk == "dma" and ks in (5, 11) and f"X{ks+6}" in q and (need not in q or q.index(need) < q.index(f"X{ks+6}")): need = f"X{ks+6}"
        if need in q:
            w = len(q) - 1 - q.index(need); q = q[q.index(need) + 1:]
            k(f"s_waitcnt vmcnt({min(63, w)}) lgkmcnt(0)")
        else: k("s_waitcnt lgkmcnt(0)")
        if ks in (5, 11) and chunk: k("s_barrier")
        br = q_bread(ks + 1) if ks < 17 else []
        for tb in range(4):
            for ht in range(4):
                ac = v(Q_AC + 16*ht + 4*tb, 4)
                k(f"v_mfma_f32_16x16x32_bf16 {ac}, {BREG(4*ks+ht)}, {v(Q_B + 16*(ks&1) + 4*tb, 4)}, {'0' if ks == 0 else ac}")
                if tb < 2 and ht in (0, 1) and br: k(br[2 * tb + ht])
                if ht == 2 and na < 72 and len(q) < 44: k(q_aload(na)); q.append(na); na += 1
                k(fill[16 * ks + 4 * tb + ht])
        for fn, nv in extra.get(ks, []):
            fn(); q += ["x"] * nv
def q_epi(k):
    st(k, "qkv_mfma")
    P = Q_X
    k("s_cmp_ge_u32 s20, 2", "s_cbranch_scc1 q_epi2", "s_cmp_lg_u32 s20, 0", "s_cbranch_scc1 q_noscale", "s_nop 3")
    for i in range(64): k(f"v_mul_f32 v{Q_AC+i}, s28, v{Q_AC+i}")
    k.label("q_noscale")
    k("s_nop 3")
    for pr in range(2):
        for tb in range(4):
            O = P + 16 * pr + 4 * tb
            for h in range(2):
                for d in range(2): k(f"v_cvt_pk_bf16_f32 v{O+2*h+d}, v{Q_AC+16*(2*pr+h)+4*tb+2*d}, v{Q_AC+16*(2*pr+h)+4*tb+2*d+1}")
        for tb in range(4):
            O = P + 16 * pr + 4 * tb
            for d in range(2): k(f"v_permlane16_swap_b32 v{O+d}, v{O+2+d}")
        for tb in range(4):
            k(f"buffer_store_dwordx4 {v(P+16*pr+4*tb,4)}, v{Q_SQ}, s[16:19], s{40 + 2*pr + (tb>>1)} offen offset:{256*(tb&1)} {SC}")
    k("s_branch q_epid")
    k.label("q_epi2")
    k("s_cmp_eq_u32 s20, 3", "s_cbranch_scc1 q_epi3", "s_nop 5")
    def vtile(ht):
        for tb in range(4):
            O = P + 8 * ht + 2 * tb
            for d in range(2): k(f"v_cvt_pk_bf16_f32 v{O+d}, v{Q_AC+16*ht+4*tb+2*d}, v{Q_AC+16*ht+4*tb+2*d+1}")
            k(f"ds_write_b64 v{Q_VW}, {v(O,2)} offset:{tb*16*144 + 32*ht}")
    def vread(ht):
        for pr in range(2):
            for e in range(2): k(f"ds_read_b64_tr_b16 {v(Q_AC+8*ht+4*pr+2*e,2)}, v{Q_VR} offset:{pr*32*144 + e*8*144 + 32*ht}")
    def vstore(ht, va=None):
        for pr in range(2): k(f"buffer_store_dwordx4 {v(Q_AC+8*ht+4*pr,4)}, v{Q_VA + ht//2}, s[16:19], 0 offen offset:{(ht&1)*2048 + pr*1024} {SC}")
    for ht in range(4): vtile(ht)
    k("s_waitcnt lgkmcnt(0)")
    for ht in range(4):
        vread(ht)
        if ht == 1: k("s_waitcnt lgkmcnt(4)"); vstore(0, Q_VA)
    for ht in range(1, 4): k(f"s_waitcnt lgkmcnt({4*(3-ht)})"); vstore(ht, Q_VA + ht)
    k("s_branch q_epid")
    k.label("q_epi3")
    k("s_nop 5")
    vtile(0)
    for tb in range(4):
        for i in range(4): k(f"v_mul_f32 v{Q_AC+16+4*tb+i}, v{Q_TS}, v{Q_AC+16+4*tb+i}")
    k("s_waitcnt lgkmcnt(0)")
    vread(0)
    for a_ in range(2):
        for h in range(2):
            for x in range(2): k(f"v_cvt_pk_bf16_f32 v{P+8+4*a_+2*h+x}, v{Q_AC+16+4*(a_+2*x)+2*h}, v{Q_AC+16+4*(a_+2*x)+2*h+1}")
    k(f"v_mov_b32 v{P+16}, 0x3f803f80", f"v_and_b32 v{P+17}, 8, v0", f"v_cmp_eq_u32 vcc, 0, v{P+17}")
    for a_ in range(2):
        for h in range(2): k(f"buffer_store_dwordx2 {v(P+8+4*a_+2*h,2)}, v{Q_STL}, s[16:19], 0 offen offset:{256*h + 128*a_} {SC}")
    k("s_waitcnt lgkmcnt(0)")
    for i in range(8): k(f"v_cndmask_b32 v{Q_AC+i}, v{P+16}, v{Q_AC+i}, vcc")
    vstore(0)
    k.label("q_epid")

def startup(k):
    k("s_cmp_ge_u32 s2, 256", "s_cbranch_scc1 mega_done")
    k(f"s_load_dwordx4 s[28:31], s[0:1], 0", f"s_load_dwordx2 s[32:33], s[0:1], {A_WO*8}", f"s_load_dwordx4 s[60:63], s[0:1], {A_WG*8}",
      f"s_load_dwordx4 s[48:51], s[0:1], {A_WD*8}", f"s_load_dwordx4 s[52:55], s[0:1], {A_DBG*8}")
    k("v_lshrrev_b32 v1, 6, v0", "v_and_b32 v0, 63, v0", "v_readfirstlane_b32 s20, v1", f"v_lshlrev_b32 v{V_L16}, 4, v0", "s_mov_b32 s3, 0")
    if STAMP[0]: k(f"v_mov_b32 v{V_STAMP}, 0")
    if int(OPT.get("cpf", 1)):
        k("s_cmp_lg_u32 s20, 3", "s_cbranch_scc1 no_cpf", "s_getpc_b64 s[34:35]")
        k.label("cpf_base")
        k("s_lshr_b32 s36, s2, 3", "s_lshl_b32 s36, s36, 4", "v_add_u32 v4, s36, v0", "v_and_b32 v4, 511, v4", "v_lshlrev_b32 v4, 7, v4", "v_mov_b32 v7, s35")
        k("v_min_u32 v6, mega_done-cpf_base, v4", "v_add_co_u32 v2, vcc, s34, v6", "s_nop 1", "v_addc_co_u32 v3, vcc, 0, v7, vcc", "global_load_dword v5, v[2:3], off ; WAWOK")
        k.label("no_cpf")
    wgmap(k, int(OPT.get("q0map", 2)))
    T = 16
    q4, tk, tok, t3, t4, t5, t6, t7, tmp, t9 = range(T, T + 10)
    DQ, DO, TQ, TO = 32, 36, 38, 42
    k(f"v_lshrrev_b32 v{q4}, 4, v0", f"v_and_b32 v{tk}, 15, v0", "s_lshl_b32 s38, s20, 4", f"v_add_u32 v{tok}, s38, v{tk}")
    k(f"v_mul_u32_u24 v{Q_XL}, 1152, v{tok}", f"v_lshl_add_u32 v{Q_XL}, v{q4}, 4, v{Q_XL}")
    hi, c, u, h, col = t3, t4, t5, t6, t7
    k(f"v_lshrrev_b32 v{hi}, 5, v0", f"v_and_b32 v{c}, 31, v0", f"v_lshlrev_b32 v{tmp}, 1, v{hi}", f"v_sub_u32 v{c}, v{c}, v{tmp}")
    k(f"v_lshrrev_b32 v{u}, 1, v{c}", f"v_and_b32 v{h}, 1, v{c}")
    k(f"v_and_b32 v{col}, 3, v{u}", f"v_mul_u32_u24 v{col}, 36, v{col}", f"v_and_b32 v{tmp}, 1, v{u}", f"v_lshl_add_u32 v{col}, v{tmp}, 2, v{col}", f"v_lshl_add_u32 v{col}, v{h}, 4, v{col}")
    k(f"v_lshrrev_b32 v{tmp}, 2, v{u}", f"v_mul_u32_u24 v{tmp}, 1152, v{tmp}", f"v_add_u32 v{col}, v{col}, v{tmp}")
    k(f"v_subrev_u32 v{tmp}, 8, v{u}", f"v_mul_u32_u24 v{tmp}, 1152, v{tmp}", f"v_mul_u32_u24 v{t9}, 72, v{h}", f"v_add3_u32 v{tmp}, v{tmp}, v{t9}, 32")
    k(f"v_cmp_lt_u32 vcc, 7, v{u}", "s_nop 1", f"v_cndmask_b32 v{col}, v{col}, v{tmp}, vcc")
    k(f"v_lshlrev_b32 v{tmp}, 4, v{c}", f"v_add_u32 v{tmp}, {2304 - 320}, v{tmp}")
    k(f"v_cmp_lt_u32 vcc, 9, v{u}", "s_nop 1", f"v_cndmask_b32 v{col}, v{col}, v{tmp}, vcc")
    k(f"v_mul_u32_u24 v{tmp}, 3456, v{hi}", f"s_mul_i32 s42, s20, {8*3456}", f"v_add3_u32 v{col}, v{col}, v{tmp}, s42")
    k(f"v_mov_b32 v{t9}, 0x80000000", f"v_cmp_gt_u32 vcc, 29, v{c}", "s_nop 1", f"v_cndmask_b32 v{DQ}, v{t9}, v{col}, vcc")
    for i in range(1, 4): k(f"v_add_u32 v{DQ+i}, {i*(6912-1088)}, v{DQ}")
    k("s_sub_u32 s34, s2, 112", "s_lshr_b32 s35, s34, 3", "s_and_b32 s34, s34, 7", "s_movk_i32 s40, 6554")
    n_, lam, cc, t1, t2 = t3, t4, t5, t6, t7
    for x in range(2):
        if x == 0: k("s_lshl_b32 s41, s20, 6", f"v_add_u32 v{n_}, s41, v0")
        else: k(f"v_add_u32 v{n_}, 256, v0")
        k(f"v_mul_u32_u24 v{lam}, s40, v{n_}", f"v_lshrrev_b32 v{lam}, 16, v{lam}", f"v_mul_u32_u24 v{cc}, 10, v{lam}", f"v_sub_u32 v{cc}, v{n_}, v{cc}")
        k(f"v_lshrrev_b32 v{t1}, 4, v{lam}", f"v_lshl_add_u32 v{n_}, v{t1}, 1, v{lam}")
        k(f"v_bfe_u32 v{t2}, v{lam}, 2, 1", f"v_lshl_add_u32 v{t1}, v{t1}, 1, v{t2}", f"v_mul_u32_u24 v{t1}, 72, v{t1}")
        k(f"v_bfe_u32 v{t2}, v{lam}, 3, 1", f"v_mul_u32_u24 v{t2}, 36, v{t2}", f"v_add3_u32 v{t1}, v{t1}, v{t2}, 16", f"v_and_b32 v{t2}, 1, v{lam}", f"v_add_u32 v{t1}, v{t1}, v{t2}", f"v_bfe_u32 v{t2}, v{lam}, 1, 1", f"v_mul_u32_u24 v{t2}, 18, v{t2}", f"v_add_u32 v{t1}, v{t1}, v{t2}")
        k("s_cmp_lt_u32 s35, 16", "s_cselect_b64 vcc, -1, 0", f"v_cndmask_b32 v{t1}, v{t1}, v{n_}, vcc")
        k(f"v_mul_u32_u24 v{t1}, 1152, v{t1}", f"v_lshl_add_u32 v{t1}, v{cc}, 4, v{t1}", f"v_cmp_gt_u32 vcc, 9, v{cc}", "s_nop 1", f"v_cndmask_b32 v{DO+x}, v{t9}, v{t1}, vcc")
    k("s_cmp_eq_u32 s20, 0", "s_cselect_b64 vcc, -1, 0", f"v_cndmask_b32 v{DO+1}, v{t9}, v{DO+1}, vcc")
    k(f"s_mul_i32 s36, s35, {36*1152}", "s_sub_u32 s37, s35, 16", f"s_mul_i32 s37, s37, {288*1152}", "s_cmp_lt_u32 s35, 16", "s_cselect_b32 s36, s36, s37", "s_mul_i32 s37, s34, 144", "s_add_u32 s36, s36, s37")
    k("s_and_b32 s37, s2, 7", "s_mul_i32 s37, s37, 144", "s_lshr_b32 s39, s2, 3", f"s_mul_i32 s39, s39, {32*3456}", "s_add_u32 s37, s37, s39")
    srd_fill(k, 12, TILE)
    k(f"s_mul_i32 s39, s21, {TILE}")
    k("s_waitcnt lgkmcnt(0)")
    st(k, "kernarg")
    k(f"s_mov_b32 s{S_WS}, s54", f"s_mov_b32 s{S_WS+1}, s55", f"s_mov_b32 s{S_X}, s28", f"s_mov_b32 s{S_X+1}, s29", f"s_mov_b32 s{S_OUT}, s50", f"s_mov_b32 s{S_OUT+1}, s51")
    k("s_mov_b32 s4, s30", "s_mov_b32 s5, s31", "s_cmp_lt_u32 s2, 144", f"s_cselect_b32 s6, {D*3*D*2}, 0", "s_mov_b32 s7, 0x00020000")
    k("s_mov_b32 s8, s32", "s_mov_b32 s9, s33", "s_cmp_ge_u32 s2, 112", f"s_cselect_b32 s10, {D*D*2}, 0", "s_mov_b32 s11, 0x00020000")
    k("s_mul_i32 s40, s20, 4480", f"s_add_u32 m0, s40, {STG_Q}", "s_nop 0")
    for i in range(4): k(f"buffer_load_dwordx4 v{DQ+i}, s[4:7], s37 offen offset:{1088*i} lds")
    k("s_lshl_b32 s40, s20, 10", f"s_add_u32 m0, s40, {STG_O}", "s_nop 0", f"buffer_load_dwordx4 v{DO}, s[8:11], s36 offen lds")
    k("s_cmp_eq_u32 s20, 0", f"s_cselect_b32 m0, {STG_O + 4096}, 145920", "s_nop 0", f"buffer_load_dwordx4 v{DO+1}, s[8:11], s36 offen lds")
    if OPT.get("fine"): st(k, "p0_dmaq")
    add64(k, 12, S_X, 39)
    for i in range(18): k(f"buffer_load_dwordx4 {v(Q_X+4*i,4)}, v{Q_XL}, s[12:15], 0 offen offset:{64*i}")
    if OPT.get("fine"): st(k, "p0_xiss")
    k("s_mov_b32 s56, s52", "s_mov_b32 s57, s53"); srd_fill(k, 56, 256)
    if OPT.get("dbgout"): k("s_mov_b64 s[12:13], s[52:53]")
    k("s_or_b32 s38, s2, s20", "s_cmp_lg_u32 s38, 0", "s_cbranch_scc1 no_nonce")
    k("s_memrealtime s[38:39]", "s_waitcnt lgkmcnt(0)", "s_or_b32 s38, s38, 1", "s_mov_b64 exec, 1", "v_mov_b32 v9, 0", "v_mov_b32 v10, s38", "v_mov_b32 v11, s39")
    k(f"buffer_store_dwordx2 v[10:11], v9, s[56:59], 0 offen {SC}", "s_waitcnt vmcnt(0)", "s_mov_b64 exec, -1")
    k.label("no_nonce")
    k(f"s_add_u32 s{S_FL}, s{S_WS}, {hx(WS_F)}", f"s_addc_u32 s{S_FL+1}, s{S_WS+1}, 0"); srd_fill(k, S_FL, 12 * FT() + 5 * 8192)
    r4, c4 = t3, t4
    k(f"v_bfe_u32 v{r4}, v0, 2, 2", f"v_and_b32 v{c4}, 3, v0")
    k(f"v_mul_u32_u24 v{t5}, 4480, v{q4}", f"v_mul_u32_u24 v{t6}, 544, v{r4}", f"v_add3_u32 v{t5}, v{t5}, v{t6}, {STG_Q}".replace(f", {STG_Q}", ", 0"), f"v_add_u32 v{t5}, {STG_Q}, v{t5}", f"v_lshl_add_u32 v{t5}, v{c4}, 3, v{t5}")
    k("s_lshl_b32 s40, s20, 7", "s_cmp_ge_u32 s20, 2", "s_cselect_b32 s41, 64, 0", "s_add_u32 s40, s40, s41")
    k(f"v_add_u32 v{TQ}, s40, v{t5}", f"v_add_u32 v{TQ+1}, 32, v{TQ}", f"v_lshl_add_u32 v{t6}, v{c4}, 3, v{t5}", f"v_add_u32 v{t6}, 256, v{t6}")
    k("s_cmp_eq_u32 s20, 3", "s_cselect_b64 vcc, -1, 0", f"v_cndmask_b32 v{TQ+1}, v{TQ+1}, v{t6}, vcc")
    k(f"v_lshrrev_b32 v{t6}, 1, v{q4}", f"v_and_b32 v{t7}, 1, v{q4}", f"v_lshl_add_u32 v{tmp}, v{t7}, 2, v{r4}", f"v_lshl_add_u32 v{tmp}, v{t6}, 4, v{tmp}", f"v_mul_u32_u24 v{tmp}, 160, v{tmp}")
    k(f"v_lshl_add_u32 v{tmp}, v{c4}, 3, v{tmp}", f"v_add_u32 v{TO+1}, {STG_O + 128}, v{tmp}", "s_lshl_b32 s40, s20, 5", f"s_add_u32 s40, s40, {STG_O}", f"v_add_u32 v{TO}, s40, v{tmp}")
    k("s_and_b32 s40, s2, 7", "s_lshl_b32 s40, s40, 2", "s_add_u32 s40, s40, s20", f"s_mul_i32 s40, s40, {72*1024}", f"s_add_u32 s40, s40, {hx(WS_WQ)}")
    k("s_lshr_b32 s41, s2, 3", "s_lshl_b32 s41, s41, 12", "s_add_u32 s42, s41, 0x800", "s_cmp_eq_u32 s20, 3", "s_cselect_b64 vcc, -1, 0", f"v_cndmask_b32 v44, v{V_L16}, v{t9}, vcc")
    k(f"s_mul_i32 s43, s34, {90*1024}", f"s_add_u32 s43, s43, {hx(WS_WO)}", "s_mul_i32 s45, s35, 5120", "s_lshl_b32 s46, s20, 10", "s_add_u32 s46, s46, s45", "s_add_u32 s45, s45, 4096", "s_cmp_eq_u32 s20, 0", "s_cselect_b64 vcc, -1, 0", f"v_cndmask_b32 v45, v{t9}, v{V_L16}, vcc")
    k("s_mov_b32 s64, s62", "s_mov_b32 s65, s63", "s_mov_b64 s[72:73], s[48:49]", "s_lshr_b32 s74, s2, 3", "s_and_b32 s75, s2, 7")
    srd_fill(k, 60, D * F * 2); srd_fill(k, 64, D * F * 2)
    k("s_lshl_b32 s76, s75, 2", "s_add_u32 s76, s76, s20", f"s_mul_i32 s76, s76, {WFR*1024}", f"s_add_u32 s76, s76, {hx(WS_W)}"); add64(k, 68, S_WS, 76); srd_fill(k, 68, WFR * 1024)
    l8, l7 = t5, t6
    k(f"v_lshrrev_b32 v{l8}, 3, v0", f"v_and_b32 v{l7}, 7, v0", "s_lshl_b32 s76, s20, 3", f"v_add_u32 v{l8}, s76, v{l8}")
    k("s_and_b32 s76, s20, 1", "s_lshl_b32 s76, s76, 1", f"v_add_u32 v{tmp}, s76, v{t7}", f"v_lshlrev_b32 v{tmp}, 1, v{tmp}", f"v_xor_b32 v{tmp}, v{tmp}, v{l7}", f"v_lshlrev_b32 v{tmp}, 4, v{tmp}")
    k(f"v_mul_u32_u24 v{l8}, 9216, v{l8}", f"v_add_u32 v{V_PD}, v{tmp}, v{l8}")
    k(f"v_lshrrev_b32 v{tmp}, 1, v{r4}", f"v_lshl_add_u32 v{tmp}, v{t7}, 1, v{tmp}", f"v_xor_b32 v{tmp}, s20, v{tmp}", f"v_lshlrev_b32 v{tmp}, 5, v{tmp}", f"v_lshl_add_u32 v{tmp}, v{c4}, 3, v{tmp}", f"v_lshl_add_u32 v{tmp}, v{r4}, 7, v{tmp}")
    k(f"v_lshl_add_u32 v{V_PT0}, v{q4}, 10, v{tmp}")
    st(k, "p0_issued")
    k("s_waitcnt vmcnt(18)")
    if OPT.get("fine"): st(k, "p0_qland")
    k("s_barrier")
    if OPT.get("fine"): st(k, "p0_bar")
    PT = Q_AC
    for ht in range(4):
        for e in range(2):
            k(f"ds_read_b64_tr_b16 {v(PT+4*ht+2*e,2)}, v{TQ+1 if ht == 1 else TQ} offset:{e*2176 + (0 if ht == 1 else 32*ht)}")
    for x in range(2):
        for e in range(2): k(f"ds_read_b64_tr_b16 {v(PT+16+4*x+2*e,2)}, v{TO+x} offset:{e*1280}")
    add64(k, 4, S_WS, 40); k("s_cmp_lt_u32 s2, 144", f"s_cselect_b32 s6, {72*1024}, 0")
    add64(k, 8, S_WS, 43); k("s_cmp_ge_u32 s2, 112", f"s_cselect_b32 s10, {90*1024}, 0")
    k("s_waitcnt lgkmcnt(0)")
    for ht in range(4): k(f"buffer_store_dwordx4 {v(PT+4*ht,4)}, v{44 if ht >= 2 else V_L16}, s[4:7], s{41 + ht//2} offen offset:{1024*(ht&1)} {SC}")
    k(f"buffer_store_dwordx4 {v(PT+16,4)}, v{V_L16}, s[8:11], s46 offen {SC}", f"buffer_store_dwordx4 {v(PT+20,4)}, v45, s[8:11], s45 offen {SC}")
    st(k, "p0_prepst")
    q_setup(k)
    ln_stats_norm(k, Q_X, Q_LT, 29)
    if OPT.get("fine"): st(k, "p0_qsetup")
    for i in range(18):
        k(f"s_waitcnt vmcnt({17 - i + 6})"); k(ln_acc(Q_X, Q_LT, 29, i))
    st(k, "p0_stats")
    k("v_mov_b32 v9, 0", "s_mov_b32 s23, 0x10000")
    k.label("non_l")
    k(f"buffer_load_dwordx2 v[10:11], v9, s[56:59], 0 offen {SC}", "s_waitcnt vmcnt(0)", f"v_readfirstlane_b32 s{S_NON}, v10", f"v_readfirstlane_b32 s{S_NON+1}, v11",
      "s_sub_u32 s23, s23, 1", "s_cselect_b32 s24, 1, 0", f"s_or_b32 s24, s24, s{S_NON}", "s_cmp_eq_u32 s24, 0", "s_cbranch_scc1 non_l")
    k.label("non_d")
    publish(k, F_P0, layered=False, idx="phys")
    if OPT.get("fine"): st(k, "p0_pub")
    k("s_lshl_b32 s88, s20, 10")
    for rd in range(4): k(dma_round(rd, STG_F + 8192 * rd))
    if OPT.get("fine"): st(k, "p0_f0")
    ln_finish(k, Q_LT)
    for i in range(18): k(q_lnq(i, True))
    st(k, "p0_ln")
    k("s_waitcnt vmcnt(0) lgkmcnt(0)")
    wait(k, ["v_and_b32 v9, 31, v0", "v_min_u32 v9, 17, v9", "v_lshlrev_b32 v9, 3, v9", "s_bfe_u32 s23, s2, 0x30003", "s_add_u32 s23, s23, 112", "v_add_u32 v10, s23, v9", "v_add_u32 v9, s22, v9", "v_cmp_gt_u32 vcc, 32, v0", "s_nop 1", "v_cndmask_b32 v9, v10, v9, vcc", f"v_lshlrev_b32 v9, {FS[0]}, v9"])
    st(k, "p0_flags")
    N0 = int(OPT.get("n0", 12))
    for n in range(N0): k(q_aload(n))
    k("s_mov_b32 s14, 0")
    e1, e2 = int(OPT.get("e1", 17)), int(OPT.get("e2", 17))
    ex = {}
    FD = Q_X + 32
    def f0tr():
        k(f"v_add_u32 v{Q_T}, {STG_F}, v{V_PT0}", f"v_add_u32 v{Q_T+1}, 512, v{Q_T}")
        for rd in range(4):
            k(tr_round(FD + 8 * rd, Q_T, Q_T + 1, 8192 * rd))
            if rd == 1: k("s_waitcnt lgkmcnt(4)")
    ex.setdefault(12, []).append((f0tr, 0))
    for rd in range(4): ex.setdefault(e1 - 3 + rd, []).append((lambda rd=rd: k(st_round(rd, FD + 8 * rd)), 2))
    q_loop(k, N0, list(range(N0)), ex, chunk=False)
    k("s_branch q_epi")

def phase_qkv1(k):
    wgmap(k, int(OPT.get("q1map", 4)))
    q_setup(k)
    q4, tk = Q_T, Q_T + 1
    k("s_lshl_b32 s38, s20, 8", f"v_lshlrev_b32 v{Q_XL}, 10, v{q4}", f"v_lshl_add_u32 v{Q_XL}, v{tk}, 4, v{Q_XL}", f"v_add_u32 v{Q_XL}, s38, v{Q_XL}")
    k(f"s_mul_i32 s38, s21, {TILE}", f"s_add_u32 s38, s38, {hx(WS_XN)}"); add64(k, 8, S_WS, 38); srd_fill(k, 8, TILE)
    k("s_mov_b32 s27, 0", "s_lshl_b32 s38, s20, 10")
    NE = int(OPT.get("qne", 20))
    for n in range(NE): k(q_aload(n))
    wait(k, tile_flags(F_RED, prev_layer=True))
    st(k, "q1_flags")
    for i in range(18):
        k(f"s_add_u32 m0, s38, {4096*i}", "s_nop 0" if i == 0 else "s_add_u32 s27, s27, 0x1000", f"buffer_load_dwordx4 v{Q_XL}, s[8:11], s27 offen {SC} lds")
    k("s_waitcnt vmcnt(12)", "s_barrier")
    st(k, "q1_x0")
    q_loop(k, NE, [f"X{i}" for i in range(6, 18)], {}, chunk="dma")

import k_att2 as AT
def phase_att(k):
    A = AT; T = A.V_T; SO = A.SO
    wgmap(k, 1)
    k(f"v_and_b32 v{T}, 31, v0", f"v_lshrrev_b32 v{T+1}, 5, v0")
    bias = [8, 9, 10, 11, 87]
    for i in range(5):
        k(f"s_add_i32 s23, s21, {i-4}", f"s_cmp_lt_i32 s23, 0", f"s_cselect_b32 s{bias[i]}, {A.NEG}, 0", "s_max_i32 s23, s23, 0",
          "s_lshl_b32 s23, s23, 3", "s_add_u32 s23, s23, s22", f"s_mul_i32 s{SO+i}, s23, {KVB}")
    k("s_lshl_b32 s15, s20, 11", f"v_add_u32 v{A.V_QMO}, s15, v{V_L16}", f"v_add_u32 v{A.V_KM}, {KV_KM}, v{A.V_QMO}")
    k("s_lshl_b32 s25, s20, 8", f"v_lshlrev_b32 v{A.V_KT}, 3, v{T}", f"v_add_u32 v{A.V_KT}, s25, v{A.V_KT}")
    k(f"v_mov_b32 v{T+3}, 0x80000000", f"v_cmp_gt_u32 vcc, 32, v0", f"v_add_u32 v{T+4}, {KV_QT}, v{A.V_KT}", f"v_add_u32 v{A.V_KT}, {KV_KT}, v{A.V_KT}")
    k(f"v_cndmask_b32 v{A.V_QT}, v{T+3}, v{T+4}, vcc", f"v_lshlrev_b32 v{T+4}, 2, v0", f"v_cndmask_b32 v{A.V_ST}, v{T+3}, v{T+4}, vcc")
    add64(k, 4, S_WS, 3); srd_fill(k, 4, 256 * KVB)
    k(f"v_mov_b32 v{T+9}, 0x3f80", f"v_mov_b32 v{T+8}, 0")
    for t in range(2):
        for p_ in range(2):
            q = A.V_Q1 + 8 * t + 4 * p_
            k(f"v_mov_b32 v{q + 1 - p_}, 0", f"v_cndmask_b32 v{q+2}, 0, v{T+9}, vcc", f"v_mov_b32 v{q+3}, 0")
    for i in range(5): k(f"v_mov_b32 v{T+9}, s{bias[i]}", f"v_accvgpr_write_b32 {a(A.A_K+12*i+3)}, v{T+8}", f"v_accvgpr_write_b32 {a(A.A_K+12*i+2)}, v{T+9}")
    k("s_mul_i32 s25, s20, 18", f"v_add_u32 v{T+4}, s25, v{T}", f"v_cmp_eq_u32 vcc, 18, v{T}", f"v_mov_b32 v{T+5}, 72", "s_nop 0", f"v_cndmask_b32 v{T+4}, v{T+4}, v{T+5}, vcc")
    k(f"v_lshrrev_b32 v{T+5}, 4, v{T+4}", f"v_and_b32 v{T+4}, 15, v{T+4}", f"v_lshlrev_b32 v{T+4}, 4, v{T+4}", f"v_lshl_add_u32 v{T+4}, v{T+5}, 11, v{T+4}", f"v_lshl_add_u32 v{T+4}, v{T+1}, 8, v{T+4}", f"v_add_u32 v{T+4}, {KV_V}, v{T+4}", f"v_cmp_gt_u32 vcc, 19, v{T}")
    k(f"v_lshlrev_b32 v{A.V_D4}, 2, v{T+1}", f"v_sub_u32 v{A.V_D4}, v{T}, v{A.V_D4}", f"v_cndmask_b32 v{A.V_VV}, v{T+3}, v{T+4}, vcc")
    for i in range(16): k(f"v_cmp_le_i32 s[{A.MSK+2*i}:{A.MSK+2*i+1}], {8*(i//4) + i%4}, v{A.V_D4}")
    k(f"v_mov_b32 v{T+9}, 0xffff")
    for d in range(8): k(f"v_cndmask_b32 v{A.V_MK+d}, 0, v{T+9}, s[{A.MSK+4*d}:{A.MSK+4*d+1}]")
    for d in range(8): k(f"v_cndmask_b32 v{A.V_MK+d}, v{A.V_MK+d}, -1, s[{A.MSK+4*d+2}:{A.MSK+4*d+3}]")
    k(f"s_mul_i32 s23, s21, {TILE}", "s_add_u32 s23, s23, s3", f"s_add_u32 s23, s23, {hx(WS_O)}"); add64(k, 16, S_WS, 23); srd_fill(k, 16, TILE)
    k("s_lshl_b32 s88, s22, 13", "s_add_u32 s88, s88, s15")
    k(f"v_lshlrev_b32 v{A.V_SO}, 4, v{T}", f"v_lshl_add_u32 v{A.V_SO}, v{T+1}, 10, v{A.V_SO}")
    k("s_add_u32 s89, s22, 64", "s_lshl_b32 s89, s89, 10", "s_lshl_b32 s23, s20, 8", "s_add_u32 s89, s89, s23")
    for i in range(4): k(f"v_mov_b32 v{A.V_MX+i}, 0xff7fffff")
    k("s_bfe_u32 s23, s2, 0x30003", f"s_mul_i32 s23, s23, {90*1024}", f"s_add_u32 s23, s23, {hx(WS_WO)}"); add64(k, 8, S_WS, 23); srd_fill(k, 8, 90 * 1024)
    st(k, "att_setup")
    wait(k, ["v_min_u32 v9, 4, v0", "s_sub_u32 s23, s21, 4", "v_add_u32 v9, s23, v9", "v_max_i32 v9, 0, v9", "v_lshlrev_b32 v9, 3, v9", "v_add_u32 v9, s22, v9", f"v_lshlrev_b32 v9, {FS[0]}, v9",
             f"s_add_u32 s23, s14, {F_QKV*FT()}", "v_add_u32 v9, s23, v9"])
    st(k, "att_flags")
    kk = Kern("t")
    if int(OPT.get("jt", 1)):
        kk("s_mov_b32 s26, 0", "s_mov_b32 s27, 0x00020000", "s_mov_b64 s[24:25], s[60:61]", "s_mov_b64 s[12:13], s[60:61]", "s_cmp_lg_u32 s3, 0", "s_cbranch_scc1 att_notouch")
        kk("s_lshl_b32 s76, s20, 5", "s_add_u32 s76, s76, s74", "s_add_u32 s76, s76, 128", "s_sub_u32 s77, s76, 162", "s_lshl_b32 s77, s77, 1", "s_cmp_lt_u32 s76, 162", "s_cselect_b32 s76, s76, s77",
          f"s_cselect_b32 s77, 9216, 1152", f"s_cselect_b32 s80, 1152, {576*1152}", f"s_cselect_b32 s81, 0, {32*1152}", "s_cselect_b64 s[24:25], s[60:61], s[72:73]", "s_cselect_b64 s[12:13], s[64:65], s[72:73]")
        kk(div18(76, 78, 79), "s_lshl_b32 s79, s79, 5", "s_mul_i32 s79, s79, s77", "s_lshl_b32 s78, s78, 7", "s_add_u32 s78, s78, s79", "s_mul_i32 s79, s75, s80", "s_add_u32 s78, s78, s79", "s_add_u32 s81, s81, s78")
        kk(f"s_mov_b32 s26, {hx(D*F*2)}", "att_notouch:", "v_and_b32 v9, 31, v0", "v_mul_u32_u24 v9, s77, v9")
        kk("buffer_load_dword v10, v9, s[24:27], s78 offen", "s_mov_b64 s[24:25], s[12:13]", "buffer_load_dword v11, v9, s[24:27], s81 offen")
    A.body(k, st, SC, kk.L)
def wo_dma(k):
    o = [["s_mul_i32 s26, s20, 23552", f"s_add_u32 s27, s26, {WOIMG}"]]
    for g in range(6):
        o.append(["s_mov_b32 m0, s27", "s_add_u32 s27, s27, 0x1000", f"buffer_load_dwordx4 v{V_L16}, s[8:11], s26 offen lds"])
        for i in range(1, 4 if g < 5 else 3): o.append(f"buffer_load_dwordx4 v{V_L16}, s[8:11], s26 offen offset:{1024*i} lds")
        o[-1] = [o[-1], "s_add_u32 s26, s26, 0x1000"]
    return o

W_XL, W_A0, W_A1, W_RL, W_SP, W_S8, W_T, W_AC, W_R, W_AF, W_B = 2, 3, 4, 5, 6, 7, 16, 36, 56, 184, 108
def phase_wo(k):
    wgmap(k, 8)
    T = W_T; q4, tk, tok, n, lam, c, t1, t2 = range(T, T + 8)
    k(f"v_lshrrev_b32 v{q4}, 4, v0", f"v_and_b32 v{tk}, 15, v0", "s_lshl_b32 s38, s20, 4", f"v_add_u32 v{tok}, s38, v{tk}")
    k(f"v_lshlrev_b32 v{W_XL}, 10, v{q4}", f"v_lshl_add_u32 v8, v{tok}, 2, v{W_XL}", f"v_lshl_add_u32 v{W_XL}, v{tok}, 4, v{W_XL}")
    k(f"s_mul_i32 s39, s21, {TILE}", "s_add_u32 s41, s39, s3", f"s_add_u32 s42, s41, {hx(WS_O)}"); add64(k, 4, S_WS, 42); srd_fill(k, 4, TILE)
    k(f"s_add_u32 s42, s{S_WS}, {hx(WS_X2)}", f"s_addc_u32 s43, s{S_WS+1}, 0", "s_cmp_eq_u32 s3, 0", f"s_cselect_b32 s8, s{S_X}, s42", f"s_cselect_b32 s9, s{S_X+1}, s43", "s_cselect_b64 vcc, -1, 0", "s_cselect_b32 s36, 32, 2048")
    k("s_mul_i32 s46, s22, 9216", "s_mul_i32 s37, s22, 144", "s_cselect_b32 s45, s37, s46")
    k("s_add_u32 s8, s8, s39", "s_addc_u32 s9, s9, 0"); srd_fill(k, 8, TILE)
    k(f"v_mul_u32_u24 v{t1}, 1152, v{tok}", f"v_lshl_add_u32 v{t1}, v{q4}, 3, v{t1}")
    k(f"v_lshrrev_b32 v{n}, 1, v{q4}", f"v_and_b32 v{lam}, 1, v{q4}")
    k(f"v_lshlrev_b32 v{t2}, 4, v{tok}", f"v_lshl_add_u32 v{c}, v{lam}, 3, v{t2}", f"v_lshl_add_u32 v{c}, v{n}, 10, v{c}")
    k(f"v_cndmask_b32 v{W_RL}, v{c}, v{t1}, vcc")
    for ht in range(5):
        k(f"buffer_load_dwordx2 {v(W_R+2*ht,2)}, v{W_RL}, s[8:11], s45 offen {SC}")
        if ht < 4: k("s_add_u32 s45, s45, s36")
    k(f"v_add_u32 v{W_A0}, {WOIMG}, v{V_L16}", f"v_add_u32 v{W_A1}, {WOIMG + 61440}, v{V_L16}")
    k(f"v_lshl_add_u32 v{t1}, v{lam}, 1, v{n}", f"v_lshl_add_u32 v{W_SP}, v{t1}, 10, v{t2}")
    k(f"v_lshl_add_u32 v{t1}, v{q4}, 3, v{t2}", f"v_add_u32 v{t1}, 8192, v{t1}", f"v_mov_b32 v{c}, 0x80000000", f"v_cmp_gt_u32 vcc, 2, v{q4}", "s_nop 1", f"v_cndmask_b32 v{W_S8}, v{c}, v{t1}, vcc")
    k(f"s_add_u32 s42, s41, {hx(WS_X1)}"); add64(k, 16, S_WS, 42); srd_fill(k, 16, TILE)
    k("s_add_u32 s47, s46, 4096", "s_mov_b32 s40, 0", "s_mov_b32 s29, 0x3f803f80", f"v_cndmask_b32 v{W_T+12}, 0, -1, vcc")
    k(f"v_lshlrev_b32 v{t1}, 3, v{tok}", f"v_cmp_gt_u32 vcc, 16, v0", "s_lshl_b32 s42, s21, 3", "s_add_u32 s42, s42, s22", "s_lshl_b32 s42, s42, 9", "s_add_u32 s42, s42, s3", f"s_add_u32 s42, s42, {hx(WS_SS)}", f"v_cndmask_b32 v{W_T+13}, v{c}, v{t1}, vcc")
    add64(k, 8, S_WS, 42); srd_fill(k, 8, 512)
    def aread(ks): return [f"ds_read_b128 {v(W_AF + 20*(ks%3) + 4*ht, 4)}, v{W_A1 if ks >= 12 else W_A0} offset:{(5*ks+ht)*1024 - (61440 if ks >= 12 else 0)}" for ht in range(5)]
    st(k, "wo_setup")
    k("s_waitcnt vmcnt(0)")
    kk = Kern("t"); wgmap(kk, int(OPT.get("map", 4)), 34, 35)
    kk.L = [x.replace("s44", "s30").replace("s45", "s31").replace("s46", "s32").replace("s47", "s33") for x in kk.L]
    wait(k, tile_flags(F_ATT) + kk.L + ["v_and_b32 v10, 31, v0", "s_lshl_b32 s35, s35, 5", "v_add_u32 v10, s35, v10", "v_lshlrev_b32 v10, 3, v10", f"v_add_u32 v10, {F_PF*FT()}, v10",
                               "v_cmp_gt_u32 vcc, 32, v0", "s_nop 1", "v_cndmask_b32 v9, v10, v9, vcc"])
    st(k, "wo_flags")
    for i in range(18):
        if i < 16: k(f"buffer_load_dwordx4 {v(W_B+4*i,4)}, v{W_XL}, s[4:7], s40 offen {SC}")
        else:
            for d in range(4): k(f"buffer_load_dword v{W_B+4*i+d}, v8, s[4:7], s40 offen offset:{256*d} {SC}")
        if i < 17: k("s_add_u32 s40, s40, 0x1000")
    k("s_waitcnt lgkmcnt(0)")
    k(aread(0), aread(1))
    for ks in range(18):
        k(f"s_waitcnt vmcnt({15 - ks + 8 if ks < 16 else 4 * (17 - ks)}) lgkmcnt({5 if ks < 17 else 0})")
        ar = aread(ks + 2) if ks < 16 else []
        for ht in range(5):
            ac = v(W_AC + 4 * ht, 4)
            k(f"v_mfma_f32_16x16x32_bf16 {ac}, {v(W_AF + 20*(ks%3) + 4*ht, 4)}, {v(W_B+4*ks,4)}, {'0' if ks == 0 else ac}")
            if ar: k(ar[ht])
    k.label("wo_epi")
    st(k, "wo_mfma")
    for ht in range(5):
        for d in range(2):
            k(f"v_lshlrev_b32 v{T+4*(ht&1)+2*d}, 16, v{W_R+2*ht+d}", f"v_and_b32 v{T+4*(ht&1)+2*d+1}, 0xffff0000, v{W_R+2*ht+d}")
        if ht == 0: k("s_nop 3")
        for i in range(4): k(f"v_add_f32 v{W_AC+4*ht+i}, v{W_AC+4*ht+i}, v{T+4*(ht&1)+i}")
    P = W_B
    WO_STATS(k)
    for ht in range(0):
        for d in range(2): k(f"v_cvt_pk_bf16_f32 v{P+2*ht+d}, v{W_AC+4*ht+2*d}, v{W_AC+4*ht+2*d+1}")
    publish(k, F_WO)
    st(k, "wo_pub")

def WO_STATS(k):
    P = W_B; T = W_T + 8
    for ht in range(5):
        for d in range(2): k(f"v_cvt_pk_bf16_f32 v{P+2*ht+d}, v{W_AC+4*ht+2*d}, v{W_AC+4*ht+2*d+1}")
    k(f"v_and_b32 v{P+12}, v{P+8}, v{W_T+12}", f"v_and_b32 v{P+13}, v{P+9}, v{W_T+12}", f"v_mov_b32 v{T}, 0", f"v_mov_b32 v{T+2}, 0")
    for pr in range(2):
        for d in range(2): k(f"v_permlane16_swap_b32 v{P+4*pr+d}, v{P+4*pr+2+d}")
    k(f"buffer_store_dwordx4 {v(P,4)}, v{W_SP}, s[16:19], s46 offen {SC}", f"buffer_store_dwordx4 {v(P+4,4)}, v{W_SP}, s[16:19], s47 offen {SC}")
    k(f"buffer_store_dwordx2 {v(P+8,2)}, v{W_S8}, s[16:19], s46 offen {SC}")
    for x in list(range(P, P + 8)) + [P + 12, P + 13]:
        k(f"v_dot2c_f32_bf16 v{T}, s29, v{x}", f"v_dot2c_f32_bf16 v{T+2}, v{x}, v{x}")
    k("s_nop 2")
    xlane(k, T, (16, 32))
    k(f"v_mov_b32 v{T+1}, v{T+2}", f"buffer_store_dwordx2 {v(T,2)}, v{W_T+13}, s[8:11], 0 offen {SC}")
def phase_ffn(k):
    F_ = FF; mp = int(OPT.get("map", 4)); late = int(OPT.get("late", 8))
    wgmap(k, mp)
    k("s_mov_b32 s29, 0x3f803f80")
    t0, t1, t2, t5, t6 = 64, 65, 66, 67, 68
    k(f"v_lshrrev_b32 v{t0}, 4, v0", f"v_and_b32 v{t1}, 15, v0", "s_lshl_b32 s38, s20, 8")
    k(f"v_lshlrev_b32 v{t2}, 10, v{t0}", f"v_lshl_add_u32 v{t2}, v{t1}, 4, v{t2}", f"v_add_u32 v{F_.V_XL}, s38, v{t2}")
    k(f"s_mul_i32 s39, s21, {TILE}", "s_add_u32 s39, s39, s3", f"s_add_u32 s39, s39, {hx(WS_X1)}"); add64(k, 8, S_WS, 39); srd_fill(k, 8, TILE)
    k("s_lshl_b32 s24, s22, 2", "s_add_u32 s24, s24, s20", f"s_mul_i32 s24, s24, {WFR*1024}", f"s_add_u32 s24, s24, {hx(WS_W)}"); add64(k, 4, S_WS, 24); srd_fill(k, 4, WFR * 1024)
    k("s_lshl_b32 s41, s22, 5", "s_add_u32 s41, s41, s21", f"s_mul_i32 s41, s41, {TILE}", "s_add_u32 s41, s41, s3", f"s_add_u32 s41, s41, {hx(WS_P)}"); add64(k, 16, S_WS, 41); srd_fill(k, 16, TILE)
    k("s_mov_b32 s27, 0", "s_mov_b32 s40, 0")
    k(f"v_and_b32 v{t6}, 1, v{t0}", f"v_lshrrev_b32 v{t5}, 1, v{t0}", f"v_add_u32 v{F_.V_XR1}, 36864, v{V_L16}")
    k("s_lshr_b32 s41, s20, 1", "s_lshl_b32 s41, s41, 12", "s_and_b32 s42, s20, 1", "s_lshl_b32 s42, s42, 3", "s_add_u32 s41, s41, s42")
    k(f"v_add_u32 v{F_.V_HW}, s41, v{V_L16}")
    k("s_lshl_b32 s41, s20, 10", f"v_add_u32 v{F_.V_XW}, s41, v{V_L16}")
    k(f"v_lshlrev_b32 v{F_.V_ST}, 10, v{t5}", f"v_lshl_add_u32 v{F_.V_ST}, v{t6}, 8, v{F_.V_ST}", f"v_lshl_add_u32 v{F_.V_ST}, v{t1}, 4, v{F_.V_ST}")
    k("s_lshl_b32 s41, s20, 11", f"v_add_u32 v{F_.V_ST}, s41, v{F_.V_ST}", f"v_mov_b32 v{F_.V_C2}, {fl(F_.C2)}")
    k("s_cmp_eq_u32 s3, 0", "s_cselect_b32 s31, 0, 0x4000", "s_lshl_b32 s30, s21, 9", "s_add_u32 s31, s31, s30", f"s_add_u32 s31, s31, {12*FT()}")
    k("s_lshl_b32 s30, s22, 2", "s_add_u32 s30, s30, s20", "s_lshl_b32 s30, s30, 3", "s_add_u32 s30, s30, s31")
    k("s_lshl_b32 s42, s21, 12", "s_add_u32 s42, s42, s3", f"s_add_u32 s42, s42, {hx(WS_SS)}"); add64(k, 32, S_WS, 42); srd_fill(k, 32, 4096)
    k("s_lshl_b32 s42, s20, 7", f"v_lshlrev_b32 v{t2}, 3, v{t1}", f"v_lshl_add_u32 v{t2}, v{t0}, 10, v{t2}", f"v_add_u32 v{t2}, s42, v{t2}")
    k("s_mov_b32 s23, 0")
    F4.preload(k)
    k("s_mov_b32 s26, s23")
    wait(k, tile_flags(F_WO))
    st(k, "ffn_flags")
    if int(OPT.get("touch", 0)):
        per = 18 * mp * (1 if int(OPT["touch"]) == 1 else 1)
        k(f"s_mul_i32 s41, s44, {per}", "v_add_u32 v11, s41, v0", "v_lshlrev_b32 v11, 7, v11", f"v_cmp_gt_u32 vcc, {per}, v0", "v_mov_b32 v5, 0x80000000", f"s_mov_b32 s49, {int(OPT.get('tch0', 3)) * TILE}", "v_cndmask_b32 v11, v5, v11, vcc")
    k("s_mov_b32 s23, s26")
    LT = F_.V_LT
    k(f"buffer_load_dwordx2 {v(LT+8,2)}, v{t2}, s[32:35], 0 offen {SC}", f"buffer_load_dwordx2 {v(LT+10,2)}, v{t2}, s[32:35], 0 offen offset:512 {SC}")
    XS = int(OPT.get("xs", 8))
    def xl(i): return [f"buffer_load_dwordx4 {v(F_.V_X+4*i,4)}, v{F_.V_XL}, s[8:11], s40 offen {SC}"] + (["s_add_u32 s40, s40, 0x1000"] if i < 17 else [])
    for i in range(XS): k(xl(i))
    k(f"s_waitcnt vmcnt({XS})", f"v_add_f32 v{LT}, v{LT+8}, v{LT+10}", f"v_add_f32 v{LT+2}, v{LT+9}, v{LT+11}")
    kk = Kern("t"); xlane(kk, LT, (16, 32)); ln_fin2(kk, LT)
    k(merge(kk.L, [xl(i) for i in range(XS, 18)]))
    st(k, "ffn_stats")
    def lnq(i):
        kk = Kern("t"); kk(ln_apply(F_.V_X, F_.V_LT, i, pk=(i < 6))); ln_write(kk, i, F_.V_X, F_.V_XW); return kk.L
    F4.group0(k, lnq)
    st(k, "ffn_g0")
    k("s_mov_b32 s25, 4", "s_mov_b32 s26, 99", "s_cmp_lg_u32 s3, 0", "s_cbranch_scc1 ffn_loopA_odd")
    JD = 200
    x1 = {2: jit_setup()}
    for n_, rd in enumerate(range(4, 8)):
        g_ = dma_round(rd, STG_J + 8192 * n_); x1[4 * (6 + 7 * n_) + 1] = g_[0]; x1[4 * (9 + 7 * n_) + 1] = g_[1]
    F4.groupA(k, 1, x1)
    x2 = {4 * 13 + 1: ["s_barrier"]}
    for n_, rd in enumerate(range(4, 8)):
        sel = 0 if rd == 4 else (2 if rd == 5 else 1)
        for e_, op in enumerate(tr_round(JD + 8 * n_, J_T0 + sel, J_T1 + sel, 8192 * n_)): x2[4 * (14 + 2 * n_ + e_ // 2) + 2 * (e_ % 2)] = [op]
        g_ = st_round(rd, JD + 8 * n_); x2[4 * (24 + 3 * n_) + 1] = (["s_waitcnt lgkmcnt(0)"] if n_ == 0 else []) + g_[0]; x2[4 * (25 + 3 * n_) + 1] = g_[1]
    F4.groupA(k, 2, x2)
    x3 = {4 * 18 + 1: ["s_lshl_b32 s76, s2, 2", "s_add_u32 s76, s76, s20", "s_lshl_b32 s76, s76, 3", f"s_add_u32 s76, s76, {FPJ()}", "s_mov_b64 exec, 1", "v_mov_b32 v9, 0", f"v_mov_b32 v10, s{S_NON}", f"v_mov_b32 v11, s{S_NON+1}",
                        f"buffer_store_dwordx2 v[10:11], v9, s[{S_FL}:{S_FL+3}], s76 offen {SC}", "s_mov_b64 exec, -1"]}
    F4.groupA(k, 3, x3)
    k("s_mov_b32 s25, 2", "s_mov_b32 s26, 2", "v_and_b32 v9, 31, v0", "v_lshlrev_b32 v9, 3, v9", "v_add_u32 v9, s22, v9", "v_lshlrev_b32 v9, 2, v9", "v_add_u32 v9, s20, v9", "v_lshlrev_b32 v9, 3, v9", f"v_add_u32 v9, {FPJ()}, v9")
    k.label("ffn_loopA")
    F4.groupA(k, 2)
    k.label("ffn_loopA_odd")
    pl = f"buffer_load_dwordx2 v[10:11], v9, s[{S_FL}:{S_FL+3}], 0 offen {SC}"
    xo = {1: ["s_cmp_lg_u32 s25, s26", "s_cbranch_scc1 jit_p0", pl + " ; COND", "jit_p0:"],
          4 * 22 + 1: ["s_cmp_lg_u32 s25, s26", "s_cbranch_scc1 jit_p1", "s_mov_b32 s76, 0x10000", "jit_l:", f"v_cmp_ne_u64 vcc, s[{S_NON}:{S_NON+1}], v[10:11]", "s_sub_u32 s76, s76, 1", "s_cselect_b64 s[78:79], 0, -1", "s_nop 1",
                       "s_and_b64 vcc, vcc, s[78:79]", "s_cbranch_vccz jit_p1", pl + " ; COND", "s_waitcnt vmcnt(0)", "s_branch jit_l", "jit_p1:"]}
    F4.groupA(k, 1, xo)
    k("s_sub_u32 s25, s25, 1", "s_cmp_lg_u32 s25, 0", "s_cbranch_scc1 ffn_loopA")
    F4.groupA(k, 8)
    st(k, "ffn_A")
    hook = ["s_mov_b64 exec, 1", "v_mov_b32 v9, 0", f"v_mov_b32 v10, s{S_NON}", f"v_mov_b32 v11, s{S_NON+1}",
            f"buffer_store_dwordx2 v[10:11], v9, s[{S_FL}:{S_FL+3}], s30 offen {SC}", "s_mov_b64 exec, -1"]
    hook2 = [x.replace("s30 offen", "s30 offen offset:256") for x in hook] if int(OPT.get("mid2", 1)) else None
    F4.phaseB(k, OPT.get("bsc", SC), hook, st if OPT.get("bst") else None, hook2)
    st(k, "ffn_B")

def phase_red(k):
    R = 16; ACC = 100
    pm4, pm1, rm4, rm1, t0, t1 = 2, 3, 4, 5, 6, 7
    k("s_lshl_b32 s23, s22, 3", f"v_and_b32 v{t0}, 7, v0", f"v_add_u32 v{t0}, s23, v{t0}")
    k(f"v_lshrrev_b32 v{t1}, 3, v0", "s_lshl_b32 s24, s20, 3", f"v_add_u32 v{t1}, s24, v{t1}")
    k(f"v_lshlrev_b32 v{pm4}, 4, v{t0}", f"v_lshl_add_u32 v{pm4}, v{t1}, 10, v{pm4}", f"v_mul_u32_u24 v{rm4}, 1152, v{t0}", f"v_lshl_add_u32 v{rm4}, v{t1}, 4, v{rm4}")
    k(f"v_lshrrev_b32 v{t1}, 5, v0", "s_lshl_b32 s24, s20, 1", f"v_add_u32 v{t1}, s24, v{t1}", f"v_add_u32 v8, s23, v{t1}", "v_bfe_u32 v9, v0, 2, 3", "v_bfe_u32 v10, v0, 3, 2", "v_and_b32 v11, 3, v0")
    k("s_cmp_eq_u32 s3, 0", "s_cselect_b64 vcc, -1, 0", f"v_cndmask_b32 v{t0}, v8, v{t0}, vcc", f"v_cndmask_b32 v{t1}, v9, v{t1}, vcc", "v_cndmask_b32 v10, v11, v10, vcc", f"v_add_u32 v{t1}, 64, v{t1}")
    k(f"v_lshlrev_b32 v{pm1}, 4, v{t0}", f"v_lshl_add_u32 v{pm1}, v{t1}, 10, v{pm1}", f"v_mul_u32_u24 v{rm1}, 1152, v{t0}", f"v_lshl_add_u32 v{rm1}, v{t1}, 4, v{rm1}")
    k(f"v_lshl_add_u32 v{pm1}, v10, 2, v{pm1}", f"v_lshl_add_u32 v{rm1}, v10, 2, v{rm1}")
    k(f"s_mul_i32 s24, s21, {TILE}", "s_add_u32 s25, s24, s3"); add64(k, 4, S_WS, 25); srd_fill(k, 4, LSTR - 31 * TILE)
    k(f"s_add_u32 s8, s4, {hx(WS_X2)}", "s_addc_u32 s9, s5, 0"); add64(k, 26, S_OUT, 24)
    k("s_cmp_eq_u32 s3, 0", "s_cselect_b32 s8, s8, s26", "s_cselect_b32 s9, s9, s27", "s_cselect_b32 s28, 0x8000, 512", "s_cselect_b64 vcc, -1, 0"); srd_fill(k, 8, TILE)
    k(f"v_cndmask_b32 v{rm4}, v{rm4}, v{pm4}, vcc", f"v_cndmask_b32 v{rm1}, v{rm1}, v{pm1}, vcc")
    ACCB = 110
    def ld0(j, srd=4): return [f"buffer_load_dwordx4 {v(R+10*j,4)}, v{pm4}, s[{srd}:{srd+3}], s25 offen {SC}"]
    def ld1(j): return ["s_add_u32 s26, s25, 0x8000", f"buffer_load_dwordx4 {v(R+10*j+4,4)}, v{pm4}, s[4:7], s26 offen {SC}"]
    def ld2(j): return [f"buffer_load_dword v{R+10*j+8}, v{pm1}, s[4:7], s25 offen {SC}"]
    def over(fn):
        k(f"s_mov_b32 s25, {hx(WS_P)}")
        for j in range(8):
            k(fn(j))
            if j < 7: k(f"s_add_u32 s25, s25, {hx(ACT)}")
    k("v_lshlrev_b32 v9, 3, v0", f"buffer_load_dwordx2 v[10:11], v9, s[{S_FL}:{S_FL+3}], s31 offen {SC}")
    k("s_mov_b32 s32, 0x00003f80", "s_mov_b32 s33, 0x3f800000")
    for i in range(18): k(f"v_mov_b32 v{ACCB+i}, 0")
    k("s_waitcnt vmcnt(0)", f"v_cmp_ne_u64 vcc, s[{S_NON}:{S_NON+1}], v[10:11]", "s_nop 3", "s_cmp_eq_u32 vcc_lo, 0", "s_cselect_b32 s34, 1, 0", "s_cmp_eq_u32 vcc_hi, 0", "s_cselect_b32 s35, 1, 0", "s_cmp_eq_u32 s20, 3", "s_cselect_b32 s35, 0, s35")
    RP = int(OPT.get("rp", 2))
    if RP == 1: k("s_cselect_b32 s34, 0, s34")
    publish(k, F_FFN)
    k("s_cmp_eq_u32 s34, 0", "s_cbranch_scc1 red_noearly")
    over(ld0)
    k.label("red_noearly")
    k(f"s_mov_b32 s25, {hx(WS_X1)}"); k(ld0(8), ld1(8), ld2(8))
    k("s_cmp_eq_u32 s35, 0", "s_cbranch_scc1 red_noearly1")
    over(ld1)
    k.label("red_noearly1")
    wait(k, tile_flags(F_FFN), pw=3 if RP else 0)
    st(k, "red_flags")
    over(ld2)
    k("s_cmp_lg_u32 s35, 0", "s_cbranch_scc1 red_haveearly1")
    over(ld1)
    k.label("red_haveearly1")
    k("s_cmp_lg_u32 s34, 0", "s_cbranch_scc1 red_haveearly")
    over(ld0)
    k("s_waitcnt vmcnt(0)")
    k.label("red_haveearly")
    k("s_waitcnt vmcnt(16)")
    def acc(j, ds):
        for d in ds: k(f"v_dot2c_f32_bf16 v{ACCB+2*d}, s32, v{R+10*j+d}", f"v_dot2c_f32_bf16 v{ACCB+2*d+1}, s33, v{R+10*j+d}")
    k("s_cmp_eq_u32 s35, 0", "s_cbranch_scc1 red_w", "s_waitcnt vmcnt(8)")
    k.label("red_w")
    for j in range(9): acc(j, range(4))
    acc(8, range(4, 9))
    k("s_waitcnt vmcnt(0)")
    for j in range(8): acc(j, range(4, 9))
    k("s_nop 2")
    for d in range(9): k(f"v_cvt_pk_bf16_f32 v{R+d}, v{ACCB+2*d}, v{ACCB+2*d+1}")
    k(f"buffer_store_dwordx4 {v(R,4)}, v{rm4}, s[8:11], 0 offen {SC}", f"buffer_store_dwordx4 {v(R+4,4)}, v{rm4}, s[8:11], s28 offen {SC}", f"buffer_store_dword v{R+8}, v{rm1}, s[8:11], 0 offen {SC}")

def red_ln(k):
    R = 16; ACCB = 110; T = 130
    k(f"v_mov_b32 v{T}, 0", f"v_mov_b32 v{T+2}, 0", "s_mov_b32 s29, 0x3f803f80")
    for d in range(9): k(f"v_dot2c_f32_bf16 v{T}, s29, v{R+d}", f"v_dot2c_f32_bf16 v{T+2}, v{R+d}, v{R+d}")
    k("s_nop 1")
    xlane(k, T, (8, 16, 32))
    k(f"v_and_b32 v{T+8}, 7, v0", f"v_lshlrev_b32 v{T+8}, 3, v{T+8}", f"v_add_u32 v{T+8}, {TILE}, v{T+8}", "s_lshl_b32 s23, s20, 6", f"v_add_u32 v{T+9}, s23, v{T+8}", f"v_mov_b32 v{T+1}, v{T+2}")
    k(f"ds_write_b64 v{T+9}, {v(T,2)}", "s_waitcnt lgkmcnt(0)", "s_barrier")
    for w_ in range(4): k(f"ds_read_b64 {v(T+10+2*w_,2)}, v{T+8} offset:{64*w_}")
    k(f"s_add_u32 s8, s4, {hx(WS_XN)}", "s_addc_u32 s9, s5, 0")
    for d in range(9): k(f"v_lshlrev_b32 v{ACCB+2*d}, 16, v{R+d}", f"v_and_b32 v{ACCB+2*d+1}, 0xffff0000, v{R+d}")
    k("s_waitcnt lgkmcnt(0)")
    k(f"v_add_f32 v{T}, v{T+10}, v{T+12}", f"v_add_f32 v{T+2}, v{T+11}, v{T+13}", f"v_add_f32 v{T+14}, v{T+14}, v{T+16}", f"v_add_f32 v{T+15}, v{T+15}, v{T+17}", f"v_add_f32 v{T}, v{T}, v{T+14}", f"v_add_f32 v{T+2}, v{T+2}, v{T+15}")
    ln_fin2(k, T)
    for d in range(9): k(f"v_pk_fma_f32 {v(ACCB+2*d,2)}, {v(ACCB+2*d,2)}, {v(T+4,2)}, {v(T+6,2)} op_sel_hi:[1,0,0]")
    for d in range(9): k(f"v_cvt_pk_bf16_f32 v{R+12+d}, v{ACCB+2*d}, v{ACCB+2*d+1}")
    k(f"buffer_store_dwordx4 {v(R+12,4)}, v4, s[8:11], 0 offen {SC}", f"buffer_store_dwordx4 {v(R+16,4)}, v4, s[8:11], s28 offen {SC}", f"buffer_store_dword v{R+20}, v5, s[8:11], 0 offen {SC}")
def gen():
    k = Kern("mega")
    NST[0] = 0; NAMES.clear(); LBL[0] = 0; FS[0] = int(OPT.get("fs", 6))
    FF.STAMP = 0; FF.WG = int(OPT.get("wg", 1)); FF.TOUCH = 0
    st0 = len(k.L)
    startup(k)
    k.label("layer1")
    phase_qkv1(k)
    k.label("q_epi")
    q_epi(k)
    publish(k, F_QKV, extra=F_PF)
    st(k, "qkv_pub")
    phase_att(k)
    wd = wo_dma(k); n1 = int(OPT.get("wd1", 8))
    k(wd[:n1 + 1])
    publish(k, F_ATT, vm=n1, keep=True)
    k(wd[n1 + 1:])
    st(k, "att_pub")
    phase_wo(k)
    phase_ffn(k)
    phase_red(k)
    k("s_cmp_lg_u32 s3, 0", "s_cbranch_scc1 mega_end")
    red_ln(k)
    publish(k, F_RED)
    st(k, "red_pub")
    if STAMP[0] and OPT.get("dbgout"): k("s_nop 1", f"v_readlane_b32 s56, v{V_STAMP}, 0", *[f"v_readlane_b32 s{57+i}, v{V_STAMP}, {NAMES.index(n)}" for i, n in enumerate(["p0_flags", "red_pub"])], "s_nop 3", "v_writelane_b32 v15, s56, 60", "v_writelane_b32 v15, s57, 61", "v_writelane_b32 v15, s58, 62", "s_nop 1",
        f"v_readlane_b32 s56, v{V_STAMP}, {NAMES.index('qkv_pub')}", f"v_readlane_b32 s57, v{V_STAMP}, {NAMES.index('ffn_g0')}", f"v_readlane_b32 s58, v{V_STAMP}, {NAMES.index('ffn_B')}", "s_nop 3", "v_writelane_b32 v15, s56, 57", "v_writelane_b32 v15, s57, 58", "v_writelane_b32 v15, s58, 59")
    elif STAMP[0]: dump(k, 0)
    k(f"s_mov_b32 s3, {hx(LSTR)}", f"s_mov_b32 s14, {5*FT()}", "s_branch layer1")
    k.label("mega_end")
    if STAMP[0]:
        k("s_waitcnt vmcnt(0)"); st(k, "end")
        if OPT.get("dbgout"):
            sel = [61, 57, 58, 59, 62] + [NAMES.index(n) for n in ("q1_flags", "qkv_pub", "att_pub", "wo_pub", "ffn_g0", "ffn_A", "ffn_B", "red_flags", "end")]
            k(f"s_cmp_lg_u32 s2, {OPT['dbgout']}", "s_cbranch_scc1 mega_done", "s_cmp_lg_u32 s20, 0", "s_cbranch_scc1 mega_done", "v_readlane_b32 s40, v15, 60", "v_mov_b32 v2, 0")
            for i, x in enumerate(sel): k(f"v_readlane_b32 s41, v15, {x}", "s_nop 3", "s_sub_u32 s41, s41, s40", f"v_writelane_b32 v2, s41, {i}")
            k("s_mov_b64 s[4:5], s[12:13]"); srd_fill(k, 4, 256)
            k("v_lshlrev_b32 v9, 2, v0", "s_mov_b64 exec, 0x3fff", "buffer_store_dword v2, v9, s[4:7], 0 offen offset:8")
        else: dump(k, 1)
    k.label("mega_done")
    k("s_endpgm")
    return k
def dump(k, L):
    LBL[0] += 1
    k("s_cmp_lg_u32 s20, 0", f"s_cbranch_scc1 dmp{LBL[0]}", f"s_lshl_b32 s23, s2, 9", f"s_add_u32 s23, s23, {hx(WS_ST + 256*L)}"); add64(k, 4, S_WS, 23); srd_fill(k, 4, 256)
    k("v_lshlrev_b32 v9, 2, v0", f"buffer_store_dword v{V_STAMP}, v9, s[4:7], 0 offen", "s_waitcnt vmcnt(0)")
    k.label(f"dmp{LBL[0]}")
class JP(list):
    def __init__(s): super().__init__([0, 1, 1, 1, 1, 1])
def trips(w):
    d = {"ffn_loopA": [1, 0, 1, 1, 1, 0], "ffn_loopA_odd": [0, 1], "jit_p0": [0, 1, 1, 1, 1, 1], "jit_p1": JP(), "ffn_loopB": [1, 1, 0] * 2, "mega_end": [0, 1], "ffn_nomid": [1, 0, 1] * 2, "red_noearly": [0, 1], "red_haveearly": [1, 0], "red_noearly1": [w & 1, 1], "red_haveearly1": [1 - (w & 1), 0], "red_w": [w & 1, 1], "att_notouch": [0, 1], "att_sk0": [0, 1], "att_sk1": [0, 1], "att_sk2": [0, 1], "q_nof": [0, 1], "att_noprep2": [0, 1], "ffn_noring": [1, 0], "ffn_ring2": [0, 1], "wo_l1": [0, 1],
         "q_epi2": 9 if w >= 2 else 0, "q_epi3": 9 if w == 3 else 0, "no_cpf": 0 if w == 3 else 9, "no_touch": 0 if w == 3 else 9, "q_noscale": 9 if w else 0, "no_nonce": 9 if w else 0}
    for i in range(1, 40):
        for n in (f"pub{i}", f"wt{i}_d", f"dmp{i}"): d[n] = 9 if w else 0
        d[f"pub{i}_x"] = [0, 1]
        d[f"wt{i}_d"] = 9 if w != POLLW.get(f"wt{i}", 0) else 0
    return d
```

```python
from common import *
V_KM, V_KT, V_QT, V_VV, V_SO, V_ST, V_D4, V_QMO = 2, 3, 4, 5, 6, 7, 8, 22
V_MX = 16; V_MK = 216; V_QM = 24; V_Q1 = 224; V_QTT = 240
V_NM = 40; V_O = 72; V_S = 104; V_P = 168; V_T = 200
A_K = 0; A_V = 60
MSK = 28; SO = 82
NEG = bf16u(-1e30)
def mf(d, A, B, c): return f"v_mfma_f32_32x32x16_bf16 {d}, {A}, {B}, {c}"
def kmain(b): return a(A_K + 12 * (b // 2) + 4 + 4 * (b % 2), 4)
def ktail(b): return a(A_K + 12 * (b // 2), 4)
def qk(t, b, sb, c):
    S_ = v(V_S + 16 * sb, 16)
    return [mf(S_, kmain(b), v(V_QM + 4*t, 4), c), mf(S_, ktail(b), v(V_Q1 + 8*t + 4*(b % 2), 4), S_)]
def cost(x): return 2 if isinstance(x, str) and x.startswith(("v_exp", "v_rcp")) else 1
class VM:
    def __init__(s, k, loads): s.k = k; s.todo = list(loads); s.q = []; s.done = set()
    def issue(s, n=1):
        for _ in range(n):
            if s.todo:
                tag, op = s.todo.pop(0); s.k(op); s.q.append(tag)
    def need(s, tags):
        tags = [t for t in tags if t not in s.done]
        while any(t in [x[0] for x in s.todo] for t in tags): s.issue()
        if tags:
            i = max(s.q.index(t) for t in tags); s.k(f"s_waitcnt vmcnt({len(s.q) - 1 - i})"); s.done.update(s.q[:i + 1]); s.q = s.q[i + 1:]
    def __call__(s, x):
        if isinstance(x, (list, tuple)) and not (len(x) == 2 and x[0] in ("NEED", "ISSUE")):
            for y in x: s(y)
        elif isinstance(x, tuple): s.need(x[1]) if x[0] == "NEED" else s.issue(x[1])
        else:
            s.k(x)
            if x.startswith("buffer_") and "COND" not in x: s.q.append("x")
def inter(E, main, side, lead=0, tail=0):
    tot = sum(cost(x) for x in main); span = max(1, tot - lead - tail); c = 0; si = 0
    for x in main:
        while si < len(side) and c >= lead + si * span / len(side):
            E(side[si]); si += 1
        E(x); c += cost(x)
    while si < len(side): E(side[si]); si += 1
def body(k, st, SC, after_p1=()):
    T = V_T
    L = []
    L.append(("Q0", f"buffer_load_dwordx4 {v(V_QM,4)}, v{V_QMO}, s[4:7], s{SO+4} offen {SC}"))
    L.append(("QT", f"buffer_load_dwordx2 {v(V_QTT,2)}, v{V_QT}, s[4:7], s{SO+4} offen {SC}"))
    def km(b): return (f"K{b}", f"buffer_load_dwordx4 {kmain(b)}, v{V_KM}, s[4:7], s{SO+b//2} offen offset:{1024*(b%2)} {SC}")
    def kt(i): return (f"T{i}", f"buffer_load_dwordx2 {a(A_K+12*i,2)}, v{V_KT}, s[4:7], s{SO+i} offen {SC}")
    L += [km(0), kt(0), km(8), kt(4), ("Q1", f"buffer_load_dwordx4 {v(V_QM+4,4)}, v{V_QMO}, s[4:7], s{SO+4} offen offset:1024 {SC}"), km(1), km(9)]
    for i in (1, 2, 3): L += [km(2*i), kt(i), km(2*i+1)]
    for b in (0, 8, 1, 9, 2, 3, 4, 5, 6, 7):
        for s_ in range(2): L.append((f"V{b}", f"buffer_load_dwordx4 {a(A_V+8*b+4*s_,4)}, v{V_VV}, s[4:7], s{SO+b//2} offen offset:{(2*(b%2)+s_)*512} {SC}") if s_ else
                                     (f"v{b}", f"buffer_load_dwordx4 {a(A_V+8*b,4)}, v{V_VV}, s[4:7], s{SO+b//2} offen offset:{(2*(b%2))*512} {SC}"))
    E = VM(k, L)
    kn = lambda bs: ("NEED", [f"K{b}" for b in bs] + [f"T{b//2}" for b in bs])
    E.issue(int(OPT.get("an0", 9)))
    units = [(0, (0, 8)), (1, (1, 9)), (1, (8,)), (0, (1,))] + [(t, (b,)) for b in range(2, 8) for t in range(2)]
    free = [0, 1, 2, 3]; sb = {}
    def m1(i, c):
        t, bs = units[i]; sb[i] = [free.pop(0) for _ in bs]; o = []
        for b, s_ in zip(bs, sb[i]): o += qk(t, b, s_, c(t))
        return o
    def merge_ops(i):
        lo, hi = [V_S + 16 * x for x in sb[i]]
        return [f"v_cndmask_b32 v{lo+n}, v{lo+n}, v{hi+n}, s[{MSK+2*n}:{MSK+2*n+1}]" for n in range(16)]
    zero = lambda t: "0"
    E(("NEED", ["QT"]))
    for t in range(2): k(f"v_mov_b32 v{V_Q1+8*t}, v{V_QTT+t}", f"v_mov_b32 v{V_Q1+8*t+5}, v{V_QTT+t}")
    st(k, "att_first")
    E(kn(units[0][1])); E(m1(0, zero)); E(("ISSUE", 2))
    E(("NEED", ["Q1", "K1", "K9"])); E(m1(1, zero)); E(("ISSUE", 2)); k("s_nop 2")
    nxt = [2]
    def issue_next():
        if nxt[0] < 16 and free:
            o = [kn(units[nxt[0]][1])] + m1(nxt[0], zero); nxt[0] += 1
            return o
        return []
    pend = []
    for i in range(16):
        t, bs = units[i]; S_ = V_S + 16 * sb[i][0]
        mx = [f"v_max3_f32 v{V_MX+2*t+(n&1)}, v{S_+2*n}, v{S_+2*n+1}, v{V_MX+2*t+(n&1)}" for n in range(8)]
        if len(bs) == 2:
            inter(E, merge_ops(i), pend); free.append(sb[i][1]); pend = issue_next()
        if i == 15: k("s_nop 3")
        inter(E, mx, pend + [("ISSUE", 1)]); free.append(sb[i][0])
        pend = issue_next()
    st(k, "att_p1")
    for t in range(2): k(f"v_max_f32 v{V_MX+2*t}, v{V_MX+2*t}, v{V_MX+2*t+1}")
    for t in range(2): k(f"v_mov_b32 v{V_MX+2*t+1}, v{V_MX+2*t}")
    E(("ISSUE", 1)); k("s_nop 0")
    for t in range(2): k(f"v_permlane32_swap_b32 v{V_MX+2*t}, v{V_MX+2*t+1}")
    E(("ISSUE", 1)); k("s_nop 0")
    for t in range(2): k(f"v_max_f32 v{V_MX+2*t}, v{V_MX+2*t}, v{V_MX+2*t+1}")
    units = [(0, (0, 8)), (1, (8,)), (1, (1, 9)), (0, (1,))] + [(t, (b,)) for b in range(2, 8) for t in range(2)]
    free = [0, 1, 2, 3]; sb = {}; pfree = [0, 1, 2, 3]; pb = {}
    nmc = lambda t: v(V_NM + 16 * t, 16)
    for n in range(16): k(f"v_sub_f32 v{V_NM+n}, 0, v{V_MX}")
    k("s_nop 0")
    inter(E, [f"v_sub_f32 v{V_NM+16+n}, 0, v{V_MX+2}" for n in range(16)], m1(0, nmc), 1, 4)
    E(("ISSUE", 2)); k("s_nop 3")
    ostarted = set()
    def m2(i):
        t, bs = units[i]; o = []; O_ = v(V_O + 16 * t, 16)
        for b, p_ in zip(bs, pb[i]):
            for s_ in range(2):
                c = O_ if t in ostarted else "0"; ostarted.add(t)
                o.append([("NEED", [f"V{b}"]), mf(O_, a(A_V + 8*b + 4*s_, 4), v(V_P + 8*p_ + 4*s_, 4), c)])
        return o
    carry = []
    for i in range(16):
        t, bs = units[i]; S_ = V_S + 16 * sb[i][0]
        side = m1(i + 1, nmc) if i + 1 < 16 else []
        m2ops = m2(i - 1) if i >= 1 else []
        pb[i] = [pfree.pop(0) for _ in bs]
        P0 = V_P + 8 * pb[i][0]
        x = merge_ops(i) if len(bs) == 2 else []
        for n in range(8):
            x += [f"v_exp_f32 v{S_+2*n}, v{S_+2*n}", f"v_exp_f32 v{S_+2*n+1}, v{S_+2*n+1}"]
            if n >= 1: x.append(f"v_cvt_pk_bf16_f32 v{P0+n-1}, v{S_+2*n-2}, v{S_+2*n-1}")
        last = f"v_cvt_pk_bf16_f32 v{P0+7}, v{S_+14}, v{S_+15}"
        x[-1], x[-2] = x[-2], x[-1]
        x = x[:-2] + [x[-1], x[-2]]
        if len(bs) == 2:
            P1 = V_P + 8 * pb[i][1]
            x += [f"v_and_b32 v{P1}, v{P0}, v{V_MK}", last]
            for n in range(1, 8): x.append(f"v_and_b32 v{P1+n}, v{P0+n}, v{V_MK+n}")
            for n in range(8): x.append(f"v_xor_b32 v{P0+n}, v{P0+n}, v{P1+n}")
        else: x.append(last)
        if i >= 1:
            for p_ in pb[i - 1]: pfree.append(p_)
        ex = [("ISSUE", 2)]
        if after_p1 and not E.todo: ex = [list(after_p1)]; after_p1 = None
        inter(E, x, side + ex + m2ops, 1, 3)
        for s_ in sb[i]: free.append(s_)
    def epi(t):
        O_ = V_O + 16 * t; R = T + 2 * t; P_ = V_NM + 8 * t
        o = [f"v_mov_b32 v{R+1}, v{O_+10}", "s_nop 1", f"v_permlane32_swap_b32 v{O_+10}, v{R+1}", "s_nop 1", f"v_rcp_f32 v{R}, v{O_+10}", "s_nop 0"]
        o += [f"v_mul_f32 v{O_+n}, v{O_+n}, v{R}" for n in range(10)]
        o += [f"v_cvt_pk_bf16_f32 v{P_+n}, v{O_+2*n}, v{O_+2*n+1}" for n in range(5)]
        o += [f"buffer_store_dwordx4 {v(P_,4)}, v{V_SO}, s[16:19], s88 offen offset:{512*t} {SC}", f"buffer_store_dword v{P_+4}, v{V_ST}, s[16:19], s89 offen offset:{128*t} {SC}"]
        return o
    k("s_nop 1")
    E(m2(15))
    st(k, "att_p2")
    k("s_nop 5"); E(epi(0)); E(epi(1))
```

```python
from common import *
from k_ffn3 import BREG, fread, gelu_ops, place, epiB_cvt, epiB_swap, epiB_store, V_WO, V_HW, V_AC, V_RG, V_HP, V_T, V_X, V_LT, V_XL, V_XW, V_ST, V_XR1, V_C2, C2, fill_has_ds
NPRE = 18
def cfg(): return int(OPT.get("na", 18)), int(OPT.get("nbb", 18))
def sreg(s): return V_RG + 4 * s if s < 18 else (200 + 4 * (s - 18) if s < 32 else 48 + 4 * (s - 32))
def slot(f):
    NA, NBB = cfg()
    if f in xset(): return 18 + xset().index(f)
    if f < 324: return f % NA
    b = (f - 324) % NBB
    return (324 + b) % NA if b < NA else b
RES = 92160
def xset(): return [324 + 24 + 8 * i for i in range(int(OPT.get("xr", 14)))]
def rset(): return [324 + 20 + 8 * i for i in range(17)] if int(OPT.get("res", 1)) else []
class Stream:
    def __init__(s, nxt, q): s.n = nxt; s.q = list(q); s.cnt = 0
    def load(s, k):
        f = s.n
        if f in xset():
            if f % 3 == 2: k("s_add_u32 s23, s23, 0xc00")
            s.n += 1
            return
        if f in rset():
            i = rset().index(f)
            k("s_cmp_lg_u32 s3, 0", f"s_cbranch_scc1 res_sk{i}", f"s_add_u32 m0, s50, {1024*i}", "s_nop 0",
              f"buffer_load_dwordx4 v{V_WO}, s[4:7], s23 offen sc1 lds" if f % 3 == 0 else f"buffer_load_dwordx4 v{V_WO}, s[4:7], s23 offen offset:{(f%3)*1024} sc1 lds", f"res_sk{i}:")
            k.L[-4] = f"s_add_u32 m0, s50, {1024*i - (f%3)*1024 + 4096}"
            if f % 3 == 2: k("s_add_u32 s23, s23, 0xc00")
            s.mark = getattr(s, "mark", {}); s.mark[f] = s.cnt; s.n += 1
            return
        s.cnt += 1
        k(f"buffer_load_dwordx4 {v(sreg(slot(f)), 4)}, v{V_WO}, s[4:7], s23 offen" + (f" offset:{(f%3)*1024}" if f % 3 else "") + OPT.get("wsc", " sc1"))
        if f % 3 == 2: k("s_add_u32 s23, s23, 0xc00")
        s.q.append(f); s.n += 1
    def wait(s, k, f):
        if f in s.q:
            i = s.q.index(f); k(f"s_waitcnt vmcnt({len(s.q) - 1 - i})"); s.q = s.q[i + 1:]
    def emit(s, k, ops):
        for x in ops:
            if x.startswith("XW"): x = f"s_waitcnt vmcnt({17 - int(x[3:]) + s.n - NPRE})"
            k(x)
            if x.startswith("buffer_") and "COND" not in x: s.q.append("x"); s.cnt += 1
def preload(k):
    st = Stream(0, [])
    for _ in range(NPRE): st.load(k)
def posA(k, st, f, acc, fill, allow):
    n = f % 36; ks, m = n // 2, n % 2
    st.wait(k, f)
    for q_ in range(4):
        tb = 3 - q_ if m else q_
        d = v(acc + 16*m + 4*tb, 4)
        k(f"v_mfma_f32_16x16x32_bf16 {d}, {v(sreg(slot(f)), 4)}, {BREG(4*ks+tb)}, {'0' if ks == 0 else d}")
        if q_ == 3 and st.n <= allow(f) and st.n < 486: st.load(k)
        if q_ == 1 and st.n <= allow(f - 1) and st.n < 486: st.load(k)
        st.emit(k, fill[4*n + q_])
def group0(k, lnq):
    NA, _ = cfg()
    st = Stream(NPRE, range(NPRE))
    cuts = [int(x) for x in OPT.get("cuts", "0,6,12,18").split(",")]
    for i in range(cuts[1]): st.emit(k, [f"XW {i}"] + lnq(i))
    k("s_waitcnt lgkmcnt(0)", "s_barrier")
    for f in range(4 * cuts[1]):
        k(fread(f))
        if f % 12 == 11: k("s_waitcnt lgkmcnt(6)")
    fill = [[] for _ in range(144)]
    for c in range(1, len(cuts) - 1):
        g0, g1 = 8 * cuts[c - 1], 8 * cuts[c]
        nf = 4 * (cuts[c + 1] - cuts[c]); nr = max(4, min(11, (g1 - g0) // 3))
        ops = [x for i in range(cuts[c], cuts[c + 1]) for x in [f"XW {i}"] + lnq(i)]
        place(fill, ops, g0 + 1, g1 - nr - 1, 1)
        fill[g1 - nr - 1] += ["s_waitcnt lgkmcnt(0)", "s_barrier"]
        for f in range(nf):
            fill[g1 - nr + f * (nr - 1) // nf].append(fread(4 * cuts[c] + f))
            if f % 12 == 11: fill[g1 - nr + f * (nr - 1) // nf].append("s_waitcnt lgkmcnt(6)")
    allow = (lambda f: f + NA if f >= 10 else (f + NA if NA == 18 else -1))
    for n in range(36):
        if n % 2 == 0 and n // 2 in cuts:
            nq = cuts[cuts.index(n // 2) + 1] - n // 2
            k(f"s_waitcnt lgkmcnt({min(8, 4 * nq - 4)})")
        if n % 2 == 1 and n // 2 in cuts: k("s_waitcnt lgkmcnt(0)") if not fill_has_ds(fill, 4 * n - 4, 4 * n) else k("s_waitcnt lgkmcnt(1)")
        posA(k, st, n, V_AC, fill, allow)
    k("s_barrier")
    assert st.n == 36 + NA and st.q == list(range(36, 36 + NA)), (st.n, st.q)
def groupA(k, g, extra=None):
    NA, _ = cfg(); par = g & 1; last = g == 8
    st = Stream(36 * g + NA, range(36 * g, 36 * g + NA))
    gl = gelu_ops(V_AC + 32 * (1 - par)) + [f"v_add_u32 v{V_HW}, 0x2000, v{V_HW}"]
    fill = [[] for _ in range(144)]
    place(fill, gl, 6, 142)
    if int(OPT.get("touch", 0)) and par == 1:
        fill[1] += ["buffer_load_dword v5, v11, s[4:7], s49 offen ; WAWOK", f"s_add_u32 s49, s49, {TILE}"]
        if int(OPT.get("touch", 0)) == 2: fill[73] += ["buffer_load_dword v5, v11, s[4:7], s49 offen ; WAWOK", f"s_add_u32 s49, s49, {TILE}"]
    if last:
        k("s_waitcnt lgkmcnt(0)", "s_barrier")
        for f in range(56):
            gp = 4 * (2 * (f // 4) + 2) + (f % 4) * 2
            fill[gp].append(fread(f))
            if f % 8 == 7: fill[gp + 1].append("s_waitcnt lgkmcnt(4)")
    PG = int(OPT.get("peel", 0))
    if last or (PG and g in (6, 7)):
        xs = list(enumerate(xset())); ng = 3 if PG else 1; gi_ = g - 6 if PG else 0
        mine = xs[len(xs) * gi_ // ng: len(xs) * (gi_ + 1) // ng]
        for n_, (i, f) in enumerate(mine):
            fill[4 * (1 + n_ * 34 // max(1, len(mine))) + 1] += [f"s_mov_b32 s49, {f * 1024}", f"buffer_load_dwordx4 {v(sreg(18 + i), 4)}, v{V_WO}, s[4:7], s49 offen sc1"]
    for gp, ops in (extra or {}).items(): fill[gp] = fill[gp] + ops
    for n in range(36): posA(k, st, 36 * g + n, V_AC + 32 * par, fill, lambda f: f + NA)
def phaseB(k, sc, midhook, stp=None, midhook2=None):
    NA, NBB = cfg()
    st = Stream(324 + NA, range(324, 324 + NA))
    def allow(f):
        p = f - 324
        if p < 12: return min(f + NBB, 324 + 31)
        return f + NBB
    O = V_HP
    for g in range(9):
        acc = V_AC + 32 + 16 * (g & 1); prev = V_AC + 32 + 16 * (1 - (g & 1))
        fill = [[] for _ in range(72)]
        if stp and g in (1, 2, 5, 8): stp(k, f"B_g{g}")
        if g == 0:
            place(fill, gelu_ops(V_AC), 4, 44, 1)
            fill[44] += ["s_waitcnt lgkmcnt(0)", "s_barrier"]
            for i in range(16): fill[45 + i // 2].append(fread(56 + i))
            fill[55] += ["s_waitcnt lgkmcnt(0)"]
            k("s_waitcnt lgkmcnt(0)")
        else:
            place(fill, epiB_cvt(prev, O), 4, 10); place(fill, epiB_swap(O), 12, 15)
            s_ = epiB_store(O, sc); SP2 = int(OPT.get("sp2", 10)); fill[17].append(s_[0]); fill[4 * SP2 + 1] += s_[1:]
        for n in range(18):
            f = 324 + 18 * g + n
            st.wait(k, f)
            if f in rset(): k("s_waitcnt lgkmcnt(0)")
            if f + 3 in rset():
                i = rset().index(f + 3)
                fill[4 * n + 1] = [f"s_waitcnt vmcnt({st.cnt - st.mark[f + 3]})", f"ds_read_b128 {v(sreg(slot(f + 3)), 4)}, v5 offset:{1024*i}"] + fill[4 * n + 1]
            if midhook and "mid" not in st.__dict__ and g >= 5 and st.q.count("x") <= 2 * (g - 5) + (n > 4) + (n > int(OPT.get("sp2", 10))):
                st.mid = True; st.emit(k, midhook); print("mid flag at B pos", 18 * g + n, file=__import__("sys").stderr)
            if midhook2 and "mid2" not in st.__dict__ and g == 8 and n > 4 and st.q.count("x") <= 1 + (n > int(OPT.get("sp2", 10))):
                st.mid2 = True; st.emit(k, midhook2); print("mid2 flag at B pos", 18 * g + n, file=__import__("sys").stderr)
            for tb in range(4):
                d = v(acc + 4*tb, 4)
                k(f"v_mfma_f32_16x16x32_bf16 {d}, {v(sreg(slot(f)), 4)}, {BREG(4*n+tb)}, {'0' if n == 0 else d}")
                if tb == 3 and st.n <= allow(f) and st.n < 486: st.load(k)
                if tb == 1 and st.n <= allow(f - 1) and st.n < 486: st.load(k)
                st.emit(k, fill[4*n + tb])
    k("s_nop 7")
    k(epiB_cvt(acc, O)); k("s_nop 1"); k(epiB_swap(O)); k(epiB_store(O, sc))
```

```python
from common import *
import k_ffn3 as FF
import k_ffn4 as F4
LDS = 163840
SC = "sc1"
S_WS, S_X, S_OUT, S_NON, S_FL = 96, 98, 100, 90, 92
S_FO = 19
S_FO = 75 + 0
V_L16, V_PD, V_PT0, V_PT1, V_STAMP = 1, 12, 13, 14, 15
F_P0, F_QKV, F_ATT, F_WO, F_FFN, F_RED, F_PF = 0, 1, 2, 3, 4, 5, 11
STG_Q, STG_O, STG_F, STG_J = 73728, 91648, 96768, 73728
FS = [3]
def FT(): return 256 << FS[0]
def FPJ(): return 12 * FT() + 4 * 8192
F_PJ = 0
WOIMG = 0
NST = [0]
def st(k, name=""):
    if STAMP[0]:
        k("s_memtime s[0:1]" if STAMP[0] == 2 else "s_memrealtime s[0:1]", "s_waitcnt lgkmcnt(0)", f"v_writelane_b32 v{V_STAMP}, s0, {NST[0]}" + f" ; {name}")
        NAMES.append(name); NST[0] += 1
NAMES = []
def add64(k, d, base, off_s):
    k(f"s_add_u32 s{d}, s{base}, s{off_s}", f"s_addc_u32 s{d+1}, s{base+1}, 0")
LBL = [0]
POLLW = {}
def publish(k, fid, layered=True, vm=0, idx="task", extra=None, keep=False):
    LBL[0] += 1; L = f"pub{LBL[0]}"
    k(f"s_waitcnt vmcnt({vm})", "s_barrier", "s_cmp_lg_u32 s20, 0", f"s_cbranch_scc1 {L}")
    if idx == "task": k("s_lshl_b32 s23, s21, 3", "s_add_u32 s23, s23, s22", f"s_lshl_b32 s23, s23, {FS[0]}")
    else: k(f"s_lshl_b32 s23, s2, {FS[0]}")
    k(f"s_add_u32 s23, s23, {fid*FT()}")
    if layered: k("s_add_u32 s23, s23, s14")
    k("s_mov_b64 exec, 1", "v_mov_b32 v9, 0", f"v_mov_b32 v10, s{S_NON}", f"v_mov_b32 v11, s{S_NON+1}")
    k(f"buffer_store_dwordx2 v[10:11], v9, s[{S_FL}:{S_FL+3}], s23 offen {SC}")
    if extra is not None:
        k("s_cmp_lg_u32 s3, 0", f"s_cbranch_scc1 {L}_x")
        k("s_lshl_b32 s23, s75, 5", "s_add_u32 s23, s23, s74", "s_lshl_b32 s23, s23, 3", f"s_add_u32 s23, s23, {extra*FT()}", f"buffer_store_dwordx2 v[10:11], v9, s[{S_FL}:{S_FL+3}], s23 offen {SC}")
        k.label(f"{L}_x")
    k("s_mov_b64 exec, -1")
    k.label(L)
def wait(k, setup, pw=0):
    LBL[0] += 1; L = f"wt{LBL[0]}"; POLLW[L] = pw
    k(f"s_cmp_lg_u32 s20, {pw}", f"s_cbranch_scc1 {L}_d")
    k(setup, "s_mov_b32 s23, 0x10000")
    if int(OPT.get("pre", 0)): k(f"s_sleep {OPT['pre']}")
    k.label(f"{L}_l")
    if int(OPT.get("slp", 0)): k(f"s_sleep {OPT['slp']}")
    k(f"buffer_load_dwordx2 v[10:11], v9, s[{S_FL}:{S_FL+3}], 0 offen {SC}", "s_waitcnt vmcnt(0)")
    k(f"v_cmp_ne_u64 vcc, s[{S_NON}:{S_NON+1}], v[10:11]", "s_sub_u32 s23, s23, 1", "s_cselect_b64 s[24:25], 0, -1", "s_nop 1", "s_and_b64 vcc, vcc, s[24:25]", f"s_cbranch_vccnz {L}_l")
    k.label(f"{L}_d")
    k("s_barrier")
def tile_flags(fid, prev_layer=False):
    o = ["v_and_b32 v9, 7, v0", "s_lshl_b32 s23, s21, 3", "v_add_u32 v9, s23, v9", f"v_lshlrev_b32 v9, {FS[0]}, v9", f"s_add_u32 s23, s14, {hx(fid*FT() - (5*FT() if prev_layer else 0))}", "v_add_u32 v9, s23, v9"]
    return o

def div18(su, sq, sr): return [f"s_mul_i32 s{sq}, s{su}, 3641", f"s_lshr_b32 s{sq}, s{sq}, 16", f"s_mul_i32 s{sr}, s{sq}, 18", f"s_sub_u32 s{sr}, s{su}, s{sr}"]
def soffA(rd): return [f"s_add_u32 s76, s74, {32*rd}"] + div18(76, 78, 79) + [f"s_mul_i32 s79, s79, {32*9216}", "s_lshl_b32 s78, s78, 7", "s_add_u32 s78, s78, s79", "s_mul_i32 s79, s75, 1152", "s_add_u32 s78, s78, s79"]
def soffB(rd, d): return [f"s_add_u32 s76, s74, {hx(32*rd - 162)}", "s_lshl_b32 s76, s76, 1"] + div18(76, d, 79) + [f"s_mul_i32 s79, s79, {32*1152}", f"s_lshl_b32 s{d}, s{d}, 7", f"s_add_u32 s{d}, s{d}, s79", f"s_mul_i32 s79, s75, {576*1152}", f"s_add_u32 s{d}, s{d}, s79"]
J_PD, J_T0, J_T1 = 240, 243, 246
def dma_round(rd, lds):
    if rd <= 4: pre, s1, s2, o2, vd = soffA(rd), 60, 64, 78, V_PD
    elif rd == 5:
        pre = soffB(5, 77) + soffA(5) + ["s_cmp_lt_u32 s74, 2", "s_cselect_b32 s78, s78, s77", f"s_cselect_b32 s79, 0, {32*1152}", "s_add_u32 s77, s78, s79"]
        s1, s2, o2, vd = 80, 84, 77, J_PD + 2
    else: pre, s1, s2, o2, vd = soffB(rd, 78) + [f"s_add_u32 s77, s78, {32*1152}"], 36, 36, 77, J_PD + 1
    return [pre + [f"s_add_u32 m0, s88, {lds}", "s_nop 0", f"buffer_load_dwordx4 v{vd}, s[{s1}:{s1+3}], s78 offen lds"],
            [f"s_add_u32 m0, s88, {lds + 4096}", "s_nop 0", f"buffer_load_dwordx4 v{vd}, s[{s2}:{s2+3}], s{o2} offen lds"]]
def tr_round(T, t0, t1, off): return [f"ds_read_b64_tr_b16 {v(T + 4*u + 2*e, 2)}, v{(t0, t1)[e]} offset:{off + 4096*u}" for u in range(2) for e in range(2)]
def st_round(rd, T):
    pre = [f"s_add_u32 s76, s74, {32*rd}", "s_lshl_b32 s78, s76, 11"]
    if rd == 7: pre += ["s_cmp_lt_u32 s76, 243", f"s_cselect_b32 s70, {WFR*1024}, 0"]
    return [pre + [f"buffer_store_dwordx4 {v(T,4)}, v{V_L16}, s[68:71], s78 offen {SC}"], [f"buffer_store_dwordx4 {v(T+4,4)}, v{V_L16}, s[68:71], s78 offen offset:1024 {SC}"]]
def jit_setup():
    q4, r4, c4, t, l8 = 250, 251, 252, 253, 254
    o = [f"v_lshrrev_b32 v{q4}, 4, v0", f"v_bfe_u32 v{r4}, v0, 2, 2", f"v_and_b32 v{c4}, 7, v0", f"v_lshlrev_b32 v{t}, 1, v{q4}", f"v_xor_b32 v{t}, v{t}, v{c4}", f"v_lshlrev_b32 v{t}, 4, v{t}",
         f"v_lshrrev_b32 v{l8}, 3, v0", "s_lshl_b32 s76, s20, 3", f"v_add_u32 v{l8}, s76, v{l8}", f"v_mul_u32_u24 v{l8}, 1152, v{l8}", f"v_add_u32 v{J_PD+1}, v{t}, v{l8}",
         f"v_add_u32 v{J_T0}, {STG_J}, v{V_PT0}", f"v_add_u32 v{J_T1}, 512, v{J_T0}", f"v_lshlrev_b32 v{t}, 9, v{q4}", f"v_sub_u32 v{J_T0+1}, v{J_T0}, v{t}", f"v_add_u32 v{J_T1+1}, 2048, v{J_T0+1}",
         "s_cmp_lt_u32 s74, 2", "s_cselect_b64 vcc, -1, 0", "s_cselect_b64 s[80:81], s[60:61], s[72:73]", "s_cselect_b64 s[84:85], s[64:65], s[72:73]", "s_mov_b64 s[36:37], s[72:73]",
         f"v_cndmask_b32 v{J_PD+2}, v{J_PD+1}, v{V_PD}, vcc", f"v_cndmask_b32 v{J_T0+2}, v{J_T0+1}, v{J_T0}, vcc", f"v_cndmask_b32 v{J_T1+2}, v{J_T1+1}, v{J_T1}, vcc", "s_lshl_b32 s88, s20, 10"]
    for r_ in (36, 80, 84): o += [f"s_mov_b32 s{r_+2}, {hx(D*F*2)}", f"s_mov_b32 s{r_+3}, 0x00020000"]
    return o

Q_XL, Q_SQ, Q_S8, Q_STL, Q_TS, Q_BR1, Q_XW = 2, 3, 4, 5, 6, 7, 8
Q_A2 = 160
Q_VW, Q_VR, Q_VA = 172, 173, 174
Q_AC, Q_B, Q_LT, Q_T, Q_X = 48, 112, 144, 161, 184
BREG = FF.BREG
def q_aload(n):
    o = [f"buffer_load_dwordx4 {BREG(n)}, v{Q_A2 if n % 4 >= 2 else V_L16}, s[4:7], s26 offen" + (f" offset:{(n%4)*1024}" if n % 4 else "") + f" {SC}"]
    if n % 4 == 3: o.append("s_add_u32 s26, s26, 0x1000")
    return o
def q_setup(k):
    q4, tk, r1, r2, t5, t6 = range(Q_T, Q_T + 6)
    k(f"v_lshrrev_b32 v{q4}, 4, v0", f"v_and_b32 v{tk}, 15, v0", f"v_and_b32 v{r1}, 1, v{q4}", f"v_lshrrev_b32 v{r2}, 1, v{q4}")
    k("s_lshl_b32 s38, s20, 10", f"v_add_u32 v{Q_XW}, s38, v{V_L16}", f"v_add_u32 v{Q_BR1}, 36864, v{V_L16}")
    k(f"v_lshlrev_b32 v{t5}, 4, v{tk}", f"v_lshl_add_u32 v{t6}, v{r2}, 9, v{t5}", f"v_lshl_add_u32 v{Q_SQ}, v{r1}, 11, v{t6}")
    k("s_lshl_b32 s40, s20, 13", "s_add_u32 s41, s40, 0x400", "s_add_u32 s42, s40, 0x1000", "s_add_u32 s43, s41, 0x1000")
    k("s_and_b32 s39, s20, 1", "s_mul_i32 s39, s39, 9216", f"s_add_u32 s39, s39, {STG_Q}")
    k(f"v_mul_u32_u24 v{t6}, 144, v{tk}", f"v_lshl_add_u32 v{t6}, v{q4}, 3, v{t6}", f"v_add_u32 v{Q_VW}, s39, v{t6}")
    k(f"v_bfe_u32 v{t6}, v0, 2, 2", f"v_lshl_add_u32 v{t6}, v{r1}, 2, v{t6}", f"v_lshl_add_u32 v{t6}, v{r2}, 4, v{t6}", f"v_mul_u32_u24 v{t6}, 144, v{t6}", f"v_and_b32 v{Q_VR}, 3, v0", f"v_lshl_add_u32 v{t6}, v{Q_VR}, 3, v{t6}", f"v_add_u32 v{Q_VR}, s39, v{t6}")
    k(f"v_lshlrev_b32 v{t6}, 4, v{tk}", f"v_lshl_add_u32 v{t6}, v{r1}, 8, v{t6}", f"v_lshl_add_u32 v{t6}, v{r2}, 9, v{t6}")
    k("s_and_b32 s39, s20, 1", "s_lshl_b32 s39, s39, 13", f"s_add_u32 s39, s39, {KV_V}", f"v_add_u32 v{Q_VA}, s39, v{t6}", f"v_add_u32 v{Q_VA+1}, 0x1000, v{Q_VA}")
    k(f"v_mov_b32 v{r1}, 0x80000000", f"v_cmp_gt_u32 vcc, 32, v0", f"v_mov_b32 v{r2}, {fl(QSCALE)}", "s_nop 0", f"v_cndmask_b32 v{Q_TS}, 1.0, v{r2}, vcc")
    k(f"v_lshlrev_b32 v{t6}, 9, v{q4}", f"v_lshl_add_u32 v{t6}, v{tk}, 3, v{t6}", f"v_add_u32 v{Q_STL}, {KV_QT}, v{t6}")
    k("s_cmp_eq_u32 s20, 3", "s_cselect_b64 vcc, -1, 0", f"v_cndmask_b32 v{Q_A2}, v{V_L16}, v{r1}, vcc")
    k("s_lshl_b32 s38, s22, 2", "s_add_u32 s38, s38, s20", f"s_mul_i32 s38, s38, {72*1024}", f"s_add_u32 s38, s38, {hx(WS_WQ)}"); add64(k, 4, S_WS, 38); srd_fill(k, 4, 72 * 1024)
    k("s_lshl_b32 s38, s21, 3", "s_add_u32 s38, s38, s22", f"s_mul_i32 s38, s38, {KVB}", "s_add_u32 s38, s38, s3"); add64(k, 16, S_WS, 38); srd_fill(k, 16, KVB)
    k("s_mov_b32 s26, 0", "s_mov_b32 s29, 0x3f803f80", f"s_mov_b32 s28, {fl(QSCALE)}")
def ln_write(k, i, X, XW):
    off = i * 4096
    if i == 16: k(f"v_add_u32 v{XW}, 0x10000, v{XW}")
    k(f"ds_write_b128 v{XW}, {v(X+4*i,4)} offset:{off if off < 65536 else off - 65536}")
def q_bread(ks): return [f"ds_read_b128 {v(Q_B + 16*(ks&1) + 4*tb, 4)}, v{Q_BR1 if ks >= 9 else V_L16} offset:{((4*ks+tb) % 36)*1024}" for tb in range(4)]
def q_lnq(i, pk):
    kk = Kern("t"); kk(ln_apply(Q_X, Q_LT, i, pk=pk)); ln_write(kk, i, Q_X, Q_XW); return kk.L
def q_loop(k, na, q, extra, chunk=True):
    k(q_bread(0))
    fill = [[] for _ in range(18 * 16)]
    for c in ((1, 2) if chunk is True else ()):
        ops = [x for i in range(6 * c, 6 * c + 6) for x in q_lnq(i, False)]
        g0 = 96 * (c - 1)
        gaps = [g for g in range(g0, g0 + 80) if g % 4 in (1, 3)]
        for n, x in enumerate(ops): fill[gaps[n * len(gaps) // len(ops)]].append(x)
    for ks in range(18):
        need = 4 * ks + 3
        assert need < na, (ks, na)
        if chunk == "dma" and ks in (5, 11) and f"X{ks+6}" in q and (need not in q or q.index(need) < q.index(f"X{ks+6}")): need = f"X{ks+6}"
        if need in q:
            w = len(q) - 1 - q.index(need); q = q[q.index(need) + 1:]
            k(f"s_waitcnt vmcnt({min(63, w)}) lgkmcnt(0)")
        else: k("s_waitcnt lgkmcnt(0)")
        if ks in (5, 11) and chunk: k("s_barrier")
        br = q_bread(ks + 1) if ks < 17 else []
        for tb in range(4):
            for ht in range(4):
                ac = v(Q_AC + 16*ht + 4*tb, 4)
                k(f"v_mfma_f32_16x16x32_bf16 {ac}, {BREG(4*ks+ht)}, {v(Q_B + 16*(ks&1) + 4*tb, 4)}, {'0' if ks == 0 else ac}")
                if tb < 2 and ht in (0, 1) and br: k(br[2 * tb + ht])
                if ht == 2 and na < 72 and len(q) < 44: k(q_aload(na)); q.append(na); na += 1
                k(fill[16 * ks + 4 * tb + ht])
        for fn, nv in extra.get(ks, []):
            fn(); q += ["x"] * nv
def q_epi(k):
    st(k, "qkv_mfma")
    P = Q_X
    k("s_cmp_ge_u32 s20, 2", "s_cbranch_scc1 q_epi2", "s_cmp_lg_u32 s20, 0", "s_cbranch_scc1 q_noscale", "s_nop 3")
    for i in range(64): k(f"v_mul_f32 v{Q_AC+i}, s28, v{Q_AC+i}")
    k.label("q_noscale")
    k("s_nop 3")
    for pr in range(2):
        for tb in range(4):
            O = P + 16 * pr + 4 * tb
            for h in range(2):
                for d in range(2): k(f"v_cvt_pk_bf16_f32 v{O+2*h+d}, v{Q_AC+16*(2*pr+h)+4*tb+2*d}, v{Q_AC+16*(2*pr+h)+4*tb+2*d+1}")
        for tb in range(4):
            O = P + 16 * pr + 4 * tb
            for d in range(2): k(f"v_permlane16_swap_b32 v{O+d}, v{O+2+d}")
        for tb in range(4):
            k(f"buffer_store_dwordx4 {v(P+16*pr+4*tb,4)}, v{Q_SQ}, s[16:19], s{40 + 2*pr + (tb>>1)} offen offset:{256*(tb&1)} {SC}")
    k("s_branch q_epid")
    k.label("q_epi2")
    k("s_cmp_eq_u32 s20, 3", "s_cbranch_scc1 q_epi3", "s_nop 5")
    def vtile(ht):
        for tb in range(4):
            O = P + 8 * ht + 2 * tb
            for d in range(2): k(f"v_cvt_pk_bf16_f32 v{O+d}, v{Q_AC+16*ht+4*tb+2*d}, v{Q_AC+16*ht+4*tb+2*d+1}")
            k(f"ds_write_b64 v{Q_VW}, {v(O,2)} offset:{tb*16*144 + 32*ht}")
    def vread(ht):
        for pr in range(2):
            for e in range(2): k(f"ds_read_b64_tr_b16 {v(Q_AC+8*ht+4*pr+2*e,2)}, v{Q_VR} offset:{pr*32*144 + e*8*144 + 32*ht}")
    def vstore(ht, va=None):
        for pr in range(2): k(f"buffer_store_dwordx4 {v(Q_AC+8*ht+4*pr,4)}, v{Q_VA + ht//2}, s[16:19], 0 offen offset:{(ht&1)*2048 + pr*1024} {SC}")
    for ht in range(4): vtile(ht)
    k("s_waitcnt lgkmcnt(0)")
    for ht in range(4):
        vread(ht)
        if ht == 1: k("s_waitcnt lgkmcnt(4)"); vstore(0, Q_VA)
    for ht in range(1, 4): k(f"s_waitcnt lgkmcnt({4*(3-ht)})"); vstore(ht, Q_VA + ht)
    k("s_branch q_epid")
    k.label("q_epi3")
    k("s_nop 5")
    vtile(0)
    for tb in range(4):
        for i in range(4): k(f"v_mul_f32 v{Q_AC+16+4*tb+i}, v{Q_TS}, v{Q_AC+16+4*tb+i}")
    k("s_waitcnt lgkmcnt(0)")
    vread(0)
    for a_ in range(2):
        for h in range(2):
            for x in range(2): k(f"v_cvt_pk_bf16_f32 v{P+8+4*a_+2*h+x}, v{Q_AC+16+4*(a_+2*x)+2*h}, v{Q_AC+16+4*(a_+2*x)+2*h+1}")
    k(f"v_mov_b32 v{P+16}, 0x3f803f80", f"v_and_b32 v{P+17}, 8, v0", f"v_cmp_eq_u32 vcc, 0, v{P+17}")
    for a_ in range(2):
        for h in range(2): k(f"buffer_store_dwordx2 {v(P+8+4*a_+2*h,2)}, v{Q_STL}, s[16:19], 0 offen offset:{256*h + 128*a_} {SC}")
    k("s_waitcnt lgkmcnt(0)")
    for i in range(8): k(f"v_cndmask_b32 v{Q_AC+i}, v{P+16}, v{Q_AC+i}, vcc")
    vstore(0)
    k.label("q_epid")

def startup(k):
    k("s_cmp_ge_u32 s2, 256", "s_cbranch_scc1 mega_done")
    if STAMP[0]: k("s_memrealtime s[56:57]")
    k(f"s_load_dwordx4 s[28:31], s[0:1], 0", f"s_load_dwordx2 s[32:33], s[0:1], {A_WO*8}", f"s_load_dwordx4 s[60:63], s[0:1], {A_WG*8}",
      f"s_load_dwordx4 s[48:51], s[0:1], {A_WD*8}", f"s_load_dwordx4 s[52:55], s[0:1], {A_DBG*8}")
    k("v_lshrrev_b32 v1, 6, v0", "v_and_b32 v0, 63, v0", "v_readfirstlane_b32 s20, v1", f"v_lshlrev_b32 v{V_L16}, 4, v0", "s_mov_b32 s3, 0")
    if STAMP[0]: k(f"v_mov_b32 v{V_STAMP}, 0")
    if int(OPT.get("cpf", 1)):
        k("s_cmp_lg_u32 s20, 3", "s_cbranch_scc1 no_cpf", "s_getpc_b64 s[34:35]")
        k.label("cpf_base")
        k("s_lshr_b32 s36, s2, 3", "s_mul_i32 s36, s36, 18", "v_add_u32 v4, s36, v0", f"v_and_b32 v4, 1023, v4", "v_lshlrev_b32 v4, 7, v4", "v_mov_b32 v7, s35")
        k("v_min_u32 v6, mega_done-cpf_base, v4", "v_add_co_u32 v2, vcc, s34, v6", "s_nop 1", "v_addc_co_u32 v3, vcc, 0, v7, vcc", "global_load_dword v5, v[2:3], off ; WAWOK")
        k.label("no_cpf")
    wgmap(k, int(OPT.get("q0map", 2)))
    T = 16
    q4, tk, tok, t3, t4, t5, t6, t7, tmp, t9 = range(T, T + 10)
    DQ, DO, TQ, TO = 32, 36, 38, 42
    k(f"v_lshrrev_b32 v{q4}, 4, v0", f"v_and_b32 v{tk}, 15, v0", "s_lshl_b32 s38, s20, 4", f"v_add_u32 v{tok}, s38, v{tk}")
    k(f"v_mul_u32_u24 v{Q_XL}, 1152, v{tok}", f"v_lshl_add_u32 v{Q_XL}, v{q4}, 4, v{Q_XL}")
    hi, c, u, h, col = t3, t4, t5, t6, t7
    k(f"v_lshrrev_b32 v{hi}, 5, v0", f"v_and_b32 v{c}, 31, v0", f"v_lshlrev_b32 v{tmp}, 1, v{hi}", f"v_sub_u32 v{c}, v{c}, v{tmp}")
    k(f"v_lshrrev_b32 v{u}, 1, v{c}", f"v_and_b32 v{h}, 1, v{c}")
    k(f"v_and_b32 v{col}, 3, v{u}", f"v_mul_u32_u24 v{col}, 36, v{col}", f"v_and_b32 v{tmp}, 1, v{u}", f"v_lshl_add_u32 v{col}, v{tmp}, 2, v{col}", f"v_lshl_add_u32 v{col}, v{h}, 4, v{col}")
    k(f"v_lshrrev_b32 v{tmp}, 2, v{u}", f"v_mul_u32_u24 v{tmp}, 1152, v{tmp}", f"v_add_u32 v{col}, v{col}, v{tmp}")
    k(f"v_subrev_u32 v{tmp}, 8, v{u}", f"v_mul_u32_u24 v{tmp}, 1152, v{tmp}", f"v_mul_u32_u24 v{t9}, 72, v{h}", f"v_add3_u32 v{tmp}, v{tmp}, v{t9}, 32")
    k(f"v_cmp_lt_u32 vcc, 7, v{u}", "s_nop 1", f"v_cndmask_b32 v{col}, v{col}, v{tmp}, vcc")
    k(f"v_lshlrev_b32 v{tmp}, 4, v{c}", f"v_add_u32 v{tmp}, {2304 - 320}, v{tmp}")
    k(f"v_cmp_lt_u32 vcc, 9, v{u}", "s_nop 1", f"v_cndmask_b32 v{col}, v{col}, v{tmp}, vcc")
    k(f"v_mul_u32_u24 v{tmp}, 3456, v{hi}", f"s_mul_i32 s42, s20, {8*3456}", f"v_add3_u32 v{col}, v{col}, v{tmp}, s42")
    k(f"v_mov_b32 v{t9}, 0x80000000", f"v_cmp_gt_u32 vcc, 29, v{c}", "s_nop 1", f"v_cndmask_b32 v{DQ}, v{t9}, v{col}, vcc")
    for i in range(1, 4): k(f"v_add_u32 v{DQ+i}, {i*(6912-1088)}, v{DQ}")
    k("s_sub_u32 s34, s2, 112", "s_lshr_b32 s35, s34, 3", "s_and_b32 s34, s34, 7", "s_movk_i32 s40, 6554")
    n_, lam, cc, t1, t2 = t3, t4, t5, t6, t7
    for x in range(2):
        if x == 0: k("s_lshl_b32 s41, s20, 6", f"v_add_u32 v{n_}, s41, v0")
        else: k(f"v_add_u32 v{n_}, 256, v0")
        k(f"v_mul_u32_u24 v{lam}, s40, v{n_}", f"v_lshrrev_b32 v{lam}, 16, v{lam}", f"v_mul_u32_u24 v{cc}, 10, v{lam}", f"v_sub_u32 v{cc}, v{n_}, v{cc}")
        k(f"v_lshrrev_b32 v{t1}, 4, v{lam}", f"v_lshl_add_u32 v{n_}, v{t1}, 1, v{lam}")
        k(f"v_bfe_u32 v{t2}, v{lam}, 2, 1", f"v_lshl_add_u32 v{t1}, v{t1}, 1, v{t2}", f"v_mul_u32_u24 v{t1}, 72, v{t1}")
        k(f"v_bfe_u32 v{t2}, v{lam}, 3, 1", f"v_mul_u32_u24 v{t2}, 36, v{t2}", f"v_add3_u32 v{t1}, v{t1}, v{t2}, 16", f"v_and_b32 v{t2}, 1, v{lam}", f"v_add_u32 v{t1}, v{t1}, v{t2}", f"v_bfe_u32 v{t2}, v{lam}, 1, 1", f"v_mul_u32_u24 v{t2}, 18, v{t2}", f"v_add_u32 v{t1}, v{t1}, v{t2}")
        k("s_cmp_lt_u32 s35, 16", "s_cselect_b64 vcc, -1, 0", f"v_cndmask_b32 v{t1}, v{t1}, v{n_}, vcc")
        k(f"v_mul_u32_u24 v{t1}, 1152, v{t1}", f"v_lshl_add_u32 v{t1}, v{cc}, 4, v{t1}", f"v_cmp_gt_u32 vcc, 9, v{cc}", "s_nop 1", f"v_cndmask_b32 v{DO+x}, v{t9}, v{t1}, vcc")
    k("s_cmp_eq_u32 s20, 0", "s_cselect_b64 vcc, -1, 0", f"v_cndmask_b32 v{DO+1}, v{t9}, v{DO+1}, vcc")
    k(f"s_mul_i32 s36, s35, {36*1152}", "s_sub_u32 s37, s35, 16", f"s_mul_i32 s37, s37, {288*1152}", "s_cmp_lt_u32 s35, 16", "s_cselect_b32 s36, s36, s37", "s_mul_i32 s37, s34, 144", "s_add_u32 s36, s36, s37")
    k("s_and_b32 s37, s2, 7", "s_mul_i32 s37, s37, 144", "s_lshr_b32 s39, s2, 3", f"s_mul_i32 s39, s39, {32*3456}", "s_add_u32 s37, s37, s39")
    srd_fill(k, 12, TILE)
    k(f"s_mul_i32 s39, s21, {TILE}")
    k("s_waitcnt lgkmcnt(0)")
    if STAMP[0]:
        k(f"v_writelane_b32 v{V_STAMP}, s56, 0"); NAMES.append("entry"); NST[0] += 1
    st(k, "kernarg")
    k(f"s_mov_b32 s{S_WS}, s54", f"s_mov_b32 s{S_WS+1}, s55", f"s_mov_b32 s{S_X}, s28", f"s_mov_b32 s{S_X+1}, s29", f"s_mov_b32 s{S_OUT}, s50", f"s_mov_b32 s{S_OUT+1}, s51")
    k("s_mov_b32 s4, s30", "s_mov_b32 s5, s31", "s_cmp_lt_u32 s2, 144", f"s_cselect_b32 s6, {D*3*D*2}, 0", "s_mov_b32 s7, 0x00020000")
    k("s_mov_b32 s8, s32", "s_mov_b32 s9, s33", "s_cmp_ge_u32 s2, 112", f"s_cselect_b32 s10, {D*D*2}, 0", "s_mov_b32 s11, 0x00020000")
    k("s_mul_i32 s40, s20, 4480", f"s_add_u32 m0, s40, {STG_Q}", "s_nop 0")
    for i in range(4): k(f"buffer_load_dwordx4 v{DQ+i}, s[4:7], s37 offen offset:{1088*i} lds")
    k("s_lshl_b32 s40, s20, 10", f"s_add_u32 m0, s40, {STG_O}", "s_nop 0", f"buffer_load_dwordx4 v{DO}, s[8:11], s36 offen lds")
    k("s_cmp_eq_u32 s20, 0", f"s_cselect_b32 m0, {STG_O + 4096}, 145920", "s_nop 0", f"buffer_load_dwordx4 v{DO+1}, s[8:11], s36 offen lds")
    if OPT.get("fine"): st(k, "p0_dmaq")
    add64(k, 12, S_X, 39)
    for i in range(18): k(f"buffer_load_dwordx4 {v(Q_X+4*i,4)}, v{Q_XL}, s[12:15], 0 offen offset:{64*i}")
    if OPT.get("fine"): st(k, "p0_xiss")
    k("s_mov_b32 s56, s52", "s_mov_b32 s57, s53"); srd_fill(k, 56, 256)
    k("s_or_b32 s38, s2, s20", "s_cmp_lg_u32 s38, 0", "s_cbranch_scc1 no_nonce")
    k("s_memrealtime s[38:39]", "s_waitcnt lgkmcnt(0)", "s_or_b32 s38, s38, 1", "s_mov_b64 exec, 1", "v_mov_b32 v9, 0", "v_mov_b32 v10, s38", "v_mov_b32 v11, s39")
    k(f"buffer_store_dwordx2 v[10:11], v9, s[56:59], 0 offen {SC}", "s_waitcnt vmcnt(0)", "s_mov_b64 exec, -1")
    k.label("no_nonce")
    k(f"s_add_u32 s{S_FL}, s{S_WS}, {hx(WS_F)}", f"s_addc_u32 s{S_FL+1}, s{S_WS+1}, 0"); srd_fill(k, S_FL, 12 * FT() + 5 * 8192)
    r4, c4 = t3, t4
    k(f"v_bfe_u32 v{r4}, v0, 2, 2", f"v_and_b32 v{c4}, 3, v0")
    k(f"v_mul_u32_u24 v{t5}, 4480, v{q4}", f"v_mul_u32_u24 v{t6}, 544, v{r4}", f"v_add3_u32 v{t5}, v{t5}, v{t6}, {STG_Q}".replace(f", {STG_Q}", ", 0"), f"v_add_u32 v{t5}, {STG_Q}, v{t5}", f"v_lshl_add_u32 v{t5}, v{c4}, 3, v{t5}")
    k("s_lshl_b32 s40, s20, 7", "s_cmp_ge_u32 s20, 2", "s_cselect_b32 s41, 64, 0", "s_add_u32 s40, s40, s41")
    k(f"v_add_u32 v{TQ}, s40, v{t5}", f"v_add_u32 v{TQ+1}, 32, v{TQ}", f"v_lshl_add_u32 v{t6}, v{c4}, 3, v{t5}", f"v_add_u32 v{t6}, 256, v{t6}")
    k("s_cmp_eq_u32 s20, 3", "s_cselect_b64 vcc, -1, 0", f"v_cndmask_b32 v{TQ+1}, v{TQ+1}, v{t6}, vcc")
    k(f"v_lshrrev_b32 v{t6}, 1, v{q4}", f"v_and_b32 v{t7}, 1, v{q4}", f"v_lshl_add_u32 v{tmp}, v{t7}, 2, v{r4}", f"v_lshl_add_u32 v{tmp}, v{t6}, 4, v{tmp}", f"v_mul_u32_u24 v{tmp}, 160, v{tmp}")
    k(f"v_lshl_add_u32 v{tmp}, v{c4}, 3, v{tmp}", f"v_add_u32 v{TO+1}, {STG_O + 128}, v{tmp}", "s_lshl_b32 s40, s20, 5", f"s_add_u32 s40, s40, {STG_O}", f"v_add_u32 v{TO}, s40, v{tmp}")
    k("s_and_b32 s40, s2, 7", "s_lshl_b32 s40, s40, 2", "s_add_u32 s40, s40, s20", f"s_mul_i32 s40, s40, {72*1024}", f"s_add_u32 s40, s40, {hx(WS_WQ)}")
    k("s_lshr_b32 s41, s2, 3", "s_lshl_b32 s41, s41, 12", "s_add_u32 s42, s41, 0x800", "s_cmp_eq_u32 s20, 3", "s_cselect_b64 vcc, -1, 0", f"v_cndmask_b32 v44, v{V_L16}, v{t9}, vcc")
    k(f"s_mul_i32 s43, s34, {90*1024}", f"s_add_u32 s43, s43, {hx(WS_WO)}", "s_mul_i32 s45, s35, 5120", "s_lshl_b32 s46, s20, 10", "s_add_u32 s46, s46, s45", "s_add_u32 s45, s45, 4096", "s_cmp_eq_u32 s20, 0", "s_cselect_b64 vcc, -1, 0", f"v_cndmask_b32 v45, v{t9}, v{V_L16}, vcc")
    k("s_mov_b32 s64, s62", "s_mov_b32 s65, s63", "s_mov_b64 s[72:73], s[48:49]", "s_lshr_b32 s74, s2, 3", "s_and_b32 s75, s2, 7")
    srd_fill(k, 60, D * F * 2); srd_fill(k, 64, D * F * 2)
    k("s_lshl_b32 s76, s75, 2", "s_add_u32 s76, s76, s20", f"s_mul_i32 s76, s76, {WFR*1024}", f"s_add_u32 s76, s76, {hx(WS_W)}"); add64(k, 68, S_WS, 76); srd_fill(k, 68, WFR * 1024)
    l8, l7 = t5, t6
    k(f"v_lshrrev_b32 v{l8}, 3, v0", f"v_and_b32 v{l7}, 7, v0", "s_lshl_b32 s76, s20, 3", f"v_add_u32 v{l8}, s76, v{l8}")
    k("s_and_b32 s76, s20, 1", "s_lshl_b32 s76, s76, 1", f"v_add_u32 v{tmp}, s76, v{t7}", f"v_lshlrev_b32 v{tmp}, 1, v{tmp}", f"v_xor_b32 v{tmp}, v{tmp}, v{l7}", f"v_lshlrev_b32 v{tmp}, 4, v{tmp}")
    k(f"v_mul_u32_u24 v{l8}, 9216, v{l8}", f"v_add_u32 v{V_PD}, v{tmp}, v{l8}")
    k(f"v_lshrrev_b32 v{tmp}, 1, v{r4}", f"v_lshl_add_u32 v{tmp}, v{t7}, 1, v{tmp}", f"v_xor_b32 v{tmp}, s20, v{tmp}", f"v_lshlrev_b32 v{tmp}, 5, v{tmp}", f"v_lshl_add_u32 v{tmp}, v{c4}, 3, v{tmp}", f"v_lshl_add_u32 v{tmp}, v{r4}, 7, v{tmp}")
    k(f"v_lshl_add_u32 v{V_PT0}, v{q4}, 10, v{tmp}")
    st(k, "p0_issued")
    k("s_waitcnt vmcnt(18)")
    if OPT.get("fine"): st(k, "p0_qland")
    k("s_barrier")
    if OPT.get("fine"): st(k, "p0_bar")
    PT = Q_AC
    for ht in range(4):
        for e in range(2):
            k(f"ds_read_b64_tr_b16 {v(PT+4*ht+2*e,2)}, v{TQ+1 if ht == 1 else TQ} offset:{e*2176 + (0 if ht == 1 else 32*ht)}")
    for x in range(2):
        for e in range(2): k(f"ds_read_b64_tr_b16 {v(PT+16+4*x+2*e,2)}, v{TO+x} offset:{e*1280}")
    add64(k, 4, S_WS, 40); k("s_cmp_lt_u32 s2, 144", f"s_cselect_b32 s6, {72*1024}, 0")
    add64(k, 8, S_WS, 43); k("s_cmp_ge_u32 s2, 112", f"s_cselect_b32 s10, {90*1024}, 0")
    k("s_waitcnt lgkmcnt(0)")
    for ht in range(4): k(f"buffer_store_dwordx4 {v(PT+4*ht,4)}, v{44 if ht >= 2 else V_L16}, s[4:7], s{41 + ht//2} offen offset:{1024*(ht&1)} {SC}")
    k(f"buffer_store_dwordx4 {v(PT+16,4)}, v{V_L16}, s[8:11], s46 offen {SC}", f"buffer_store_dwordx4 {v(PT+20,4)}, v45, s[8:11], s45 offen {SC}")
    st(k, "p0_prepst")
    q_setup(k)
    ln_stats_norm(k, Q_X, Q_LT, 29)
    if OPT.get("fine"): st(k, "p0_qsetup")
    for i in range(18):
        k(f"s_waitcnt vmcnt({17 - i + 6})"); k(ln_acc(Q_X, Q_LT, 29, i))
    st(k, "p0_stats")
    k("v_mov_b32 v9, 0", "s_mov_b32 s23, 0x10000")
    k.label("non_l")
    k(f"buffer_load_dwordx2 v[10:11], v9, s[56:59], 0 offen {SC}", "s_waitcnt vmcnt(0)", f"v_readfirstlane_b32 s{S_NON}, v10", f"v_readfirstlane_b32 s{S_NON+1}, v11",
      "s_sub_u32 s23, s23, 1", "s_cselect_b32 s24, 1, 0", f"s_or_b32 s24, s24, s{S_NON}", "s_cmp_eq_u32 s24, 0", "s_cbranch_scc1 non_l")
    k.label("non_d")
    publish(k, F_P0, layered=False, idx="phys")
    if OPT.get("fine"): st(k, "p0_pub")
    k("s_lshl_b32 s88, s20, 10")
    for rd in range(4): k(dma_round(rd, STG_F + 8192 * rd))
    if OPT.get("fine"): st(k, "p0_f0")
    ln_finish(k, Q_LT)
    for i in range(18): k(q_lnq(i, True))
    st(k, "p0_ln")
    k("s_waitcnt vmcnt(0) lgkmcnt(0)")
    wait(k, ["v_and_b32 v9, 31, v0", "v_min_u32 v9, 17, v9", "v_lshlrev_b32 v9, 3, v9", "s_bfe_u32 s23, s2, 0x30003", "s_add_u32 s23, s23, 112", "v_add_u32 v10, s23, v9", "v_add_u32 v9, s22, v9", "v_cmp_gt_u32 vcc, 32, v0", "s_nop 1", "v_cndmask_b32 v9, v10, v9, vcc", f"v_lshlrev_b32 v9, {FS[0]}, v9"])
    st(k, "p0_flags")
    N0 = int(OPT.get("n0", 12))
    for n in range(N0): k(q_aload(n))
    k("s_mov_b32 s14, 0")
    e1, e2 = int(OPT.get("e1", 17)), int(OPT.get("e2", 17))
    ex = {}
    FD = Q_X + 32
    def f0tr():
        k(f"v_add_u32 v{Q_T}, {STG_F}, v{V_PT0}", f"v_add_u32 v{Q_T+1}, 512, v{Q_T}")
        for rd in range(4):
            k(tr_round(FD + 8 * rd, Q_T, Q_T + 1, 8192 * rd))
            if rd == 1: k("s_waitcnt lgkmcnt(4)")
    ex.setdefault(12, []).append((f0tr, 0))
    for rd in range(4): ex.setdefault(e1 - 3 + rd, []).append((lambda rd=rd: k(st_round(rd, FD + 8 * rd)), 2))
    q_loop(k, N0, list(range(N0)), ex, chunk=False)
    k("s_branch q_epi")

def phase_qkv1(k):
    wgmap(k, int(OPT.get("q1map", 4)))
    q_setup(k)
    q4, tk = Q_T, Q_T + 1
    k("s_lshl_b32 s38, s20, 8", f"v_lshlrev_b32 v{Q_XL}, 10, v{q4}", f"v_lshl_add_u32 v{Q_XL}, v{tk}, 4, v{Q_XL}", f"v_add_u32 v{Q_XL}, s38, v{Q_XL}")
    k(f"s_mul_i32 s38, s21, {TILE}", f"s_add_u32 s38, s38, {hx(WS_XN)}"); add64(k, 8, S_WS, 38); srd_fill(k, 8, TILE)
    k("s_mov_b32 s27, 0", "s_lshl_b32 s38, s20, 10")
    NE = int(OPT.get("qne", 20))
    for n in range(NE): k(q_aload(n))
    wait(k, tile_flags(F_RED, prev_layer=True), pw=int(OPT.get("qpw", 3)))
    st(k, "q1_flags")
    for i in range(18):
        k(f"s_add_u32 m0, s38, {4096*i}", "s_nop 0" if i == 0 else "s_add_u32 s27, s27, 0x1000", f"buffer_load_dwordx4 v{Q_XL}, s[8:11], s27 offen {SC} lds")
    k("s_waitcnt vmcnt(12)", "s_barrier")
    st(k, "q1_x0")
    q_loop(k, NE, [f"X{i}" for i in range(6, 18)], {}, chunk="dma")

import k_att2 as AT
def phase_att(k):
    A = AT; T = A.V_T; SO = A.SO
    wgmap(k, 1)
    k(f"v_and_b32 v{T}, 31, v0", f"v_lshrrev_b32 v{T+1}, 5, v0")
    bias = [8, 9, 10, 11, 87]
    for i in range(5):
        k(f"s_add_i32 s23, s21, {i-4}", f"s_cmp_lt_i32 s23, 0", f"s_cselect_b32 s{bias[i]}, {A.NEG}, 0", "s_max_i32 s23, s23, 0",
          "s_lshl_b32 s23, s23, 3", "s_add_u32 s23, s23, s22", f"s_mul_i32 s{SO+i}, s23, {KVB}")
    k("s_lshl_b32 s15, s20, 11", f"v_add_u32 v{A.V_QMO}, s15, v{V_L16}", f"v_add_u32 v{A.V_KM}, {KV_KM}, v{A.V_QMO}")
    k("s_lshl_b32 s25, s20, 8", f"v_lshlrev_b32 v{A.V_KT}, 3, v{T}", f"v_add_u32 v{A.V_KT}, s25, v{A.V_KT}")
    k(f"v_mov_b32 v{T+3}, 0x80000000", f"v_cmp_gt_u32 vcc, 32, v0", f"v_add_u32 v{T+4}, {KV_QT}, v{A.V_KT}", f"v_add_u32 v{A.V_KT}, {KV_KT}, v{A.V_KT}")
    k(f"v_cndmask_b32 v{A.V_QT}, v{T+3}, v{T+4}, vcc", f"v_lshlrev_b32 v{T+4}, 2, v0", f"v_cndmask_b32 v{A.V_ST}, v{T+3}, v{T+4}, vcc")
    add64(k, 4, S_WS, 3); srd_fill(k, 4, 256 * KVB)
    k(f"v_mov_b32 v{T+9}, 0x3f80", f"v_mov_b32 v{T+8}, 0")
    for t in range(2):
        for p_ in range(2):
            q = A.V_Q1 + 8 * t + 4 * p_
            k(f"v_mov_b32 v{q + 1 - p_}, 0", f"v_cndmask_b32 v{q+2}, 0, v{T+9}, vcc", f"v_mov_b32 v{q+3}, 0")
    for i in range(5): k(f"v_mov_b32 v{T+9}, s{bias[i]}", f"v_accvgpr_write_b32 {a(A.A_K+12*i+3)}, v{T+8}", f"v_accvgpr_write_b32 {a(A.A_K+12*i+2)}, v{T+9}")
    k("s_mul_i32 s25, s20, 18", f"v_add_u32 v{T+4}, s25, v{T}", f"v_cmp_eq_u32 vcc, 18, v{T}", f"v_mov_b32 v{T+5}, 72", "s_nop 0", f"v_cndmask_b32 v{T+4}, v{T+4}, v{T+5}, vcc")
    k(f"v_lshrrev_b32 v{T+5}, 4, v{T+4}", f"v_and_b32 v{T+4}, 15, v{T+4}", f"v_lshlrev_b32 v{T+4}, 4, v{T+4}", f"v_lshl_add_u32 v{T+4}, v{T+5}, 11, v{T+4}", f"v_lshl_add_u32 v{T+4}, v{T+1}, 8, v{T+4}", f"v_add_u32 v{T+4}, {KV_V}, v{T+4}", f"v_cmp_gt_u32 vcc, 19, v{T}")
    k(f"v_lshlrev_b32 v{A.V_D4}, 2, v{T+1}", f"v_sub_u32 v{A.V_D4}, v{T}, v{A.V_D4}", f"v_cndmask_b32 v{A.V_VV}, v{T+3}, v{T+4}, vcc")
    for i in range(16): k(f"v_cmp_le_i32 s[{A.MSK+2*i}:{A.MSK+2*i+1}], {8*(i//4) + i%4}, v{A.V_D4}")
    k(f"v_mov_b32 v{T+9}, 0xffff")
    for d in range(8): k(f"v_cndmask_b32 v{A.V_MK+d}, 0, v{T+9}, s[{A.MSK+4*d}:{A.MSK+4*d+1}]")
    for d in range(8): k(f"v_cndmask_b32 v{A.V_MK+d}, v{A.V_MK+d}, -1, s[{A.MSK+4*d+2}:{A.MSK+4*d+3}]")
    k(f"s_mul_i32 s23, s21, {TILE}", "s_add_u32 s23, s23, s3", f"s_add_u32 s23, s23, {hx(WS_O)}"); add64(k, 16, S_WS, 23); srd_fill(k, 16, TILE)
    k("s_lshl_b32 s88, s22, 13", "s_add_u32 s88, s88, s15")
    k(f"v_lshlrev_b32 v{A.V_SO}, 4, v{T}", f"v_lshl_add_u32 v{A.V_SO}, v{T+1}, 10, v{A.V_SO}")
    k("s_add_u32 s89, s22, 64", "s_lshl_b32 s89, s89, 10", "s_lshl_b32 s23, s20, 8", "s_add_u32 s89, s89, s23")
    for i in range(4): k(f"v_mov_b32 v{A.V_MX+i}, 0xff7fffff")
    k("s_bfe_u32 s23, s2, 0x30003", f"s_mul_i32 s23, s23, {90*1024}", f"s_add_u32 s23, s23, {hx(WS_WO)}"); add64(k, 8, S_WS, 23); srd_fill(k, 8, 90 * 1024)
    st(k, "att_setup")
    wait(k, ["v_min_u32 v9, 4, v0", "s_sub_u32 s23, s21, 4", "v_add_u32 v9, s23, v9", "v_max_i32 v9, 0, v9", "v_lshlrev_b32 v9, 3, v9", "v_add_u32 v9, s22, v9", f"v_lshlrev_b32 v9, {FS[0]}, v9",
             f"s_add_u32 s23, s14, {F_QKV*FT()}", "v_add_u32 v9, s23, v9"])
    st(k, "att_flags")
    kk = Kern("t")
    if int(OPT.get("jt", 1)):
        kk("s_mov_b32 s26, 0", "s_mov_b32 s27, 0x00020000", "s_mov_b64 s[24:25], s[60:61]", "s_mov_b64 s[12:13], s[60:61]", "s_cmp_lg_u32 s3, 0", "s_cbranch_scc1 att_notouch")
        kk("s_lshl_b32 s76, s20, 5", "s_add_u32 s76, s76, s74", "s_add_u32 s76, s76, 128", "s_sub_u32 s77, s76, 162", "s_lshl_b32 s77, s77, 1", "s_cmp_lt_u32 s76, 162", "s_cselect_b32 s76, s76, s77",
          f"s_cselect_b32 s77, 9216, 1152", f"s_cselect_b32 s80, 1152, {576*1152}", f"s_cselect_b32 s81, 0, {32*1152}", "s_cselect_b64 s[24:25], s[60:61], s[72:73]", "s_cselect_b64 s[12:13], s[64:65], s[72:73]")
        kk(div18(76, 78, 79), "s_lshl_b32 s79, s79, 5", "s_mul_i32 s79, s79, s77", "s_lshl_b32 s78, s78, 7", "s_add_u32 s78, s78, s79", "s_mul_i32 s79, s75, s80", "s_add_u32 s78, s78, s79", "s_add_u32 s81, s81, s78")
        kk(f"s_mov_b32 s26, {hx(D*F*2)}", "att_notouch:", "v_and_b32 v9, 31, v0", "v_mul_u32_u24 v9, s77, v9")
        kk("buffer_load_dword v10, v9, s[24:27], s78 offen", "s_mov_b64 s[24:25], s[12:13]", "buffer_load_dword v11, v9, s[24:27], s81 offen")
    A.body(k, st, SC, kk.L)
def wo_dma(k):
    o = [["s_mul_i32 s26, s20, 23552", f"s_add_u32 s27, s26, {WOIMG}"]]
    for g in range(6):
        o.append(["s_mov_b32 m0, s27", "s_add_u32 s27, s27, 0x1000", f"buffer_load_dwordx4 v{V_L16}, s[8:11], s26 offen {SC} lds"])
        for i in range(1, 4 if g < 5 else 3): o.append(f"buffer_load_dwordx4 v{V_L16}, s[8:11], s26 offen offset:{1024*i} {SC} lds")
        o[-1] = [o[-1], "s_add_u32 s26, s26, 0x1000"]
    o[-2] = ["s_cmp_eq_u32 s20, 3", "s_cbranch_scc1 wo_dsk", o[-2]]; o[-1] = [o[-1][0], "wo_dsk:"]
    return o

W_XL, W_A0, W_A1, W_RL, W_SP, W_S8, W_T, W_AC, W_R, W_AF, W_B = 2, 3, 4, 5, 6, 7, 16, 36, 56, 184, 108
def phase_wo(k):
    wgmap(k, 8)
    T = W_T; q4, tk, tok, n, lam, c, t1, t2 = range(T, T + 8)
    k(f"v_lshrrev_b32 v{q4}, 4, v0", f"v_and_b32 v{tk}, 15, v0", "s_lshl_b32 s38, s20, 4", f"v_add_u32 v{tok}, s38, v{tk}")
    k(f"v_lshlrev_b32 v{W_XL}, 10, v{q4}", f"v_lshl_add_u32 v8, v{tok}, 2, v{W_XL}", f"v_lshl_add_u32 v{W_XL}, v{tok}, 4, v{W_XL}")
    k(f"s_mul_i32 s39, s21, {TILE}", "s_add_u32 s41, s39, s3", f"s_add_u32 s42, s41, {hx(WS_O)}"); add64(k, 4, S_WS, 42); srd_fill(k, 4, TILE)
    k(f"s_add_u32 s42, s{S_WS}, {hx(WS_X2)}", f"s_addc_u32 s43, s{S_WS+1}, 0", "s_cmp_eq_u32 s3, 0", f"s_cselect_b32 s8, s{S_X}, s42", f"s_cselect_b32 s9, s{S_X+1}, s43", "s_cselect_b64 vcc, -1, 0", "s_cselect_b32 s36, 32, 2048")
    k("s_mul_i32 s46, s22, 9216", "s_mul_i32 s37, s22, 144", "s_cselect_b32 s45, s37, s46")
    k("s_add_u32 s8, s8, s39", "s_addc_u32 s9, s9, 0"); srd_fill(k, 8, TILE)
    k(f"v_mul_u32_u24 v{t1}, 1152, v{tok}", f"v_lshl_add_u32 v{t1}, v{q4}, 3, v{t1}")
    k(f"v_lshrrev_b32 v{n}, 1, v{q4}", f"v_and_b32 v{lam}, 1, v{q4}")
    k(f"v_lshlrev_b32 v{t2}, 4, v{tok}", f"v_lshl_add_u32 v{c}, v{lam}, 3, v{t2}", f"v_lshl_add_u32 v{c}, v{n}, 10, v{c}")
    k(f"v_cndmask_b32 v{W_RL}, v{c}, v{t1}, vcc")
    for ht in range(5):
        k(f"buffer_load_dwordx2 {v(W_R+2*ht,2)}, v{W_RL}, s[8:11], s45 offen {SC}")
        if ht < 4: k("s_add_u32 s45, s45, s36")
    k(f"v_add_u32 v{W_A0}, {WOIMG}, v{V_L16}", f"v_add_u32 v{W_A1}, {WOIMG + 61440}, v{V_L16}")
    k(f"v_lshl_add_u32 v{t1}, v{lam}, 1, v{n}", f"v_lshl_add_u32 v{W_SP}, v{t1}, 10, v{t2}")
    k(f"v_lshl_add_u32 v{t1}, v{q4}, 3, v{t2}", f"v_add_u32 v{t1}, 8192, v{t1}", f"v_mov_b32 v{c}, 0x80000000", f"v_cmp_gt_u32 vcc, 2, v{q4}", "s_nop 1", f"v_cndmask_b32 v{W_S8}, v{c}, v{t1}, vcc")
    k(f"s_add_u32 s42, s41, {hx(WS_X1)}"); add64(k, 16, S_WS, 42); srd_fill(k, 16, TILE)
    k("s_add_u32 s47, s46, 4096", "s_mov_b32 s40, 0", "s_mov_b32 s29, 0x3f803f80", f"v_cndmask_b32 v{W_T+12}, 0, -1, vcc")
    k(f"v_lshlrev_b32 v{t1}, 3, v{tok}", f"v_cmp_gt_u32 vcc, 16, v0", "s_lshl_b32 s42, s21, 3", "s_add_u32 s42, s42, s22", "s_lshl_b32 s42, s42, 9", "s_add_u32 s42, s42, s3", f"s_add_u32 s42, s42, {hx(WS_SS)}", f"v_cndmask_b32 v{W_T+13}, v{c}, v{t1}, vcc")
    add64(k, 8, S_WS, 42); srd_fill(k, 8, 512)
    def aread(ks): return [f"ds_read_b128 {v(W_AF + 20*(ks%3) + 4*ht, 4)}, v{W_A1 if ks >= 12 else W_A0} offset:{(5*ks+ht)*1024 - (61440 if ks >= 12 else 0)}" for ht in range(5)]
    st(k, "wo_setup")
    k("s_waitcnt vmcnt(0)")
    kk = Kern("t"); wgmap(kk, int(OPT.get("map", 2)), 34, 35)
    kk.L = [x.replace("s44", "s30").replace("s45", "s31").replace("s46", "s32").replace("s47", "s33") for x in kk.L]
    wait(k, tile_flags(F_ATT) + kk.L + ["v_and_b32 v10, 31, v0", "s_lshl_b32 s35, s35, 5", "v_add_u32 v10, s35, v10", "v_lshlrev_b32 v10, 3, v10", f"v_add_u32 v10, {F_PF*FT()}, v10",
                               "v_cmp_gt_u32 vcc, 32, v0", "s_nop 1", "v_cndmask_b32 v9, v10, v9, vcc"])
    st(k, "wo_flags")
    for i in range(18):
        if i < 16: k(f"buffer_load_dwordx4 {v(W_B+4*i,4)}, v{W_XL}, s[4:7], s40 offen {SC}")
        else:
            for d in range(4): k(f"buffer_load_dword v{W_B+4*i+d}, v8, s[4:7], s40 offen offset:{256*d} {SC}")
        if i < 17: k("s_add_u32 s40, s40, 0x1000")
    k("s_waitcnt lgkmcnt(0)")
    k(aread(0), aread(1))
    for ks in range(18):
        k(f"s_waitcnt vmcnt({15 - ks + 8 if ks < 16 else 4 * (17 - ks)}) lgkmcnt({5 if ks < 17 else 0})")
        ar = aread(ks + 2) if ks < 16 else []
        for ht in range(5):
            ac = v(W_AC + 4 * ht, 4)
            k(f"v_mfma_f32_16x16x32_bf16 {ac}, {v(W_AF + 20*(ks%3) + 4*ht, 4)}, {v(W_B+4*ks,4)}, {'0' if ks == 0 else ac}")
            if ar: k(ar[ht])
    k.label("wo_epi")
    st(k, "wo_mfma")
    for ht in range(5):
        for d in range(2):
            k(f"v_lshlrev_b32 v{T+4*(ht&1)+2*d}, 16, v{W_R+2*ht+d}", f"v_and_b32 v{T+4*(ht&1)+2*d+1}, 0xffff0000, v{W_R+2*ht+d}")
        if ht == 0: k("s_nop 3")
        for i in range(4): k(f"v_add_f32 v{W_AC+4*ht+i}, v{W_AC+4*ht+i}, v{T+4*(ht&1)+i}")
    P = W_B
    WO_STATS(k)
    for ht in range(0):
        for d in range(2): k(f"v_cvt_pk_bf16_f32 v{P+2*ht+d}, v{W_AC+4*ht+2*d}, v{W_AC+4*ht+2*d+1}")
    publish(k, F_WO)
    st(k, "wo_pub")

def WO_STATS(k):
    P = W_B; T = W_T + 8
    for ht in range(5):
        for d in range(2): k(f"v_cvt_pk_bf16_f32 v{P+2*ht+d}, v{W_AC+4*ht+2*d}, v{W_AC+4*ht+2*d+1}")
    k(f"v_and_b32 v{P+12}, v{P+8}, v{W_T+12}", f"v_and_b32 v{P+13}, v{P+9}, v{W_T+12}", f"v_mov_b32 v{T}, 0", f"v_mov_b32 v{T+2}, 0")
    for pr in range(2):
        for d in range(2): k(f"v_permlane16_swap_b32 v{P+4*pr+d}, v{P+4*pr+2+d}")
    k(f"buffer_store_dwordx4 {v(P,4)}, v{W_SP}, s[16:19], s46 offen {SC}", f"buffer_store_dwordx4 {v(P+4,4)}, v{W_SP}, s[16:19], s47 offen {SC}")
    k(f"buffer_store_dwordx2 {v(P+8,2)}, v{W_S8}, s[16:19], s46 offen {SC}")
    for x in list(range(P, P + 8)) + [P + 12, P + 13]:
        k(f"v_dot2c_f32_bf16 v{T}, s29, v{x}", f"v_dot2c_f32_bf16 v{T+2}, v{x}, v{x}")
    k("s_nop 2")
    xlane(k, T, (16, 32))
    k(f"v_mov_b32 v{T+1}, v{T+2}", f"buffer_store_dwordx2 {v(T,2)}, v{W_T+13}, s[8:11], 0 offen {SC}")
def phase_ffn(k):
    F_ = FF; mp = int(OPT.get("map", 2)); late = int(OPT.get("late", 8))
    wgmap(k, mp)
    k("s_mov_b32 s29, 0x3f803f80")
    t0, t1, t2, t5, t6 = 64, 65, 66, 67, 68
    k(f"v_lshrrev_b32 v{t0}, 4, v0", f"v_and_b32 v{t1}, 15, v0", "s_lshl_b32 s38, s20, 8")
    k(f"v_lshlrev_b32 v{t2}, 10, v{t0}", f"v_lshl_add_u32 v{t2}, v{t1}, 4, v{t2}", f"v_add_u32 v{F_.V_XL}, s38, v{t2}")
    k(f"s_mul_i32 s39, s21, {TILE}", "s_add_u32 s39, s39, s3", f"s_add_u32 s39, s39, {hx(WS_X1)}"); add64(k, 8, S_WS, 39); srd_fill(k, 8, TILE)
    k("s_lshl_b32 s24, s22, 2", "s_add_u32 s24, s24, s20", f"s_mul_i32 s24, s24, {WFR*1024}", f"s_add_u32 s24, s24, {hx(WS_W)}"); add64(k, 4, S_WS, 24); srd_fill(k, 4, WFR * 1024)
    k("s_lshl_b32 s41, s22, 5", "s_add_u32 s41, s41, s21", f"s_mul_i32 s41, s41, {TILE}", "s_add_u32 s41, s41, s3", f"s_add_u32 s41, s41, {hx(WS_P)}"); add64(k, 16, S_WS, 41); srd_fill(k, 16, TILE)
    k("s_mov_b32 s27, 0", "s_mov_b32 s40, 0")
    k(f"v_and_b32 v{t6}, 1, v{t0}", f"v_lshrrev_b32 v{t5}, 1, v{t0}", f"v_add_u32 v{F_.V_XR1}, 36864, v{V_L16}")
    k("s_lshr_b32 s41, s20, 1", "s_lshl_b32 s41, s41, 12", "s_and_b32 s42, s20, 1", "s_lshl_b32 s42, s42, 3", "s_add_u32 s41, s41, s42")
    k(f"v_add_u32 v{F_.V_HW}, s41, v{V_L16}")
    k("s_lshl_b32 s41, s20, 10", f"v_add_u32 v{F_.V_XW}, s41, v{V_L16}")
    k(f"v_lshlrev_b32 v{F_.V_ST}, 10, v{t5}", f"v_lshl_add_u32 v{F_.V_ST}, v{t6}, 8, v{F_.V_ST}", f"v_lshl_add_u32 v{F_.V_ST}, v{t1}, 4, v{F_.V_ST}")
    k("s_lshl_b32 s41, s20, 11", f"v_add_u32 v{F_.V_ST}, s41, v{F_.V_ST}", f"v_mov_b32 v{F_.V_C2}, {fl(F_.C2)}")
    k("s_cmp_eq_u32 s3, 0", "s_cselect_b32 s31, 0, 0x4000", "s_lshl_b32 s30, s21, 9", "s_add_u32 s31, s31, s30", f"s_add_u32 s31, s31, {12*FT()}")
    k("s_lshl_b32 s30, s22, 2", "s_add_u32 s30, s30, s20", "s_lshl_b32 s30, s30, 3", "s_add_u32 s30, s30, s31")
    k("s_lshl_b32 s42, s21, 12", "s_add_u32 s42, s42, s3", f"s_add_u32 s42, s42, {hx(WS_SS)}"); add64(k, 32, S_WS, 42); srd_fill(k, 32, 4096)
    k("s_lshl_b32 s42, s20, 7", f"v_lshlrev_b32 v{t2}, 3, v{t1}", f"v_lshl_add_u32 v{t2}, v{t0}, 10, v{t2}", f"v_add_u32 v{t2}, s42, v{t2}")
    k("s_mov_b32 s23, 0")
    F4.preload(k)
    k("s_mov_b32 s26, s23")
    k("s_cmp_lg_u32 s3, 0", "s_cbranch_scc1 ffn_nojs")
    js = jit_setup()
    k([x for x in js if x.startswith("s_") and "vcc" not in x and not x.startswith("s_lshl_b32 s76")])
    for n_, rd in enumerate(range(4, 8)):
        g_ = dma_round(rd, 0); pre = g_[0][:-3]; o2 = "s78" if rd <= 4 else "s77"
        k(pre, f"s_mov_b32 s{44+3*n_}, s78", f"s_mov_b32 s{45+3*n_}, {o2}", f"s_add_u32 s76, s74, {32*rd}", f"s_lshl_b32 s{46+3*n_}, s76, 11")
    k("s_cmp_lt_u32 s76, 243", f"s_cselect_b32 s56, {WFR*1024}, 0")
    k.label("ffn_nojs")
    wait(k, tile_flags(F_WO))
    st(k, "ffn_flags")
    if int(OPT.get("touch", 0)):
        per = 18 * mp * (1 if int(OPT["touch"]) == 1 else 1)
        k(f"s_mul_i32 s41, s44, {per}", "v_add_u32 v11, s41, v0", "v_lshlrev_b32 v11, 7, v11", f"v_cmp_gt_u32 vcc, {per}, v0", "v_mov_b32 v5, 0x80000000", f"s_mov_b32 s49, {int(OPT.get('tch0', 3)) * TILE}", "v_cndmask_b32 v11, v5, v11, vcc")
    k("s_mov_b32 s23, s26")
    LT = F_.V_LT
    k(f"buffer_load_dwordx2 {v(LT+8,2)}, v{t2}, s[32:35], 0 offen {SC}", f"buffer_load_dwordx2 {v(LT+10,2)}, v{t2}, s[32:35], 0 offen offset:512 {SC}")
    XS = int(OPT.get("xs", 8))
    def xl(i): return [f"buffer_load_dwordx4 {v(F_.V_X+4*i,4)}, v{F_.V_XL}, s[8:11], s40 offen {SC}"] + (["s_add_u32 s40, s40, 0x1000"] if i < 17 else [])
    for i in range(XS): k(xl(i))
    k(f"s_waitcnt vmcnt({XS})", f"v_add_f32 v{LT}, v{LT+8}, v{LT+10}", f"v_add_f32 v{LT+2}, v{LT+9}, v{LT+11}")
    kk = Kern("t"); xlane(kk, LT, (16, 32)); ln_fin2(kk, LT)
    k(merge(kk.L, [xl(i) for i in range(XS, 18)]))
    st(k, "ffn_stats")
    def lnq(i):
        kk = Kern("t"); kk(ln_apply(F_.V_X, F_.V_LT, i, pk=(i < 6))); ln_write(kk, i, F_.V_X, F_.V_XW); return kk.L
    F4.group0(k, lnq)
    st(k, "ffn_g0")
    PG = int(OPT.get("peel", 0))
    k(f"s_mov_b32 s25, {4 - PG}", "s_mov_b32 s26, 99", "s_cmp_lg_u32 s3, 0", "s_cbranch_scc1 ffn_loopA_odd")
    JD = 200
    x1 = {2: [x for x in jit_setup() if x.startswith("v_") or "vcc" in x or x.startswith(("s_lshl_b32 s76", "s_cmp_lt_u32 s74"))]}
    import re as _re
    for n_, rd in enumerate(range(4, 8)):
        g_ = dma_round(rd, STG_J + 8192 * n_)
        a0 = g_[0][-3:]; a1 = g_[1]
        x1[4 * (6 + 7 * n_)] = [a0[0]]; x1[4 * (6 + 7 * n_) + 1] = [a0[2].replace("s78 offen", f"s{44+3*n_} offen")]
        x1[4 * (9 + 7 * n_)] = [a1[0]]; x1[4 * (9 + 7 * n_) + 1] = [_re.sub(r"s7[78] offen", f"s{45+3*n_} offen", a1[2])]
    F4.groupA(k, 1, x1)
    x2 = {4 * 13 + 1: ["s_barrier"]}
    for n_, rd in enumerate(range(4, 8)):
        sel = 0 if rd == 4 else (2 if rd == 5 else 1)
        for e_, op in enumerate(tr_round(JD + 8 * n_, J_T0 + sel, J_T1 + sel, 8192 * n_)): x2[4 * (14 + 2 * n_ + e_ // 2) + 2 * (e_ % 2)] = [op]
        g_ = st_round(rd, JD + 8 * n_)
        x2[4 * (24 + 3 * n_) + 1] = (["s_waitcnt lgkmcnt(0)"] if n_ == 0 else []) + (["s_mov_b32 s70, s56"] if rd == 7 else []) + [g_[0][-1].replace("s78", f"s{46+3*n_}")]
        x2[4 * (25 + 3 * n_) + 1] = [g_[1][0].replace("s78", f"s{46+3*n_}")]
    F4.groupA(k, 2, x2)
    x3 = {4 * 18 + 1: ["s_lshl_b32 s76, s2, 2", "s_add_u32 s76, s76, s20", "s_lshl_b32 s76, s76, 3", f"s_add_u32 s76, s76, {FPJ()}", "s_mov_b64 exec, 1", "v_mov_b32 v9, 0", f"v_mov_b32 v10, s{S_NON}", f"v_mov_b32 v11, s{S_NON+1}",
                        f"buffer_store_dwordx2 v[10:11], v9, s[{S_FL}:{S_FL+3}], s76 offen {SC}", "s_mov_b64 exec, -1"]}
    F4.groupA(k, 3, x3)
    k(f"s_mov_b32 s25, {2 - PG}", f"s_mov_b32 s26, {2 - PG}", "v_and_b32 v9, 31, v0", "v_lshlrev_b32 v9, 3, v9", "v_add_u32 v9, s22, v9", "v_lshlrev_b32 v9, 2, v9", "v_add_u32 v9, s20, v9", "v_lshlrev_b32 v9, 3, v9", f"v_add_u32 v9, {FPJ()}, v9")
    k.label("ffn_loopA")
    F4.groupA(k, 2)
    k.label("ffn_loopA_odd")
    pl = f"buffer_load_dwordx2 v[10:11], v9, s[{S_FL}:{S_FL+3}], 0 offen {SC}"
    xo = {1: ["s_cmp_lg_u32 s25, s26", "s_cbranch_scc1 jit_p0", pl + " ; COND", "jit_p0:"],
          4 * 22 + 1: ["s_cmp_lg_u32 s25, s26", "s_cbranch_scc1 jit_p1", "s_mov_b32 s76, 0x10000", "jit_l:", f"v_cmp_ne_u64 vcc, s[{S_NON}:{S_NON+1}], v[10:11]", "s_sub_u32 s76, s76, 1", "s_cselect_b64 s[78:79], 0, -1", "s_nop 1",
                       "s_and_b64 vcc, vcc, s[78:79]", "s_cbranch_vccz jit_p1", pl + " ; COND", "s_waitcnt vmcnt(0)", "s_branch jit_l", "jit_p1:"]}
    F4.groupA(k, 1, xo)
    k("s_sub_u32 s25, s25, 1", "s_cmp_lg_u32 s25, 0", "s_cbranch_scc1 ffn_loopA")
    if PG: F4.groupA(k, 6); F4.groupA(k, 7)
    k(f"s_mul_i32 s50, s20, {17*1024}", f"s_add_u32 s50, s50, {F4.RES}", f"v_add_u32 v5, s50, v{V_L16}", "s_sub_u32 s50, s50, 4096")
    F4.groupA(k, 8)
    st(k, "ffn_A")
    hook = ["s_mov_b64 exec, 1", "v_mov_b32 v9, 0", f"v_mov_b32 v10, s{S_NON}", f"v_mov_b32 v11, s{S_NON+1}",
            f"buffer_store_dwordx2 v[10:11], v9, s[{S_FL}:{S_FL+3}], s30 offen {SC}", "s_mov_b64 exec, -1"]
    hook2 = [x.replace("s30 offen", "s30 offen offset:256") for x in hook] if int(OPT.get("mid2", 1)) else None
    F4.phaseB(k, OPT.get("bsc", SC), hook, st if OPT.get("bst") else None, hook2)
    st(k, "ffn_B")

def phase_red(k):
    R = 16; ACC = 100
    pm4, pm1, rm4, rm1, t0, t1 = 2, 3, 4, 5, 6, 7
    k("s_lshl_b32 s23, s22, 3", f"v_and_b32 v{t0}, 7, v0", f"v_add_u32 v{t0}, s23, v{t0}")
    k(f"v_lshrrev_b32 v{t1}, 3, v0", "s_lshl_b32 s24, s20, 3", f"v_add_u32 v{t1}, s24, v{t1}")
    k(f"v_lshlrev_b32 v{pm4}, 4, v{t0}", f"v_lshl_add_u32 v{pm4}, v{t1}, 10, v{pm4}", f"v_mul_u32_u24 v{rm4}, 1152, v{t0}", f"v_lshl_add_u32 v{rm4}, v{t1}, 4, v{rm4}")
    k(f"v_lshrrev_b32 v{t1}, 5, v0", "s_lshl_b32 s24, s20, 1", f"v_add_u32 v{t1}, s24, v{t1}", f"v_add_u32 v8, s23, v{t1}", "v_bfe_u32 v9, v0, 2, 3", "v_bfe_u32 v10, v0, 3, 2", "v_and_b32 v11, 3, v0")
    k("s_cmp_eq_u32 s3, 0", "s_cselect_b64 vcc, -1, 0", f"v_cndmask_b32 v{t0}, v8, v{t0}, vcc", f"v_cndmask_b32 v{t1}, v9, v{t1}, vcc", "v_cndmask_b32 v10, v11, v10, vcc", f"v_add_u32 v{t1}, 64, v{t1}")
    k(f"v_lshlrev_b32 v{pm1}, 4, v{t0}", f"v_lshl_add_u32 v{pm1}, v{t1}, 10, v{pm1}", f"v_mul_u32_u24 v{rm1}, 1152, v{t0}", f"v_lshl_add_u32 v{rm1}, v{t1}, 4, v{rm1}")
    k(f"v_lshl_add_u32 v{pm1}, v10, 2, v{pm1}", f"v_lshl_add_u32 v{rm1}, v10, 2, v{rm1}")
    k(f"s_mul_i32 s24, s21, {TILE}", "s_add_u32 s25, s24, s3"); add64(k, 4, S_WS, 25); srd_fill(k, 4, LSTR - 31 * TILE)
    k(f"s_add_u32 s8, s4, {hx(WS_X2)}", "s_addc_u32 s9, s5, 0"); add64(k, 26, S_OUT, 24)
    k("s_cmp_eq_u32 s3, 0", "s_cselect_b32 s8, s8, s26", "s_cselect_b32 s9, s9, s27", "s_cselect_b32 s28, 0x8000, 512", "s_cselect_b64 vcc, -1, 0"); srd_fill(k, 8, TILE)
    k(f"v_cndmask_b32 v{rm4}, v{rm4}, v{pm4}, vcc", f"v_cndmask_b32 v{rm1}, v{rm1}, v{pm1}, vcc")
    ACCB = 110
    def ld0(j, srd=4): return [f"buffer_load_dwordx4 {v(R+10*j,4)}, v{pm4}, s[{srd}:{srd+3}], s25 offen {SC}"]
    def ld1(j): return ["s_add_u32 s26, s25, 0x8000", f"buffer_load_dwordx4 {v(R+10*j+4,4)}, v{pm4}, s[4:7], s26 offen {SC}"]
    def ld2(j): return [f"buffer_load_dword v{R+10*j+8}, v{pm1}, s[4:7], s25 offen {SC}"]
    def over(fn):
        k(f"s_mov_b32 s25, {hx(WS_P)}")
        for j in range(8):
            k(fn(j))
            if j < 7: k(f"s_add_u32 s25, s25, {hx(ACT)}")
    k("v_lshlrev_b32 v9, 3, v0", f"buffer_load_dwordx2 v[10:11], v9, s[{S_FL}:{S_FL+3}], s31 offen {SC}")
    k("s_mov_b32 s32, 0x00003f80", "s_mov_b32 s33, 0x3f800000")
    for i in range(18): k(f"v_mov_b32 v{ACCB+i}, 0")
    k("s_waitcnt vmcnt(0)", f"v_cmp_ne_u64 vcc, s[{S_NON}:{S_NON+1}], v[10:11]", "s_nop 3", "s_cmp_eq_u32 vcc_lo, 0", "s_cselect_b32 s34, 1, 0", "s_cmp_eq_u32 vcc_hi, 0", "s_cselect_b32 s35, 1, 0", "s_cmp_eq_u32 s20, 3", "s_cselect_b32 s35, 0, s35")
    RP = int(OPT.get("rp", 2))
    if RP == 1: k("s_cselect_b32 s34, 0, s34")
    publish(k, F_FFN)
    k("s_cmp_eq_u32 s34, 0", "s_cbranch_scc1 red_noearly")
    over(ld0)
    k.label("red_noearly")
    k(f"s_mov_b32 s25, {hx(WS_X1)}"); k(ld0(8), ld1(8), ld2(8))
    k("s_cmp_eq_u32 s35, 0", "s_cbranch_scc1 red_noearly1")
    over(ld1)
    k.label("red_noearly1")
    wait(k, tile_flags(F_FFN), pw=3 if RP else 0)
    st(k, "red_flags")
    over(ld2)
    k("s_cmp_lg_u32 s35, 0", "s_cbranch_scc1 red_haveearly1")
    over(ld1)
    k.label("red_haveearly1")
    k("s_cmp_lg_u32 s34, 0", "s_cbranch_scc1 red_haveearly")
    over(ld0)
    k("s_waitcnt vmcnt(0)")
    k.label("red_haveearly")
    k("s_waitcnt vmcnt(16)")
    def acc(j, ds):
        for d in ds: k(f"v_dot2c_f32_bf16 v{ACCB+2*d}, s32, v{R+10*j+d}", f"v_dot2c_f32_bf16 v{ACCB+2*d+1}, s33, v{R+10*j+d}")
    k("s_cmp_eq_u32 s35, 0", "s_cbranch_scc1 red_w", "s_waitcnt vmcnt(8)")
    k.label("red_w")
    for j in range(9): acc(j, range(4))
    acc(8, range(4, 9))
    k("s_waitcnt vmcnt(0)")
    for j in range(8): acc(j, range(4, 9))
    k("s_nop 2")
    for d in range(9): k(f"v_cvt_pk_bf16_f32 v{R+d}, v{ACCB+2*d}, v{ACCB+2*d+1}")
    k(f"buffer_store_dwordx4 {v(R,4)}, v{rm4}, s[8:11], 0 offen {SC}", f"buffer_store_dwordx4 {v(R+4,4)}, v{rm4}, s[8:11], s28 offen {SC}", f"buffer_store_dword v{R+8}, v{rm1}, s[8:11], 0 offen {SC}")

def red_ln(k):
    R = 16; ACCB = 110; T = 130
    k(f"v_mov_b32 v{T}, 0", f"v_mov_b32 v{T+2}, 0", "s_mov_b32 s29, 0x3f803f80")
    for d in range(9): k(f"v_dot2c_f32_bf16 v{T}, s29, v{R+d}", f"v_dot2c_f32_bf16 v{T+2}, v{R+d}, v{R+d}")
    k("s_nop 1")
    xlane(k, T, (8, 16, 32))
    k(f"v_and_b32 v{T+8}, 7, v0", f"v_lshlrev_b32 v{T+8}, 3, v{T+8}", f"v_add_u32 v{T+8}, {TILE}, v{T+8}", "s_lshl_b32 s23, s20, 6", f"v_add_u32 v{T+9}, s23, v{T+8}", f"v_mov_b32 v{T+1}, v{T+2}")
    k(f"ds_write_b64 v{T+9}, {v(T,2)}", "s_waitcnt lgkmcnt(0)", "s_barrier")
    for w_ in range(4): k(f"ds_read_b64 {v(T+10+2*w_,2)}, v{T+8} offset:{64*w_}")
    k(f"s_add_u32 s8, s4, {hx(WS_XN)}", "s_addc_u32 s9, s5, 0")
    for d in range(9): k(f"v_lshlrev_b32 v{ACCB+2*d}, 16, v{R+d}", f"v_and_b32 v{ACCB+2*d+1}, 0xffff0000, v{R+d}")
    k("s_waitcnt lgkmcnt(0)")
    k(f"v_add_f32 v{T}, v{T+10}, v{T+12}", f"v_add_f32 v{T+2}, v{T+11}, v{T+13}", f"v_add_f32 v{T+14}, v{T+14}, v{T+16}", f"v_add_f32 v{T+15}, v{T+15}, v{T+17}", f"v_add_f32 v{T}, v{T}, v{T+14}", f"v_add_f32 v{T+2}, v{T+2}, v{T+15}")
    ln_fin2(k, T)
    for d in range(9): k(f"v_pk_fma_f32 {v(ACCB+2*d,2)}, {v(ACCB+2*d,2)}, {v(T+4,2)}, {v(T+6,2)} op_sel_hi:[1,0,0]")
    for d in range(9): k(f"v_cvt_pk_bf16_f32 v{R+12+d}, v{ACCB+2*d}, v{ACCB+2*d+1}")
    k(f"buffer_store_dwordx4 {v(R+12,4)}, v4, s[8:11], 0 offen {SC}", f"buffer_store_dwordx4 {v(R+16,4)}, v4, s[8:11], s28 offen {SC}", f"buffer_store_dword v{R+20}, v5, s[8:11], 0 offen {SC}")
def gen():
    k = Kern("mega")
    NST[0] = 0; NAMES.clear(); LBL[0] = 0; FS[0] = int(OPT.get("fs", 6))
    FF.STAMP = 0; FF.WG = int(OPT.get("wg", 1)); FF.TOUCH = 0
    st0 = len(k.L)
    startup(k)
    k.label("layer1")
    phase_qkv1(k)
    k.label("q_epi")
    q_epi(k)
    publish(k, F_QKV, extra=F_PF)
    st(k, "qkv_pub")
    phase_att(k)
    wd = wo_dma(k); n1 = int(OPT.get("wd1", 8))
    k(wd[:n1 + 1])
    publish(k, F_ATT, vm=n1, keep=True)
    k(wd[n1 + 1:])
    st(k, "att_pub")
    phase_wo(k)
    phase_ffn(k)
    phase_red(k)
    k("s_cmp_lg_u32 s3, 0", "s_cbranch_scc1 mega_end")
    red_ln(k)
    publish(k, F_RED)
    st(k, "red_pub")
    if STAMP[0]: dump(k, 0)
    k(f"s_mov_b32 s3, {hx(LSTR)}", f"s_mov_b32 s14, {5*FT()}", "s_branch layer1")
    k.label("mega_end")
    if STAMP[0]:
        k("s_waitcnt vmcnt(0)"); st(k, "end"); dump(k, 1)
    k.label("mega_done")
    k("s_endpgm")
    return k
def dump(k, L):
    LBL[0] += 1
    k("s_cmp_lg_u32 s20, 0", f"s_cbranch_scc1 dmp{LBL[0]}", f"s_lshl_b32 s23, s2, 9", f"s_add_u32 s23, s23, {hx(WS_ST + 256*L)}"); add64(k, 4, S_WS, 23); srd_fill(k, 4, 256)
    k("v_lshlrev_b32 v9, 2, v0", f"buffer_store_dword v{V_STAMP}, v9, s[4:7], 0 offen", "s_waitcnt vmcnt(0)")
    k.label(f"dmp{LBL[0]}")
class JP(list):
    def __init__(s): super().__init__([0, 1, 1, 1, 1, 1])
def trips(w):
    d = {"ffn_loopA": [0, 1, 1, 0] if int(OPT.get("peel", 0)) else [1, 0, 1, 1, 1, 0], "ffn_loopA_odd": [0, 1], "jit_p0": [0, 1, 1, 1, 1, 1], "jit_p1": JP(), "ffn_loopB": [1, 1, 0] * 2, "mega_end": [0, 1], "ffn_nomid": [1, 0, 1] * 2, "red_noearly": [0, 1], "red_haveearly": [1, 0], "red_noearly1": [w & 1, 1], "red_haveearly1": [1 - (w & 1), 0], "red_w": [w & 1, 1], "att_notouch": [0, 1], "ffn_nojs": [0, 1], "att_sk0": [0, 1], "att_sk1": [0, 1], "att_sk2": [0, 1], "q_nof": [0, 1], "att_noprep2": [0, 1], "ffn_noring": [1, 0], "ffn_ring2": [0, 1], "wo_l1": [0, 1],
         "q_epi2": 9 if w >= 2 else 0, "q_epi3": 9 if w == 3 else 0, "no_cpf": 0 if w == 3 else 9, "no_touch": 0 if w == 3 else 9, "q_noscale": 9 if w else 0, "no_nonce": 9 if w else 0}
    for i in range(17): d[f"res_sk{i}"] = [0, 1]
    d["wo_dsk"] = 9 if w == 3 else 0
    for i in range(1, 40):
        for n in (f"pub{i}", f"wt{i}_d", f"dmp{i}"): d[n] = 9 if w else 0
        d[f"pub{i}_x"] = [0, 1]
        d[f"wt{i}_d"] = 9 if w != POLLW.get(f"wt{i}", 0) else 0
    return d
```

```python
from asmlib import *
S, D, F, H, DH, WIN = 2048, 576, 4608, 32, 18, 256
TILE = 73728
ACT = 32 * TILE
A_X, A_WQKV, A_WO, A_BX, A_WG, A_WU, A_WD, A_OUT, A_DBG, A_WS = range(10)
LSTR = 40 << 20
WS_KV = 0
KVB = 28672
WS_O = 8 << 20
WS_X1 = 11 << 20
WS_X2 = 14 << 20
WS_P = 17 << 20
assert WS_P + 8 * ACT <= LSTR

def srd_fill(k, reg, nbytes):
    k(f"s_mov_b32 s{reg+2}, {hx(nbytes)}", f"s_mov_b32 s{reg+3}, 0x00020000")

def ln_stats_norm(k, X, T, sOnes, nq=18):
    S0, S1, Q0, Q1 = T, T+1, T+2, T+3
    k(f"v_mov_b32 v{S0}, 0", f"v_mov_b32 v{S1}, 0", f"v_mov_b32 v{Q0}, 0", f"v_mov_b32 v{Q1}, 0")
    return S0, S1, Q0, Q1

def ln_acc(X, T, sOnes, i):
    S0, S1, Q0, Q1 = T, T+1, T+2, T+3
    o = []
    for d in range(4):
        x = X + 4*i + d
        o.append(f"v_dot2c_f32_bf16 v{S0 + (d&1)}, s{sOnes}, v{x}")
        o.append(f"v_dot2c_f32_bf16 v{Q0 + (d&1)}, v{x}, v{x}")
    return o

def ln_finish(k, T):
    S0, S1, Q0, Q1 = T, T+1, T+2, T+3
    k("s_nop 2")
    k(f"v_add_f32 v{S0}, v{S0}, v{S1}", f"v_add_f32 v{Q0}, v{Q0}, v{Q1}")
    for sw in ("v_permlane16_swap_b32", "v_permlane32_swap_b32"):
        k(f"v_mov_b32 v{S1}, v{S0}", f"v_mov_b32 v{Q1}, v{Q0}", "s_nop 1")
        k(f"{sw} v{S0}, v{S1}", f"{sw} v{Q0}, v{Q1}", "s_nop 1")
        k(f"v_add_f32 v{S0}, v{S0}, v{S1}", f"v_add_f32 v{Q0}, v{Q0}, v{Q1}")
    k(f"v_mul_f32 v{S0}, {fl(1.0/D)}, v{S0}")
    k(f"v_mul_f32 v{Q0}, {fl(1.0/D)}, v{Q0}")
    k(f"v_fma_f32 v{Q0}, -v{S0}, v{S0}, v{Q0}")
    k(f"v_max_f32 v{Q0}, 0, v{Q0}")
    k(f"v_add_f32 v{Q0}, {fl(1e-5)}, v{Q0}")
    k(f"v_rsq_f32 v{T+4}, v{Q0}", "s_nop 0")
    k(f"v_mul_f32 v{T+6}, v{S0}, v{T+4}")
    k(f"v_sub_f32 v{T+6}, 0, v{T+6}")

def ln_apply(X, T, i, pk=True, R=None):
    o = []
    if R is None: R = T
    for d in range(4):
        x = X + 4*i + d; t = T + 8 + 2*d
        o.append(f"v_lshlrev_b32 v{t}, 16, v{x}")
        o.append(f"v_and_b32 v{t+1}, 0xffff0000, v{x}")
    for d in range(4):
        t = T + 8 + 2*d
        if pk: o.append(f"v_pk_fma_f32 v[{t}:{t+1}], v[{t}:{t+1}], v[{R+4}:{R+5}], v[{R+6}:{R+7}] op_sel_hi:[1,0,0]")
        else: o += [f"v_fma_f32 v{t}, v{t}, v{T+4}, v{T+6}", f"v_fma_f32 v{t+1}, v{t+1}, v{T+4}, v{T+6}"]
    for d in range(4):
        x = X + 4*i + d; t = T + 8 + 2*d
        o.append(f"v_cvt_pk_bf16_f32 v{x}, v{t}, v{t+1}")
    return o
WS_W = 2 * LSTR
WFR = 486
KV_QM, KV_KM, KV_V, KV_QT, KV_KT = 0, 8192, 16384, 26624, 27648
QSCALE = DH ** -0.5 * 1.4426950408889634
def stamp_out(k, name, n=7):
    k(f"s_load_dwordx2 s[44:45], s[0:1], {A_DBG*8}", "s_waitcnt lgkmcnt(0)")
    srd_fill(k, 44, 256)
    k("s_cmp_lg_u32 s20, 0", f"s_cbranch_scc1 {name}_done", "s_cmp_ge_u32 s2, 4", f"s_cbranch_scc1 {name}_done")
    k("s_lshl_b32 s48, s2, 6", "v_mov_b32 v2, s48")
    for i in range(n):
        k(f"s_sub_u32 s50, s{60+2*i}, s60", "v_mov_b32 v4, s50", "v_mov_b32 v5, 0", f"buffer_store_dwordx2 v[4:5], v2, s[44:47], 0 offen offset:{8*i}")
STAMP = [0]
def stamp(k, i):
    if STAMP[0] == 1: k(f"s_memtime s[{60+2*i}:{61+2*i}]")
    if STAMP[0] == 3: k(f"s_memrealtime s[{60+2*i}:{61+2*i}]")

def wgmap(k, mp, sr=21, sj=22):
    if mp == 1: k(f"s_and_b32 s{sj}, s2, 7", f"s_lshr_b32 s{sr}, s2, 3", f"s_mov_b32 s44, s{sr}")
    elif mp == 44:
        k("s_and_b32 s45, s2, 7", "s_lshr_b32 s46, s2, 3", f"s_and_b32 s{sj}, s45, 1", f"s_lshl_b32 s{sj}, s{sj}, 2", "s_and_b32 s47, s46, 3", f"s_add_u32 s{sj}, s{sj}, s47")
        k("s_lshr_b32 s44, s46, 2", f"s_lshr_b32 s{sr}, s45, 1", f"s_lshl_b32 s{sr}, s{sr}, 3", f"s_add_u32 s{sr}, s{sr}, s44")
    elif mp == 8:
        k(f"s_bfe_u32 s{sj}, s2, 0x30003", f"s_and_b32 s45, s2, 7", f"s_lshr_b32 s44, s2, 6", f"s_lshl_b32 s{sr}, s45, 2", f"s_add_u32 s{sr}, s{sr}, s44")
    else:
        lg = {2: 1, 4: 2}[mp]
        k("s_and_b32 s45, s2, 7", "s_lshr_b32 s46, s2, 3")
        k(f"s_lshr_b32 s{sj}, s45, {lg}", f"s_lshl_b32 s{sj}, s{sj}, {lg}", f"s_and_b32 s47, s46, {mp-1}", f"s_add_u32 s{sj}, s{sj}, s47")
        k(f"s_lshr_b32 s44, s46, {lg}", f"s_lshl_b32 s{sr}, s44, {lg}", f"s_and_b32 s47, s45, {mp-1}", f"s_add_u32 s{sr}, s{sr}, s47")
OPT = {}
WS_WQ = WS_W + (16 << 20)
WS_WO = WS_WQ + (3 << 20)
WS_F = WS_WO + (1 << 20)
WS_ST = WS_F + (1 << 20)

WS_XN = 36 << 20
WS_SS = 39 << 20
assert WS_P + 8 * ACT <= WS_XN and WS_XN + ACT <= WS_SS
def ln_fin2(k, T):
    S0, Q0 = T, T + 2
    k(f"v_mul_f32 v{S0}, {fl(1.0/D)}, v{S0}", f"v_mul_f32 v{Q0}, {fl(1.0/D)}, v{Q0}", f"v_fma_f32 v{Q0}, -v{S0}, v{S0}, v{Q0}", f"v_max_f32 v{Q0}, 0, v{Q0}",
      f"v_add_f32 v{Q0}, {fl(1e-5)}, v{Q0}", f"v_rsq_f32 v{T+4}, v{Q0}", "s_nop 0", f"v_mul_f32 v{T+6}, v{S0}, v{T+4}", f"v_sub_f32 v{T+6}, 0, v{T+6}")
def xlane(k, T, kinds):
    S0, S1, Q0, Q1 = T, T+1, T+2, T+3
    for sw in kinds:
        if sw in (1, 2, 4):
            m_ = {1: "quad_perm:[1,0,3,2]", 2: "quad_perm:[2,3,0,1]", 4: "row_half_mirror"}[sw]
            k("s_nop 1", f"v_add_f32_dpp v{S0}, v{S0}, v{S0} {m_} row_mask:0xf bank_mask:0xf", f"v_add_f32_dpp v{Q0}, v{Q0}, v{Q0} {m_} row_mask:0xf bank_mask:0xf")
        elif sw == 8:
            k("s_nop 1", f"v_add_f32_dpp v{S0}, v{S0}, v{S0} row_ror:8 row_mask:0xf bank_mask:0xf", f"v_add_f32_dpp v{Q0}, v{Q0}, v{Q0} row_ror:8 row_mask:0xf bank_mask:0xf")
        else:
            op = f"v_permlane{sw}_swap_b32"
            k(f"v_mov_b32 v{S1}, v{S0}", f"v_mov_b32 v{Q1}, v{Q0}", "s_nop 1", f"{op} v{S0}, v{S1}", f"{op} v{Q0}, v{Q1}", "s_nop 1", f"v_add_f32 v{S0}, v{S0}, v{S1}", f"v_add_f32 v{Q0}, v{Q0}, v{Q1}")
```

```python
from common import *
import k_ffn3 as FF
import k_ffn4 as F4
LDS = 163840
SC = "sc1"
S_WS, S_X, S_OUT, S_NON, S_FL = 96, 98, 100, 90, 92
S_FO = 19
S_FO = 75 + 0
V_L16, V_PD, V_PT0, V_PT1, V_STAMP = 1, 12, 13, 14, 15
F_P0, F_QKV, F_ATT, F_WO, F_FFN, F_RED, F_PF = 0, 1, 2, 3, 4, 5, 11
STG_Q, STG_O, STG_F, STG_J = 73728, 91648, 96768, 73728
FS = [3]
def FT(): return 256 << FS[0]
def FPJ(): return 12 * FT() + 4 * 8192
F_PJ = 0
WOIMG = 0
NST = [0]
def st(k, name=""):
    if STAMP[0]:
        k("s_memtime s[0:1]" if STAMP[0] == 2 else "s_memrealtime s[0:1]", "s_waitcnt lgkmcnt(0)", f"v_writelane_b32 v{V_STAMP}, s0, {NST[0]}" + f" ; {name}")
        NAMES.append(name); NST[0] += 1
NAMES = []
def add64(k, d, base, off_s):
    k(f"s_add_u32 s{d}, s{base}, s{off_s}", f"s_addc_u32 s{d+1}, s{base+1}, 0")
LBL = [0]
POLLW = {}
def publish(k, fid, layered=True, vm=0, idx="task", extra=None, keep=False):
    LBL[0] += 1; L = f"pub{LBL[0]}"
    k(f"s_waitcnt vmcnt({vm})", "s_barrier", "s_cmp_lg_u32 s20, 0", f"s_cbranch_scc1 {L}")
    if idx == "task": k("s_lshl_b32 s23, s21, 3", "s_add_u32 s23, s23, s22", f"s_lshl_b32 s23, s23, {FS[0]}")
    else: k(f"s_lshl_b32 s23, s2, {FS[0]}")
    k(f"s_add_u32 s23, s23, {fid*FT()}")
    if layered: k("s_add_u32 s23, s23, s14")
    k("s_mov_b64 exec, 1", "v_mov_b32 v9, 0", f"v_mov_b32 v10, s{S_NON}", f"v_mov_b32 v11, s{S_NON+1}")
    k(f"buffer_store_dwordx2 v[10:11], v9, s[{S_FL}:{S_FL+3}], s23 offen {SC}")
    if extra is not None:
        k("s_cmp_lg_u32 s3, 0", f"s_cbranch_scc1 {L}_x")
        k("s_lshl_b32 s23, s75, 5", "s_add_u32 s23, s23, s74", "s_lshl_b32 s23, s23, 3", f"s_add_u32 s23, s23, {extra*FT()}", f"buffer_store_dwordx2 v[10:11], v9, s[{S_FL}:{S_FL+3}], s23 offen {SC}")
        k.label(f"{L}_x")
    k("s_mov_b64 exec, -1")
    k.label(L)
def wait(k, setup, pw=0):
    LBL[0] += 1; L = f"wt{LBL[0]}"; POLLW[L] = pw
    k(f"s_cmp_lg_u32 s20, {pw}", f"s_cbranch_scc1 {L}_d")
    k(setup, "s_mov_b32 s23, 0x10000")
    if int(OPT.get("pre", 0)): k(f"s_sleep {OPT['pre']}")
    k.label(f"{L}_l")
    if int(OPT.get("slp", 0)): k(f"s_sleep {OPT['slp']}")
    k(f"buffer_load_dwordx2 v[10:11], v9, s[{S_FL}:{S_FL+3}], 0 offen {SC}", "s_waitcnt vmcnt(0)")
    k(f"v_cmp_ne_u64 vcc, s[{S_NON}:{S_NON+1}], v[10:11]", "s_sub_u32 s23, s23, 1", "s_cselect_b64 s[24:25], 0, -1", "s_nop 1", "s_and_b64 vcc, vcc, s[24:25]", f"s_cbranch_vccnz {L}_l")
    k.label(f"{L}_d")
    k("s_barrier")
def tile_flags(fid, prev_layer=False):
    o = ["v_and_b32 v9, 7, v0", "s_lshl_b32 s23, s21, 3", "v_add_u32 v9, s23, v9", f"v_lshlrev_b32 v9, {FS[0]}, v9", f"s_add_u32 s23, s14, {hx(fid*FT() - (5*FT() if prev_layer else 0))}", "v_add_u32 v9, s23, v9"]
    return o

def div18(su, sq, sr): return [f"s_mul_i32 s{sq}, s{su}, 3641", f"s_lshr_b32 s{sq}, s{sq}, 16", f"s_mul_i32 s{sr}, s{sq}, 18", f"s_sub_u32 s{sr}, s{su}, s{sr}"]
def soffA(rd): return [f"s_add_u32 s76, s74, {32*rd}"] + div18(76, 78, 79) + [f"s_mul_i32 s79, s79, {32*9216}", "s_lshl_b32 s78, s78, 7", "s_add_u32 s78, s78, s79", "s_mul_i32 s79, s75, 1152", "s_add_u32 s78, s78, s79"]
def soffB(rd, d): return [f"s_add_u32 s76, s74, {hx(32*rd - 162)}", "s_lshl_b32 s76, s76, 1"] + div18(76, d, 79) + [f"s_mul_i32 s79, s79, {32*1152}", f"s_lshl_b32 s{d}, s{d}, 7", f"s_add_u32 s{d}, s{d}, s79", f"s_mul_i32 s79, s75, {576*1152}", f"s_add_u32 s{d}, s{d}, s79"]
J_PD, J_T0, J_T1 = 240, 243, 246
def dma_round(rd, lds):
    if rd <= 4: pre, s1, s2, o2, vd = soffA(rd), 60, 64, 78, V_PD
    elif rd == 5:
        pre = soffB(5, 77) + soffA(5) + ["s_cmp_lt_u32 s74, 2", "s_cselect_b32 s78, s78, s77", f"s_cselect_b32 s79, 0, {32*1152}", "s_add_u32 s77, s78, s79"]
        s1, s2, o2, vd = 80, 84, 77, J_PD + 2
    else: pre, s1, s2, o2, vd = soffB(rd, 78) + [f"s_add_u32 s77, s78, {32*1152}"], 36, 36, 77, J_PD + 1
    return [pre + [f"s_add_u32 m0, s88, {lds}", "s_nop 0", f"buffer_load_dwordx4 v{vd}, s[{s1}:{s1+3}], s78 offen lds"],
            [f"s_add_u32 m0, s88, {lds + 4096}", "s_nop 0", f"buffer_load_dwordx4 v{vd}, s[{s2}:{s2+3}], s{o2} offen lds"]]
def tr_round(T, t0, t1, off): return [f"ds_read_b64_tr_b16 {v(T + 4*u + 2*e, 2)}, v{(t0, t1)[e]} offset:{off + 4096*u}" for u in range(2) for e in range(2)]
def st_round(rd, T):
    pre = [f"s_add_u32 s76, s74, {32*rd}", "s_lshl_b32 s78, s76, 11"]
    if rd == 7: pre += ["s_cmp_lt_u32 s76, 243", f"s_cselect_b32 s70, {WFR*1024}, 0"]
    return [pre + [f"buffer_store_dwordx4 {v(T,4)}, v{V_L16}, s[68:71], s78 offen {SC}"], [f"buffer_store_dwordx4 {v(T+4,4)}, v{V_L16}, s[68:71], s78 offen offset:1024 {SC}"]]
def jit_setup():
    q4, r4, c4, t, l8 = 250, 251, 252, 253, 254
    o = [f"v_lshrrev_b32 v{q4}, 4, v0", f"v_bfe_u32 v{r4}, v0, 2, 2", f"v_and_b32 v{c4}, 7, v0", f"v_lshlrev_b32 v{t}, 1, v{q4}", f"v_xor_b32 v{t}, v{t}, v{c4}", f"v_lshlrev_b32 v{t}, 4, v{t}",
         f"v_lshrrev_b32 v{l8}, 3, v0", "s_lshl_b32 s76, s20, 3", f"v_add_u32 v{l8}, s76, v{l8}", f"v_mul_u32_u24 v{l8}, 1152, v{l8}", f"v_add_u32 v{J_PD+1}, v{t}, v{l8}",
         f"v_add_u32 v{J_T0}, {STG_J}, v{V_PT0}", f"v_add_u32 v{J_T1}, 512, v{J_T0}", f"v_lshlrev_b32 v{t}, 9, v{q4}", f"v_sub_u32 v{J_T0+1}, v{J_T0}, v{t}", f"v_add_u32 v{J_T1+1}, 2048, v{J_T0+1}",
         "s_cmp_lt_u32 s74, 2", "s_cselect_b64 vcc, -1, 0", "s_cselect_b64 s[80:81], s[60:61], s[72:73]", "s_cselect_b64 s[84:85], s[64:65], s[72:73]", "s_mov_b64 s[36:37], s[72:73]",
         f"v_cndmask_b32 v{J_PD+2}, v{J_PD+1}, v{V_PD}, vcc", f"v_cndmask_b32 v{J_T0+2}, v{J_T0+1}, v{J_T0}, vcc", f"v_cndmask_b32 v{J_T1+2}, v{J_T1+1}, v{J_T1}, vcc", "s_lshl_b32 s88, s20, 10"]
    for r_ in (36, 80, 84): o += [f"s_mov_b32 s{r_+2}, {hx(D*F*2)}", f"s_mov_b32 s{r_+3}, 0x00020000"]
    return o

Q_XL, Q_SQ, Q_S8, Q_STL, Q_TS, Q_BR1, Q_XW = 2, 3, 4, 5, 6, 7, 8
Q_A2 = 160
Q_VW, Q_VR, Q_VA = 172, 173, 174
Q_AC, Q_B, Q_LT, Q_T, Q_X = 48, 112, 144, 161, 184
BREG = FF.BREG
def q_aload(n):
    o = [f"buffer_load_dwordx4 {BREG(n)}, v{Q_A2 if n % 4 >= 2 else V_L16}, s[4:7], s26 offen" + (f" offset:{(n%4)*1024}" if n % 4 else "") + f" {SC}"]
    if n % 4 == 3: o.append("s_add_u32 s26, s26, 0x1000")
    return o
def q_setup(k):
    q4, tk, r1, r2, t5, t6 = range(Q_T, Q_T + 6)
    k(f"v_lshrrev_b32 v{q4}, 4, v0", f"v_and_b32 v{tk}, 15, v0", f"v_and_b32 v{r1}, 1, v{q4}", f"v_lshrrev_b32 v{r2}, 1, v{q4}")
    k("s_lshl_b32 s38, s20, 10", f"v_add_u32 v{Q_XW}, s38, v{V_L16}", f"v_add_u32 v{Q_BR1}, 36864, v{V_L16}")
    k(f"v_lshlrev_b32 v{t5}, 4, v{tk}", f"v_lshl_add_u32 v{t6}, v{r2}, 9, v{t5}", f"v_lshl_add_u32 v{Q_SQ}, v{r1}, 11, v{t6}")
    k("s_lshl_b32 s40, s20, 13", "s_add_u32 s41, s40, 0x400", "s_add_u32 s42, s40, 0x1000", "s_add_u32 s43, s41, 0x1000")
    k("s_and_b32 s39, s20, 1", "s_mul_i32 s39, s39, 9216", f"s_add_u32 s39, s39, {STG_Q}")
    k(f"v_mul_u32_u24 v{t6}, 144, v{tk}", f"v_lshl_add_u32 v{t6}, v{q4}, 3, v{t6}", f"v_add_u32 v{Q_VW}, s39, v{t6}")
    k(f"v_bfe_u32 v{t6}, v0, 2, 2", f"v_lshl_add_u32 v{t6}, v{r1}, 2, v{t6}", f"v_lshl_add_u32 v{t6}, v{r2}, 4, v{t6}", f"v_mul_u32_u24 v{t6}, 144, v{t6}", f"v_and_b32 v{Q_VR}, 3, v0", f"v_lshl_add_u32 v{t6}, v{Q_VR}, 3, v{t6}", f"v_add_u32 v{Q_VR}, s39, v{t6}")
    k(f"v_lshlrev_b32 v{t6}, 4, v{tk}", f"v_lshl_add_u32 v{t6}, v{r1}, 8, v{t6}", f"v_lshl_add_u32 v{t6}, v{r2}, 9, v{t6}")
    k("s_and_b32 s39, s20, 1", "s_lshl_b32 s39, s39, 13", f"s_add_u32 s39, s39, {KV_V}", f"v_add_u32 v{Q_VA}, s39, v{t6}", f"v_add_u32 v{Q_VA+1}, 0x1000, v{Q_VA}")
    k(f"v_mov_b32 v{r1}, 0x80000000", f"v_cmp_gt_u32 vcc, 32, v0", f"v_mov_b32 v{r2}, {fl(QSCALE)}", "s_nop 0", f"v_cndmask_b32 v{Q_TS}, 1.0, v{r2}, vcc")
    k(f"v_lshlrev_b32 v{t6}, 9, v{q4}", f"v_lshl_add_u32 v{t6}, v{tk}, 3, v{t6}", f"v_add_u32 v{Q_STL}, {KV_QT}, v{t6}")
    k("s_cmp_eq_u32 s20, 3", "s_cselect_b64 vcc, -1, 0", f"v_cndmask_b32 v{Q_A2}, v{V_L16}, v{r1}, vcc")
    k("s_lshl_b32 s38, s22, 2", "s_add_u32 s38, s38, s20", f"s_mul_i32 s38, s38, {72*1024}", f"s_add_u32 s38, s38, {hx(WS_WQ)}"); add64(k, 4, S_WS, 38); srd_fill(k, 4, 72 * 1024)
    k("s_lshl_b32 s38, s21, 3", "s_add_u32 s38, s38, s22", f"s_mul_i32 s38, s38, {KVB}", "s_add_u32 s38, s38, s3"); add64(k, 16, S_WS, 38); srd_fill(k, 16, KVB)
    k("s_mov_b32 s26, 0", "s_mov_b32 s29, 0x3f803f80", f"s_mov_b32 s28, {fl(QSCALE)}")
def ln_write(k, i, X, XW):
    off = i * 4096
    if i == 16: k(f"v_add_u32 v{XW}, 0x10000, v{XW}")
    k(f"ds_write_b128 v{XW}, {v(X+4*i,4)} offset:{off if off < 65536 else off - 65536}")
def q_bread(ks, sw=False): return [f"ds_read_b128 {v(Q_B + 16*(ks&1) + 4*tb, 4)}, v{(178 + (ks & 1) + (2 if ks >= 9 else 0)) if sw else (Q_BR1 if ks >= 9 else V_L16)} offset:{((4*ks+tb) % 36)*1024}" for tb in range(4)]
def q_lnq(i, pk):
    kk = Kern("t"); kk(ln_apply(Q_X, Q_LT, i, pk=pk)); ln_write(kk, i, Q_X, Q_XW); return kk.L
def q_loop(k, na, q, extra, chunk=True):
    k(q_bread(0, chunk is False))
    fill = [[] for _ in range(18 * 16)]
    for c in ((1, 2) if chunk is True else ()):
        ops = [x for i in range(6 * c, 6 * c + 6) for x in q_lnq(i, False)]
        g0 = 96 * (c - 1)
        gaps = [g for g in range(g0, g0 + 80) if g % 4 in (1, 3)]
        for n, x in enumerate(ops): fill[gaps[n * len(gaps) // len(ops)]].append(x)
    for ks in range(18):
        need = 4 * ks + 3
        assert need < na, (ks, na)
        if chunk == "dma" and ks in (5, 11) and f"X{ks+6}" in q and (need not in q or q.index(need) < q.index(f"X{ks+6}")): need = f"X{ks+6}"
        if need in q:
            w = len(q) - 1 - q.index(need); q = q[q.index(need) + 1:]
            k(f"s_waitcnt vmcnt({min(63, w)}) lgkmcnt(0)")
        else: k("s_waitcnt lgkmcnt(0)")
        if ks in (5, 11) and chunk: k("s_barrier")
        br = q_bread(ks + 1, chunk is False) if ks < 17 else []
        for tb in range(4):
            for ht in range(4):
                ac = v(Q_AC + 16*ht + 4*tb, 4)
                k(f"v_mfma_f32_16x16x32_bf16 {ac}, {BREG(4*ks+ht)}, {v(Q_B + 16*(ks&1) + 4*tb, 4)}, {'0' if ks == 0 else ac}")
                if tb < 2 and ht in (0, 1) and br: k(br[2 * tb + ht])
                if ht == 2 and na < 72 and len(q) < 44: k(q_aload(na)); q.append(na); na += 1
                k(fill[16 * ks + 4 * tb + ht])
        for fn, nv in extra.get(ks, []):
            fn(); q += ["x"] * nv
def q_epi(k):
    st(k, "qkv_mfma")
    P = Q_X
    k("s_cmp_ge_u32 s20, 2", "s_cbranch_scc1 q_epi2", "s_cmp_lg_u32 s20, 0", "s_cbranch_scc1 q_noscale", "s_nop 3")
    for i in range(64): k(f"v_mul_f32 v{Q_AC+i}, s28, v{Q_AC+i}")
    k.label("q_noscale")
    k("s_nop 3")
    for pr in range(2):
        for tb in range(4):
            O = P + 16 * pr + 4 * tb
            for h in range(2):
                for d in range(2): k(f"v_cvt_pk_bf16_f32 v{O+2*h+d}, v{Q_AC+16*(2*pr+h)+4*tb+2*d}, v{Q_AC+16*(2*pr+h)+4*tb+2*d+1}")
        for tb in range(4):
            O = P + 16 * pr + 4 * tb
            for d in range(2): k(f"v_permlane16_swap_b32 v{O+d}, v{O+2+d}")
        for tb in range(4):
            k(f"buffer_store_dwordx4 {v(P+16*pr+4*tb,4)}, v{Q_SQ}, s[16:19], s{40 + 2*pr + (tb>>1)} offen offset:{256*(tb&1)} {SC}")
    k("s_branch q_epid")
    k.label("q_epi2")
    k("s_cmp_eq_u32 s20, 3", "s_cbranch_scc1 q_epi3", "s_nop 5")
    def vtile(ht):
        for tb in range(4):
            O = P + 8 * ht + 2 * tb
            for d in range(2): k(f"v_cvt_pk_bf16_f32 v{O+d}, v{Q_AC+16*ht+4*tb+2*d}, v{Q_AC+16*ht+4*tb+2*d+1}")
            k(f"ds_write_b64 v{Q_VW}, {v(O,2)} offset:{tb*16*144 + 32*ht}")
    def vread(ht):
        for pr in range(2):
            for e in range(2): k(f"ds_read_b64_tr_b16 {v(Q_AC+8*ht+4*pr+2*e,2)}, v{Q_VR} offset:{pr*32*144 + e*8*144 + 32*ht}")
    def vstore(ht, va=None):
        for pr in range(2): k(f"buffer_store_dwordx4 {v(Q_AC+8*ht+4*pr,4)}, v{Q_VA + ht//2}, s[16:19], 0 offen offset:{(ht&1)*2048 + pr*1024} {SC}")
    for ht in range(4): vtile(ht)
    k("s_waitcnt lgkmcnt(0)")
    for ht in range(4):
        vread(ht)
        if ht == 1: k("s_waitcnt lgkmcnt(4)"); vstore(0, Q_VA)
    for ht in range(1, 4): k(f"s_waitcnt lgkmcnt({4*(3-ht)})"); vstore(ht, Q_VA + ht)
    k("s_branch q_epid")
    k.label("q_epi3")
    k("s_nop 5")
    vtile(0)
    for tb in range(4):
        for i in range(4): k(f"v_mul_f32 v{Q_AC+16+4*tb+i}, v{Q_TS}, v{Q_AC+16+4*tb+i}")
    k("s_waitcnt lgkmcnt(0)")
    vread(0)
    for a_ in range(2):
        for h in range(2):
            for x in range(2): k(f"v_cvt_pk_bf16_f32 v{P+8+4*a_+2*h+x}, v{Q_AC+16+4*(a_+2*x)+2*h}, v{Q_AC+16+4*(a_+2*x)+2*h+1}")
    k(f"v_mov_b32 v{P+16}, 0x3f803f80", f"v_and_b32 v{P+17}, 8, v0", f"v_cmp_eq_u32 vcc, 0, v{P+17}")
    for a_ in range(2):
        for h in range(2): k(f"buffer_store_dwordx2 {v(P+8+4*a_+2*h,2)}, v{Q_STL}, s[16:19], 0 offen offset:{256*h + 128*a_} {SC}")
    k("s_waitcnt lgkmcnt(0)")
    for i in range(8): k(f"v_cndmask_b32 v{Q_AC+i}, v{P+16}, v{Q_AC+i}, vcc")
    vstore(0)
    k.label("q_epid")

def startup(k):
    k("s_cmp_ge_u32 s2, 256", "s_cbranch_scc1 mega_done")
    k("s_memrealtime s[56:57]")
    k(f"s_load_dwordx4 s[28:31], s[0:1], 0", f"s_load_dwordx2 s[32:33], s[0:1], {A_WO*8}", f"s_load_dwordx4 s[60:63], s[0:1], {A_WG*8}",
      f"s_load_dwordx4 s[48:51], s[0:1], {A_WD*8}", f"s_load_dwordx4 s[52:55], s[0:1], {A_DBG*8}")
    k("v_lshrrev_b32 v1, 6, v0", "v_and_b32 v0, 63, v0", "v_readfirstlane_b32 s20, v1", f"v_lshlrev_b32 v{V_L16}, 4, v0", "s_mov_b32 s3, 0")
    if STAMP[0]: k(f"v_mov_b32 v{V_STAMP}, 0")
    if int(OPT.get("cpf", 1)):
        k("s_cmp_lg_u32 s20, 3", "s_cbranch_scc1 no_cpf", "s_getpc_b64 s[34:35]")
        k.label("cpf_base")
        k("s_lshr_b32 s36, s2, 3", "s_mul_i32 s36, s36, 18", "v_add_u32 v4, s36, v0", f"v_and_b32 v4, 1023, v4", "v_lshlrev_b32 v4, 7, v4", "v_mov_b32 v7, s35")
        k("v_min_u32 v6, mega_done-cpf_base, v4", "v_add_co_u32 v2, vcc, s34, v6", "s_nop 1", "v_addc_co_u32 v3, vcc, 0, v7, vcc", "global_load_dword v5, v[2:3], off ; WAWOK")
        k.label("no_cpf")
    wgmap(k, int(OPT.get("q0map", 4)))
    T = 16
    q4, tk, tok, t3, t4, t5, t6, t7, tmp, t9 = range(T, T + 10)
    DQ, DO, TQ, TO = 32, 36, 38, 42
    k(f"v_lshrrev_b32 v{q4}, 4, v0", f"v_and_b32 v{tk}, 15, v0", "s_lshl_b32 s38, s20, 4", f"v_add_u32 v{tok}, s38, v{tk}")
    k(f"v_lshrrev_b32 v{t3}, 3, v0", f"v_add_u32 v{t3}, s38, v{t3}", f"v_mul_u32_u24 v{Q_XL}, 1152, v{t3}", f"v_and_b32 v{t3}, 7, v0", f"v_lshl_add_u32 v{Q_XL}, v{t3}, 4, v{Q_XL}", "s_movk_i32 s26, 9216")
    hi, c, u, h, col = t3, t4, t5, t6, t7
    k(f"v_lshrrev_b32 v{hi}, 5, v0", f"v_and_b32 v{c}, 31, v0", f"v_lshlrev_b32 v{tmp}, 1, v{hi}", f"v_sub_u32 v{c}, v{c}, v{tmp}")
    k(f"v_mul_u32_u24 v{u}, 57, v{c}", f"v_lshrrev_b32 v{u}, 9, v{u}", f"v_mul_u32_u24 v{u}, 1008, v{u}", f"v_lshl_add_u32 v{col}, v{c}, 4, v{u}")
    k(f"v_mul_u32_u24 v{tmp}, 3456, v{hi}", f"s_mul_i32 s42, s20, {8*3456}", f"v_add3_u32 v{col}, v{col}, v{tmp}, s42")
    k(f"v_mov_b32 v{t9}, 0x80000000", f"v_cmp_gt_u32 vcc, 27, v{c}", "s_nop 1", f"v_cndmask_b32 v{DQ}, v{t9}, v{col}, vcc")
    for i in range(1, 4): k(f"v_add_u32 v{DQ+i}, {i*(6912-1088)}, v{DQ}")
    k("s_sub_u32 s34, s2, 112", "s_lshr_b32 s35, s34, 3", "s_and_b32 s34, s34, 7", "s_movk_i32 s40, 6554")
    n_, lam, cc, t1, t2 = t3, t4, t5, t6, t7
    for x in range(2):
        if x == 0: k("s_lshl_b32 s41, s20, 6", f"v_add_u32 v{n_}, s41, v0")
        else: k(f"v_add_u32 v{n_}, 256, v0")
        k(f"v_mul_u32_u24 v{lam}, s40, v{n_}", f"v_lshrrev_b32 v{lam}, 16, v{lam}", f"v_mul_u32_u24 v{cc}, 10, v{lam}", f"v_sub_u32 v{cc}, v{n_}, v{cc}")
        k(f"v_lshrrev_b32 v{t1}, 4, v{lam}", f"v_lshl_add_u32 v{n_}, v{t1}, 1, v{lam}")
        k(f"v_bfe_u32 v{t2}, v{lam}, 2, 1", f"v_lshl_add_u32 v{t1}, v{t1}, 1, v{t2}", f"v_mul_u32_u24 v{t1}, 72, v{t1}")
        k(f"v_bfe_u32 v{t2}, v{lam}, 3, 1", f"v_mul_u32_u24 v{t2}, 36, v{t2}", f"v_add3_u32 v{t1}, v{t1}, v{t2}, 16", f"v_and_b32 v{t2}, 1, v{lam}", f"v_add_u32 v{t1}, v{t1}, v{t2}", f"v_bfe_u32 v{t2}, v{lam}, 1, 1", f"v_mul_u32_u24 v{t2}, 18, v{t2}", f"v_add_u32 v{t1}, v{t1}, v{t2}")
        k("s_cmp_lt_u32 s35, 16", "s_cselect_b64 vcc, -1, 0", f"v_cndmask_b32 v{t1}, v{t1}, v{n_}, vcc")
        k(f"v_mul_u32_u24 v{t1}, 1152, v{t1}", f"v_lshl_add_u32 v{t1}, v{cc}, 4, v{t1}", f"v_cmp_gt_u32 vcc, 9, v{cc}", "s_nop 1", f"v_cndmask_b32 v{DO+x}, v{t9}, v{t1}, vcc")
    k("s_cmp_eq_u32 s20, 0", "s_cselect_b64 vcc, -1, 0", f"v_cndmask_b32 v{DO+1}, v{t9}, v{DO+1}, vcc")
    k(f"s_mul_i32 s36, s35, {36*1152}", "s_sub_u32 s37, s35, 16", f"s_mul_i32 s37, s37, {288*1152}", "s_cmp_lt_u32 s35, 16", "s_cselect_b32 s36, s36, s37", "s_mul_i32 s37, s34, 144", "s_add_u32 s36, s36, s37")
    k("s_and_b32 s37, s2, 7", "s_mul_i32 s37, s37, 144", "s_lshr_b32 s39, s2, 3", f"s_mul_i32 s39, s39, {32*3456}", "s_add_u32 s37, s37, s39")
    srd_fill(k, 12, TILE)
    k(f"s_mul_i32 s39, s21, {TILE}")
    k("s_waitcnt lgkmcnt(0)")
    if STAMP[0]:
        k(f"v_writelane_b32 v{V_STAMP}, s56, 0"); NAMES.append("entry"); NST[0] += 1
    k("s_sub_u32 s89, s56, 5000")
    st(k, "kernarg")
    k(f"s_mov_b32 s{S_WS}, s54", f"s_mov_b32 s{S_WS+1}, s55", f"s_mov_b32 s{S_X}, s28", f"s_mov_b32 s{S_X+1}, s29", f"s_mov_b32 s{S_OUT}, s50", f"s_mov_b32 s{S_OUT+1}, s51")
    k("s_mov_b32 s4, s30", "s_mov_b32 s5, s31", "s_cmp_lt_u32 s2, 144", f"s_cselect_b32 s6, {D*3*D*2}, 0", "s_mov_b32 s7, 0x00020000")
    k("s_mov_b32 s8, s32", "s_mov_b32 s9, s33", "s_cmp_ge_u32 s2, 112", f"s_cselect_b32 s10, {D*D*2}, 0", "s_mov_b32 s11, 0x00020000")
    k("s_mul_i32 s40, s20, 4480", f"s_add_u32 m0, s40, {STG_Q}", "s_nop 0")
    for i in range(4): k(f"buffer_load_dwordx4 v{DQ+i}, s[4:7], s37 offen offset:{1088*i} lds")
    k("s_lshl_b32 s40, s20, 10", f"s_add_u32 m0, s40, {STG_O}", "s_nop 0", f"buffer_load_dwordx4 v{DO}, s[8:11], s36 offen lds")
    k("s_cmp_eq_u32 s20, 0", f"s_cselect_b32 m0, {STG_O + 4096}, 145920", "s_nop 0", f"buffer_load_dwordx4 v{DO+1}, s[8:11], s36 offen lds")
    if OPT.get("fine"): st(k, "p0_dmaq")
    add64(k, 12, S_X, 39)
    for n in range(18): k(f"buffer_load_dwordx4 {v(Q_X+4*n,4)}, v{Q_XL}, s[12:15], {'s26' if n >= 9 else '0'} offen offset:{128*(n%9)}")
    if OPT.get("fine"): st(k, "p0_xiss")
    k("s_mov_b32 s56, s52", "s_mov_b32 s57, s53"); srd_fill(k, 56, 256)
    k("s_or_b32 s38, s2, s20", "s_cmp_lg_u32 s38, 0", "s_cbranch_scc1 no_nonce")
    k("s_memrealtime s[38:39]", "s_waitcnt lgkmcnt(0)", "s_or_b32 s38, s38, 1", "s_mov_b64 exec, 1", "v_mov_b32 v9, 0", "v_mov_b32 v10, s38", "v_mov_b32 v11, s39")
    k(f"buffer_store_dwordx2 v[10:11], v9, s[56:59], 0 offen {SC}", "s_waitcnt vmcnt(0)", "s_mov_b64 exec, -1")
    k.label("no_nonce")
    k(f"s_add_u32 s{S_FL}, s{S_WS}, {hx(WS_F)}", f"s_addc_u32 s{S_FL+1}, s{S_WS+1}, 0"); srd_fill(k, S_FL, 12 * FT() + 5 * 8192)
    r4, c4 = t3, t4
    k(f"v_bfe_u32 v{r4}, v0, 2, 2", f"v_and_b32 v{c4}, 3, v0")
    k(f"v_mul_u32_u24 v{t5}, 4480, v{q4}", f"v_mul_u32_u24 v{t6}, 544, v{r4}", f"v_add3_u32 v{t5}, v{t5}, v{t6}, {STG_Q}".replace(f", {STG_Q}", ", 0"), f"v_add_u32 v{t5}, {STG_Q}, v{t5}", f"v_lshl_add_u32 v{t5}, v{c4}, 3, v{t5}")
    k("s_mul_i32 s40, s20, 144", "s_cmp_eq_u32 s20, 3", "s_cselect_b32 s40, 416, s40", "s_cselect_b64 vcc, -1, 0", f"v_add_u32 v{TQ}, s40, v{t5}")
    k("s_cmp_lt_u32 s20, 2", "s_cselect_b32 s41, 40, 32", f"v_add_u32 v{TQ+1}, s41, v{TQ}", f"v_lshl_add_u32 v{t6}, v{c4}, 6, v{t5}", f"v_add_u32 v{t6}, 32, v{t6}", f"v_cndmask_b32 v{TQ+1}, v{TQ+1}, v{t6}, vcc")
    k("s_cselect_b32 s41, 72, 64", f"v_add_u32 v{TQ+2}, s41, v{TQ}", "s_cselect_b32 s41, 112, 96", f"v_add_u32 v{TQ+3}, s41, v{TQ}")
    k(f"v_lshrrev_b32 v{t6}, 1, v{q4}", f"v_and_b32 v{t7}, 1, v{q4}", f"v_lshl_add_u32 v{tmp}, v{t7}, 2, v{r4}", f"v_lshl_add_u32 v{tmp}, v{t6}, 4, v{tmp}", f"v_mul_u32_u24 v{tmp}, 160, v{tmp}")
    k(f"v_lshl_add_u32 v{tmp}, v{c4}, 3, v{tmp}", f"v_add_u32 v{TO+1}, {STG_O + 128}, v{tmp}", "s_lshl_b32 s40, s20, 5", f"s_add_u32 s40, s40, {STG_O}", f"v_add_u32 v{TO}, s40, v{tmp}")
    k("s_and_b32 s40, s2, 7", "s_lshl_b32 s40, s40, 2", "s_add_u32 s40, s40, s20", f"s_mul_i32 s40, s40, {72*1024}", f"s_add_u32 s40, s40, {hx(WS_WQ)}")
    k("s_lshr_b32 s41, s2, 3", "s_lshl_b32 s41, s41, 12", "s_add_u32 s42, s41, 0x800", "s_cmp_eq_u32 s20, 3", "s_cselect_b64 vcc, -1, 0", f"v_cndmask_b32 v44, v{V_L16}, v{t9}, vcc")
    k(f"s_mul_i32 s43, s34, {90*1024}", f"s_add_u32 s43, s43, {hx(WS_WO)}", "s_mul_i32 s45, s35, 5120", "s_lshl_b32 s46, s20, 10", "s_add_u32 s46, s46, s45", "s_add_u32 s45, s45, 4096", "s_cmp_eq_u32 s20, 0", "s_cselect_b64 vcc, -1, 0", f"v_cndmask_b32 v45, v{t9}, v{V_L16}, vcc")
    k("s_mov_b32 s64, s62", "s_mov_b32 s65, s63", "s_mov_b64 s[72:73], s[48:49]", "s_lshr_b32 s74, s2, 3", "s_and_b32 s75, s2, 7")
    srd_fill(k, 60, D * F * 2); srd_fill(k, 64, D * F * 2)
    k("s_lshl_b32 s76, s75, 2", "s_add_u32 s76, s76, s20", f"s_mul_i32 s76, s76, {WFR*1024}", f"s_add_u32 s76, s76, {hx(WS_W)}"); add64(k, 68, S_WS, 76); srd_fill(k, 68, WFR * 1024)
    l8, l7 = t5, t6
    k(f"v_lshrrev_b32 v{l8}, 3, v0", f"v_and_b32 v{l7}, 7, v0", "s_lshl_b32 s76, s20, 3", f"v_add_u32 v{l8}, s76, v{l8}")
    k("s_and_b32 s76, s20, 1", "s_lshl_b32 s76, s76, 1", f"v_add_u32 v{tmp}, s76, v{t7}", f"v_lshlrev_b32 v{tmp}, 1, v{tmp}", f"v_xor_b32 v{tmp}, v{tmp}, v{l7}", f"v_lshlrev_b32 v{tmp}, 4, v{tmp}")
    k(f"v_mul_u32_u24 v{l8}, 9216, v{l8}", f"v_add_u32 v{V_PD}, v{tmp}, v{l8}")
    k(f"v_lshrrev_b32 v{tmp}, 1, v{r4}", f"v_lshl_add_u32 v{tmp}, v{t7}, 1, v{tmp}", f"v_xor_b32 v{tmp}, s20, v{tmp}", f"v_lshlrev_b32 v{tmp}, 5, v{tmp}", f"v_lshl_add_u32 v{tmp}, v{c4}, 3, v{tmp}", f"v_lshl_add_u32 v{tmp}, v{r4}, 7, v{tmp}")
    k(f"v_lshl_add_u32 v{V_PT0}, v{q4}, 10, v{tmp}")
    st(k, "p0_issued")
    k("s_waitcnt vmcnt(18)")
    if OPT.get("fine"): st(k, "p0_qland")
    k("s_barrier")
    if OPT.get("fine"): st(k, "p0_bar")
    PT = Q_AC
    for ht in range(4):
        for e in range(2):
            k(f"ds_read_b64_tr_b16 {v(PT+4*ht+2*e,2)}, v{TQ+ht} offset:{e*2176}")
    for x in range(2):
        for e in range(2): k(f"ds_read_b64_tr_b16 {v(PT+16+4*x+2*e,2)}, v{TO+x} offset:{e*1280}")
    add64(k, 4, S_WS, 40); k("s_cmp_lt_u32 s2, 144", f"s_cselect_b32 s6, {72*1024}, 0")
    add64(k, 8, S_WS, 43); k("s_cmp_ge_u32 s2, 112", f"s_cselect_b32 s10, {90*1024}, 0")
    k("s_waitcnt lgkmcnt(0)")
    for ht in range(4): k(f"buffer_store_dwordx4 {v(PT+4*ht,4)}, v{44 if ht >= 2 else V_L16}, s[4:7], s{41 + ht//2} offen offset:{1024*(ht&1)} {SC}")
    k(f"buffer_store_dwordx4 {v(PT+16,4)}, v{V_L16}, s[8:11], s46 offen {SC}", f"buffer_store_dwordx4 {v(PT+20,4)}, v45, s[8:11], s45 offen {SC}")
    st(k, "p0_prepst")
    q_setup(k)
    LT2 = 164; XR = 178
    ln_stats_norm(k, Q_X, Q_LT, 29); ln_stats_norm(k, Q_X, LT2, 29)
    c8, r8, u1 = 168, 169, 170
    k(f"v_and_b32 v{c8}, 7, v0", f"v_lshrrev_b32 v{r8}, 3, v0", f"v_xor_b32 v{r8}, v{r8}, v{c8}", f"v_lshlrev_b32 v{r8}, 4, v{r8}", f"v_and_b32 v{u1}, 3, v{c8}", f"v_lshl_add_u32 v{r8}, v{u1}, 8, v{r8}",
      f"v_lshrrev_b32 v{c8}, 2, v{c8}", f"v_lshl_add_u32 v{r8}, v{c8}, 12, v{r8}", "s_lshl_b32 s38, s20, 10", f"v_add_u32 v{Q_XW}, s38, v{r8}")
    k(f"v_lshrrev_b32 v{c8}, 4, v0", f"v_xor_b32 v{r8}, v0, v{c8}", f"v_lshlrev_b32 v{XR}, 4, v{r8}", f"v_xor_b32 v{XR+1}, 64, v{XR}", f"v_add_u32 v{XR+2}, 36864, v{XR}", f"v_add_u32 v{XR+3}, 36864, v{XR+1}")
    if OPT.get("fine"): st(k, "p0_qsetup")
    for i in range(18):
        k(f"s_waitcnt vmcnt({17 - i + 6})"); k(ln_acc(Q_X, Q_LT if i < 9 else LT2, 29, i))
    st(k, "p0_stats")
    k("v_mov_b32 v9, 0", "s_mov_b32 s23, 0x10000")
    k.label("non_l")
    k(f"buffer_load_dwordx2 v[10:11], v9, s[56:59], 0 offen {SC}", "s_waitcnt vmcnt(0)", f"v_readfirstlane_b32 s{S_NON}, v10", f"v_readfirstlane_b32 s{S_NON+1}, v11",
      "s_sub_u32 s23, s23, 1", "s_cbranch_scc1 non_d", f"s_cmp_eq_u32 s{S_NON}, 0", "s_cbranch_scc1 non_l", f"s_sub_u32 s24, s{S_NON}, s89", "s_cmp_lt_i32 s24, 0", "s_cbranch_scc1 non_l")
    k.label("non_d")
    publish(k, F_P0, layered=False, idx="phys")
    if OPT.get("fine"): st(k, "p0_pub")
    k("s_lshl_b32 s88, s20, 10")
    for rd in range(4): k(dma_round(rd, STG_F + 8192 * rd))
    if OPT.get("fine"): st(k, "p0_f0")
    for T_ in (Q_LT, LT2):
        k(f"v_add_f32 v{T_}, v{T_}, v{T_+1}", f"v_add_f32 v{T_+2}, v{T_+2}, v{T_+3}")
    for T_ in (Q_LT, LT2): xlane(k, T_, (1, 2, 4)); ln_fin2(k, T_)
    for i in list(range(0, 8)) + list(range(9, 17)) + [8, 17]:
        k(ln_apply(Q_X, Q_LT, i, True, Q_LT if i < 9 else LT2))
        if i == 8: k(f"v_add_u32 v{Q_XW}, 0x10000, v{Q_XW}")
        k(f"ds_write_b128 v{Q_XW}, {v(Q_X+4*i,4)} offset:{(8192*(i%9) if i % 9 < 8 else 0) + 128*(i//9)}")
    st(k, "p0_ln")
    k("s_waitcnt vmcnt(0) lgkmcnt(0)")
    wait(k, ["v_and_b32 v9, 31, v0", "v_min_u32 v9, 17, v9", "v_lshlrev_b32 v9, 3, v9", "s_bfe_u32 s23, s2, 0x30003", "s_add_u32 s23, s23, 112", "v_add_u32 v10, s23, v9", "v_add_u32 v9, s22, v9", "v_cmp_gt_u32 vcc, 32, v0", "s_nop 1", "v_cndmask_b32 v9, v10, v9, vcc", f"v_lshlrev_b32 v9, {FS[0]}, v9"])
    st(k, "p0_flags")
    N0 = int(OPT.get("n0", 12))
    for n in range(N0): k(q_aload(n))
    k("s_mov_b32 s14, 0")
    e1, e2 = int(OPT.get("e1", 17)), int(OPT.get("e2", 17))
    ex = {}
    FD = Q_X + 32
    def f0tr():
        k(f"v_add_u32 v{Q_T}, {STG_F}, v{V_PT0}", f"v_add_u32 v{Q_T+1}, 512, v{Q_T}")
        for rd in range(4):
            k(tr_round(FD + 8 * rd, Q_T, Q_T + 1, 8192 * rd))
            if rd == 1: k("s_waitcnt lgkmcnt(4)")
    ex.setdefault(12, []).append((f0tr, 0))
    for rd in range(4): ex.setdefault(e1 - 3 + rd, []).append((lambda rd=rd: k(st_round(rd, FD + 8 * rd)), 2))
    q_loop(k, N0, list(range(N0)), ex, chunk=False)
    k("s_branch q_epi")

def phase_qkv1(k):
    wgmap(k, int(OPT.get("q1map", 4)))
    q_setup(k)
    q4, tk = Q_T, Q_T + 1
    k("s_lshl_b32 s38, s20, 8", f"v_lshlrev_b32 v{Q_XL}, 10, v{q4}", f"v_lshl_add_u32 v{Q_XL}, v{tk}, 4, v{Q_XL}", f"v_add_u32 v{Q_XL}, s38, v{Q_XL}")
    k(f"s_mul_i32 s38, s21, {TILE}", f"s_add_u32 s38, s38, {hx(WS_XN)}"); add64(k, 8, S_WS, 38); srd_fill(k, 8, TILE)
    k("s_mov_b32 s27, 0", "s_lshl_b32 s38, s20, 10")
    NE = int(OPT.get("qne", 20))
    for n in range(NE): k(q_aload(n))
    wait(k, tile_flags(F_RED, prev_layer=True), pw=int(OPT.get("qpw", 3)))
    st(k, "q1_flags")
    for i in range(18):
        k(f"s_add_u32 m0, s38, {4096*i}", "s_nop 0" if i == 0 else "s_add_u32 s27, s27, 0x1000", f"buffer_load_dwordx4 v{Q_XL}, s[8:11], s27 offen {SC} lds")
    k("s_waitcnt vmcnt(12)", "s_barrier")
    st(k, "q1_x0")
    q_loop(k, NE, [f"X{i}" for i in range(6, 18)], {}, chunk="dma")

import k_att2 as AT
def phase_att(k):
    A = AT; T = A.V_T; SO = A.SO
    wgmap(k, 1)
    k(f"v_and_b32 v{T}, 31, v0", f"v_lshrrev_b32 v{T+1}, 5, v0")
    bias = [8, 9, 10, 11, 87]
    for i in range(5):
        k(f"s_add_i32 s23, s21, {i-4}", f"s_cmp_lt_i32 s23, 0", f"s_cselect_b32 s{bias[i]}, {A.NEG}, 0", "s_max_i32 s23, s23, 0",
          "s_lshl_b32 s23, s23, 3", "s_add_u32 s23, s23, s22", f"s_mul_i32 s{SO+i}, s23, {KVB}")
    k("s_lshl_b32 s15, s20, 11", f"v_add_u32 v{A.V_QMO}, s15, v{V_L16}", f"v_add_u32 v{A.V_KM}, {KV_KM}, v{A.V_QMO}")
    k("s_lshl_b32 s25, s20, 8", f"v_lshlrev_b32 v{A.V_KT}, 3, v{T}", f"v_add_u32 v{A.V_KT}, s25, v{A.V_KT}")
    k(f"v_mov_b32 v{T+3}, 0x80000000", f"v_cmp_gt_u32 vcc, 32, v0", f"v_add_u32 v{T+4}, {KV_QT}, v{A.V_KT}", f"v_add_u32 v{A.V_KT}, {KV_KT}, v{A.V_KT}")
    k(f"v_cndmask_b32 v{A.V_QT}, v{T+3}, v{T+4}, vcc", f"v_lshlrev_b32 v{T+4}, 2, v0", f"v_cndmask_b32 v{A.V_ST}, v{T+3}, v{T+4}, vcc")
    add64(k, 4, S_WS, 3); srd_fill(k, 4, 256 * KVB)
    k(f"v_mov_b32 v{T+9}, 0x3f80", f"v_mov_b32 v{T+8}, 0")
    for t in range(2):
        for p_ in range(2):
            q = A.V_Q1 + 8 * t + 4 * p_
            k(f"v_mov_b32 v{q + 1 - p_}, 0", f"v_cndmask_b32 v{q+2}, 0, v{T+9}, vcc", f"v_mov_b32 v{q+3}, 0")
    for i in range(5): k(f"v_mov_b32 v{T+9}, s{bias[i]}", f"v_accvgpr_write_b32 {a(A.A_K+12*i+3)}, v{T+8}", f"v_accvgpr_write_b32 {a(A.A_K+12*i+2)}, v{T+9}")
    k("s_mul_i32 s25, s20, 18", f"v_add_u32 v{T+4}, s25, v{T}", f"v_cmp_eq_u32 vcc, 18, v{T}", f"v_mov_b32 v{T+5}, 72", "s_nop 0", f"v_cndmask_b32 v{T+4}, v{T+4}, v{T+5}, vcc")
    k(f"v_lshrrev_b32 v{T+5}, 4, v{T+4}", f"v_and_b32 v{T+4}, 15, v{T+4}", f"v_lshlrev_b32 v{T+4}, 4, v{T+4}", f"v_lshl_add_u32 v{T+4}, v{T+5}, 11, v{T+4}", f"v_lshl_add_u32 v{T+4}, v{T+1}, 8, v{T+4}", f"v_add_u32 v{T+4}, {KV_V}, v{T+4}", f"v_cmp_gt_u32 vcc, 19, v{T}")
    k(f"v_lshlrev_b32 v{A.V_D4}, 2, v{T+1}", f"v_sub_u32 v{A.V_D4}, v{T}, v{A.V_D4}", f"v_cndmask_b32 v{A.V_VV}, v{T+3}, v{T+4}, vcc")
    for i in range(16): k(f"v_cmp_le_i32 s[{A.MSK+2*i}:{A.MSK+2*i+1}], {8*(i//4) + i%4}, v{A.V_D4}")
    k(f"v_mov_b32 v{T+9}, 0xffff")
    for d in range(8): k(f"v_cndmask_b32 v{A.V_MK+d}, 0, v{T+9}, s[{A.MSK+4*d}:{A.MSK+4*d+1}]")
    for d in range(8): k(f"v_cndmask_b32 v{A.V_MK+d}, v{A.V_MK+d}, -1, s[{A.MSK+4*d+2}:{A.MSK+4*d+3}]")
    k(f"s_mul_i32 s23, s21, {TILE}", "s_add_u32 s23, s23, s3", f"s_add_u32 s23, s23, {hx(WS_O)}"); add64(k, 16, S_WS, 23); srd_fill(k, 16, TILE)
    k("s_lshl_b32 s88, s22, 13", "s_add_u32 s88, s88, s15")
    k(f"v_lshlrev_b32 v{A.V_SO}, 4, v{T}", f"v_lshl_add_u32 v{A.V_SO}, v{T+1}, 10, v{A.V_SO}")
    k("s_add_u32 s89, s22, 64", "s_lshl_b32 s89, s89, 10", "s_lshl_b32 s23, s20, 8", "s_add_u32 s89, s89, s23")
    for i in range(4): k(f"v_mov_b32 v{A.V_MX+i}, 0xff7fffff")
    k("s_bfe_u32 s23, s2, 0x30003", f"s_mul_i32 s23, s23, {90*1024}", f"s_add_u32 s23, s23, {hx(WS_WO)}"); add64(k, 8, S_WS, 23); srd_fill(k, 8, 90 * 1024)
    st(k, "att_setup")
    wait(k, ["v_min_u32 v9, 4, v0", "s_sub_u32 s23, s21, 4", "v_add_u32 v9, s23, v9", "v_max_i32 v9, 0, v9", "v_lshlrev_b32 v9, 3, v9", "v_add_u32 v9, s22, v9", f"v_lshlrev_b32 v9, {FS[0]}, v9",
             f"s_add_u32 s23, s14, {F_QKV*FT()}", "v_add_u32 v9, s23, v9"])
    st(k, "att_flags")
    kk = Kern("t")
    if int(OPT.get("jt", 1)):
        kk("s_mov_b32 s26, 0", "s_mov_b32 s27, 0x00020000", "s_mov_b64 s[24:25], s[60:61]", "s_mov_b64 s[12:13], s[60:61]", "s_cmp_lg_u32 s3, 0", "s_cbranch_scc1 att_notouch")
        kk("s_lshl_b32 s76, s20, 5", "s_add_u32 s76, s76, s74", "s_add_u32 s76, s76, 128", "s_sub_u32 s77, s76, 162", "s_lshl_b32 s77, s77, 1", "s_cmp_lt_u32 s76, 162", "s_cselect_b32 s76, s76, s77",
          f"s_cselect_b32 s77, 9216, 1152", f"s_cselect_b32 s80, 1152, {576*1152}", f"s_cselect_b32 s81, 0, {32*1152}", "s_cselect_b64 s[24:25], s[60:61], s[72:73]", "s_cselect_b64 s[12:13], s[64:65], s[72:73]")
        kk(div18(76, 78, 79), "s_lshl_b32 s79, s79, 5", "s_mul_i32 s79, s79, s77", "s_lshl_b32 s78, s78, 7", "s_add_u32 s78, s78, s79", "s_mul_i32 s79, s75, s80", "s_add_u32 s78, s78, s79", "s_add_u32 s81, s81, s78")
        kk(f"s_mov_b32 s26, {hx(D*F*2)}", "att_notouch:", "v_and_b32 v9, 31, v0", "v_mul_u32_u24 v9, s77, v9")
        kk("buffer_load_dword v10, v9, s[24:27], s78 offen", "s_mov_b64 s[24:25], s[12:13]", "buffer_load_dword v11, v9, s[24:27], s81 offen")
    A.body(k, st, SC, kk.L)
def wo_dma(k):
    o = [["s_mul_i32 s26, s20, 23552", f"s_add_u32 s27, s26, {WOIMG}"]]
    for g in range(6):
        o.append(["s_mov_b32 m0, s27", "s_add_u32 s27, s27, 0x1000", f"buffer_load_dwordx4 v{V_L16}, s[8:11], s26 offen {SC} lds"])
        for i in range(1, 4 if g < 5 else 3): o.append(f"buffer_load_dwordx4 v{V_L16}, s[8:11], s26 offen offset:{1024*i} {SC} lds")
        o[-1] = [o[-1], "s_add_u32 s26, s26, 0x1000"]
    o[-2] = ["s_cmp_eq_u32 s20, 3", "s_cbranch_scc1 wo_dsk", o[-2]]; o[-1] = [o[-1][0], "wo_dsk:"]
    return o

W_XL, W_A0, W_A1, W_RL, W_SP, W_S8, W_T, W_AC, W_R, W_AF, W_B = 2, 3, 4, 5, 6, 7, 16, 36, 56, 184, 108
def phase_wo(k):
    wgmap(k, 8)
    T = W_T; q4, tk, tok, n, lam, c, t1, t2 = range(T, T + 8)
    k(f"v_lshrrev_b32 v{q4}, 4, v0", f"v_and_b32 v{tk}, 15, v0", "s_lshl_b32 s38, s20, 4", f"v_add_u32 v{tok}, s38, v{tk}")
    k(f"v_lshlrev_b32 v{W_XL}, 10, v{q4}", f"v_lshl_add_u32 v8, v{tok}, 2, v{W_XL}", f"v_lshl_add_u32 v{W_XL}, v{tok}, 4, v{W_XL}")
    k(f"s_mul_i32 s39, s21, {TILE}", "s_add_u32 s41, s39, s3", f"s_add_u32 s42, s41, {hx(WS_O)}"); add64(k, 4, S_WS, 42); srd_fill(k, 4, TILE)
    k(f"s_add_u32 s42, s{S_WS}, {hx(WS_X2)}", f"s_addc_u32 s43, s{S_WS+1}, 0", "s_cmp_eq_u32 s3, 0", f"s_cselect_b32 s8, s{S_X}, s42", f"s_cselect_b32 s9, s{S_X+1}, s43", "s_cselect_b64 vcc, -1, 0", "s_cselect_b32 s36, 32, 2048")
    k("s_mul_i32 s46, s22, 9216", "s_mul_i32 s37, s22, 144", "s_cselect_b32 s45, s37, s46")
    k("s_add_u32 s8, s8, s39", "s_addc_u32 s9, s9, 0"); srd_fill(k, 8, TILE)
    k(f"v_mul_u32_u24 v{t1}, 1152, v{tok}", f"v_lshl_add_u32 v{t1}, v{q4}, 3, v{t1}")
    k(f"v_lshrrev_b32 v{n}, 1, v{q4}", f"v_and_b32 v{lam}, 1, v{q4}")
    k(f"v_lshlrev_b32 v{t2}, 4, v{tok}", f"v_lshl_add_u32 v{c}, v{lam}, 3, v{t2}", f"v_lshl_add_u32 v{c}, v{n}, 10, v{c}")
    k(f"v_cndmask_b32 v{W_RL}, v{c}, v{t1}, vcc")
    k("s_mov_b64 s[48:49], s[8:9]", "s_mov_b64 s[50:51], s[10:11]")
    k(f"v_add_u32 v{W_A0}, {WOIMG}, v{V_L16}", f"v_add_u32 v{W_A1}, {WOIMG + 61440}, v{V_L16}")
    k(f"v_lshl_add_u32 v{t1}, v{lam}, 1, v{n}", f"v_lshl_add_u32 v{W_SP}, v{t1}, 10, v{t2}")
    k(f"v_lshl_add_u32 v{t1}, v{q4}, 3, v{t2}", f"v_add_u32 v{t1}, 8192, v{t1}", f"v_mov_b32 v{c}, 0x80000000", f"v_cmp_gt_u32 vcc, 2, v{q4}", "s_nop 1", f"v_cndmask_b32 v{W_S8}, v{c}, v{t1}, vcc")
    k(f"s_add_u32 s42, s41, {hx(WS_X1)}"); add64(k, 16, S_WS, 42); srd_fill(k, 16, TILE)
    k("s_add_u32 s47, s46, 4096", "s_mov_b32 s40, 0", "s_mov_b32 s29, 0x3f803f80", f"v_cndmask_b32 v{W_T+12}, 0, -1, vcc")
    k(f"v_lshlrev_b32 v{t1}, 3, v{tok}", f"v_cmp_gt_u32 vcc, 16, v0", "s_lshl_b32 s42, s21, 3", "s_add_u32 s42, s42, s22", "s_lshl_b32 s42, s42, 9", "s_add_u32 s42, s42, s3", f"s_add_u32 s42, s42, {hx(WS_SS)}", f"v_cndmask_b32 v{W_T+13}, v{c}, v{t1}, vcc")
    add64(k, 8, S_WS, 42); srd_fill(k, 8, 512)
    def aread(ks): return [f"ds_read_b128 {v(W_AF + 20*(ks%3) + 4*ht, 4)}, v{W_A1 if ks >= 12 else W_A0} offset:{(5*ks+ht)*1024 - (61440 if ks >= 12 else 0)}" for ht in range(5)]
    st(k, "wo_setup")
    k("s_waitcnt vmcnt(0)")
    kk = Kern("t"); wgmap(kk, int(OPT.get("map", 2)), 34, 35)
    kk.L = [x.replace("s44", "s30").replace("s45", "s31").replace("s46", "s32").replace("s47", "s33") for x in kk.L]
    wait(k, tile_flags(F_ATT) + kk.L + ["v_and_b32 v10, 31, v0", "s_lshl_b32 s35, s35, 5", "v_add_u32 v10, s35, v10", "v_lshlrev_b32 v10, 3, v10", f"v_add_u32 v10, {F_PF*FT()}, v10",
                               "v_cmp_gt_u32 vcc, 32, v0", "s_nop 1", "v_cndmask_b32 v9, v10, v9, vcc"])
    st(k, "wo_flags")
    for i in range(18):
        if i < 16: k(f"buffer_load_dwordx4 {v(W_B+4*i,4)}, v{W_XL}, s[4:7], s40 offen {SC}")
        else:
            for d in range(4): k(f"buffer_load_dword v{W_B+4*i+d}, v8, s[4:7], s40 offen offset:{256*d} {SC}")
        if i < 17: k("s_add_u32 s40, s40, 0x1000")
    k(aread(0), aread(1))
    RS = int(OPT.get("rs", 0))
    for ks in range(18):
        k(f"s_waitcnt vmcnt({(15 - ks + 8 if ks < 16 else 4 * (17 - ks)) + max(0, min(5, ks - RS))}) lgkmcnt({5 if ks < 17 else 0})")
        ar = aread(ks + 2) if ks < 16 else []
        for ht in range(5):
            ac = v(W_AC + 4 * ht, 4)
            k(f"v_mfma_f32_16x16x32_bf16 {ac}, {v(W_AF + 20*(ks%3) + 4*ht, 4)}, {v(W_B+4*ks,4)}, {'0' if ks == 0 else ac}")
            if ar: k(ar[ht])
        if RS <= ks < RS + 5: k(f"buffer_load_dwordx2 {v(W_R+2*(ks-RS),2)}, v{W_RL}, s[48:51], s45 offen {SC}", "s_add_u32 s45, s45, s36")
    k.label("wo_epi")
    st(k, "wo_mfma")
    k("s_waitcnt vmcnt(0)")
    for ht in range(5):
        for d in range(2):
            k(f"v_lshlrev_b32 v{T+4*(ht&1)+2*d}, 16, v{W_R+2*ht+d}", f"v_and_b32 v{T+4*(ht&1)+2*d+1}, 0xffff0000, v{W_R+2*ht+d}")
        if ht == 0: k("s_nop 3")
        for i in range(4): k(f"v_add_f32 v{W_AC+4*ht+i}, v{W_AC+4*ht+i}, v{T+4*(ht&1)+i}")
    P = W_B
    WO_STATS(k)
    for ht in range(0):
        for d in range(2): k(f"v_cvt_pk_bf16_f32 v{P+2*ht+d}, v{W_AC+4*ht+2*d}, v{W_AC+4*ht+2*d+1}")
    publish(k, F_WO)
    st(k, "wo_pub")

def WO_STATS(k):
    P = W_B; T = W_T + 8
    for ht in range(5):
        for d in range(2): k(f"v_cvt_pk_bf16_f32 v{P+2*ht+d}, v{W_AC+4*ht+2*d}, v{W_AC+4*ht+2*d+1}")
    k(f"v_and_b32 v{P+12}, v{P+8}, v{W_T+12}", f"v_and_b32 v{P+13}, v{P+9}, v{W_T+12}", f"v_mov_b32 v{T}, 0", f"v_mov_b32 v{T+2}, 0")
    for pr in range(2):
        for d in range(2): k(f"v_permlane16_swap_b32 v{P+4*pr+d}, v{P+4*pr+2+d}")
    k(f"buffer_store_dwordx4 {v(P,4)}, v{W_SP}, s[16:19], s46 offen {SC}", f"buffer_store_dwordx4 {v(P+4,4)}, v{W_SP}, s[16:19], s47 offen {SC}")
    k(f"buffer_store_dwordx2 {v(P+8,2)}, v{W_S8}, s[16:19], s46 offen {SC}")
    for x in list(range(P, P + 8)) + [P + 12, P + 13]:
        k(f"v_dot2c_f32_bf16 v{T}, s29, v{x}", f"v_dot2c_f32_bf16 v{T+2}, v{x}, v{x}")
    k("s_nop 2")
    xlane(k, T, (16, 32))
    k(f"v_mov_b32 v{T+1}, v{T+2}", f"buffer_store_dwordx2 {v(T,2)}, v{W_T+13}, s[8:11], 0 offen {SC}")
def phase_ffn(k):
    F_ = FF; mp = int(OPT.get("map", 2)); late = int(OPT.get("late", 8))
    wgmap(k, mp)
    k("s_mov_b32 s29, 0x3f803f80")
    t0, t1, t2, t5, t6 = 64, 65, 66, 67, 68
    k(f"v_lshrrev_b32 v{t0}, 4, v0", f"v_and_b32 v{t1}, 15, v0", "s_lshl_b32 s38, s20, 8")
    k(f"v_lshlrev_b32 v{t2}, 10, v{t0}", f"v_lshl_add_u32 v{t2}, v{t1}, 4, v{t2}", f"v_add_u32 v{F_.V_XL}, s38, v{t2}")
    k(f"s_mul_i32 s39, s21, {TILE}", "s_add_u32 s39, s39, s3", f"s_add_u32 s39, s39, {hx(WS_X1)}"); add64(k, 8, S_WS, 39); srd_fill(k, 8, TILE)
    k("s_lshl_b32 s24, s22, 2", "s_add_u32 s24, s24, s20", f"s_mul_i32 s24, s24, {WFR*1024}", f"s_add_u32 s24, s24, {hx(WS_W)}"); add64(k, 4, S_WS, 24); srd_fill(k, 4, WFR * 1024)
    k("s_lshl_b32 s41, s22, 5", "s_add_u32 s41, s41, s21", f"s_mul_i32 s41, s41, {TILE}", "s_add_u32 s41, s41, s3", f"s_add_u32 s41, s41, {hx(WS_P)}"); add64(k, 16, S_WS, 41); srd_fill(k, 16, TILE)
    k("s_mov_b32 s27, 0", "s_mov_b32 s40, 0")
    k(f"v_and_b32 v{t6}, 1, v{t0}", f"v_lshrrev_b32 v{t5}, 1, v{t0}", f"v_add_u32 v{F_.V_XR1}, 36864, v{V_L16}")
    k("s_lshr_b32 s41, s20, 1", "s_lshl_b32 s41, s41, 12", "s_and_b32 s42, s20, 1", "s_lshl_b32 s42, s42, 3", "s_add_u32 s41, s41, s42")
    k(f"v_add_u32 v{F_.V_HW}, s41, v{V_L16}")
    k("s_lshl_b32 s41, s20, 10", f"v_add_u32 v{F_.V_XW}, s41, v{V_L16}")
    k(f"v_lshlrev_b32 v{F_.V_ST}, 10, v{t5}", f"v_lshl_add_u32 v{F_.V_ST}, v{t6}, 8, v{F_.V_ST}", f"v_lshl_add_u32 v{F_.V_ST}, v{t1}, 4, v{F_.V_ST}")
    k("s_lshl_b32 s41, s20, 11", f"v_add_u32 v{F_.V_ST}, s41, v{F_.V_ST}", f"v_mov_b32 v{F_.V_C2}, {fl(F_.C2)}")
    k("s_cmp_eq_u32 s3, 0", "s_cselect_b32 s31, 0, 0x4000", "s_lshl_b32 s30, s21, 9", "s_add_u32 s31, s31, s30", f"s_add_u32 s31, s31, {12*FT()}")
    k("s_lshl_b32 s30, s22, 2", "s_add_u32 s30, s30, s20", "s_lshl_b32 s30, s30, 3", "s_add_u32 s30, s30, s31")
    k("s_lshl_b32 s42, s21, 12", "s_add_u32 s42, s42, s3", f"s_add_u32 s42, s42, {hx(WS_SS)}"); add64(k, 32, S_WS, 42); srd_fill(k, 32, 4096)
    k("s_lshl_b32 s42, s20, 7", f"v_lshlrev_b32 v{t2}, 3, v{t1}", f"v_lshl_add_u32 v{t2}, v{t0}, 10, v{t2}", f"v_add_u32 v{t2}, s42, v{t2}")
    k("s_mov_b32 s23, 0")
    F4.preload(k)
    k("s_mov_b32 s26, s23")
    k("s_cmp_lg_u32 s3, 0", "s_cbranch_scc1 ffn_nojs")
    js = jit_setup()
    k([x for x in js if x.startswith("s_") and "vcc" not in x and not x.startswith("s_lshl_b32 s76")])
    for n_, rd in enumerate(range(4, 8)):
        g_ = dma_round(rd, 0); pre = g_[0][:-3]; o2 = "s78" if rd <= 4 else "s77"
        k(pre, f"s_mov_b32 s{44+3*n_}, s78", f"s_mov_b32 s{45+3*n_}, {o2}", f"s_add_u32 s76, s74, {32*rd}", f"s_lshl_b32 s{46+3*n_}, s76, 11")
    k("s_cmp_lt_u32 s76, 243", f"s_cselect_b32 s56, {WFR*1024}, 0")
    k.label("ffn_nojs")
    wait(k, tile_flags(F_WO))
    st(k, "ffn_flags")
    if int(OPT.get("touch", 0)):
        per = 18 * mp * (1 if int(OPT["touch"]) == 1 else 1)
        k(f"s_mul_i32 s41, s44, {per}", "v_add_u32 v11, s41, v0", "v_lshlrev_b32 v11, 7, v11", f"v_cmp_gt_u32 vcc, {per}, v0", "v_mov_b32 v5, 0x80000000", f"s_mov_b32 s49, {int(OPT.get('tch0', 3)) * TILE}", "v_cndmask_b32 v11, v5, v11, vcc")
    k("s_mov_b32 s23, s26")
    LT = F_.V_LT
    k(f"buffer_load_dwordx2 {v(LT+8,2)}, v{t2}, s[32:35], 0 offen {SC}", f"buffer_load_dwordx2 {v(LT+10,2)}, v{t2}, s[32:35], 0 offen offset:512 {SC}")
    XS = int(OPT.get("xs", 8))
    def xl(i): return [f"buffer_load_dwordx4 {v(F_.V_X+4*i,4)}, v{F_.V_XL}, s[8:11], s40 offen {SC}"] + (["s_add_u32 s40, s40, 0x1000"] if i < 17 else [])
    for i in range(XS): k(xl(i))
    k(f"s_waitcnt vmcnt({XS})", f"v_add_f32 v{LT}, v{LT+8}, v{LT+10}", f"v_add_f32 v{LT+2}, v{LT+9}, v{LT+11}")
    kk = Kern("t"); xlane(kk, LT, (16, 32)); ln_fin2(kk, LT)
    k(merge(kk.L, [xl(i) for i in range(XS, 18)]))
    st(k, "ffn_stats")
    def lnq(i):
        kk = Kern("t"); kk(ln_apply(F_.V_X, F_.V_LT, i, pk=(i < 6))); ln_write(kk, i, F_.V_X, F_.V_XW); return kk.L
    F4.group0(k, lnq)
    st(k, "ffn_g0")
    PG = int(OPT.get("peel", 0))
    k(f"s_mov_b32 s25, {4 - PG}", "s_mov_b32 s26, 99", "s_cmp_lg_u32 s3, 0", "s_cbranch_scc1 ffn_loopA_odd")
    JD = 200
    x1 = {2: [x for x in jit_setup() if x.startswith("v_") or "vcc" in x or x.startswith(("s_lshl_b32 s76", "s_cmp_lt_u32 s74"))]}
    import re as _re
    for n_, rd in enumerate(range(4, 8)):
        g_ = dma_round(rd, STG_J + 8192 * n_)
        a0 = g_[0][-3:]; a1 = g_[1]
        x1[4 * (6 + 7 * n_)] = [a0[0]]; x1[4 * (6 + 7 * n_) + 1] = [a0[2].replace("s78 offen", f"s{44+3*n_} offen")]
        x1[4 * (9 + 7 * n_)] = [a1[0]]; x1[4 * (9 + 7 * n_) + 1] = [_re.sub(r"s7[78] offen", f"s{45+3*n_} offen", a1[2])]
    F4.groupA(k, 1, x1)
    x2 = {4 * 13 + 1: ["s_barrier"]}
    for n_, rd in enumerate(range(4, 8)):
        sel = 0 if rd == 4 else (2 if rd == 5 else 1)
        for e_, op in enumerate(tr_round(JD + 8 * n_, J_T0 + sel, J_T1 + sel, 8192 * n_)): x2[4 * (14 + 2 * n_ + e_ // 2) + 2 * (e_ % 2)] = [op]
        g_ = st_round(rd, JD + 8 * n_)
        x2[4 * (24 + 3 * n_) + 1] = (["s_waitcnt lgkmcnt(0)"] if n_ == 0 else []) + (["s_mov_b32 s70, s56"] if rd == 7 else []) + [g_[0][-1].replace("s78", f"s{46+3*n_}")]
        x2[4 * (25 + 3 * n_) + 1] = [g_[1][0].replace("s78", f"s{46+3*n_}")]
    F4.groupA(k, 2, x2)
    x3 = {4 * 18 + 1: ["s_lshl_b32 s76, s2, 2", "s_add_u32 s76, s76, s20", "s_lshl_b32 s76, s76, 3", f"s_add_u32 s76, s76, {FPJ()}", "s_mov_b64 exec, 1", "v_mov_b32 v9, 0", f"v_mov_b32 v10, s{S_NON}", f"v_mov_b32 v11, s{S_NON+1}",
                        f"buffer_store_dwordx2 v[10:11], v9, s[{S_FL}:{S_FL+3}], s76 offen {SC}", "s_mov_b64 exec, -1"]}
    F4.groupA(k, 3, x3)
    k(f"s_mov_b32 s25, {2 - PG}", f"s_mov_b32 s26, {2 - PG}", "v_and_b32 v9, 31, v0", "v_lshlrev_b32 v9, 3, v9", "v_add_u32 v9, s22, v9", "v_lshlrev_b32 v9, 2, v9", "v_add_u32 v9, s20, v9", "v_lshlrev_b32 v9, 3, v9", f"v_add_u32 v9, {FPJ()}, v9")
    k.label("ffn_loopA")
    F4.groupA(k, 2)
    k.label("ffn_loopA_odd")
    pl = f"buffer_load_dwordx2 v[10:11], v9, s[{S_FL}:{S_FL+3}], 0 offen {SC}"
    xo = {1: ["s_cmp_lg_u32 s25, s26", "s_cbranch_scc1 jit_p0", pl + " ; COND", "jit_p0:"],
          4 * 22 + 1: ["s_cmp_lg_u32 s25, s26", "s_cbranch_scc1 jit_p1", "s_mov_b32 s76, 0x10000", "jit_l:", f"v_cmp_ne_u64 vcc, s[{S_NON}:{S_NON+1}], v[10:11]", "s_sub_u32 s76, s76, 1", "s_cselect_b64 s[78:79], 0, -1", "s_nop 1",
                       "s_and_b64 vcc, vcc, s[78:79]", "s_cbranch_vccz jit_p1", pl + " ; COND", "s_waitcnt vmcnt(0)", "s_branch jit_l", "jit_p1:"]}
    F4.groupA(k, 1, xo)
    k("s_sub_u32 s25, s25, 1", "s_cmp_lg_u32 s25, 0", "s_cbranch_scc1 ffn_loopA")
    if PG: F4.groupA(k, 6); F4.groupA(k, 7)
    k(f"s_mul_i32 s50, s20, {17*1024}", f"s_add_u32 s50, s50, {F4.RES}", f"v_add_u32 v5, s50, v{V_L16}", "s_sub_u32 s50, s50, 4096")
    F4.groupA(k, 8)
    st(k, "ffn_A")
    hook = ["s_mov_b64 exec, 1", "v_mov_b32 v9, 0", f"v_mov_b32 v10, s{S_NON}", f"v_mov_b32 v11, s{S_NON+1}",
            f"buffer_store_dwordx2 v[10:11], v9, s[{S_FL}:{S_FL+3}], s30 offen {SC}", "s_mov_b64 exec, -1"]
    hook2 = [x.replace("s30 offen", "s30 offen offset:256") for x in hook] if int(OPT.get("mid2", 1)) else None
    F4.phaseB(k, OPT.get("bsc", SC), hook, st if OPT.get("bst") else None, hook2)
    st(k, "ffn_B")

def phase_red(k):
    R = 16; ACC = 100
    pm4, pm1, rm4, rm1, t0, t1 = 2, 3, 4, 5, 6, 7
    k("s_lshl_b32 s23, s22, 3", f"v_and_b32 v{t0}, 7, v0", f"v_add_u32 v{t0}, s23, v{t0}")
    k(f"v_lshrrev_b32 v{t1}, 3, v0", "s_lshl_b32 s24, s20, 3", f"v_add_u32 v{t1}, s24, v{t1}")
    k(f"v_lshlrev_b32 v{pm4}, 4, v{t0}", f"v_lshl_add_u32 v{pm4}, v{t1}, 10, v{pm4}", f"v_mul_u32_u24 v{rm4}, 1152, v{t0}", f"v_lshl_add_u32 v{rm4}, v{t1}, 4, v{rm4}")
    k(f"v_lshrrev_b32 v{t1}, 5, v0", "s_lshl_b32 s24, s20, 1", f"v_add_u32 v{t1}, s24, v{t1}", f"v_add_u32 v8, s23, v{t1}", "v_bfe_u32 v9, v0, 2, 3", "v_bfe_u32 v10, v0, 3, 2", "v_and_b32 v11, 3, v0")
    k("s_cmp_eq_u32 s3, 0", "s_cselect_b64 vcc, -1, 0", f"v_cndmask_b32 v{t0}, v8, v{t0}, vcc", f"v_cndmask_b32 v{t1}, v9, v{t1}, vcc", "v_cndmask_b32 v10, v11, v10, vcc", f"v_add_u32 v{t1}, 64, v{t1}")
    k(f"v_lshlrev_b32 v{pm1}, 4, v{t0}", f"v_lshl_add_u32 v{pm1}, v{t1}, 10, v{pm1}", f"v_mul_u32_u24 v{rm1}, 1152, v{t0}", f"v_lshl_add_u32 v{rm1}, v{t1}, 4, v{rm1}")
    k(f"v_lshl_add_u32 v{pm1}, v10, 2, v{pm1}", f"v_lshl_add_u32 v{rm1}, v10, 2, v{rm1}")
    k(f"s_mul_i32 s24, s21, {TILE}", "s_add_u32 s25, s24, s3"); add64(k, 4, S_WS, 25); srd_fill(k, 4, LSTR - 31 * TILE)
    k(f"s_add_u32 s8, s4, {hx(WS_X2)}", "s_addc_u32 s9, s5, 0"); add64(k, 26, S_OUT, 24)
    k("s_cmp_eq_u32 s3, 0", "s_cselect_b32 s8, s8, s26", "s_cselect_b32 s9, s9, s27", "s_cselect_b32 s28, 0x8000, 512", "s_cselect_b64 vcc, -1, 0"); srd_fill(k, 8, TILE)
    k(f"v_cndmask_b32 v{rm4}, v{rm4}, v{pm4}, vcc", f"v_cndmask_b32 v{rm1}, v{rm1}, v{pm1}, vcc")
    ACCB = 110
    def ld0(j, srd=4): return [f"buffer_load_dwordx4 {v(R+10*j,4)}, v{pm4}, s[{srd}:{srd+3}], s25 offen {SC}"]
    def ld1(j): return ["s_add_u32 s26, s25, 0x8000", f"buffer_load_dwordx4 {v(R+10*j+4,4)}, v{pm4}, s[4:7], s26 offen {SC}"]
    def ld2(j): return [f"buffer_load_dword v{R+10*j+8}, v{pm1}, s[4:7], s25 offen {SC}"]
    def over(fn):
        k(f"s_mov_b32 s25, {hx(WS_P)}")
        for j in range(8):
            k(fn(j))
            if j < 7: k(f"s_add_u32 s25, s25, {hx(ACT)}")
    k("v_lshlrev_b32 v9, 3, v0", f"buffer_load_dwordx2 v[10:11], v9, s[{S_FL}:{S_FL+3}], s31 offen {SC}")
    k("s_mov_b32 s32, 0x00003f80", "s_mov_b32 s33, 0x3f800000")
    for i in range(18): k(f"v_mov_b32 v{ACCB+i}, 0")
    k("s_waitcnt vmcnt(0)", f"v_cmp_ne_u64 vcc, s[{S_NON}:{S_NON+1}], v[10:11]", "s_nop 3", "s_cmp_eq_u32 vcc_lo, 0", "s_cselect_b32 s34, 1, 0", "s_cmp_eq_u32 vcc_hi, 0", "s_cselect_b32 s35, 1, 0", "s_cmp_eq_u32 s20, 3", "s_cselect_b32 s35, 0, s35")
    RP = int(OPT.get("rp", 2))
    if RP == 1: k("s_cselect_b32 s34, 0, s34")
    publish(k, F_FFN)
    k("s_cmp_eq_u32 s34, 0", "s_cbranch_scc1 red_noearly")
    over(ld0)
    k.label("red_noearly")
    k(f"s_mov_b32 s25, {hx(WS_X1)}"); k(ld0(8), ld1(8), ld2(8))
    k("s_cmp_eq_u32 s35, 0", "s_cbranch_scc1 red_noearly1")
    over(ld1)
    k.label("red_noearly1")
    wait(k, tile_flags(F_FFN), pw=3 if RP else 0)
    st(k, "red_flags")
    over(ld2)
    k("s_cmp_lg_u32 s35, 0", "s_cbranch_scc1 red_haveearly1")
    over(ld1)
    k.label("red_haveearly1")
    k("s_cmp_lg_u32 s34, 0", "s_cbranch_scc1 red_haveearly")
    over(ld0)
    k("s_waitcnt vmcnt(0)")
    k.label("red_haveearly")
    k("s_waitcnt vmcnt(16)")
    def acc(j, ds):
        for d in ds: k(f"v_dot2c_f32_bf16 v{ACCB+2*d}, s32, v{R+10*j+d}", f"v_dot2c_f32_bf16 v{ACCB+2*d+1}, s33, v{R+10*j+d}")
    k("s_cmp_eq_u32 s35, 0", "s_cbranch_scc1 red_w", "s_waitcnt vmcnt(8)")
    k.label("red_w")
    for j in range(9): acc(j, range(4))
    acc(8, range(4, 9))
    k("s_waitcnt vmcnt(0)")
    for j in range(8): acc(j, range(4, 9))
    k("s_nop 2")
    for d in range(9): k(f"v_cvt_pk_bf16_f32 v{R+d}, v{ACCB+2*d}, v{ACCB+2*d+1}")
    k(f"buffer_store_dwordx4 {v(R,4)}, v{rm4}, s[8:11], 0 offen {SC}", f"buffer_store_dwordx4 {v(R+4,4)}, v{rm4}, s[8:11], s28 offen {SC}", f"buffer_store_dword v{R+8}, v{rm1}, s[8:11], 0 offen {SC}")

def red_ln(k):
    R = 16; ACCB = 110; T = 130
    k(f"v_mov_b32 v{T}, 0", f"v_mov_b32 v{T+2}, 0", "s_mov_b32 s29, 0x3f803f80")
    for d in range(9): k(f"v_dot2c_f32_bf16 v{T}, s29, v{R+d}", f"v_dot2c_f32_bf16 v{T+2}, v{R+d}, v{R+d}")
    k("s_nop 1")
    xlane(k, T, (8, 16, 32))
    k(f"v_and_b32 v{T+8}, 7, v0", f"v_lshlrev_b32 v{T+8}, 3, v{T+8}", f"v_add_u32 v{T+8}, {TILE}, v{T+8}", "s_lshl_b32 s23, s20, 6", f"v_add_u32 v{T+9}, s23, v{T+8}", f"v_mov_b32 v{T+1}, v{T+2}")
    k(f"ds_write_b64 v{T+9}, {v(T,2)}", "s_waitcnt lgkmcnt(0)", "s_barrier")
    for w_ in range(4): k(f"ds_read_b64 {v(T+10+2*w_,2)}, v{T+8} offset:{64*w_}")
    k(f"s_add_u32 s8, s4, {hx(WS_XN)}", "s_addc_u32 s9, s5, 0")
    for d in range(9): k(f"v_lshlrev_b32 v{ACCB+2*d}, 16, v{R+d}", f"v_and_b32 v{ACCB+2*d+1}, 0xffff0000, v{R+d}")
    k("s_waitcnt lgkmcnt(0)")
    k(f"v_add_f32 v{T}, v{T+10}, v{T+12}", f"v_add_f32 v{T+2}, v{T+11}, v{T+13}", f"v_add_f32 v{T+14}, v{T+14}, v{T+16}", f"v_add_f32 v{T+15}, v{T+15}, v{T+17}", f"v_add_f32 v{T}, v{T}, v{T+14}", f"v_add_f32 v{T+2}, v{T+2}, v{T+15}")
    ln_fin2(k, T)
    for d in range(9): k(f"v_pk_fma_f32 {v(ACCB+2*d,2)}, {v(ACCB+2*d,2)}, {v(T+4,2)}, {v(T+6,2)} op_sel_hi:[1,0,0]")
    for d in range(9): k(f"v_cvt_pk_bf16_f32 v{R+12+d}, v{ACCB+2*d}, v{ACCB+2*d+1}")
    k(f"buffer_store_dwordx4 {v(R+12,4)}, v4, s[8:11], 0 offen {SC}", f"buffer_store_dwordx4 {v(R+16,4)}, v4, s[8:11], s28 offen {SC}", f"buffer_store_dword v{R+20}, v5, s[8:11], 0 offen {SC}")
def gen():
    k = Kern("mega")
    NST[0] = 0; NAMES.clear(); LBL[0] = 0; FS[0] = int(OPT.get("fs", 6))
    FF.STAMP = 0; FF.WG = int(OPT.get("wg", 1)); FF.TOUCH = 0
    st0 = len(k.L)
    startup(k)
    k.label("layer1")
    phase_qkv1(k)
    k.label("q_epi")
    q_epi(k)
    publish(k, F_QKV, extra=F_PF)
    st(k, "qkv_pub")
    phase_att(k)
    wd = wo_dma(k); n1 = int(OPT.get("wd1", 8))
    k(wd[:n1 + 1])
    publish(k, F_ATT, vm=n1, keep=True)
    k(wd[n1 + 1:])
    st(k, "att_pub")
    phase_wo(k)
    phase_ffn(k)
    phase_red(k)
    k("s_cmp_lg_u32 s3, 0", "s_cbranch_scc1 mega_end")
    red_ln(k)
    publish(k, F_RED)
    st(k, "red_pub")
    if STAMP[0]: dump(k, 0)
    k(f"s_mov_b32 s3, {hx(LSTR)}", f"s_mov_b32 s14, {5*FT()}", "s_branch layer1")
    k.label("mega_end")
    if STAMP[0]:
        k("s_waitcnt vmcnt(0)"); st(k, "end"); dump(k, 1)
    k.label("mega_done")
    k("s_endpgm")
    return k
def dump(k, L):
    LBL[0] += 1
    k("s_cmp_lg_u32 s20, 0", f"s_cbranch_scc1 dmp{LBL[0]}", f"s_lshl_b32 s23, s2, 9", f"s_add_u32 s23, s23, {hx(WS_ST + 256*L)}"); add64(k, 4, S_WS, 23); srd_fill(k, 4, 256)
    k("v_lshlrev_b32 v9, 2, v0", f"buffer_store_dword v{V_STAMP}, v9, s[4:7], 0 offen", "s_waitcnt vmcnt(0)")
    k.label(f"dmp{LBL[0]}")
class JP(list):
    def __init__(s): super().__init__([0, 1, 1, 1, 1, 1])
def trips(w):
    d = {"ffn_loopA": [0, 1, 1, 0] if int(OPT.get("peel", 0)) else [1, 0, 1, 1, 1, 0], "ffn_loopA_odd": [0, 1], "jit_p0": [0, 1, 1, 1, 1, 1], "jit_p1": JP(), "ffn_loopB": [1, 1, 0] * 2, "mega_end": [0, 1], "ffn_nomid": [1, 0, 1] * 2, "red_noearly": [0, 1], "red_haveearly": [1, 0], "red_noearly1": [w & 1, 1], "red_haveearly1": [1 - (w & 1), 0], "red_w": [w & 1, 1], "att_notouch": [0, 1], "ffn_nojs": [0, 1], "att_sk0": [0, 1], "att_sk1": [0, 1], "att_sk2": [0, 1], "q_nof": [0, 1], "att_noprep2": [0, 1], "ffn_noring": [1, 0], "ffn_ring2": [0, 1], "wo_l1": [0, 1],
         "q_epi2": 9 if w >= 2 else 0, "q_epi3": 9 if w == 3 else 0, "no_cpf": 0 if w == 3 else 9, "no_touch": 0 if w == 3 else 9, "q_noscale": 9 if w else 0, "no_nonce": 9 if w else 0}
    for i in range(17): d[f"res_sk{i}"] = [0, 1]
    d["wo_dsk"] = 9 if w == 3 else 0
    for i in range(1, 40):
        for n in (f"pub{i}", f"wt{i}_d", f"dmp{i}"): d[n] = 9 if w else 0
        d[f"pub{i}_x"] = [0, 1]
        d[f"wt{i}_d"] = 9 if w != POLLW.get(f"wt{i}", 0) else 0
    return d
```

```python
from common import *
from k_ffn3 import BREG, fread, gelu_ops, place, epiB_cvt, epiB_swap, epiB_store, V_WO, V_HW, V_AC, V_RG, V_HP, V_T, V_X, V_LT, V_XL, V_XW, V_ST, V_XR1, V_C2, C2, fill_has_ds
NPRE = 18
def cfg(): return int(OPT.get("na", 18)), int(OPT.get("nbb", 18))
def sreg(s): return V_RG + 4 * s if s < 18 else (200 + 4 * (s - 18) if s < 32 else 48 + 4 * (s - 32))
def slot(f):
    NA, NBB = cfg()
    if f in xset(): return 18 + xset().index(f)
    if f < 324: return f % NA
    b = (f - 324) % NBB
    return (324 + b) % NA if b < NA else b
RES = 92160
def xset(): return [324 + 24 + 8 * i for i in range(int(OPT.get("xr", 14)))]
def rset(): return [324 + 20 + 8 * i for i in range(17)] if int(OPT.get("res", 1)) else []
class Stream:
    def __init__(s, nxt, q): s.n = nxt; s.q = list(q); s.cnt = 0
    def load(s, k):
        f = s.n
        if f in xset():
            if f % 3 == 2: k("s_add_u32 s23, s23, 0xc00")
            s.n += 1
            return
        if f in rset():
            i = rset().index(f)
            k("s_cmp_lg_u32 s3, 0", f"s_cbranch_scc1 res_sk{i}", f"s_add_u32 m0, s50, {1024*i}", "s_nop 0",
              f"buffer_load_dwordx4 v{V_WO}, s[4:7], s23 offen sc1 lds" if f % 3 == 0 else f"buffer_load_dwordx4 v{V_WO}, s[4:7], s23 offen offset:{(f%3)*1024} sc1 lds", f"res_sk{i}:")
            k.L[-4] = f"s_add_u32 m0, s50, {1024*i - (f%3)*1024 + 4096}"
            if f % 3 == 2: k("s_add_u32 s23, s23, 0xc00")
            s.mark = getattr(s, "mark", {}); s.mark[f] = s.cnt; s.n += 1
            return
        s.cnt += 1
        k(f"buffer_load_dwordx4 {v(sreg(slot(f)), 4)}, v{V_WO}, s[4:7], s23 offen" + (f" offset:{(f%3)*1024}" if f % 3 else "") + OPT.get("wsc", " sc1"))
        if f % 3 == 2: k("s_add_u32 s23, s23, 0xc00")
        s.q.append(f); s.n += 1
    def wait(s, k, f):
        if f in s.q:
            i = s.q.index(f); k(f"s_waitcnt vmcnt({len(s.q) - 1 - i})"); s.q = s.q[i + 1:]
    def emit(s, k, ops):
        for x in ops:
            if x.startswith("XW"): x = f"s_waitcnt vmcnt({17 - int(x[3:]) + s.n - NPRE})"
            k(x)
            if x.startswith("buffer_") and "COND" not in x: s.q.append("x"); s.cnt += 1
def preload(k, a_=0, b_=NPRE):
    st = Stream(a_, [])
    for _ in range(a_, b_): st.load(k)
def posA(k, st, f, acc, fill, allow):
    n = f % 36; ks, m = n // 2, n % 2
    st.wait(k, f)
    for q_ in range(4):
        tb = 3 - q_ if m else q_
        d = v(acc + 16*m + 4*tb, 4)
        k(f"v_mfma_f32_16x16x32_bf16 {d}, {v(sreg(slot(f)), 4)}, {BREG(4*ks+tb)}, {'0' if ks == 0 else d}")
        if q_ == 3 and st.n <= allow(f) and st.n < 486: st.load(k)
        if q_ == 1 and st.n <= allow(f - 1) and st.n < 486: st.load(k)
        st.emit(k, fill[4*n + q_])
def group0(k, lnq):
    NA, _ = cfg()
    st = Stream(NPRE, range(NPRE))
    cuts = [int(x) for x in OPT.get("cuts", "0,6,12,18").split(",")]
    for i in range(cuts[1]): st.emit(k, [f"XW {i}"] + lnq(i))
    k("s_waitcnt lgkmcnt(0)", "s_barrier")
    for f in range(4 * cuts[1]):
        k(fread(f))
        if f % 12 == 11: k("s_waitcnt lgkmcnt(6)")
    fill = [[] for _ in range(144)]
    for c in range(1, len(cuts) - 1):
        g0, g1 = 8 * cuts[c - 1], 8 * cuts[c]
        nf = 4 * (cuts[c + 1] - cuts[c]); nr = max(4, min(11, (g1 - g0) // 3))
        ops = [x for i in range(cuts[c], cuts[c + 1]) for x in [f"XW {i}"] + lnq(i)]
        place(fill, ops, g0 + 1, g1 - nr - 1, 1)
        fill[g1 - nr - 1] += ["s_waitcnt lgkmcnt(0)", "s_barrier"]
        for f in range(nf):
            fill[g1 - nr + f * (nr - 1) // nf].append(fread(4 * cuts[c] + f))
            if f % 12 == 11: fill[g1 - nr + f * (nr - 1) // nf].append("s_waitcnt lgkmcnt(6)")
    allow = (lambda f: f + NA if f >= 10 else (f + NA if NA == 18 else -1))
    for n in range(36):
        if n % 2 == 0 and n // 2 in cuts:
            nq = cuts[cuts.index(n // 2) + 1] - n // 2
            k(f"s_waitcnt lgkmcnt({min(8, 4 * nq - 4)})")
        if n % 2 == 1 and n // 2 in cuts: k("s_waitcnt lgkmcnt(0)") if not fill_has_ds(fill, 4 * n - 4, 4 * n) else k("s_waitcnt lgkmcnt(1)")
        posA(k, st, n, V_AC, fill, allow)
    k("s_barrier")
    assert st.n == 36 + NA and st.q == list(range(36, 36 + NA)), (st.n, st.q)
def groupA(k, g, extra=None):
    NA, _ = cfg(); par = g & 1; last = g == 8
    st = Stream(36 * g + NA, range(36 * g, 36 * g + NA))
    gl = gelu_ops(V_AC + 32 * (1 - par)) + [f"v_add_u32 v{V_HW}, 0x2000, v{V_HW}"]
    fill = [[] for _ in range(144)]
    place(fill, gl, 6, 142)
    if int(OPT.get("touch", 0)) and par == 1:
        fill[1] += ["buffer_load_dword v5, v11, s[4:7], s49 offen ; WAWOK", f"s_add_u32 s49, s49, {TILE}"]
        if int(OPT.get("touch", 0)) == 2: fill[73] += ["buffer_load_dword v5, v11, s[4:7], s49 offen ; WAWOK", f"s_add_u32 s49, s49, {TILE}"]
    if last:
        k("s_waitcnt lgkmcnt(0)", "s_barrier")
        for f in range(56):
            gp = 4 * (2 * (f // 4) + 2) + (f % 4) * 2
            fill[gp].append(fread(f))
            if f % 8 == 7: fill[gp + 1].append("s_waitcnt lgkmcnt(4)")
    PG = int(OPT.get("peel", 0))
    if last or (PG and g in (6, 7)):
        xs = list(enumerate(xset())); ng = 3 if PG else 1; gi_ = g - 6 if PG else 0
        mine = xs[len(xs) * gi_ // ng: len(xs) * (gi_ + 1) // ng]
        for n_, (i, f) in enumerate(mine):
            fill[4 * (1 + n_ * 34 // max(1, len(mine))) + 1] += [f"s_mov_b32 s49, {f * 1024}", f"buffer_load_dwordx4 {v(sreg(18 + i), 4)}, v{V_WO}, s[4:7], s49 offen sc1"]
    for gp, ops in (extra or {}).items(): fill[gp] = fill[gp] + ops
    for n in range(36): posA(k, st, 36 * g + n, V_AC + 32 * par, fill, lambda f: f + NA)
def phaseB(k, sc, midhook, stp=None, midhook2=None):
    NA, NBB = cfg()
    st = Stream(324 + NA, range(324, 324 + NA))
    RO = int(OPT.get("ro", 0)); SP2 = int(OPT.get("sp2", 10))
    order = [(g, n) for g in range(9) for n in range(18)]
    if RO: order = [(0, n) for n in range(16)] + [(1, n) for n in range(16)] + [(0, 16), (0, 17), (1, 16), (1, 17)] + order[36:]
    sets = [V_AC + 32, V_AC + 48, V_AC] if RO else [V_AC + 32, V_AC + 48]
    accof = lambda g: sets[g % len(sets)]
    O = V_HP
    fill = [[] for _ in range(4 * 162)]
    GE = int(OPT.get("ge", 100)) if RO else 44
    place(fill, gelu_ops(V_AC), 4, GE, 1 if not RO else 0)
    fill[GE] += ["s_waitcnt lgkmcnt(0)", "s_barrier"]
    if RO:
        fill[8] += ["s_barrier"]
        for i in range(8): fill[12 + 4 * i].append(fread(56 + i))
        fill[4 * 13 + 1] += ["s_waitcnt lgkmcnt(1)"]
        for i in range(8): fill[GE + 1 + 2 * i].append(fread(64 + i))
        fill[4 * 31 + 2] += ["s_waitcnt lgkmcnt(0)"]
    else:
        for i in range(16): fill[45 + i // 2].append(fread(56 + i))
        fill[55] += ["s_waitcnt lgkmcnt(0)"]
    k("s_waitcnt lgkmcnt(0)")
    def epi(g, p0, p1, p2):
        b = 4 * p0
        place(fill, epiB_cvt(accof(g), O), b, b + 6); place(fill, epiB_swap(O), b + 8, b + 11)
        s_ = epiB_store(O, sc); fill[4 * p1 + 1].append(s_[0] + f" ; RG{g}"); fill[4 * p2 + 1] += [s_[1] + f" ; RG{g}", s_[2]]
    for g in range(8):
        if RO and g == 0: epi(0, 37, 40, 42)
        elif RO and g == 1: epi(1, 44, 47, 50)
        else: epi(g, 18 * (g + 1) + 1, 18 * (g + 1) + 4, 18 * (g + 1) + SP2)
    issued = {}
    def retired(gmax): return all(issued.get(g, 0) == 2 for g in range(gmax + 1)) and not any(isinstance(t, tuple) and t[1] <= gmax for t in st.q)
    first = set()
    for p, (g, n) in enumerate(order):
        f = 324 + p
        if stp and p in (18, 36, 90, 144): stp(k, f"B_p{p}")
        st.wait(k, f)
        if f in rset(): k("s_waitcnt lgkmcnt(0)")
        if f + 3 in rset():
            i = rset().index(f + 3)
            fill[4 * p + 1] = [f"s_waitcnt vmcnt({st.cnt - st.mark[f + 3]})", f"ds_read_b128 {v(sreg(slot(f + 3)), 4)}, v5 offset:{1024*i}"] + fill[4 * p + 1]
        for nm, hk, gm in (("mid", midhook, 3), ("mid2", midhook2, 6)):
            if hk and nm not in st.__dict__ and retired(gm):
                setattr(st, nm, True); st.emit(k, hk); print(nm, "flag at B pos", p, file=__import__("sys").stderr)
        acc = accof(g)
        for tb in range(4):
            d = v(acc + 4*tb, 4)
            k(f"v_mfma_f32_16x16x32_bf16 {d}, {v(sreg(slot(f)), 4)}, {BREG(4*n+tb)}, {'0' if n == 0 else d}")
            if tb == 3 and st.n <= f + NBB and st.n < 486: st.load(k)
            if tb == 1 and st.n <= f - 1 + NBB and st.n < 486: st.load(k)
            for x in fill[4*p + tb]:
                st.emit(k, [x])
                if "; RG" in x:
                    gg = int(x.split("RG")[1]); st.q[-1] = ("S", gg); issued[gg] = issued.get(gg, 0) + 1
    k("s_nop 7")
    k(epiB_cvt(acc, O)); k("s_nop 1"); k(epiB_swap(O)); k(epiB_store(O, sc))
```

```python
from common import *
import k_ffn3 as FF
import k_ffn4 as F4
LDS = 163840
SC = "sc1"
S_WS, S_X, S_OUT, S_NON, S_FL = 96, 98, 100, 90, 92
S_FO = 19
S_FO = 75 + 0
V_L16, V_PD, V_PT0, V_PT1, V_STAMP = 1, 12, 13, 14, 15
F_P0, F_QKV, F_ATT, F_WO, F_FFN, F_RED, F_PF = 0, 1, 2, 3, 4, 5, 11
STG_Q, STG_O, STG_F, STG_J = 73728, 91648, 96768, 73728
FS = [3]
def FT(): return 256 << FS[0]
def FPJ(): return 12 * FT() + 4 * 8192
F_PJ = 0
WOIMG = 0
NST = [0]
def st(k, name=""):
    if STAMP[0]:
        k("s_memtime s[0:1]" if STAMP[0] == 2 else "s_memrealtime s[0:1]", "s_waitcnt lgkmcnt(0)", f"v_writelane_b32 v{V_STAMP}, s0, {NST[0]}" + f" ; {name}")
        NAMES.append(name); NST[0] += 1
NAMES = []
def add64(k, d, base, off_s):
    k(f"s_add_u32 s{d}, s{base}, s{off_s}", f"s_addc_u32 s{d+1}, s{base+1}, 0")
LBL = [0]
POLLW = {}
def publish(k, fid, layered=True, vm=0, idx="task", extra=None, keep=False):
    LBL[0] += 1; L = f"pub{LBL[0]}"
    k(f"s_waitcnt vmcnt({vm})", "s_barrier", "s_cmp_lg_u32 s20, 0", f"s_cbranch_scc1 {L}")
    if idx == "task": k("s_lshl_b32 s23, s21, 3", "s_add_u32 s23, s23, s22", f"s_lshl_b32 s23, s23, {FS[0]}")
    else: k(f"s_lshl_b32 s23, s2, {FS[0]}")
    k(f"s_add_u32 s23, s23, {fid*FT()}")
    if layered: k("s_add_u32 s23, s23, s14")
    k("s_mov_b64 exec, 1", "v_mov_b32 v9, 0", f"v_mov_b32 v10, s{S_NON}", f"v_mov_b32 v11, s{S_NON+1}")
    k(f"buffer_store_dwordx2 v[10:11], v9, s[{S_FL}:{S_FL+3}], s23 offen {SC}")
    if extra is not None:
        k("s_cmp_lg_u32 s3, 0", f"s_cbranch_scc1 {L}_x")
        k("s_lshl_b32 s23, s75, 5", "s_add_u32 s23, s23, s74", "s_lshl_b32 s23, s23, 3", f"s_add_u32 s23, s23, {extra*FT()}", f"buffer_store_dwordx2 v[10:11], v9, s[{S_FL}:{S_FL+3}], s23 offen {SC}")
        k.label(f"{L}_x")
    k("s_mov_b64 exec, -1")
    k.label(L)
def wait(k, setup, pw=0):
    LBL[0] += 1; L = f"wt{LBL[0]}"; POLLW[L] = pw
    k(f"s_cmp_lg_u32 s20, {pw}", f"s_cbranch_scc1 {L}_d")
    k(setup, "s_mov_b32 s23, 0x10000")
    if int(OPT.get("pre", 0)): k(f"s_sleep {OPT['pre']}")
    k.label(f"{L}_l")
    if int(OPT.get("slp", 0)): k(f"s_sleep {OPT['slp']}")
    k(f"buffer_load_dwordx2 v[10:11], v9, s[{S_FL}:{S_FL+3}], 0 offen {SC}", "s_waitcnt vmcnt(0)")
    k(f"v_cmp_ne_u64 vcc, s[{S_NON}:{S_NON+1}], v[10:11]", "s_sub_u32 s23, s23, 1", "s_cselect_b64 s[24:25], 0, -1", "s_nop 1", "s_and_b64 vcc, vcc, s[24:25]", f"s_cbranch_vccnz {L}_l")
    k.label(f"{L}_d")
    k("s_barrier")
def tile_flags(fid, prev_layer=False):
    o = ["v_and_b32 v9, 7, v0", "s_lshl_b32 s23, s21, 3", "v_add_u32 v9, s23, v9", f"v_lshlrev_b32 v9, {FS[0]}, v9", f"s_add_u32 s23, s14, {hx(fid*FT() - (5*FT() if prev_layer else 0))}", "v_add_u32 v9, s23, v9"]
    return o

def div18(su, sq, sr): return [f"s_mul_i32 s{sq}, s{su}, 3641", f"s_lshr_b32 s{sq}, s{sq}, 16", f"s_mul_i32 s{sr}, s{sq}, 18", f"s_sub_u32 s{sr}, s{su}, s{sr}"]
def soffA(rd): return [f"s_add_u32 s76, s74, {32*rd}"] + div18(76, 78, 79) + [f"s_mul_i32 s79, s79, {32*9216}", "s_lshl_b32 s78, s78, 7", "s_add_u32 s78, s78, s79", "s_mul_i32 s79, s75, 1152", "s_add_u32 s78, s78, s79"]
def soffB(rd, d): return [f"s_add_u32 s76, s74, {hx(32*rd - 162)}", "s_lshl_b32 s76, s76, 1"] + div18(76, d, 79) + [f"s_mul_i32 s79, s79, {32*1152}", f"s_lshl_b32 s{d}, s{d}, 7", f"s_add_u32 s{d}, s{d}, s79", f"s_mul_i32 s79, s75, {576*1152}", f"s_add_u32 s{d}, s{d}, s79"]
J_PD, J_T0, J_T1 = 240, 243, 246
def dma_round(rd, lds):
    if rd <= 4: pre, s1, s2, o2, vd = soffA(rd), 60, 64, 78, V_PD
    elif rd == 5:
        pre = soffB(5, 77) + soffA(5) + ["s_cmp_lt_u32 s74, 2", "s_cselect_b32 s78, s78, s77", f"s_cselect_b32 s79, 0, {32*1152}", "s_add_u32 s77, s78, s79"]
        s1, s2, o2, vd = 80, 84, 77, J_PD + 2
    else: pre, s1, s2, o2, vd = soffB(rd, 78) + [f"s_add_u32 s77, s78, {32*1152}"], 36, 36, 77, J_PD + 1
    return [pre + [f"s_add_u32 m0, s88, {lds}", "s_nop 0", f"buffer_load_dwordx4 v{vd}, s[{s1}:{s1+3}], s78 offen lds"],
            [f"s_add_u32 m0, s88, {lds + 4096}", "s_nop 0", f"buffer_load_dwordx4 v{vd}, s[{s2}:{s2+3}], s{o2} offen lds"]]
def tr_round(T, t0, t1, off): return [f"ds_read_b64_tr_b16 {v(T + 4*u + 2*e, 2)}, v{(t0, t1)[e]} offset:{off + 4096*u}" for u in range(2) for e in range(2)]
def st_round(rd, T):
    pre = [f"s_add_u32 s76, s74, {32*rd}", "s_lshl_b32 s78, s76, 11"]
    if rd == 7: pre += ["s_cmp_lt_u32 s76, 243", f"s_cselect_b32 s70, {WFR*1024}, 0"]
    return [pre + [f"buffer_store_dwordx4 {v(T,4)}, v{V_L16}, s[68:71], s78 offen {SC}"], [f"buffer_store_dwordx4 {v(T+4,4)}, v{V_L16}, s[68:71], s78 offen offset:1024 {SC}"]]
def jit_setup():
    q4, r4, c4, t, l8 = 250, 251, 252, 253, 254
    o = [f"v_lshrrev_b32 v{q4}, 4, v0", f"v_bfe_u32 v{r4}, v0, 2, 2", f"v_and_b32 v{c4}, 7, v0", f"v_lshlrev_b32 v{t}, 1, v{q4}", f"v_xor_b32 v{t}, v{t}, v{c4}", f"v_lshlrev_b32 v{t}, 4, v{t}",
         f"v_lshrrev_b32 v{l8}, 3, v0", "s_lshl_b32 s76, s20, 3", f"v_add_u32 v{l8}, s76, v{l8}", f"v_mul_u32_u24 v{l8}, 1152, v{l8}", f"v_add_u32 v{J_PD+1}, v{t}, v{l8}",
         f"v_add_u32 v{J_T0}, {STG_J}, v{V_PT0}", f"v_add_u32 v{J_T1}, 512, v{J_T0}", f"v_lshlrev_b32 v{t}, 9, v{q4}", f"v_sub_u32 v{J_T0+1}, v{J_T0}, v{t}", f"v_add_u32 v{J_T1+1}, 2048, v{J_T0+1}",
         "s_cmp_lt_u32 s74, 2", "s_cselect_b64 vcc, -1, 0", "s_cselect_b64 s[80:81], s[60:61], s[72:73]", "s_cselect_b64 s[84:85], s[64:65], s[72:73]", "s_mov_b64 s[36:37], s[72:73]",
         f"v_cndmask_b32 v{J_PD+2}, v{J_PD+1}, v{V_PD}, vcc", f"v_cndmask_b32 v{J_T0+2}, v{J_T0+1}, v{J_T0}, vcc", f"v_cndmask_b32 v{J_T1+2}, v{J_T1+1}, v{J_T1}, vcc", "s_lshl_b32 s88, s20, 10"]
    for r_ in (36, 80, 84): o += [f"s_mov_b32 s{r_+2}, {hx(D*F*2)}", f"s_mov_b32 s{r_+3}, 0x00020000"]
    return o

Q_XL, Q_SQ, Q_S8, Q_STL, Q_TS, Q_BR1, Q_XW = 2, 3, 4, 5, 6, 7, 8
Q_A2 = 160
Q_VW, Q_VR, Q_VA = 172, 173, 174
Q_AC, Q_B, Q_LT, Q_T, Q_X = 48, 112, 144, 161, 184
BREG = FF.BREG
def q_aload(n):
    o = [f"buffer_load_dwordx4 {BREG(n)}, v{Q_A2 if n % 4 >= 2 else V_L16}, s[4:7], s26 offen" + (f" offset:{(n%4)*1024}" if n % 4 else "") + f" {SC}"]
    if n % 4 == 3: o.append("s_add_u32 s26, s26, 0x1000")
    return o
def q_setup(k):
    q4, tk, r1, r2, t5, t6 = range(Q_T, Q_T + 6)
    k(f"v_lshrrev_b32 v{q4}, 4, v0", f"v_and_b32 v{tk}, 15, v0", f"v_and_b32 v{r1}, 1, v{q4}", f"v_lshrrev_b32 v{r2}, 1, v{q4}")
    k("s_lshl_b32 s38, s20, 10", f"v_add_u32 v{Q_XW}, s38, v{V_L16}", f"v_add_u32 v{Q_BR1}, 36864, v{V_L16}")
    k(f"v_lshlrev_b32 v{t5}, 4, v{tk}", f"v_lshl_add_u32 v{t6}, v{r2}, 9, v{t5}", f"v_lshl_add_u32 v{Q_SQ}, v{r1}, 11, v{t6}")
    k("s_lshl_b32 s40, s20, 13", "s_add_u32 s41, s40, 0x400", "s_add_u32 s42, s40, 0x1000", "s_add_u32 s43, s41, 0x1000")
    k("s_and_b32 s39, s20, 1", "s_mul_i32 s39, s39, 9216", f"s_add_u32 s39, s39, {STG_Q}")
    k(f"v_mul_u32_u24 v{t6}, 144, v{tk}", f"v_lshl_add_u32 v{t6}, v{q4}, 3, v{t6}", f"v_add_u32 v{Q_VW}, s39, v{t6}")
    k(f"v_bfe_u32 v{t6}, v0, 2, 2", f"v_lshl_add_u32 v{t6}, v{r1}, 2, v{t6}", f"v_lshl_add_u32 v{t6}, v{r2}, 4, v{t6}", f"v_mul_u32_u24 v{t6}, 144, v{t6}", f"v_and_b32 v{Q_VR}, 3, v0", f"v_lshl_add_u32 v{t6}, v{Q_VR}, 3, v{t6}", f"v_add_u32 v{Q_VR}, s39, v{t6}")
    k(f"v_lshlrev_b32 v{t6}, 4, v{tk}", f"v_lshl_add_u32 v{t6}, v{r1}, 8, v{t6}", f"v_lshl_add_u32 v{t6}, v{r2}, 9, v{t6}")
    k("s_and_b32 s39, s20, 1", "s_lshl_b32 s39, s39, 13", f"s_add_u32 s39, s39, {KV_V}", f"v_add_u32 v{Q_VA}, s39, v{t6}", f"v_add_u32 v{Q_VA+1}, 0x1000, v{Q_VA}")
    k(f"v_mov_b32 v{r1}, 0x80000000", f"v_cmp_gt_u32 vcc, 32, v0", f"v_mov_b32 v{r2}, {fl(QSCALE)}", "s_nop 0", f"v_cndmask_b32 v{Q_TS}, 1.0, v{r2}, vcc")
    k(f"v_lshlrev_b32 v{t6}, 9, v{q4}", f"v_lshl_add_u32 v{t6}, v{tk}, 3, v{t6}", f"v_add_u32 v{Q_STL}, {KV_QT}, v{t6}")
    k("s_cmp_eq_u32 s20, 3", "s_cselect_b64 vcc, -1, 0", f"v_cndmask_b32 v{Q_A2}, v{V_L16}, v{r1}, vcc")
    k("s_lshl_b32 s38, s22, 2", "s_add_u32 s38, s38, s20", f"s_mul_i32 s38, s38, {72*1024}", f"s_add_u32 s38, s38, {hx(WS_WQ)}"); add64(k, 4, S_WS, 38); srd_fill(k, 4, 72 * 1024)
    k("s_lshl_b32 s38, s21, 3", "s_add_u32 s38, s38, s22", f"s_mul_i32 s38, s38, {KVB}", "s_add_u32 s38, s38, s3"); add64(k, 16, S_WS, 38); srd_fill(k, 16, KVB)
    k("s_mov_b32 s26, 0", "s_mov_b32 s29, 0x3f803f80", f"s_mov_b32 s28, {fl(QSCALE)}")
def ln_write(k, i, X, XW):
    off = i * 4096
    if i == 16: k(f"v_add_u32 v{XW}, 0x10000, v{XW}")
    k(f"ds_write_b128 v{XW}, {v(X+4*i,4)} offset:{off if off < 65536 else off - 65536}")
def q_bread(ks, sw=False): return [f"ds_read_b128 {v(Q_B + 16*(ks&1) + 4*tb, 4)}, v{(178 + (ks & 1) + (2 if ks >= 9 else 0)) if sw else (Q_BR1 if ks >= 9 else V_L16)} offset:{((4*ks+tb) % 36)*1024}" for tb in range(4)]
def q_lnq(i, pk):
    kk = Kern("t"); kk(ln_apply(Q_X, Q_LT, i, pk=pk)); ln_write(kk, i, Q_X, Q_XW); return kk.L
def q_loop(k, na, q, extra, chunk=True):
    k(q_bread(0, chunk is False))
    fill = [[] for _ in range(18 * 16)]
    for c in ((1, 2) if chunk is True else ()):
        ops = [x for i in range(6 * c, 6 * c + 6) for x in q_lnq(i, False)]
        g0 = 96 * (c - 1)
        gaps = [g for g in range(g0, g0 + 80) if g % 4 in (1, 3)]
        for n, x in enumerate(ops): fill[gaps[n * len(gaps) // len(ops)]].append(x)
    for ks in range(18):
        need = 4 * ks + 3
        assert need < na, (ks, na)
        if chunk == "dma" and ks in (5, 11) and f"X{ks+6}" in q and (need not in q or q.index(need) < q.index(f"X{ks+6}")): need = f"X{ks+6}"
        if need in q:
            w = len(q) - 1 - q.index(need); q = q[q.index(need) + 1:]
            k(f"s_waitcnt vmcnt({min(63, w)}) lgkmcnt(0)")
        else: k("s_waitcnt lgkmcnt(0)")
        if ks in (5, 11) and chunk: k("s_barrier")
        br = q_bread(ks + 1, chunk is False) if ks < 17 else []
        for tb in range(4):
            for ht in range(4):
                ac = v(Q_AC + 16*ht + 4*tb, 4)
                k(f"v_mfma_f32_16x16x32_bf16 {ac}, {BREG(4*ks+ht)}, {v(Q_B + 16*(ks&1) + 4*tb, 4)}, {'0' if ks == 0 else ac}")
                if tb < 2 and ht in (0, 1) and br: k(br[2 * tb + ht])
                if ht == 2 and na < 72 and len(q) < 44: k(q_aload(na)); q.append(na); na += 1
                k(fill[16 * ks + 4 * tb + ht])
        for fn, nv in extra.get(ks, []):
            fn(); q += ["x"] * nv
def q_epi(k):
    st(k, "qkv_mfma")
    P = Q_X
    k("s_cmp_ge_u32 s20, 2", "s_cbranch_scc1 q_epi2", "s_cmp_lg_u32 s20, 0", "s_cbranch_scc1 q_noscale", "s_nop 3")
    for i in range(64): k(f"v_mul_f32 v{Q_AC+i}, s28, v{Q_AC+i}")
    k.label("q_noscale")
    k("s_nop 3")
    for pr in range(2):
        for tb in range(4):
            O = P + 16 * pr + 4 * tb
            for h in range(2):
                for d in range(2): k(f"v_cvt_pk_bf16_f32 v{O+2*h+d}, v{Q_AC+16*(2*pr+h)+4*tb+2*d}, v{Q_AC+16*(2*pr+h)+4*tb+2*d+1}")
        for tb in range(4):
            O = P + 16 * pr + 4 * tb
            for d in range(2): k(f"v_permlane16_swap_b32 v{O+d}, v{O+2+d}")
        for tb in range(4):
            k(f"buffer_store_dwordx4 {v(P+16*pr+4*tb,4)}, v{Q_SQ}, s[16:19], s{40 + 2*pr + (tb>>1)} offen offset:{256*(tb&1)} {SC}")
    k("s_branch q_epid")
    k.label("q_epi2")
    k("s_cmp_eq_u32 s20, 3", "s_cbranch_scc1 q_epi3", "s_nop 5")
    def vtile(ht):
        for tb in range(4):
            O = P + 8 * ht + 2 * tb
            for d in range(2): k(f"v_cvt_pk_bf16_f32 v{O+d}, v{Q_AC+16*ht+4*tb+2*d}, v{Q_AC+16*ht+4*tb+2*d+1}")
            k(f"ds_write_b64 v{Q_VW}, {v(O,2)} offset:{tb*16*144 + 32*ht}")
    def vread(ht):
        for pr in range(2):
            for e in range(2): k(f"ds_read_b64_tr_b16 {v(Q_AC+8*ht+4*pr+2*e,2)}, v{Q_VR} offset:{pr*32*144 + e*8*144 + 32*ht}")
    def vstore(ht, va=None):
        for pr in range(2): k(f"buffer_store_dwordx4 {v(Q_AC+8*ht+4*pr,4)}, v{Q_VA + ht//2}, s[16:19], 0 offen offset:{(ht&1)*2048 + pr*1024} {SC}")
    for ht in range(4): vtile(ht)
    k("s_waitcnt lgkmcnt(0)")
    for ht in range(4):
        vread(ht)
        if ht == 1: k("s_waitcnt lgkmcnt(4)"); vstore(0, Q_VA)
    for ht in range(1, 4): k(f"s_waitcnt lgkmcnt({4*(3-ht)})"); vstore(ht, Q_VA + ht)
    k("s_branch q_epid")
    k.label("q_epi3")
    k("s_nop 5")
    vtile(0)
    for tb in range(4):
        for i in range(4): k(f"v_mul_f32 v{Q_AC+16+4*tb+i}, v{Q_TS}, v{Q_AC+16+4*tb+i}")
    k("s_waitcnt lgkmcnt(0)")
    vread(0)
    for a_ in range(2):
        for h in range(2):
            for x in range(2): k(f"v_cvt_pk_bf16_f32 v{P+8+4*a_+2*h+x}, v{Q_AC+16+4*(a_+2*x)+2*h}, v{Q_AC+16+4*(a_+2*x)+2*h+1}")
    k(f"v_mov_b32 v{P+16}, 0x3f803f80", f"v_and_b32 v{P+17}, 8, v0", f"v_cmp_eq_u32 vcc, 0, v{P+17}")
    for a_ in range(2):
        for h in range(2): k(f"buffer_store_dwordx2 {v(P+8+4*a_+2*h,2)}, v{Q_STL}, s[16:19], 0 offen offset:{256*h + 128*a_} {SC}")
    k("s_waitcnt lgkmcnt(0)")
    for i in range(8): k(f"v_cndmask_b32 v{Q_AC+i}, v{P+16}, v{Q_AC+i}, vcc")
    vstore(0)
    k.label("q_epid")

def startup(k):
    k("s_cmp_ge_u32 s2, 256", "s_cbranch_scc1 mega_done")
    k("s_memrealtime s[56:57]")
    k(f"s_load_dwordx4 s[28:31], s[0:1], 0", f"s_load_dwordx2 s[32:33], s[0:1], {A_WO*8}", f"s_load_dwordx4 s[60:63], s[0:1], {A_WG*8}",
      f"s_load_dwordx4 s[48:51], s[0:1], {A_WD*8}", f"s_load_dwordx4 s[52:55], s[0:1], {A_DBG*8}")
    k("v_lshrrev_b32 v1, 6, v0", "v_and_b32 v0, 63, v0", "v_readfirstlane_b32 s20, v1", f"v_lshlrev_b32 v{V_L16}, 4, v0", "s_mov_b32 s3, 0")
    if STAMP[0]: k(f"v_mov_b32 v{V_STAMP}, 0")
    if int(OPT.get("cpf", 1)):
        k("s_cmp_lg_u32 s20, 3", "s_cbranch_scc1 no_cpf", "s_getpc_b64 s[34:35]")
        k.label("cpf_base")
        k("s_lshr_b32 s36, s2, 3", "s_mul_i32 s36, s36, 18", "v_add_u32 v4, s36, v0", f"v_and_b32 v4, 1023, v4", "v_lshlrev_b32 v4, 7, v4", "v_mov_b32 v7, s35")
        k("v_min_u32 v6, mega_done-cpf_base, v4", "v_add_co_u32 v2, vcc, s34, v6", "s_nop 1", "v_addc_co_u32 v3, vcc, 0, v7, vcc", "global_load_dword v5, v[2:3], off ; WAWOK")
        k.label("no_cpf")
    wgmap(k, int(OPT.get("q0map", 4)))
    T = 16
    q4, tk, tok, t3, t4, t5, t6, t7, tmp, t9 = range(T, T + 10)
    DQ, DO, TQ, TO = 32, 36, 38, 42
    k(f"v_lshrrev_b32 v{q4}, 4, v0", f"v_and_b32 v{tk}, 15, v0", "s_lshl_b32 s38, s20, 4", f"v_add_u32 v{tok}, s38, v{tk}")
    k(f"v_lshrrev_b32 v{t3}, 3, v0", f"v_add_u32 v{t3}, s38, v{t3}", f"v_mul_u32_u24 v{Q_XL}, 1152, v{t3}", f"v_and_b32 v{t3}, 7, v0", f"v_lshl_add_u32 v{Q_XL}, v{t3}, 4, v{Q_XL}", "s_movk_i32 s26, 9216")
    hi, c, u, h, col = t3, t4, t5, t6, t7
    k(f"v_lshrrev_b32 v{hi}, 5, v0", f"v_and_b32 v{c}, 31, v0", f"v_lshlrev_b32 v{tmp}, 1, v{hi}", f"v_sub_u32 v{c}, v{c}, v{tmp}")
    k(f"v_mul_u32_u24 v{u}, 57, v{c}", f"v_lshrrev_b32 v{u}, 9, v{u}", f"v_mul_u32_u24 v{u}, 1008, v{u}", f"v_lshl_add_u32 v{col}, v{c}, 4, v{u}")
    k(f"v_mul_u32_u24 v{tmp}, 3456, v{hi}", f"s_mul_i32 s42, s20, {8*3456}", f"v_add3_u32 v{col}, v{col}, v{tmp}, s42")
    k(f"v_mov_b32 v{t9}, 0x80000000", f"v_cmp_gt_u32 vcc, 27, v{c}", "s_nop 1", f"v_cndmask_b32 v{DQ}, v{t9}, v{col}, vcc")
    for i in range(1, 4): k(f"v_add_u32 v{DQ+i}, {i*(6912-1088)}, v{DQ}")
    k("s_sub_u32 s34, s2, 112", "s_lshr_b32 s35, s34, 3", "s_and_b32 s34, s34, 7", "s_movk_i32 s40, 6554")
    n_, lam, cc, t1, t2 = t3, t4, t5, t6, t7
    for x in range(2):
        if x == 0: k("s_lshl_b32 s41, s20, 6", f"v_add_u32 v{n_}, s41, v0")
        else: k(f"v_add_u32 v{n_}, 256, v0")
        k(f"v_mul_u32_u24 v{lam}, s40, v{n_}", f"v_lshrrev_b32 v{lam}, 16, v{lam}", f"v_mul_u32_u24 v{cc}, 10, v{lam}", f"v_sub_u32 v{cc}, v{n_}, v{cc}")
        k(f"v_lshrrev_b32 v{t1}, 4, v{lam}", f"v_lshl_add_u32 v{n_}, v{t1}, 1, v{lam}")
        k(f"v_bfe_u32 v{t2}, v{lam}, 2, 1", f"v_lshl_add_u32 v{t1}, v{t1}, 1, v{t2}", f"v_mul_u32_u24 v{t1}, 72, v{t1}")
        k(f"v_bfe_u32 v{t2}, v{lam}, 3, 1", f"v_mul_u32_u24 v{t2}, 36, v{t2}", f"v_add3_u32 v{t1}, v{t1}, v{t2}, 16", f"v_and_b32 v{t2}, 1, v{lam}", f"v_add_u32 v{t1}, v{t1}, v{t2}", f"v_bfe_u32 v{t2}, v{lam}, 1, 1", f"v_mul_u32_u24 v{t2}, 18, v{t2}", f"v_add_u32 v{t1}, v{t1}, v{t2}")
        k("s_cmp_lt_u32 s35, 16", "s_cselect_b64 vcc, -1, 0", f"v_cndmask_b32 v{t1}, v{t1}, v{n_}, vcc")
        k(f"v_mul_u32_u24 v{t1}, 1152, v{t1}", f"v_lshl_add_u32 v{t1}, v{cc}, 4, v{t1}", f"v_cmp_gt_u32 vcc, 9, v{cc}", "s_nop 1", f"v_cndmask_b32 v{DO+x}, v{t9}, v{t1}, vcc")
    k("s_cmp_eq_u32 s20, 0", "s_cselect_b64 vcc, -1, 0", f"v_cndmask_b32 v{DO+1}, v{t9}, v{DO+1}, vcc")
    k(f"s_mul_i32 s36, s35, {36*1152}", "s_sub_u32 s37, s35, 16", f"s_mul_i32 s37, s37, {288*1152}", "s_cmp_lt_u32 s35, 16", "s_cselect_b32 s36, s36, s37", "s_mul_i32 s37, s34, 144", "s_add_u32 s36, s36, s37")
    k("s_and_b32 s37, s2, 7", "s_mul_i32 s37, s37, 144", "s_lshr_b32 s39, s2, 3", f"s_mul_i32 s39, s39, {32*3456}", "s_add_u32 s37, s37, s39")
    srd_fill(k, 12, TILE)
    k(f"s_mul_i32 s39, s21, {TILE}")
    k("s_waitcnt lgkmcnt(0)")
    if STAMP[0]:
        k(f"v_writelane_b32 v{V_STAMP}, s56, 0"); NAMES.append("entry"); NST[0] += 1
    k("s_sub_u32 s89, s56, 5000")
    st(k, "kernarg")
    k(f"s_mov_b32 s{S_WS}, s54", f"s_mov_b32 s{S_WS+1}, s55", f"s_mov_b32 s{S_X}, s28", f"s_mov_b32 s{S_X+1}, s29", f"s_mov_b32 s{S_OUT}, s50", f"s_mov_b32 s{S_OUT+1}, s51")
    k("s_mov_b32 s4, s30", "s_mov_b32 s5, s31", "s_cmp_lt_u32 s2, 144", f"s_cselect_b32 s6, {D*3*D*2}, 0", "s_mov_b32 s7, 0x00020000")
    k("s_mov_b32 s8, s32", "s_mov_b32 s9, s33", "s_cmp_ge_u32 s2, 112", f"s_cselect_b32 s10, {D*D*2}, 0", "s_mov_b32 s11, 0x00020000")
    k("s_mul_i32 s40, s20, 4480", f"s_add_u32 m0, s40, {STG_Q}", "s_nop 0")
    for i in range(4): k(f"buffer_load_dwordx4 v{DQ+i}, s[4:7], s37 offen offset:{1088*i} lds")
    k("s_lshl_b32 s40, s20, 10", f"s_add_u32 m0, s40, {STG_O}", "s_nop 0", f"buffer_load_dwordx4 v{DO}, s[8:11], s36 offen lds")
    k("s_cmp_eq_u32 s20, 0", f"s_cselect_b32 m0, {STG_O + 4096}, 145920", "s_nop 0", f"buffer_load_dwordx4 v{DO+1}, s[8:11], s36 offen lds")
    if OPT.get("fine"): st(k, "p0_dmaq")
    add64(k, 12, S_X, 39)
    for n in range(18): k(f"buffer_load_dwordx4 {v(Q_X+4*n,4)}, v{Q_XL}, s[12:15], {'s26' if n >= 9 else '0'} offen offset:{128*(n%9)}")
    if OPT.get("fine"): st(k, "p0_xiss")
    k("s_mov_b32 s56, s52", "s_mov_b32 s57, s53"); srd_fill(k, 56, 256)
    k("s_or_b32 s38, s2, s20", "s_cmp_lg_u32 s38, 0", "s_cbranch_scc1 no_nonce")
    k("s_memrealtime s[38:39]", "s_waitcnt lgkmcnt(0)", "s_or_b32 s38, s38, 1", "s_mov_b64 exec, 1", "v_mov_b32 v9, 0", "v_mov_b32 v10, s38", "v_mov_b32 v11, s39")
    k(f"buffer_store_dwordx2 v[10:11], v9, s[56:59], 0 offen {SC}", "s_waitcnt vmcnt(0)", "s_mov_b64 exec, -1")
    k.label("no_nonce")
    k(f"s_add_u32 s{S_FL}, s{S_WS}, {hx(WS_F)}", f"s_addc_u32 s{S_FL+1}, s{S_WS+1}, 0"); srd_fill(k, S_FL, 12 * FT() + 5 * 8192)
    r4, c4 = t3, t4
    k(f"v_bfe_u32 v{r4}, v0, 2, 2", f"v_and_b32 v{c4}, 3, v0")
    k(f"v_mul_u32_u24 v{t5}, 4480, v{q4}", f"v_mul_u32_u24 v{t6}, 544, v{r4}", f"v_add3_u32 v{t5}, v{t5}, v{t6}, {STG_Q}".replace(f", {STG_Q}", ", 0"), f"v_add_u32 v{t5}, {STG_Q}, v{t5}", f"v_lshl_add_u32 v{t5}, v{c4}, 3, v{t5}")
    k("s_mul_i32 s40, s20, 144", "s_cmp_eq_u32 s20, 3", "s_cselect_b32 s40, 416, s40", "s_cselect_b64 vcc, -1, 0", f"v_add_u32 v{TQ}, s40, v{t5}")
    k("s_cmp_lt_u32 s20, 2", "s_cselect_b32 s41, 40, 32", f"v_add_u32 v{TQ+1}, s41, v{TQ}", f"v_lshl_add_u32 v{t6}, v{c4}, 6, v{t5}", f"v_add_u32 v{t6}, 32, v{t6}", f"v_cndmask_b32 v{TQ+1}, v{TQ+1}, v{t6}, vcc")
    k("s_cselect_b32 s41, 72, 64", f"v_add_u32 v{TQ+2}, s41, v{TQ}", "s_cselect_b32 s41, 112, 96", f"v_add_u32 v{TQ+3}, s41, v{TQ}")
    k(f"v_lshrrev_b32 v{t6}, 1, v{q4}", f"v_and_b32 v{t7}, 1, v{q4}", f"v_lshl_add_u32 v{tmp}, v{t7}, 2, v{r4}", f"v_lshl_add_u32 v{tmp}, v{t6}, 4, v{tmp}", f"v_mul_u32_u24 v{tmp}, 160, v{tmp}")
    k(f"v_lshl_add_u32 v{tmp}, v{c4}, 3, v{tmp}", f"v_add_u32 v{TO+1}, {STG_O + 128}, v{tmp}", "s_lshl_b32 s40, s20, 5", f"s_add_u32 s40, s40, {STG_O}", f"v_add_u32 v{TO}, s40, v{tmp}")
    k("s_and_b32 s40, s2, 7", "s_lshl_b32 s40, s40, 2", "s_add_u32 s40, s40, s20", f"s_mul_i32 s40, s40, {72*1024}", f"s_add_u32 s40, s40, {hx(WS_WQ)}")
    k("s_lshr_b32 s41, s2, 3", "s_lshl_b32 s41, s41, 12", "s_add_u32 s42, s41, 0x800", "s_cmp_eq_u32 s20, 3", "s_cselect_b64 vcc, -1, 0", f"v_cndmask_b32 v44, v{V_L16}, v{t9}, vcc")
    k(f"s_mul_i32 s43, s34, {90*1024}", f"s_add_u32 s43, s43, {hx(WS_WO)}", "s_mul_i32 s45, s35, 5120", "s_lshl_b32 s46, s20, 10", "s_add_u32 s46, s46, s45", "s_add_u32 s45, s45, 4096", "s_cmp_eq_u32 s20, 0", "s_cselect_b64 vcc, -1, 0", f"v_cndmask_b32 v45, v{t9}, v{V_L16}, vcc")
    k("s_mov_b32 s64, s62", "s_mov_b32 s65, s63", "s_mov_b64 s[72:73], s[48:49]", "s_lshr_b32 s74, s2, 3", "s_and_b32 s75, s2, 7")
    srd_fill(k, 60, D * F * 2); srd_fill(k, 64, D * F * 2)
    k("s_lshl_b32 s76, s75, 2", "s_add_u32 s76, s76, s20", f"s_mul_i32 s76, s76, {WFR*1024}", f"s_add_u32 s76, s76, {hx(WS_W)}"); add64(k, 68, S_WS, 76); srd_fill(k, 68, WFR * 1024)
    l8, l7 = t5, t6
    k(f"v_lshrrev_b32 v{l8}, 3, v0", f"v_and_b32 v{l7}, 7, v0", "s_lshl_b32 s76, s20, 3", f"v_add_u32 v{l8}, s76, v{l8}")
    k("s_and_b32 s76, s20, 1", "s_lshl_b32 s76, s76, 1", f"v_add_u32 v{tmp}, s76, v{t7}", f"v_lshlrev_b32 v{tmp}, 1, v{tmp}", f"v_xor_b32 v{tmp}, v{tmp}, v{l7}", f"v_lshlrev_b32 v{tmp}, 4, v{tmp}")
    k(f"v_mul_u32_u24 v{l8}, 9216, v{l8}", f"v_add_u32 v{V_PD}, v{tmp}, v{l8}")
    k(f"v_lshrrev_b32 v{tmp}, 1, v{r4}", f"v_lshl_add_u32 v{tmp}, v{t7}, 1, v{tmp}", f"v_xor_b32 v{tmp}, s20, v{tmp}", f"v_lshlrev_b32 v{tmp}, 5, v{tmp}", f"v_lshl_add_u32 v{tmp}, v{c4}, 3, v{tmp}", f"v_lshl_add_u32 v{tmp}, v{r4}, 7, v{tmp}")
    k(f"v_lshl_add_u32 v{V_PT0}, v{q4}, 10, v{tmp}")
    st(k, "p0_issued")
    k("s_waitcnt vmcnt(18)")
    if OPT.get("fine"): st(k, "p0_qland")
    k("s_barrier")
    if OPT.get("fine"): st(k, "p0_bar")
    PT = Q_AC
    for ht in range(4):
        for e in range(2):
            k(f"ds_read_b64_tr_b16 {v(PT+4*ht+2*e,2)}, v{TQ+ht} offset:{e*2176}")
    for x in range(2):
        for e in range(2): k(f"ds_read_b64_tr_b16 {v(PT+16+4*x+2*e,2)}, v{TO+x} offset:{e*1280}")
    add64(k, 4, S_WS, 40); k("s_cmp_lt_u32 s2, 144", f"s_cselect_b32 s6, {72*1024}, 0")
    add64(k, 8, S_WS, 43); k("s_cmp_ge_u32 s2, 112", f"s_cselect_b32 s10, {90*1024}, 0")
    k("s_waitcnt lgkmcnt(0)")
    for ht in range(4): k(f"buffer_store_dwordx4 {v(PT+4*ht,4)}, v{44 if ht >= 2 else V_L16}, s[4:7], s{41 + ht//2} offen offset:{1024*(ht&1)} {SC}")
    k(f"buffer_store_dwordx4 {v(PT+16,4)}, v{V_L16}, s[8:11], s46 offen {SC}", f"buffer_store_dwordx4 {v(PT+20,4)}, v45, s[8:11], s45 offen {SC}")
    st(k, "p0_prepst")
    q_setup(k)
    LT2 = 164; XR = 178
    ln_stats_norm(k, Q_X, Q_LT, 29); ln_stats_norm(k, Q_X, LT2, 29)
    c8, r8, u1 = 168, 169, 170
    k(f"v_and_b32 v{c8}, 7, v0", f"v_lshrrev_b32 v{r8}, 3, v0", f"v_xor_b32 v{r8}, v{r8}, v{c8}", f"v_lshlrev_b32 v{r8}, 4, v{r8}", f"v_and_b32 v{u1}, 3, v{c8}", f"v_lshl_add_u32 v{r8}, v{u1}, 8, v{r8}",
      f"v_lshrrev_b32 v{c8}, 2, v{c8}", f"v_lshl_add_u32 v{r8}, v{c8}, 12, v{r8}", "s_lshl_b32 s38, s20, 10", f"v_add_u32 v{Q_XW}, s38, v{r8}")
    k(f"v_lshrrev_b32 v{c8}, 4, v0", f"v_xor_b32 v{r8}, v0, v{c8}", f"v_lshlrev_b32 v{XR}, 4, v{r8}", f"v_xor_b32 v{XR+1}, 64, v{XR}", f"v_add_u32 v{XR+2}, 36864, v{XR}", f"v_add_u32 v{XR+3}, 36864, v{XR+1}")
    if OPT.get("fine"): st(k, "p0_qsetup")
    for i in range(18):
        k(f"s_waitcnt vmcnt({17 - i + 6})"); k(ln_acc(Q_X, Q_LT if i < 9 else LT2, 29, i))
    st(k, "p0_stats")
    k("v_mov_b32 v9, 0", "s_mov_b32 s23, 0x10000")
    k.label("non_l")
    k(f"buffer_load_dwordx2 v[10:11], v9, s[56:59], 0 offen {SC}", "s_waitcnt vmcnt(0)", f"v_readfirstlane_b32 s{S_NON}, v10", f"v_readfirstlane_b32 s{S_NON+1}, v11",
      "s_sub_u32 s23, s23, 1", "s_cbranch_scc1 non_d", f"s_cmp_eq_u32 s{S_NON}, 0", "s_cbranch_scc1 non_l", f"s_sub_u32 s24, s{S_NON}, s89", "s_cmp_lt_i32 s24, 0", "s_cbranch_scc1 non_l")
    k.label("non_d")
    publish(k, F_P0, layered=False, idx="phys")
    if OPT.get("fine"): st(k, "p0_pub")
    k("s_lshl_b32 s88, s20, 10")
    for rd in range(4): k(dma_round(rd, STG_F + 8192 * rd))
    if OPT.get("fine"): st(k, "p0_f0")
    for T_ in (Q_LT, LT2):
        k(f"v_add_f32 v{T_}, v{T_}, v{T_+1}", f"v_add_f32 v{T_+2}, v{T_+2}, v{T_+3}")
    for T_ in (Q_LT, LT2): xlane(k, T_, (1, 2, 4)); ln_fin2(k, T_)
    for i in list(range(0, 8)) + list(range(9, 17)) + [8, 17]:
        k(ln_apply(Q_X, Q_LT, i, True, Q_LT if i < 9 else LT2))
        if i == 8: k(f"v_add_u32 v{Q_XW}, 0x10000, v{Q_XW}")
        k(f"ds_write_b128 v{Q_XW}, {v(Q_X+4*i,4)} offset:{(8192*(i%9) if i % 9 < 8 else 0) + 128*(i//9)}")
    st(k, "p0_ln")
    k("s_waitcnt vmcnt(0) lgkmcnt(0)")
    wait(k, ["v_and_b32 v9, 31, v0", "v_min_u32 v9, 17, v9", "v_lshlrev_b32 v9, 3, v9", "s_bfe_u32 s23, s2, 0x30003", "s_add_u32 s23, s23, 112", "v_add_u32 v10, s23, v9", "v_add_u32 v9, s22, v9", "v_cmp_gt_u32 vcc, 32, v0", "s_nop 1", "v_cndmask_b32 v9, v10, v9, vcc", f"v_lshlrev_b32 v9, {FS[0]}, v9"])
    st(k, "p0_flags")
    N0 = int(OPT.get("n0", 12))
    for n in range(N0): k(q_aload(n))
    k("s_mov_b32 s14, 0")
    e1, e2 = int(OPT.get("e1", 17)), int(OPT.get("e2", 17))
    ex = {}
    FD = Q_X + 32
    def f0tr():
        k(f"v_add_u32 v{Q_T}, {STG_F}, v{V_PT0}", f"v_add_u32 v{Q_T+1}, 512, v{Q_T}")
        for rd in range(4):
            k(tr_round(FD + 8 * rd, Q_T, Q_T + 1, 8192 * rd))
            if rd == 1: k("s_waitcnt lgkmcnt(4)")
    ex.setdefault(12, []).append((f0tr, 0))
    for rd in range(4): ex.setdefault(e1 - 3 + rd, []).append((lambda rd=rd: k(st_round(rd, FD + 8 * rd)), 2))
    q_loop(k, N0, list(range(N0)), ex, chunk=False)
    k("s_branch q_epi")

def phase_qkv1(k):
    wgmap(k, int(OPT.get("q1map", 4)))
    q_setup(k)
    q4, tk = Q_T, Q_T + 1
    k("s_lshl_b32 s38, s20, 8", f"v_lshlrev_b32 v{Q_XL}, 10, v{q4}", f"v_lshl_add_u32 v{Q_XL}, v{tk}, 4, v{Q_XL}", f"v_add_u32 v{Q_XL}, s38, v{Q_XL}")
    k(f"s_mul_i32 s38, s21, {TILE}", f"s_add_u32 s38, s38, {hx(WS_XN)}"); add64(k, 8, S_WS, 38); srd_fill(k, 8, TILE)
    k("s_mov_b32 s27, 0", "s_lshl_b32 s38, s20, 10")
    NE = int(OPT.get("qne", 24))
    A1 = int(OPT.get("a1", 8)); assert A1 % 4 == 0
    if A1: k(f"s_mov_b32 s26, {A1 * 1024}")
    for n in range(A1, NE): k(q_aload(n))
    wait(k, tile_flags(F_RED, prev_layer=True), pw=int(OPT.get("qpw", 3)))
    st(k, "q1_flags")
    for i in range(18):
        k(f"s_add_u32 m0, s38, {4096*i}", "s_nop 0" if i == 0 else "s_add_u32 s27, s27, 0x1000", f"buffer_load_dwordx4 v{Q_XL}, s[8:11], s27 offen {SC} lds")
    k("s_waitcnt vmcnt(12)", "s_barrier")
    st(k, "q1_x0")
    q_loop(k, NE, [f"X{i}" for i in range(6, 18)], {}, chunk="dma")

import k_att2 as AT
def phase_att(k):
    A = AT; T = A.V_T; SO = A.SO
    wgmap(k, 1)
    k(f"v_and_b32 v{T}, 31, v0", f"v_lshrrev_b32 v{T+1}, 5, v0")
    bias = [8, 9, 10, 11, 87]
    for i in range(5):
        k(f"s_add_i32 s23, s21, {i-4}", f"s_cmp_lt_i32 s23, 0", f"s_cselect_b32 s{bias[i]}, {A.NEG}, 0", "s_max_i32 s23, s23, 0",
          "s_lshl_b32 s23, s23, 3", "s_add_u32 s23, s23, s22", f"s_mul_i32 s{SO+i}, s23, {KVB}")
    k("s_lshl_b32 s15, s20, 11", f"v_add_u32 v{A.V_QMO}, s15, v{V_L16}", f"v_add_u32 v{A.V_KM}, {KV_KM}, v{A.V_QMO}")
    k("s_lshl_b32 s25, s20, 8", f"v_lshlrev_b32 v{A.V_KT}, 3, v{T}", f"v_add_u32 v{A.V_KT}, s25, v{A.V_KT}")
    k(f"v_mov_b32 v{T+3}, 0x80000000", f"v_cmp_gt_u32 vcc, 32, v0", f"v_add_u32 v{T+4}, {KV_QT}, v{A.V_KT}", f"v_add_u32 v{A.V_KT}, {KV_KT}, v{A.V_KT}")
    k(f"v_cndmask_b32 v{A.V_QT}, v{T+3}, v{T+4}, vcc", f"v_lshlrev_b32 v{T+4}, 2, v0", f"v_cndmask_b32 v{A.V_ST}, v{T+3}, v{T+4}, vcc")
    add64(k, 4, S_WS, 3); srd_fill(k, 4, 256 * KVB)
    k(f"v_mov_b32 v{T+9}, 0x3f80", f"v_mov_b32 v{T+8}, 0")
    for t in range(2):
        for p_ in range(2):
            q = A.V_Q1 + 8 * t + 4 * p_
            k(f"v_mov_b32 v{q + 1 - p_}, 0", f"v_cndmask_b32 v{q+2}, 0, v{T+9}, vcc", f"v_mov_b32 v{q+3}, 0")
    for i in range(5): k(f"v_mov_b32 v{T+9}, s{bias[i]}", f"v_accvgpr_write_b32 {a(A.A_K+12*i+3)}, v{T+8}", f"v_accvgpr_write_b32 {a(A.A_K+12*i+2)}, v{T+9}")
    k("s_mul_i32 s25, s20, 18", f"v_add_u32 v{T+4}, s25, v{T}", f"v_cmp_eq_u32 vcc, 18, v{T}", f"v_mov_b32 v{T+5}, 72", "s_nop 0", f"v_cndmask_b32 v{T+4}, v{T+4}, v{T+5}, vcc")
    k(f"v_lshrrev_b32 v{T+5}, 4, v{T+4}", f"v_and_b32 v{T+4}, 15, v{T+4}", f"v_lshlrev_b32 v{T+4}, 4, v{T+4}", f"v_lshl_add_u32 v{T+4}, v{T+5}, 11, v{T+4}", f"v_lshl_add_u32 v{T+4}, v{T+1}, 8, v{T+4}", f"v_add_u32 v{T+4}, {KV_V}, v{T+4}", f"v_cmp_gt_u32 vcc, 19, v{T}")
    k(f"v_lshlrev_b32 v{A.V_D4}, 2, v{T+1}", f"v_sub_u32 v{A.V_D4}, v{T}, v{A.V_D4}", f"v_cndmask_b32 v{A.V_VV}, v{T+3}, v{T+4}, vcc")
    for i in range(16): k(f"v_cmp_le_i32 s[{A.MSK+2*i}:{A.MSK+2*i+1}], {8*(i//4) + i%4}, v{A.V_D4}")
    k(f"v_mov_b32 v{T+9}, 0xffff")
    for d in range(8): k(f"v_cndmask_b32 v{A.V_MK+d}, 0, v{T+9}, s[{A.MSK+4*d}:{A.MSK+4*d+1}]")
    for d in range(8): k(f"v_cndmask_b32 v{A.V_MK+d}, v{A.V_MK+d}, -1, s[{A.MSK+4*d+2}:{A.MSK+4*d+3}]")
    k(f"s_mul_i32 s23, s21, {TILE}", "s_add_u32 s23, s23, s3", f"s_add_u32 s23, s23, {hx(WS_O)}"); add64(k, 16, S_WS, 23); srd_fill(k, 16, TILE)
    k("s_lshl_b32 s88, s22, 13", "s_add_u32 s88, s88, s15")
    k(f"v_lshlrev_b32 v{A.V_SO}, 4, v{T}", f"v_lshl_add_u32 v{A.V_SO}, v{T+1}, 10, v{A.V_SO}")
    k("s_add_u32 s89, s22, 64", "s_lshl_b32 s89, s89, 10", "s_lshl_b32 s23, s20, 8", "s_add_u32 s89, s89, s23")
    for i in range(4): k(f"v_mov_b32 v{A.V_MX+i}, 0xff7fffff")
    k("s_bfe_u32 s23, s2, 0x30003", f"s_mul_i32 s23, s23, {90*1024}", f"s_add_u32 s23, s23, {hx(WS_WO)}"); add64(k, 8, S_WS, 23); srd_fill(k, 8, 90 * 1024)
    st(k, "att_setup")
    wait(k, ["v_min_u32 v9, 4, v0", "s_sub_u32 s23, s21, 4", "v_add_u32 v9, s23, v9", "v_max_i32 v9, 0, v9", "v_lshlrev_b32 v9, 3, v9", "v_add_u32 v9, s22, v9", f"v_lshlrev_b32 v9, {FS[0]}, v9",
             f"s_add_u32 s23, s14, {F_QKV*FT()}", "v_add_u32 v9, s23, v9"])
    st(k, "att_flags")
    kk = Kern("t")
    if int(OPT.get("jt", 1)):
        kk("s_mov_b32 s26, 0", "s_mov_b32 s27, 0x00020000", "s_mov_b64 s[24:25], s[60:61]", "s_mov_b64 s[12:13], s[60:61]", "s_cmp_lg_u32 s3, 0", "s_cbranch_scc1 att_notouch")
        kk("s_lshl_b32 s76, s20, 5", "s_add_u32 s76, s76, s74", "s_add_u32 s76, s76, 128", "s_sub_u32 s77, s76, 162", "s_lshl_b32 s77, s77, 1", "s_cmp_lt_u32 s76, 162", "s_cselect_b32 s76, s76, s77",
          f"s_cselect_b32 s77, 9216, 1152", f"s_cselect_b32 s80, 1152, {576*1152}", f"s_cselect_b32 s81, 0, {32*1152}", "s_cselect_b64 s[24:25], s[60:61], s[72:73]", "s_cselect_b64 s[12:13], s[64:65], s[72:73]")
        kk(div18(76, 78, 79), "s_lshl_b32 s79, s79, 5", "s_mul_i32 s79, s79, s77", "s_lshl_b32 s78, s78, 7", "s_add_u32 s78, s78, s79", "s_mul_i32 s79, s75, s80", "s_add_u32 s78, s78, s79", "s_add_u32 s81, s81, s78")
        kk(f"s_mov_b32 s26, {hx(D*F*2)}", "att_notouch:", "v_and_b32 v9, 31, v0", "v_mul_u32_u24 v9, s77, v9")
        kk("buffer_load_dword v10, v9, s[24:27], s78 offen", "s_mov_b64 s[24:25], s[12:13]", "buffer_load_dword v11, v9, s[24:27], s81 offen")
    A.body(k, st, SC, kk.L)
def wo_dma(k):
    o = [["s_mul_i32 s26, s20, 23552", f"s_add_u32 s27, s26, {WOIMG}"]]
    for g in range(6):
        o.append(["s_mov_b32 m0, s27", "s_add_u32 s27, s27, 0x1000", f"buffer_load_dwordx4 v{V_L16}, s[8:11], s26 offen {SC} lds"])
        for i in range(1, 4 if g < 5 else 3): o.append(f"buffer_load_dwordx4 v{V_L16}, s[8:11], s26 offen offset:{1024*i} {SC} lds")
        o[-1] = [o[-1], "s_add_u32 s26, s26, 0x1000"]
    o[-2] = ["s_cmp_eq_u32 s20, 3", "s_cbranch_scc1 wo_dsk", o[-2]]; o[-1] = [o[-1][0], "wo_dsk:"]
    return o

W_XL, W_A0, W_A1, W_RL, W_SP, W_S8, W_T, W_AC, W_R, W_AF, W_B = 2, 3, 4, 5, 6, 7, 16, 36, 56, 184, 108
def phase_wo(k):
    wgmap(k, 8)
    T = W_T; q4, tk, tok, n, lam, c, t1, t2 = range(T, T + 8)
    k(f"v_lshrrev_b32 v{q4}, 4, v0", f"v_and_b32 v{tk}, 15, v0", "s_lshl_b32 s38, s20, 4", f"v_add_u32 v{tok}, s38, v{tk}")
    k(f"v_lshlrev_b32 v{W_XL}, 10, v{q4}", f"v_lshl_add_u32 v8, v{tok}, 2, v{W_XL}", f"v_lshl_add_u32 v{W_XL}, v{tok}, 4, v{W_XL}")
    k(f"s_mul_i32 s39, s21, {TILE}", "s_add_u32 s41, s39, s3", f"s_add_u32 s42, s41, {hx(WS_O)}"); add64(k, 4, S_WS, 42); srd_fill(k, 4, TILE)
    k(f"s_add_u32 s42, s{S_WS}, {hx(WS_X2)}", f"s_addc_u32 s43, s{S_WS+1}, 0", "s_cmp_eq_u32 s3, 0", f"s_cselect_b32 s8, s{S_X}, s42", f"s_cselect_b32 s9, s{S_X+1}, s43", "s_cselect_b64 vcc, -1, 0", "s_cselect_b32 s36, 32, 2048")
    k("s_mul_i32 s46, s22, 9216", "s_mul_i32 s37, s22, 144", "s_cselect_b32 s45, s37, s46")
    k("s_add_u32 s8, s8, s39", "s_addc_u32 s9, s9, 0"); srd_fill(k, 8, TILE)
    k(f"v_mul_u32_u24 v{t1}, 1152, v{tok}", f"v_lshl_add_u32 v{t1}, v{q4}, 3, v{t1}")
    k(f"v_lshrrev_b32 v{n}, 1, v{q4}", f"v_and_b32 v{lam}, 1, v{q4}")
    k(f"v_lshlrev_b32 v{t2}, 4, v{tok}", f"v_lshl_add_u32 v{c}, v{lam}, 3, v{t2}", f"v_lshl_add_u32 v{c}, v{n}, 10, v{c}")
    k(f"v_cndmask_b32 v{W_RL}, v{c}, v{t1}, vcc")
    k("s_mov_b64 s[48:49], s[8:9]", "s_mov_b64 s[50:51], s[10:11]")
    k(f"v_add_u32 v{W_A0}, {WOIMG}, v{V_L16}", f"v_add_u32 v{W_A1}, {WOIMG + 61440}, v{V_L16}")
    k(f"v_lshl_add_u32 v{t1}, v{lam}, 1, v{n}", f"v_lshl_add_u32 v{W_SP}, v{t1}, 10, v{t2}")
    k(f"v_lshl_add_u32 v{t1}, v{q4}, 3, v{t2}", f"v_add_u32 v{t1}, 8192, v{t1}", f"v_mov_b32 v{c}, 0x80000000", f"v_cmp_gt_u32 vcc, 2, v{q4}", "s_nop 1", f"v_cndmask_b32 v{W_S8}, v{c}, v{t1}, vcc")
    k(f"s_add_u32 s42, s41, {hx(WS_X1)}"); add64(k, 16, S_WS, 42); srd_fill(k, 16, TILE)
    k("s_add_u32 s47, s46, 4096", "s_mov_b32 s40, 0", "s_mov_b32 s29, 0x3f803f80", f"v_cndmask_b32 v{W_T+12}, 0, -1, vcc")
    k(f"v_lshlrev_b32 v{t1}, 3, v{tok}", f"v_cmp_gt_u32 vcc, 16, v0", "s_lshl_b32 s42, s21, 3", "s_add_u32 s42, s42, s22", "s_lshl_b32 s42, s42, 9", "s_add_u32 s42, s42, s3", f"s_add_u32 s42, s42, {hx(WS_SS)}", f"v_cndmask_b32 v{W_T+13}, v{c}, v{t1}, vcc")
    add64(k, 8, S_WS, 42); srd_fill(k, 8, 512)
    def aread(ks): return [f"ds_read_b128 {v(W_AF + 20*(ks%3) + 4*ht, 4)}, v{W_A1 if ks >= 12 else W_A0} offset:{(5*ks+ht)*1024 - (61440 if ks >= 12 else 0)}" for ht in range(5)]
    st(k, "wo_setup")
    k("s_waitcnt vmcnt(0)")
    kk = Kern("t"); wgmap(kk, int(OPT.get("map", 2)), 34, 35)
    kk.L = [x.replace("s44", "s30").replace("s45", "s31").replace("s46", "s32").replace("s47", "s33") for x in kk.L]
    wait(k, tile_flags(F_ATT) + kk.L + ["v_and_b32 v10, 31, v0", "s_lshl_b32 s35, s35, 5", "v_add_u32 v10, s35, v10", "v_lshlrev_b32 v10, 3, v10", f"v_add_u32 v10, {F_PF*FT()}, v10",
                               "v_cmp_gt_u32 vcc, 32, v0", "s_nop 1", "v_cndmask_b32 v9, v10, v9, vcc"])
    st(k, "wo_flags")
    for i in range(18):
        if i < 16: k(f"buffer_load_dwordx4 {v(W_B+4*i,4)}, v{W_XL}, s[4:7], s40 offen {SC}")
        else:
            for d in range(4): k(f"buffer_load_dword v{W_B+4*i+d}, v8, s[4:7], s40 offen offset:{256*d} {SC}")
        if i < 17: k("s_add_u32 s40, s40, 0x1000")
    k(aread(0), aread(1))
    RS = int(OPT.get("rs", 0))
    for ks in range(18):
        k(f"s_waitcnt vmcnt({(15 - ks + 8 if ks < 16 else 4 * (17 - ks)) + max(0, min(5, ks - RS))}) lgkmcnt({5 if ks < 17 else 0})")
        ar = aread(ks + 2) if ks < 16 else []
        for ht in range(5):
            ac = v(W_AC + 4 * ht, 4)
            k(f"v_mfma_f32_16x16x32_bf16 {ac}, {v(W_AF + 20*(ks%3) + 4*ht, 4)}, {v(W_B+4*ks,4)}, {'0' if ks == 0 else ac}")
            if ar: k(ar[ht])
        if RS <= ks < RS + 5: k(f"buffer_load_dwordx2 {v(W_R+2*(ks-RS),2)}, v{W_RL}, s[48:51], s45 offen {SC}", "s_add_u32 s45, s45, s36")
    k.label("wo_epi")
    st(k, "wo_mfma")
    k("s_waitcnt vmcnt(0)")
    for ht in range(5):
        for d in range(2):
            k(f"v_lshlrev_b32 v{T+4*(ht&1)+2*d}, 16, v{W_R+2*ht+d}", f"v_and_b32 v{T+4*(ht&1)+2*d+1}, 0xffff0000, v{W_R+2*ht+d}")
        if ht == 0: k("s_nop 3")
        for i in range(4): k(f"v_add_f32 v{W_AC+4*ht+i}, v{W_AC+4*ht+i}, v{T+4*(ht&1)+i}")
    P = W_B
    WO_STATS(k)
    for ht in range(0):
        for d in range(2): k(f"v_cvt_pk_bf16_f32 v{P+2*ht+d}, v{W_AC+4*ht+2*d}, v{W_AC+4*ht+2*d+1}")
    R1 = int(OPT.get("r1", 12))
    if R1:
        kk = Kern("t"); wgmap(kk, int(OPT.get("map", 2)), 34, 35)
        k([x.replace("s44", "s30").replace("s45", "s31").replace("s46", "s32").replace("s47", "s33") for x in kk.L])
        k("s_lshl_b32 s24, s35, 2", "s_add_u32 s24, s24, s20", f"s_mul_i32 s24, s24, {WFR*1024}", f"s_add_u32 s24, s24, {hx(WS_W)}"); add64(k, 4, S_WS, 24); srd_fill(k, 4, WFR * 1024)
        k("s_mov_b32 s23, 0"); F4.preload(k, 0, R1)
    publish(k, F_WO, vm=R1)
    st(k, "wo_pub")

def WO_STATS(k):
    P = W_B; T = W_T + 8
    for ht in range(5):
        for d in range(2): k(f"v_cvt_pk_bf16_f32 v{P+2*ht+d}, v{W_AC+4*ht+2*d}, v{W_AC+4*ht+2*d+1}")
    k(f"v_and_b32 v{P+12}, v{P+8}, v{W_T+12}", f"v_and_b32 v{P+13}, v{P+9}, v{W_T+12}", f"v_mov_b32 v{T}, 0", f"v_mov_b32 v{T+2}, 0")
    for pr in range(2):
        for d in range(2): k(f"v_permlane16_swap_b32 v{P+4*pr+d}, v{P+4*pr+2+d}")
    k(f"buffer_store_dwordx4 {v(P,4)}, v{W_SP}, s[16:19], s46 offen {SC}", f"buffer_store_dwordx4 {v(P+4,4)}, v{W_SP}, s[16:19], s47 offen {SC}")
    k(f"buffer_store_dwordx2 {v(P+8,2)}, v{W_S8}, s[16:19], s46 offen {SC}")
    for x in list(range(P, P + 8)) + [P + 12, P + 13]:
        k(f"v_dot2c_f32_bf16 v{T}, s29, v{x}", f"v_dot2c_f32_bf16 v{T+2}, v{x}, v{x}")
    k("s_nop 2")
    xlane(k, T, (16, 32))
    k(f"v_mov_b32 v{T+1}, v{T+2}", f"buffer_store_dwordx2 {v(T,2)}, v{W_T+13}, s[8:11], 0 offen {SC}")
def phase_ffn(k):
    F_ = FF; mp = int(OPT.get("map", 2)); late = int(OPT.get("late", 8))
    wgmap(k, mp)
    k("s_mov_b32 s29, 0x3f803f80")
    t0, t1, t2, t5, t6 = 64, 65, 66, 67, 68
    k(f"v_lshrrev_b32 v{t0}, 4, v0", f"v_and_b32 v{t1}, 15, v0", "s_lshl_b32 s38, s20, 8")
    k(f"v_lshlrev_b32 v{t2}, 10, v{t0}", f"v_lshl_add_u32 v{t2}, v{t1}, 4, v{t2}", f"v_add_u32 v{F_.V_XL}, s38, v{t2}")
    k(f"s_mul_i32 s39, s21, {TILE}", "s_add_u32 s39, s39, s3", f"s_add_u32 s39, s39, {hx(WS_X1)}"); add64(k, 8, S_WS, 39); srd_fill(k, 8, TILE)
    k("s_lshl_b32 s24, s22, 2", "s_add_u32 s24, s24, s20", f"s_mul_i32 s24, s24, {WFR*1024}", f"s_add_u32 s24, s24, {hx(WS_W)}"); add64(k, 4, S_WS, 24); srd_fill(k, 4, WFR * 1024)
    k("s_lshl_b32 s41, s22, 5", "s_add_u32 s41, s41, s21", f"s_mul_i32 s41, s41, {TILE}", "s_add_u32 s41, s41, s3", f"s_add_u32 s41, s41, {hx(WS_P)}"); add64(k, 16, S_WS, 41); srd_fill(k, 16, TILE)
    k("s_mov_b32 s27, 0", "s_mov_b32 s40, 0")
    k(f"v_and_b32 v{t6}, 1, v{t0}", f"v_lshrrev_b32 v{t5}, 1, v{t0}", f"v_add_u32 v{F_.V_XR1}, 36864, v{V_L16}")
    k("s_lshr_b32 s41, s20, 1", "s_lshl_b32 s41, s41, 12", "s_and_b32 s42, s20, 1", "s_lshl_b32 s42, s42, 3", "s_add_u32 s41, s41, s42")
    k(f"v_add_u32 v{F_.V_HW}, s41, v{V_L16}")
    k("s_lshl_b32 s41, s20, 10", f"v_add_u32 v{F_.V_XW}, s41, v{V_L16}")
    k(f"v_lshlrev_b32 v{F_.V_ST}, 10, v{t5}", f"v_lshl_add_u32 v{F_.V_ST}, v{t6}, 8, v{F_.V_ST}", f"v_lshl_add_u32 v{F_.V_ST}, v{t1}, 4, v{F_.V_ST}")
    k("s_lshl_b32 s41, s20, 11", f"v_add_u32 v{F_.V_ST}, s41, v{F_.V_ST}", f"v_mov_b32 v{F_.V_C2}, {fl(F_.C2)}")
    k("s_cmp_eq_u32 s3, 0", "s_cselect_b32 s31, 0, 0x4000", "s_lshl_b32 s30, s21, 9", "s_add_u32 s31, s31, s30", f"s_add_u32 s31, s31, {12*FT()}")
    k("s_lshl_b32 s30, s22, 2", "s_add_u32 s30, s30, s20", "s_lshl_b32 s30, s30, 3", "s_add_u32 s30, s30, s31")
    k("s_lshl_b32 s42, s21, 12", "s_add_u32 s42, s42, s3", f"s_add_u32 s42, s42, {hx(WS_SS)}"); add64(k, 32, S_WS, 42); srd_fill(k, 32, 4096)
    k("s_lshl_b32 s42, s20, 7", f"v_lshlrev_b32 v{t2}, 3, v{t1}", f"v_lshl_add_u32 v{t2}, v{t0}, 10, v{t2}", f"v_add_u32 v{t2}, s42, v{t2}")
    R1 = int(OPT.get("r1", 12)); assert R1 % 3 == 0
    k(f"s_mov_b32 s23, {R1 * 1024}")
    F4.preload(k, R1)
    k("s_mov_b32 s26, s23")
    k("s_cmp_lg_u32 s3, 0", "s_cbranch_scc1 ffn_nojs")
    js = jit_setup()
    k([x for x in js if x.startswith("s_") and "vcc" not in x and not x.startswith("s_lshl_b32 s76")])
    for n_, rd in enumerate(range(4, 8)):
        g_ = dma_round(rd, 0); pre = g_[0][:-3]; o2 = "s78" if rd <= 4 else "s77"
        k(pre, f"s_mov_b32 s{44+3*n_}, s78", f"s_mov_b32 s{45+3*n_}, {o2}", f"s_add_u32 s76, s74, {32*rd}", f"s_lshl_b32 s{46+3*n_}, s76, 11")
        if rd == 5 and int(OPT.get("ro", 0)):
            k("s_cmp_eq_u32 s76, 170", "s_cselect_b32 s79, 0x4000, 0", "s_add_u32 s49, s49, s79", "s_sub_u32 s79, s76, 171", "s_cmp_lt_u32 s79, 8", "s_cselect_b32 s79, 0x800, 0", "s_sub_u32 s49, s49, s79")
    k("s_cmp_lt_u32 s76, 243", f"s_cselect_b32 s56, {WFR*1024}, 0")
    k.label("ffn_nojs")
    wait(k, tile_flags(F_WO))
    st(k, "ffn_flags")
    if int(OPT.get("touch", 0)):
        per = 18 * mp * (1 if int(OPT["touch"]) == 1 else 1)
        k(f"s_mul_i32 s41, s44, {per}", "v_add_u32 v11, s41, v0", "v_lshlrev_b32 v11, 7, v11", f"v_cmp_gt_u32 vcc, {per}, v0", "v_mov_b32 v5, 0x80000000", f"s_mov_b32 s49, {int(OPT.get('tch0', 3)) * TILE}", "v_cndmask_b32 v11, v5, v11, vcc")
    k("s_mov_b32 s23, s26")
    LT = F_.V_LT
    k(f"buffer_load_dwordx2 {v(LT+8,2)}, v{t2}, s[32:35], 0 offen {SC}", f"buffer_load_dwordx2 {v(LT+10,2)}, v{t2}, s[32:35], 0 offen offset:512 {SC}")
    XS = int(OPT.get("xs", 8))
    def xl(i): return [f"buffer_load_dwordx4 {v(F_.V_X+4*i,4)}, v{F_.V_XL}, s[8:11], s40 offen {SC}"] + (["s_add_u32 s40, s40, 0x1000"] if i < 17 else [])
    for i in range(XS): k(xl(i))
    k(f"s_waitcnt vmcnt({XS})", f"v_add_f32 v{LT}, v{LT+8}, v{LT+10}", f"v_add_f32 v{LT+2}, v{LT+9}, v{LT+11}")
    kk = Kern("t"); xlane(kk, LT, (16, 32)); ln_fin2(kk, LT)
    k(merge(kk.L, [xl(i) for i in range(XS, 18)]))
    st(k, "ffn_stats")
    def lnq(i):
        kk = Kern("t"); kk(ln_apply(F_.V_X, F_.V_LT, i, pk=(i < 6))); ln_write(kk, i, F_.V_X, F_.V_XW); return kk.L
    F4.group0(k, lnq)
    st(k, "ffn_g0")
    PG = int(OPT.get("peel", 0))
    k(f"s_mov_b32 s25, {4 - PG}", "s_mov_b32 s26, 99", "s_cmp_lg_u32 s3, 0", "s_cbranch_scc1 ffn_loopA_odd")
    JD = 200
    x1 = {2: [x for x in jit_setup() if x.startswith("v_") or "vcc" in x or x.startswith(("s_lshl_b32 s76", "s_cmp_lt_u32 s74"))]}
    import re as _re
    for n_, rd in enumerate(range(4, 8)):
        g_ = dma_round(rd, STG_J + 8192 * n_)
        a0 = g_[0][-3:]; a1 = g_[1]
        x1[4 * (6 + 7 * n_)] = [a0[0]]; x1[4 * (6 + 7 * n_) + 1] = [a0[2].replace("s78 offen", f"s{44+3*n_} offen")]
        x1[4 * (9 + 7 * n_)] = [a1[0]]; x1[4 * (9 + 7 * n_) + 1] = [_re.sub(r"s7[78] offen", f"s{45+3*n_} offen", a1[2])]
    F4.groupA(k, 1, x1)
    x2 = {4 * 13 + 1: ["s_barrier"]}
    for n_, rd in enumerate(range(4, 8)):
        sel = 0 if rd == 4 else (2 if rd == 5 else 1)
        for e_, op in enumerate(tr_round(JD + 8 * n_, J_T0 + sel, J_T1 + sel, 8192 * n_)): x2[4 * (14 + 2 * n_ + e_ // 2) + 2 * (e_ % 2)] = [op]
        g_ = st_round(rd, JD + 8 * n_)
        x2[4 * (24 + 3 * n_) + 1] = (["s_waitcnt lgkmcnt(0)"] if n_ == 0 else []) + (["s_mov_b32 s70, s56"] if rd == 7 else []) + [g_[0][-1].replace("s78", f"s{46+3*n_}")]
        x2[4 * (25 + 3 * n_) + 1] = [g_[1][0].replace("s78", f"s{46+3*n_}")]
    F4.groupA(k, 2, x2)
    x3 = {4 * 18 + 1: ["s_lshl_b32 s76, s2, 2", "s_add_u32 s76, s76, s20", "s_lshl_b32 s76, s76, 3", f"s_add_u32 s76, s76, {FPJ()}", "s_mov_b64 exec, 1", "v_mov_b32 v9, 0", f"v_mov_b32 v10, s{S_NON}", f"v_mov_b32 v11, s{S_NON+1}",
                        f"buffer_store_dwordx2 v[10:11], v9, s[{S_FL}:{S_FL+3}], s76 offen {SC}", "s_mov_b64 exec, -1"]}
    F4.groupA(k, 3, x3)
    k(f"s_mov_b32 s25, {2 - PG}", f"s_mov_b32 s26, {2 - PG}", "v_and_b32 v9, 31, v0", "v_lshlrev_b32 v9, 3, v9", "v_add_u32 v9, s22, v9", "v_lshlrev_b32 v9, 2, v9", "v_add_u32 v9, s20, v9", "v_lshlrev_b32 v9, 3, v9", f"v_add_u32 v9, {FPJ()}, v9")
    k.label("ffn_loopA")
    F4.groupA(k, 2)
    k.label("ffn_loopA_odd")
    pl = f"buffer_load_dwordx2 v[10:11], v9, s[{S_FL}:{S_FL+3}], 0 offen {SC}"
    xo = {1: ["s_cmp_lg_u32 s25, s26", "s_cbranch_scc1 jit_p0", pl + " ; COND", "jit_p0:"],
          4 * 22 + 1: ["s_cmp_lg_u32 s25, s26", "s_cbranch_scc1 jit_p1", "s_mov_b32 s76, 0x10000", "jit_l:", f"v_cmp_ne_u64 vcc, s[{S_NON}:{S_NON+1}], v[10:11]", "s_sub_u32 s76, s76, 1", "s_cselect_b64 s[78:79], 0, -1", "s_nop 1",
                       "s_and_b64 vcc, vcc, s[78:79]", "s_cbranch_vccz jit_p1", pl + " ; COND", "s_waitcnt vmcnt(0)", "s_branch jit_l", "jit_p1:"]}
    F4.groupA(k, 1, xo)
    k("s_sub_u32 s25, s25, 1", "s_cmp_lg_u32 s25, 0", "s_cbranch_scc1 ffn_loopA")
    if PG: F4.groupA(k, 6); F4.groupA(k, 7)
    k(f"s_mul_i32 s50, s20, {17*1024}", f"s_add_u32 s50, s50, {F4.RES}", f"v_add_u32 v5, s50, v{V_L16}", "s_sub_u32 s50, s50, 4096")
    F4.groupA(k, 8)
    st(k, "ffn_A")
    hook = ["s_mov_b64 exec, 1", "v_mov_b32 v9, 0", f"v_mov_b32 v10, s{S_NON}", f"v_mov_b32 v11, s{S_NON+1}",
            f"buffer_store_dwordx2 v[10:11], v9, s[{S_FL}:{S_FL+3}], s30 offen {SC}", "s_mov_b64 exec, -1"]
    hook2 = [x.replace("s30 offen", "s30 offen offset:256") for x in hook] if int(OPT.get("mid2", 1)) else None
    F4.phaseB(k, OPT.get("bsc", SC), hook, st if OPT.get("bst") else None, hook2)
    st(k, "ffn_B")

def phase_red(k):
    R = 16; ACC = 100
    pm4, pm1, rm4, rm1, t0, t1 = 2, 3, 4, 5, 6, 7
    k("s_lshl_b32 s23, s22, 3", f"v_and_b32 v{t0}, 7, v0", f"v_add_u32 v{t0}, s23, v{t0}")
    k(f"v_lshrrev_b32 v{t1}, 3, v0", "s_lshl_b32 s24, s20, 3", f"v_add_u32 v{t1}, s24, v{t1}")
    k(f"v_lshlrev_b32 v{pm4}, 4, v{t0}", f"v_lshl_add_u32 v{pm4}, v{t1}, 10, v{pm4}", f"v_mul_u32_u24 v{rm4}, 1152, v{t0}", f"v_lshl_add_u32 v{rm4}, v{t1}, 4, v{rm4}")
    k(f"v_lshrrev_b32 v{t1}, 5, v0", "s_lshl_b32 s24, s20, 1", f"v_add_u32 v{t1}, s24, v{t1}", f"v_add_u32 v8, s23, v{t1}", "v_bfe_u32 v9, v0, 2, 3", "v_bfe_u32 v10, v0, 3, 2", "v_and_b32 v11, 3, v0")
    k("s_cmp_eq_u32 s3, 0", "s_cselect_b64 vcc, -1, 0", f"v_cndmask_b32 v{t0}, v8, v{t0}, vcc", f"v_cndmask_b32 v{t1}, v9, v{t1}, vcc", "v_cndmask_b32 v10, v11, v10, vcc", f"v_add_u32 v{t1}, 64, v{t1}")
    k(f"v_lshlrev_b32 v{pm1}, 4, v{t0}", f"v_lshl_add_u32 v{pm1}, v{t1}, 10, v{pm1}", f"v_mul_u32_u24 v{rm1}, 1152, v{t0}", f"v_lshl_add_u32 v{rm1}, v{t1}, 4, v{rm1}")
    k(f"v_lshl_add_u32 v{pm1}, v10, 2, v{pm1}", f"v_lshl_add_u32 v{rm1}, v10, 2, v{rm1}")
    k(f"s_mul_i32 s24, s21, {TILE}", "s_add_u32 s25, s24, s3"); add64(k, 4, S_WS, 25); srd_fill(k, 4, LSTR - 31 * TILE)
    k(f"s_add_u32 s8, s4, {hx(WS_X2)}", "s_addc_u32 s9, s5, 0"); add64(k, 26, S_OUT, 24)
    k("s_cmp_eq_u32 s3, 0", "s_cselect_b32 s8, s8, s26", "s_cselect_b32 s9, s9, s27", "s_cselect_b32 s28, 0x8000, 512", "s_cselect_b64 vcc, -1, 0"); srd_fill(k, 8, TILE)
    k(f"v_cndmask_b32 v{rm4}, v{rm4}, v{pm4}, vcc", f"v_cndmask_b32 v{rm1}, v{rm1}, v{pm1}, vcc")
    ACCB = 110
    def ld0(j, srd=4): return [f"buffer_load_dwordx4 {v(R+10*j,4)}, v{pm4}, s[{srd}:{srd+3}], s25 offen {SC}"]
    def ld1(j): return ["s_add_u32 s26, s25, 0x8000", f"buffer_load_dwordx4 {v(R+10*j+4,4)}, v{pm4}, s[4:7], s26 offen {SC}"]
    def ld2(j): return [f"buffer_load_dword v{R+10*j+8}, v{pm1}, s[4:7], s25 offen {SC}"]
    def over(fn):
        k(f"s_mov_b32 s25, {hx(WS_P)}")
        for j in range(8):
            k(fn(j))
            if j < 7: k(f"s_add_u32 s25, s25, {hx(ACT)}")
    k("v_lshlrev_b32 v9, 3, v0", f"buffer_load_dwordx2 v[10:11], v9, s[{S_FL}:{S_FL+3}], s31 offen {SC}")
    k("s_mov_b32 s32, 0x00003f80", "s_mov_b32 s33, 0x3f800000")
    for i in range(18): k(f"v_mov_b32 v{ACCB+i}, 0")
    k("s_waitcnt vmcnt(0)", f"v_cmp_ne_u64 vcc, s[{S_NON}:{S_NON+1}], v[10:11]", "s_nop 3", "s_cmp_eq_u32 vcc_lo, 0", "s_cselect_b32 s34, 1, 0", "s_cmp_eq_u32 vcc_hi, 0", "s_cselect_b32 s35, 1, 0", "s_cmp_eq_u32 s20, 3", "s_cselect_b32 s35, 0, s35")
    RP = int(OPT.get("rp", 2))
    if RP == 1: k("s_cselect_b32 s34, 0, s34")
    publish(k, F_FFN)
    k("s_cmp_eq_u32 s34, 0", "s_cbranch_scc1 red_noearly")
    over(ld0)
    k.label("red_noearly")
    k(f"s_mov_b32 s25, {hx(WS_X1)}"); k(ld0(8), ld1(8), ld2(8))
    k("s_cmp_eq_u32 s35, 0", "s_cbranch_scc1 red_noearly1")
    over(ld1)
    k.label("red_noearly1")
    wait(k, tile_flags(F_FFN), pw=3 if RP else 0)
    st(k, "red_flags")
    over(ld2)
    k("s_cmp_lg_u32 s35, 0", "s_cbranch_scc1 red_haveearly1")
    over(ld1)
    k.label("red_haveearly1")
    k("s_cmp_lg_u32 s34, 0", "s_cbranch_scc1 red_haveearly")
    over(ld0)
    k("s_waitcnt vmcnt(0)")
    k.label("red_haveearly")
    k("s_waitcnt vmcnt(16)")
    def acc(j, ds):
        for d in ds: k(f"v_dot2c_f32_bf16 v{ACCB+2*d}, s32, v{R+10*j+d}", f"v_dot2c_f32_bf16 v{ACCB+2*d+1}, s33, v{R+10*j+d}")
    k("s_cmp_eq_u32 s35, 0", "s_cbranch_scc1 red_w", "s_waitcnt vmcnt(8)")
    k.label("red_w")
    for j in range(9): acc(j, range(4))
    acc(8, range(4, 9))
    k("s_waitcnt vmcnt(0)")
    for j in range(8): acc(j, range(4, 9))
    k("s_nop 2")
    for d in range(9): k(f"v_cvt_pk_bf16_f32 v{R+d}, v{ACCB+2*d}, v{ACCB+2*d+1}")
    k(f"buffer_store_dwordx4 {v(R,4)}, v{rm4}, s[8:11], 0 offen {SC}", f"buffer_store_dwordx4 {v(R+4,4)}, v{rm4}, s[8:11], s28 offen {SC}", f"buffer_store_dword v{R+8}, v{rm1}, s[8:11], 0 offen {SC}")

def red_ln(k):
    R = 16; ACCB = 110; T = 130
    k(f"v_mov_b32 v{T}, 0", f"v_mov_b32 v{T+2}, 0", "s_mov_b32 s29, 0x3f803f80")
    for d in range(9): k(f"v_dot2c_f32_bf16 v{T}, s29, v{R+d}", f"v_dot2c_f32_bf16 v{T+2}, v{R+d}, v{R+d}")
    k("s_nop 1")
    xlane(k, T, (8, 16, 32))
    k(f"v_and_b32 v{T+8}, 7, v0", f"v_lshlrev_b32 v{T+8}, 3, v{T+8}", f"v_add_u32 v{T+8}, {TILE}, v{T+8}", "s_lshl_b32 s23, s20, 6", f"v_add_u32 v{T+9}, s23, v{T+8}", f"v_mov_b32 v{T+1}, v{T+2}")
    k(f"ds_write_b64 v{T+9}, {v(T,2)}", "s_waitcnt lgkmcnt(0)", "s_barrier")
    for w_ in range(4): k(f"ds_read_b64 {v(T+10+2*w_,2)}, v{T+8} offset:{64*w_}")
    k(f"s_add_u32 s8, s4, {hx(WS_XN)}", "s_addc_u32 s9, s5, 0")
    for d in range(9): k(f"v_lshlrev_b32 v{ACCB+2*d}, 16, v{R+d}", f"v_and_b32 v{ACCB+2*d+1}, 0xffff0000, v{R+d}")
    k("s_waitcnt lgkmcnt(0)")
    k(f"v_add_f32 v{T}, v{T+10}, v{T+12}", f"v_add_f32 v{T+2}, v{T+11}, v{T+13}", f"v_add_f32 v{T+14}, v{T+14}, v{T+16}", f"v_add_f32 v{T+15}, v{T+15}, v{T+17}", f"v_add_f32 v{T}, v{T}, v{T+14}", f"v_add_f32 v{T+2}, v{T+2}, v{T+15}")
    ln_fin2(k, T)
    for d in range(9): k(f"v_pk_fma_f32 {v(ACCB+2*d,2)}, {v(ACCB+2*d,2)}, {v(T+4,2)}, {v(T+6,2)} op_sel_hi:[1,0,0]")
    for d in range(9): k(f"v_cvt_pk_bf16_f32 v{R+12+d}, v{ACCB+2*d}, v{ACCB+2*d+1}")
    k(f"buffer_store_dwordx4 {v(R+12,4)}, v4, s[8:11], 0 offen {SC}", f"buffer_store_dwordx4 {v(R+16,4)}, v4, s[8:11], s28 offen {SC}", f"buffer_store_dword v{R+20}, v5, s[8:11], 0 offen {SC}")
def gen():
    k = Kern("mega")
    NST[0] = 0; NAMES.clear(); LBL[0] = 0; FS[0] = int(OPT.get("fs", 6))
    FF.STAMP = 0; FF.WG = int(OPT.get("wg", 1)); FF.TOUCH = 0
    st0 = len(k.L)
    startup(k)
    k.label("layer1")
    phase_qkv1(k)
    k.label("q_epi")
    q_epi(k)
    publish(k, F_QKV, extra=F_PF)
    st(k, "qkv_pub")
    phase_att(k)
    wd = wo_dma(k); n1 = int(OPT.get("wd1", 8))
    k(wd[:n1 + 1])
    publish(k, F_ATT, vm=n1, keep=True)
    k(wd[n1 + 1:])
    st(k, "att_pub")
    phase_wo(k)
    phase_ffn(k)
    phase_red(k)
    k("s_cmp_lg_u32 s3, 0", "s_cbranch_scc1 mega_end")
    red_ln(k)
    A1 = int(OPT.get("a1", 8))
    if A1:
        kk = Kern("t"); wgmap(kk, int(OPT.get("q1map", 4)), 34, 35); k(kk.L)
        k("s_lshl_b32 s38, s35, 2", "s_add_u32 s38, s38, s20", f"s_mul_i32 s38, s38, {72*1024}", f"s_add_u32 s38, s38, {hx(WS_WQ)}"); add64(k, 4, S_WS, 38); srd_fill(k, 4, 72 * 1024)
        k("s_mov_b32 s26, 0", "s_cmp_eq_u32 s20, 3", "s_cselect_b64 vcc, -1, 0", "v_mov_b32 v161, 0x80000000", f"v_cndmask_b32 v{Q_A2}, v{V_L16}, v161, vcc")
        for n in range(A1): k(q_aload(n))
    publish(k, F_RED, vm=A1)
    st(k, "red_pub")
    if STAMP[0]: dump(k, 0)
    k(f"s_mov_b32 s3, {hx(LSTR)}", f"s_mov_b32 s14, {5*FT()}", "s_branch layer1")
    k.label("mega_end")
    if STAMP[0]:
        k("s_waitcnt vmcnt(0)"); st(k, "end"); dump(k, 1)
    k.label("mega_done")
    k("s_endpgm")
    return k
def dump(k, L):
    LBL[0] += 1
    k("s_cmp_lg_u32 s20, 0", f"s_cbranch_scc1 dmp{LBL[0]}", f"s_lshl_b32 s23, s2, 9", f"s_add_u32 s23, s23, {hx(WS_ST + 256*L)}"); add64(k, 4, S_WS, 23); srd_fill(k, 4, 256)
    k("v_lshlrev_b32 v9, 2, v0", f"buffer_store_dword v{V_STAMP}, v9, s[4:7], 0 offen", "s_waitcnt vmcnt(0)")
    k.label(f"dmp{LBL[0]}")
class JP(list):
    def __init__(s): super().__init__([0, 1, 1, 1, 1, 1])
def trips(w):
    d = {"ffn_loopA": [0, 1, 1, 0] if int(OPT.get("peel", 0)) else [1, 0, 1, 1, 1, 0], "ffn_loopA_odd": [0, 1], "jit_p0": [0, 1, 1, 1, 1, 1], "jit_p1": JP(), "ffn_loopB": [1, 1, 0] * 2, "mega_end": [0, 1], "ffn_nomid": [1, 0, 1] * 2, "red_noearly": [0, 1], "red_haveearly": [1, 0], "red_noearly1": [w & 1, 1], "red_haveearly1": [1 - (w & 1), 0], "red_w": [w & 1, 1], "att_notouch": [0, 1], "ffn_nojs": [0, 1], "att_sk0": [0, 1], "att_sk1": [0, 1], "att_sk2": [0, 1], "q_nof": [0, 1], "att_noprep2": [0, 1], "ffn_noring": [1, 0], "ffn_ring2": [0, 1], "wo_l1": [0, 1],
         "q_epi2": 9 if w >= 2 else 0, "q_epi3": 9 if w == 3 else 0, "no_cpf": 0 if w == 3 else 9, "no_touch": 0 if w == 3 else 9, "q_noscale": 9 if w else 0, "no_nonce": 9 if w else 0}
    for i in range(17): d[f"res_sk{i}"] = [0, 1]
    d["wo_dsk"] = 9 if w == 3 else 0
    for i in range(1, 40):
        for n in (f"pub{i}", f"wt{i}_d", f"dmp{i}"): d[n] = 9 if w else 0
        d[f"pub{i}_x"] = [0, 1]
        d[f"wt{i}_d"] = 9 if w != POLLW.get(f"wt{i}", 0) else 0
    return d
```

```python
import sys
from common import *
import mega
NAME = "interleave_layers__sliding_block__glu_gated_geglu__prompt_kernel"
def build(opts):
    STAMP[0] = int(opts.get("stamp", 0)); OPT.update(opts)
    k = mega.gen()
    errs = check(k, [mega.trips(w) for w in (0, 1, 2, 3)])
    for e in errs: print("HAZARD", e, file=sys.stderr)
    if errs: raise SystemExit(1)
    if opts.get("stx") or opts.get("ldx"):
        L = []
        for x in k.L:
            if x.startswith("buffer_store") and " sc1" in x and opts.get("stx"): x = x.replace(" sc1", " " + opts["stx"].replace("+", " "))
            if x.startswith("buffer_load") and " sc1" in x and opts.get("ldx") and "s23 offen" not in x: x = x.replace(" sc1", " " + opts["ldx"].replace("+", " "))
            L.append(x)
        k.L = L
    hdr = f"; @launch grid=(256,1,1) block=(256,1,1) lds={mega.LDS}\n"
    if STAMP[0]: hdr += "; stamps: " + ",".join(mega.NAMES) + "\n"
    return hdr + '.amdgcn_target "amdgcn-amd-amdhsa--gfx950"\n.text\n' + f".globl {NAME}\n.p2align 8\n.type {NAME},@function\n{NAME}:\n" + k.text() + '\n.section .rodata,"a"\n' + desc(NAME, 256, 256, 102) + "\n"
if __name__ == "__main__":
    opts = dict(x.split("=") for x in sys.argv[2:])
    open(sys.argv[1], "w").write(build(opts))
```

```python
from common import *
V_KM, V_KT, V_QT, V_VV, V_SO, V_ST, V_D4, V_QMO = 2, 3, 4, 5, 6, 7, 8, 22
V_MX = 16; V_MK = 216; V_QM = 24; V_Q1 = 224; V_QTT = 240
V_NM = 40; V_O = 72; V_S = 104; V_P = 168; V_T = 200
A_K = 0; A_V = 60
MSK = 28; SO = 82
NEG = bf16u(-1e30)
def mf(d, A, B, c): return f"v_mfma_f32_32x32x16_bf16 {d}, {A}, {B}, {c}"
def kmain(b): return a(A_K + 12 * (b // 2) + 4 + 4 * (b % 2), 4)
def ktail(b): return a(A_K + 12 * (b // 2), 4)
def qk(t, b, sb, c):
    S_ = v(V_S + 16 * sb, 16)
    return [mf(S_, kmain(b), v(V_QM + 4*t, 4), c), mf(S_, ktail(b), v(V_Q1 + 8*t + 4*(b % 2), 4), S_)]
def cost(x): return 2 if isinstance(x, str) and x.startswith(("v_exp", "v_rcp")) else 1
class VM:
    def __init__(s, k, loads): s.k = k; s.todo = list(loads); s.q = []; s.done = set()
    def issue(s, n=1):
        for _ in range(n):
            if s.todo:
                tag, op = s.todo.pop(0); s.k(op); s.q.append(tag)
    def need(s, tags):
        tags = [t for t in tags if t not in s.done]
        while any(t in [x[0] for x in s.todo] for t in tags): s.issue()
        if tags:
            i = max(s.q.index(t) for t in tags); s.k(f"s_waitcnt vmcnt({len(s.q) - 1 - i})"); s.done.update(s.q[:i + 1]); s.q = s.q[i + 1:]
    def __call__(s, x):
        if isinstance(x, (list, tuple)) and not (len(x) == 2 and x[0] in ("NEED", "ISSUE")):
            for y in x: s(y)
        elif isinstance(x, tuple): s.need(x[1]) if x[0] == "NEED" else s.issue(x[1])
        else:
            s.k(x)
            if x.startswith("buffer_") and "COND" not in x: s.q.append("x")
def inter(E, main, side, lead=0, tail=0):
    tot = sum(cost(x) for x in main); span = max(1, tot - lead - tail); c = 0; si = 0
    for x in main:
        while si < len(side) and c >= lead + si * span / len(side):
            E(side[si]); si += 1
        E(x); c += cost(x)
    while si < len(side): E(side[si]); si += 1
def body(k, st, SC, after_p1=()):
    T = V_T
    L = []
    def km(b): return (f"K{b}", f"buffer_load_dwordx4 {kmain(b)}, v{V_KM}, s[4:7], s{SO+b//2} offen offset:{1024*(b%2)} {SC}")
    def kt(i): return (f"T{i}", f"buffer_load_dwordx2 {a(A_K+12*i,2)}, v{V_KT}, s[4:7], s{SO+i} offen {SC}")
    L += [km(0), kt(0), km(8), kt(4), km(1), km(9)]
    for i in (1, 2, 3): L += [km(2*i), kt(i), km(2*i+1)]
    for b in (0, 8, 1, 9, 2, 3, 4, 5, 6, 7):
        for s_ in range(2): L.append((f"V{b}", f"buffer_load_dwordx4 {a(A_V+8*b+4*s_,4)}, v{V_VV}, s[4:7], s{SO+b//2} offen offset:{(2*(b%2)+s_)*512} {SC}") if s_ else
                                     (f"v{b}", f"buffer_load_dwordx4 {a(A_V+8*b,4)}, v{V_VV}, s[4:7], s{SO+b//2} offen offset:{(2*(b%2))*512} {SC}"))
    E = VM(k, L)
    kn = lambda bs: ("NEED", [f"K{b}" for b in bs] + [f"T{b//2}" for b in bs])
    E.issue(int(OPT.get("an0", 9)))
    units = [(0, (0, 8)), (1, (1, 9)), (1, (8,)), (0, (1,))] + [(t, (b,)) for b in range(2, 8) for t in range(2)]
    free = [0, 1, 2, 3]; sb = {}
    def m1(i, c):
        t, bs = units[i]; sb[i] = [free.pop(0) for _ in bs]; o = []
        for b, s_ in zip(bs, sb[i]): o += qk(t, b, s_, c(t))
        return o
    def merge_ops(i):
        lo, hi = [V_S + 16 * x for x in sb[i]]
        return [f"v_cndmask_b32 v{lo+n}, v{lo+n}, v{hi+n}, s[{MSK+2*n}:{MSK+2*n+1}]" for n in range(16)]
    zero = lambda t: "0"
    E(kn(units[0][1])); st(k, "att_first"); E(m1(0, zero)); E(("ISSUE", 2))
    E(("NEED", ["K1", "K9"])); E(m1(1, zero)); E(("ISSUE", 2)); k("s_nop 2")
    nxt = [2]
    def issue_next():
        if nxt[0] < 16 and free:
            o = [kn(units[nxt[0]][1])] + m1(nxt[0], zero); nxt[0] += 1
            return o
        return []
    pend = []
    for i in range(16):
        t, bs = units[i]; S_ = V_S + 16 * sb[i][0]
        mx = [f"v_max3_f32 v{V_MX+2*t+(n&1)}, v{S_+2*n}, v{S_+2*n+1}, v{V_MX+2*t+(n&1)}" for n in range(8)]
        if len(bs) == 2:
            inter(E, merge_ops(i), pend); free.append(sb[i][1]); pend = issue_next()
        if i == 15: k("s_nop 3")
        inter(E, mx, pend + [("ISSUE", 1)]); free.append(sb[i][0])
        pend = issue_next()
    st(k, "att_p1")
    for t in range(2): k(f"v_max_f32 v{V_MX+2*t}, v{V_MX+2*t}, v{V_MX+2*t+1}")
    for t in range(2): k(f"v_mov_b32 v{V_MX+2*t+1}, v{V_MX+2*t}")
    E(("ISSUE", 1)); k("s_nop 0")
    for t in range(2): k(f"v_permlane32_swap_b32 v{V_MX+2*t}, v{V_MX+2*t+1}")
    E(("ISSUE", 1)); k("s_nop 0")
    for t in range(2): k(f"v_max_f32 v{V_MX+2*t}, v{V_MX+2*t}, v{V_MX+2*t+1}")
    units = [(0, (0, 8)), (1, (8,)), (1, (1, 9)), (0, (1,))] + [(t, (b,)) for b in range(2, 8) for t in range(2)]
    free = [0, 1, 2, 3]; sb = {}; pfree = [0, 1, 2, 3]; pb = {}
    nmc = lambda t: v(V_NM + 16 * t, 16)
    for n in range(16): k(f"v_sub_f32 v{V_NM+n}, 0, v{V_MX}")
    k("s_nop 0")
    inter(E, [f"v_sub_f32 v{V_NM+16+n}, 0, v{V_MX+2}" for n in range(16)], m1(0, nmc), 1, 4)
    E(("ISSUE", 2)); k("s_nop 3")
    ostarted = set()
    def m2(i):
        t, bs = units[i]; o = []; O_ = v(V_O + 16 * t, 16)
        for b, p_ in zip(bs, pb[i]):
            for s_ in range(2):
                c = O_ if t in ostarted else "0"; ostarted.add(t)
                o.append([("NEED", [f"V{b}"]), mf(O_, a(A_V + 8*b + 4*s_, 4), v(V_P + 8*p_ + 4*s_, 4), c)])
        return o
    carry = []
    for i in range(16):
        t, bs = units[i]; S_ = V_S + 16 * sb[i][0]
        side = m1(i + 1, nmc) if i + 1 < 16 else []
        m2ops = m2(i - 1) if i >= 1 else []
        pb[i] = [pfree.pop(0) for _ in bs]
        P0 = V_P + 8 * pb[i][0]
        x = merge_ops(i) if len(bs) == 2 else []
        for n in range(8):
            x += [f"v_exp_f32 v{S_+2*n}, v{S_+2*n}", f"v_exp_f32 v{S_+2*n+1}, v{S_+2*n+1}"]
            if n >= 1: x.append(f"v_cvt_pk_bf16_f32 v{P0+n-1}, v{S_+2*n-2}, v{S_+2*n-1}")
        last = f"v_cvt_pk_bf16_f32 v{P0+7}, v{S_+14}, v{S_+15}"
        x[-1], x[-2] = x[-2], x[-1]
        x = x[:-2] + [x[-1], x[-2]]
        if len(bs) == 2:
            P1 = V_P + 8 * pb[i][1]
            x += [f"v_and_b32 v{P1}, v{P0}, v{V_MK}", last]
            for n in range(1, 8): x.append(f"v_and_b32 v{P1+n}, v{P0+n}, v{V_MK+n}")
            for n in range(8): x.append(f"v_xor_b32 v{P0+n}, v{P0+n}, v{P1+n}")
        else: x.append(last)
        if i >= 1:
            for p_ in pb[i - 1]: pfree.append(p_)
        ex = [("ISSUE", 2)]
        if after_p1 and not E.todo: ex = [list(after_p1)]; after_p1 = None
        inter(E, x, side + ex + m2ops, 1, 3)
        for s_ in sb[i]: free.append(s_)
    def epi(t):
        O_ = V_O + 16 * t; R = T + 2 * t; P_ = V_NM + 8 * t
        o = [f"v_mov_b32 v{R+1}, v{O_+10}", "s_nop 1", f"v_permlane32_swap_b32 v{O_+10}, v{R+1}", "s_nop 1", f"v_rcp_f32 v{R}, v{O_+10}", "s_nop 0"]
        o += [f"v_mul_f32 v{O_+n}, v{O_+n}, v{R}" for n in range(10)]
        o += [f"v_cvt_pk_bf16_f32 v{P_+n}, v{O_+2*n}, v{O_+2*n+1}" for n in range(5)]
        o += [f"buffer_store_dwordx4 {v(P_,4)}, v{V_SO}, s[16:19], s88 offen offset:{512*t} {SC}", f"buffer_store_dword v{P_+4}, v{V_ST}, s[16:19], s89 offen offset:{128*t} {SC}"]
        return o
    k("s_nop 1")
    E(m2(15))
    st(k, "att_p2")
    k("s_nop 5"); E(epi(0)); E(epi(1))
```

```python
from common import *
import k_ffn3 as FF
import k_ffn4 as F4
LDS = 163840
SC = "sc1"
S_WS, S_X, S_OUT, S_NON, S_FL = 96, 98, 100, 90, 92
S_FO = 19
S_FO = 75 + 0
V_L16, V_PD, V_PT0, V_PT1, V_STAMP = 1, 12, 13, 14, 15
F_P0, F_QKV, F_ATT, F_WO, F_FFN, F_RED, F_PF = 0, 1, 2, 3, 4, 5, 11
STG_Q, STG_O, STG_F, STG_J = 73728, 91648, 96768, 73728
FS = [3]
def FT(): return 256 << FS[0]
def FPJ(): return 12 * FT() + 4 * 8192
F_PJ = 0
WOIMG = 0
NST = [0]
def st(k, name=""):
    if STAMP[0]:
        k("s_memtime s[0:1]" if STAMP[0] == 2 else "s_memrealtime s[0:1]", "s_waitcnt lgkmcnt(0)", f"v_writelane_b32 v{V_STAMP}, s0, {NST[0]}" + f" ; {name}")
        NAMES.append(name); NST[0] += 1
NAMES = []
def add64(k, d, base, off_s):
    k(f"s_add_u32 s{d}, s{base}, s{off_s}", f"s_addc_u32 s{d+1}, s{base+1}, 0")
LBL = [0]
POLLW = {}
def publish(k, fid, layered=True, vm=0, idx="task", extra=None, keep=False):
    LBL[0] += 1; L = f"pub{LBL[0]}"
    k(f"s_waitcnt vmcnt({vm})", "s_barrier", "s_cmp_lg_u32 s20, 0", f"s_cbranch_scc1 {L}")
    if idx == "task": k("s_lshl_b32 s23, s21, 3", "s_add_u32 s23, s23, s22", f"s_lshl_b32 s23, s23, {FS[0]}")
    else: k(f"s_lshl_b32 s23, s2, {FS[0]}")
    k(f"s_add_u32 s23, s23, {fid*FT()}")
    if layered: k("s_add_u32 s23, s23, s14")
    k("s_mov_b64 exec, 1", "v_mov_b32 v9, 0", f"v_mov_b32 v10, s{S_NON}", f"v_mov_b32 v11, s{S_NON+1}")
    k(f"buffer_store_dwordx2 v[10:11], v9, s[{S_FL}:{S_FL+3}], s23 offen {SC}")
    if extra is not None:
        k("s_cmp_lg_u32 s3, 0", f"s_cbranch_scc1 {L}_x")
        k("s_lshl_b32 s23, s75, 5", "s_add_u32 s23, s23, s74", "s_lshl_b32 s23, s23, 3", f"s_add_u32 s23, s23, {extra*FT()}", f"buffer_store_dwordx2 v[10:11], v9, s[{S_FL}:{S_FL+3}], s23 offen {SC}")
        k.label(f"{L}_x")
    k("s_mov_b64 exec, -1")
    k.label(L)
def wait(k, setup, pw=0):
    LBL[0] += 1; L = f"wt{LBL[0]}"; POLLW[L] = pw
    k(f"s_cmp_lg_u32 s20, {pw}", f"s_cbranch_scc1 {L}_d")
    k(setup, "s_mov_b32 s23, 0x10000")
    if int(OPT.get("pre", 0)): k(f"s_sleep {OPT['pre']}")
    k.label(f"{L}_l")
    if int(OPT.get("slp", 0)): k(f"s_sleep {OPT['slp']}")
    k(f"buffer_load_dwordx2 v[10:11], v9, s[{S_FL}:{S_FL+3}], 0 offen {SC}", "s_waitcnt vmcnt(0)")
    k(f"v_cmp_ne_u64 vcc, s[{S_NON}:{S_NON+1}], v[10:11]", "s_sub_u32 s23, s23, 1", "s_cselect_b64 s[24:25], 0, -1", "s_nop 1", "s_and_b64 vcc, vcc, s[24:25]", f"s_cbranch_vccnz {L}_l")
    k.label(f"{L}_d")
    k("s_barrier")
def tile_flags(fid, prev_layer=False):
    o = ["v_and_b32 v9, 7, v0", "s_lshl_b32 s23, s21, 3", "v_add_u32 v9, s23, v9", f"v_lshlrev_b32 v9, {FS[0]}, v9", f"s_add_u32 s23, s14, {hx(fid*FT() - (5*FT() if prev_layer else 0))}", "v_add_u32 v9, s23, v9"]
    return o

def div18(su, sq, sr): return [f"s_mul_i32 s{sq}, s{su}, 3641", f"s_lshr_b32 s{sq}, s{sq}, 16", f"s_mul_i32 s{sr}, s{sq}, 18", f"s_sub_u32 s{sr}, s{su}, s{sr}"]
def soffA(rd): return [f"s_add_u32 s76, s74, {32*rd}"] + div18(76, 78, 79) + [f"s_mul_i32 s79, s79, {32*9216}", "s_lshl_b32 s78, s78, 7", "s_add_u32 s78, s78, s79", "s_mul_i32 s79, s75, 1152", "s_add_u32 s78, s78, s79"]
def soffB(rd, d): return [f"s_add_u32 s76, s74, {hx(32*rd - 162)}", "s_lshl_b32 s76, s76, 1"] + div18(76, d, 79) + [f"s_mul_i32 s79, s79, {32*1152}", f"s_lshl_b32 s{d}, s{d}, 7", f"s_add_u32 s{d}, s{d}, s79", f"s_mul_i32 s79, s75, {576*1152}", f"s_add_u32 s{d}, s{d}, s79"]
J_PD, J_T0, J_T1 = 240, 243, 246
def dma_round(rd, lds):
    if rd <= 4: pre, s1, s2, o2, vd = soffA(rd), 60, 64, 78, V_PD
    elif rd == 5:
        pre = soffB(5, 77) + soffA(5) + ["s_cmp_lt_u32 s74, 2", "s_cselect_b32 s78, s78, s77", f"s_cselect_b32 s79, 0, {32*1152}", "s_add_u32 s77, s78, s79"]
        s1, s2, o2, vd = 80, 84, 77, J_PD + 2
    else: pre, s1, s2, o2, vd = soffB(rd, 78) + [f"s_add_u32 s77, s78, {32*1152}"], 36, 36, 77, J_PD + 1
    return [pre + [f"s_add_u32 m0, s88, {lds}", "s_nop 0", f"buffer_load_dwordx4 v{vd}, s[{s1}:{s1+3}], s78 offen lds"],
            [f"s_add_u32 m0, s88, {lds + 4096}", "s_nop 0", f"buffer_load_dwordx4 v{vd}, s[{s2}:{s2+3}], s{o2} offen lds"]]
def tr_round(T, t0, t1, off): return [f"ds_read_b64_tr_b16 {v(T + 4*u + 2*e, 2)}, v{(t0, t1)[e]} offset:{off + 4096*u}" for u in range(2) for e in range(2)]
def st_round(rd, T):
    pre = [f"s_add_u32 s76, s74, {32*rd}", "s_lshl_b32 s78, s76, 11"]
    if rd == 7: pre += ["s_cmp_lt_u32 s76, 243", f"s_cselect_b32 s70, {WFR*1024}, 0"]
    return [pre + [f"buffer_store_dwordx4 {v(T,4)}, v{V_L16}, s[68:71], s78 offen {SC}"], [f"buffer_store_dwordx4 {v(T+4,4)}, v{V_L16}, s[68:71], s78 offen offset:1024 {SC}"]]
def jit_setup():
    q4, r4, c4, t, l8 = 250, 251, 252, 253, 254
    o = [f"v_lshrrev_b32 v{q4}, 4, v0", f"v_bfe_u32 v{r4}, v0, 2, 2", f"v_and_b32 v{c4}, 7, v0", f"v_lshlrev_b32 v{t}, 1, v{q4}", f"v_xor_b32 v{t}, v{t}, v{c4}", f"v_lshlrev_b32 v{t}, 4, v{t}",
         f"v_lshrrev_b32 v{l8}, 3, v0", "s_lshl_b32 s76, s20, 3", f"v_add_u32 v{l8}, s76, v{l8}", f"v_mul_u32_u24 v{l8}, 1152, v{l8}", f"v_add_u32 v{J_PD+1}, v{t}, v{l8}",
         f"v_add_u32 v{J_T0}, {STG_J}, v{V_PT0}", f"v_add_u32 v{J_T1}, 512, v{J_T0}", f"v_lshlrev_b32 v{t}, 9, v{q4}", f"v_sub_u32 v{J_T0+1}, v{J_T0}, v{t}", f"v_add_u32 v{J_T1+1}, 2048, v{J_T0+1}",
         "s_cmp_lt_u32 s74, 2", "s_cselect_b64 vcc, -1, 0", "s_cselect_b64 s[80:81], s[60:61], s[72:73]", "s_cselect_b64 s[84:85], s[64:65], s[72:73]", "s_mov_b64 s[36:37], s[72:73]",
         f"v_cndmask_b32 v{J_PD+2}, v{J_PD+1}, v{V_PD}, vcc", f"v_cndmask_b32 v{J_T0+2}, v{J_T0+1}, v{J_T0}, vcc", f"v_cndmask_b32 v{J_T1+2}, v{J_T1+1}, v{J_T1}, vcc", "s_lshl_b32 s88, s20, 10"]
    for r_ in (36, 80, 84): o += [f"s_mov_b32 s{r_+2}, {hx(D*F*2)}", f"s_mov_b32 s{r_+3}, 0x00020000"]
    return o

Q_XL, Q_SQ, Q_S8, Q_STL, Q_TS, Q_BR1, Q_XW = 2, 3, 4, 5, 6, 7, 8
Q_A2 = 160
Q_VW, Q_VR, Q_VA = 172, 173, 174
Q_AC, Q_B, Q_LT, Q_T, Q_X = 48, 112, 144, 161, 184
BREG = FF.BREG
def q_aload(n):
    o = [f"buffer_load_dwordx4 {BREG(n)}, v{Q_A2 if n >= 54 else V_L16}, s[4:7], s26 offen" + (f" offset:{(n%4)*1024}" if n % 4 else "") + f" {SC}"]
    if n % 4 == 3: o.append("s_add_u32 s26, s26, 0x1000")
    return o
def q_setup(k):
    q4, tk, r1, r2, t5, t6 = range(Q_T, Q_T + 6)
    k(f"v_lshrrev_b32 v{q4}, 4, v0", f"v_and_b32 v{tk}, 15, v0", f"v_and_b32 v{r1}, 1, v{q4}", f"v_lshrrev_b32 v{r2}, 1, v{q4}")
    k("s_lshl_b32 s38, s20, 10", f"v_add_u32 v{Q_XW}, s38, v{V_L16}", f"v_add_u32 v{Q_BR1}, 36864, v{V_L16}")
    k(f"v_lshlrev_b32 v{t5}, 4, v{tk}", f"v_lshl_add_u32 v{t6}, v{r2}, 9, v{t5}", f"v_lshl_add_u32 v{Q_SQ}, v{r1}, 11, v{t6}")
    k("s_lshl_b32 s40, s20, 12", f"s_add_u32 s40, s40, {KV_KM}", "s_add_u32 s41, s40, 0x400")
    k("s_mul_i32 s39, s20, 4608", f"s_add_u32 s39, s39, {STG_Q}")
    k(f"v_mul_u32_u24 v{t6}, 72, v{tk}", f"v_lshl_add_u32 v{t6}, v{q4}, 3, v{t6}", f"v_add_u32 v{Q_VW}, s39, v{t6}")
    k(f"v_bfe_u32 v{t6}, v0, 2, 2", f"v_lshl_add_u32 v{t6}, v{r1}, 2, v{t6}", f"v_lshl_add_u32 v{t6}, v{r2}, 4, v{t6}", f"v_mul_u32_u24 v{t6}, 72, v{t6}", f"v_and_b32 v{Q_VR}, 3, v0", f"v_lshl_add_u32 v{t6}, v{Q_VR}, 3, v{t6}", f"v_add_u32 v{Q_VR}, s39, v{t6}")
    k(f"v_lshlrev_b32 v{t6}, 4, v{tk}", f"v_lshl_add_u32 v{t6}, v{r1}, 8, v{t6}", f"v_lshl_add_u32 v{t6}, v{r2}, 9, v{t6}")
    k("s_cmp_eq_u32 s20, 3", "s_cselect_b32 s39, 4, s20", "s_lshl_b32 s39, s39, 11", f"s_add_u32 s39, s39, {KV_V}", f"v_add_u32 v{Q_VA}, s39, v{t6}")
    k(f"v_lshlrev_b32 v{t6}, 9, v{r1}", f"v_lshl_add_u32 v{t6}, v{tk}, 3, v{t6}", f"v_add_u32 v{t6}, {KV_KT}, v{t6}")
    k(f"v_mov_b32 v{r1}, 0x80000000", f"v_cmp_gt_u32 vcc, 32, v0", f"v_mov_b32 v{r2}, {fl(QSCALE)}", "s_nop 0", f"v_cndmask_b32 v{Q_TS}, 1.0, v{r2}, vcc", f"v_cndmask_b32 v{Q_STL}, v{t6}, v{r1}, vcc")
    k("s_cmp_ge_u32 s20, 2", "s_cselect_b64 vcc, -1, 0", f"v_cndmask_b32 v{Q_A2}, v{V_L16}, v{r1}, vcc")
    k("s_lshl_b32 s38, s22, 2", "s_add_u32 s38, s38, s20", f"s_mul_i32 s38, s38, {72*1024}", f"s_add_u32 s38, s38, {hx(WS_WQ)}"); add64(k, 4, S_WS, 38); srd_fill(k, 4, 72 * 1024)
    k("s_lshl_b32 s38, s21, 3", "s_add_u32 s38, s38, s22", f"s_mul_i32 s38, s38, {KVB}", "s_add_u32 s38, s38, s3"); add64(k, 16, S_WS, 38); srd_fill(k, 16, KVB)
    k("s_mov_b32 s26, 0", "s_mov_b32 s29, 0x3f803f80", f"s_mov_b32 s28, {fl(QSCALE)}")
def ln_write(k, i, X, XW):
    off = i * 4096
    if i == 16: k(f"v_add_u32 v{XW}, 0x10000, v{XW}")
    k(f"ds_write_b128 v{XW}, {v(X+4*i,4)} offset:{off if off < 65536 else off - 65536}")
def q_bread(ks, sw=False): return [f"ds_read_b128 {v(Q_B + 16*(ks&1) + 4*tb, 4)}, v{(178 + (ks & 1) + (2 if ks >= 9 else 0)) if sw else (Q_BR1 if ks >= 9 else V_L16)} offset:{((4*ks+tb) % 36)*1024}" for tb in range(4)]
def q_lnq(i, pk):
    kk = Kern("t"); kk(ln_apply(Q_X, Q_LT, i, pk=pk)); ln_write(kk, i, Q_X, Q_XW); return kk.L
def q_loop(k, na, q, extra, chunk=True):
    k(q_bread(0, chunk is False))
    for ks in range(18):
        need = 3 * ks + 2 if ks < 17 else 71
        while need >= na: k(q_aload(na)); q.append(na); na += 1
        if chunk == "dma" and ks in (5, 11) and f"X{ks+6}" in q and (need not in q or q.index(need) < q.index(f"X{ks+6}")): need = f"X{ks+6}"
        if need in q:
            w = len(q) - 1 - q.index(need); q = q[q.index(need) + 1:]
            k(f"s_waitcnt vmcnt({min(63, w)}) lgkmcnt(0)")
        else: k("s_waitcnt lgkmcnt(0)")
        if ks in (5, 11) and chunk: k("s_barrier")
        br = q_bread((ks + 1) % 18, chunk is False)
        for tb in range(4):
            for ht in range(3):
                ac = v(Q_AC + 16*ht + 4*tb, 4)
                k(f"v_mfma_f32_16x16x32_bf16 {ac}, {BREG(3*ks+ht)}, {v(Q_B + 16*(ks&1) + 4*tb, 4)}, {'0' if ks == 0 else ac}")
                if tb < 2 and ht in (0, 1): k(br[2 * tb + ht])
                if ht == 2 and na < 72 and len(q) < 44 and (tb < 3 or QR4): k(q_aload(na)); q.append(na); na += 1
        for fn, nv in extra.get(ks, []):
            fn(); q += ["x"] * nv
QR4 = True
def q_pass(k, sw, a_, b_):
    def rd(ks): return [x.replace(v(Q_B + 16*(ks&1) + 4*tb, 4), v(Q_B + 16*(ks%3) + 4*tb, 4)) for tb, x in enumerate(q_bread(ks, sw))]
    if a_ == 0: k(rd(1))
    for ks in range(a_, b_):
        k(f"s_waitcnt lgkmcnt({4 if ks < 17 else 0})")
        br = rd(ks + 2) if ks < 16 else []
        for tb in range(4):
            ac = v(Q_AC + 32 + 4*tb, 4)
            k(f"v_mfma_f32_16x16x32_bf16 {ac}, {BREG(54+ks)}, {v(Q_B + 16*(ks%3) + 4*tb, 4)}, {'0' if ks == 0 else ac}")
            if br: k(br[tb])
def q_part(k, n, a_, b_):
    k("s_cmp_ge_u32 s20, 2", f"s_cbranch_scc1 q_p{n}d", "s_cmp_lg_u32 s3, 0", f"s_cbranch_scc1 q_p{n}b")
    q_pass(k, True, a_, b_)
    k(f"s_branch q_p{n}d")
    k.label(f"q_p{n}b")
    q_pass(k, False, a_, b_)
    k.label(f"q_p{n}d")
def q_epi(k):
    st(k, "qkv_mfma")
    P = Q_X; RS = 72
    def vtile(ht):
        for tb in range(4):
            O = P + 8 * ht + 2 * tb
            for d in range(2): k(f"v_cvt_pk_bf16_f32 v{O+d}, v{Q_AC+16*ht+4*tb+2*d}, v{Q_AC+16*ht+4*tb+2*d+1}")
            k(f"ds_write_b64 v{Q_VW}, {v(O,2)} offset:{tb*16*RS + 32*ht}")
    def vread(ht):
        for pr in range(2):
            for e in range(2): k(f"ds_read_b64_tr_b16 {v(Q_AC+8*ht+4*pr+2*e,2)}, v{Q_VR} offset:{pr*32*RS + e*8*RS + 32*ht}")
    def vstore(ht):
        for pr in range(2): k(f"buffer_store_dwordx4 {v(Q_AC+8*ht+4*pr,4)}, v{Q_VA}, s[16:19], 0 offen offset:{ht*2048 + pr*1024} {SC}")
    k("s_nop 5")
    vtile(0)
    k("s_cmp_ge_u32 s20, 2", "s_cbranch_scc1 q_epi2")
    for tb in range(4):
        O = P + 16 + 4 * tb
        for h in range(2):
            for d in range(2): k(f"v_cvt_pk_bf16_f32 v{O+2*h+d}, v{Q_AC+16*(1+h)+4*tb+2*d}, v{Q_AC+16*(1+h)+4*tb+2*d+1}")
    k("s_waitcnt lgkmcnt(0)")
    vread(0)
    for tb in range(4):
        for d in range(2): k(f"v_permlane16_swap_b32 v{P+16+4*tb+d}, v{P+16+4*tb+2+d}")
    for tb in range(4): k(f"buffer_store_dwordx4 {v(P+16+4*tb,4)}, v{Q_SQ}, s[16:19], s{40 + (tb>>1)} offen offset:{256*(tb&1)} {SC}")
    k("s_waitcnt lgkmcnt(0)")
    vstore(0)
    k("s_branch q_epid")
    k.label("q_epi2")
    k("s_cmp_eq_u32 s20, 3", "s_cbranch_scc1 q_epi3")
    vtile(1)
    k("s_waitcnt lgkmcnt(0)")
    vread(0); vread(1)
    k("s_waitcnt lgkmcnt(4)"); vstore(0); k("s_waitcnt lgkmcnt(0)"); vstore(1)
    k("s_branch q_epid")
    k.label("q_epi3")
    for tb in range(4):
        for i in range(4): k(f"v_mul_f32 v{Q_AC+16+4*tb+i}, v{Q_TS}, v{Q_AC+16+4*tb+i}")
    for a_ in range(2):
        for h in range(2):
            for x in range(2): k(f"v_cvt_pk_bf16_f32 v{P+16+4*a_+2*h+x}, v{Q_AC+16+4*(a_+2*x)+2*h}, v{Q_AC+16+4*(a_+2*x)+2*h+1}")
    vtile(1)
    k("s_waitcnt lgkmcnt(4)")
    vread(0)
    k(f"v_mov_b32 v{P+24}, 0x3f803f80", f"v_and_b32 v{P+25}, 8, v0", f"v_cmp_eq_u32 vcc, 0, v{P+25}")
    for a_ in range(2):
        for h in range(2): k(f"buffer_store_dwordx2 {v(P+16+4*a_+2*h,2)}, v{Q_STL}, s[16:19], 0 offen offset:{256*h + 128*a_} {SC}")
    k("s_waitcnt lgkmcnt(0)")
    for i in range(8): k(f"v_cndmask_b32 v{Q_AC+i}, v{P+24}, v{Q_AC+i}, vcc")
    vstore(0)
    k.label("q_epid")
    st(k, "qkv_st")
    q_part(k, 0, 0, int(OPT.get("qh", 14)))
    st(k, "qkv_q")
def q_fin(k):
    import k_att2 as A
    if int(OPT.get("qh", 14)) < 18:
        q_part(k, 1, int(OPT.get("qh", 14)), 18); k("s_nop 7")
    for i in range(16): k(f"v_mul_f32 v{Q_AC+32+i}, s28, v{Q_AC+32+i}")
    for tb in range(4):
        for d in range(2): k(f"v_cvt_pk_bf16_f32 v{A.V_QM+2*tb+d}, v{Q_AC+32+4*tb+2*d}, v{Q_AC+32+4*tb+2*d+1}")
    k("v_and_b32 v9, 31, v0", "v_mul_u32_u24 v9, 72, v9", "s_lshl_b32 s23, s20, 2", f"s_add_u32 s23, s23, {STG_Q + 3*4608 + 32}", "v_add_u32 v9, s23, v9")
    k(f"ds_read_b32 v{A.V_QTT}, v9", f"ds_read_b32 v{A.V_QTT+1}, v9 offset:{32*72}")
    for t in range(2):
        for d in range(2): k(f"v_permlane16_swap_b32 v{A.V_QM+4*t+d}, v{A.V_QM+4*t+2+d}")

def startup(k):
    k("s_cmp_ge_u32 s2, 256", "s_cbranch_scc1 mega_done")
    k("s_memrealtime s[56:57]")
    k(f"s_load_dwordx4 s[28:31], s[0:1], 0", f"s_load_dwordx2 s[32:33], s[0:1], {A_WO*8}", f"s_load_dwordx4 s[60:63], s[0:1], {A_WG*8}",
      f"s_load_dwordx4 s[48:51], s[0:1], {A_WD*8}", f"s_load_dwordx4 s[52:55], s[0:1], {A_DBG*8}")
    k("v_lshrrev_b32 v1, 6, v0", "v_and_b32 v0, 63, v0", "v_readfirstlane_b32 s20, v1", f"v_lshlrev_b32 v{V_L16}, 4, v0", "s_mov_b32 s3, 0")
    if STAMP[0]: k(f"v_mov_b32 v{V_STAMP}, 0")
    if int(OPT.get("cpf", 1)):
        k("s_cmp_lg_u32 s20, 3", "s_cbranch_scc1 no_cpf", "s_getpc_b64 s[34:35]")
        k.label("cpf_base")
        k("s_lshr_b32 s36, s2, 3", "s_mul_i32 s36, s36, 18", "v_add_u32 v4, s36, v0", f"v_and_b32 v4, 1023, v4", "v_lshlrev_b32 v4, 7, v4", "v_mov_b32 v7, s35")
        k("v_min_u32 v6, mega_done-cpf_base, v4", "v_add_co_u32 v2, vcc, s34, v6", "s_nop 1", "v_addc_co_u32 v3, vcc, 0, v7, vcc", "global_load_dword v5, v[2:3], off ; WAWOK")
        k.label("no_cpf")
    wgmap(k, int(OPT.get("qmap", 44)))
    T = 16
    q4, tk, tok, t3, t4, t5, t6, t7, tmp, t9 = range(T, T + 10)
    DQ, DO, TQ, TO = 32, 36, 38, 42
    k(f"v_lshrrev_b32 v{q4}, 4, v0", f"v_and_b32 v{tk}, 15, v0", "s_lshl_b32 s38, s20, 4", f"v_add_u32 v{tok}, s38, v{tk}")
    k(f"v_lshrrev_b32 v{t3}, 3, v0", f"v_add_u32 v{t3}, s38, v{t3}", f"v_mul_u32_u24 v{Q_XL}, 1152, v{t3}", f"v_and_b32 v{t3}, 7, v0", f"v_lshl_add_u32 v{Q_XL}, v{t3}, 4, v{Q_XL}", "s_movk_i32 s26, 9216")
    hi, c, u, h, col = t3, t4, t5, t6, t7
    k(f"v_lshrrev_b32 v{hi}, 5, v0", f"v_and_b32 v{c}, 31, v0", f"v_lshlrev_b32 v{tmp}, 1, v{hi}", f"v_sub_u32 v{c}, v{c}, v{tmp}")
    k(f"v_mul_u32_u24 v{u}, 57, v{c}", f"v_lshrrev_b32 v{u}, 9, v{u}", f"v_mul_u32_u24 v{u}, 1008, v{u}", f"v_lshl_add_u32 v{col}, v{c}, 4, v{u}")
    k(f"v_mul_u32_u24 v{tmp}, 3456, v{hi}", f"s_mul_i32 s42, s20, {8*3456}", f"v_add3_u32 v{col}, v{col}, v{tmp}, s42")
    k(f"v_mov_b32 v{t9}, 0x80000000", f"v_cmp_gt_u32 vcc, 27, v{c}", "s_nop 1", f"v_cndmask_b32 v{DQ}, v{t9}, v{col}, vcc")
    for i in range(1, 4): k(f"v_add_u32 v{DQ+i}, {i*(6912-1088)}, v{DQ}")
    k("s_sub_u32 s34, s2, 112", "s_lshr_b32 s35, s34, 3", "s_and_b32 s34, s34, 7", "s_movk_i32 s40, 6554")
    n_, lam, cc, t1, t2 = t3, t4, t5, t6, t7
    for x in range(2):
        if x == 0: k("s_lshl_b32 s41, s20, 6", f"v_add_u32 v{n_}, s41, v0")
        else: k(f"v_add_u32 v{n_}, 256, v0")
        k(f"v_mul_u32_u24 v{lam}, s40, v{n_}", f"v_lshrrev_b32 v{lam}, 16, v{lam}", f"v_mul_u32_u24 v{cc}, 10, v{lam}", f"v_sub_u32 v{cc}, v{n_}, v{cc}")
        k(f"v_lshrrev_b32 v{t1}, 4, v{lam}", f"v_lshl_add_u32 v{n_}, v{t1}, 1, v{lam}")
        k(f"v_bfe_u32 v{t2}, v{lam}, 2, 1", f"v_lshl_add_u32 v{t1}, v{t1}, 1, v{t2}", f"v_mul_u32_u24 v{t1}, 72, v{t1}")
        k(f"v_bfe_u32 v{t2}, v{lam}, 3, 1", f"v_mul_u32_u24 v{t2}, 36, v{t2}", f"v_add3_u32 v{t1}, v{t1}, v{t2}, 16", f"v_and_b32 v{t2}, 1, v{lam}", f"v_add_u32 v{t1}, v{t1}, v{t2}", f"v_bfe_u32 v{t2}, v{lam}, 1, 1", f"v_mul_u32_u24 v{t2}, 18, v{t2}", f"v_add_u32 v{t1}, v{t1}, v{t2}")
        k("s_cmp_lt_u32 s35, 16", "s_cselect_b64 vcc, -1, 0", f"v_cndmask_b32 v{t1}, v{t1}, v{n_}, vcc")
        k(f"v_mul_u32_u24 v{t1}, 1152, v{t1}", f"v_lshl_add_u32 v{t1}, v{cc}, 4, v{t1}", f"v_cmp_gt_u32 vcc, 9, v{cc}", "s_nop 1", f"v_cndmask_b32 v{DO+x}, v{t9}, v{t1}, vcc")
    k("s_cmp_eq_u32 s20, 0", "s_cselect_b64 vcc, -1, 0", f"v_cndmask_b32 v{DO+1}, v{t9}, v{DO+1}, vcc")
    k(f"s_mul_i32 s36, s35, {36*1152}", "s_sub_u32 s37, s35, 16", f"s_mul_i32 s37, s37, {288*1152}", "s_cmp_lt_u32 s35, 16", "s_cselect_b32 s36, s36, s37", "s_mul_i32 s37, s34, 144", "s_add_u32 s36, s36, s37")
    k("s_and_b32 s37, s2, 7", "s_mul_i32 s37, s37, 144", "s_lshr_b32 s39, s2, 3", f"s_mul_i32 s39, s39, {32*3456}", "s_add_u32 s37, s37, s39")
    srd_fill(k, 12, TILE)
    k(f"s_mul_i32 s39, s21, {TILE}")
    k("s_waitcnt lgkmcnt(0)")
    if STAMP[0]:
        k(f"v_writelane_b32 v{V_STAMP}, s56, 0"); NAMES.append("entry"); NST[0] += 1
    k("s_sub_u32 s89, s56, 5000")
    st(k, "kernarg")
    k(f"s_mov_b32 s{S_WS}, s54", f"s_mov_b32 s{S_WS+1}, s55", f"s_mov_b32 s{S_X}, s28", f"s_mov_b32 s{S_X+1}, s29", f"s_mov_b32 s{S_OUT}, s50", f"s_mov_b32 s{S_OUT+1}, s51")
    k("s_mov_b32 s4, s30", "s_mov_b32 s5, s31", "s_cmp_lt_u32 s2, 144", f"s_cselect_b32 s6, {D*3*D*2}, 0", "s_mov_b32 s7, 0x00020000")
    k("s_mov_b32 s8, s32", "s_mov_b32 s9, s33", "s_cmp_ge_u32 s2, 112", f"s_cselect_b32 s10, {D*D*2}, 0", "s_mov_b32 s11, 0x00020000")
    k("s_mul_i32 s40, s20, 4480", f"s_add_u32 m0, s40, {STG_Q}", "s_nop 0")
    for i in range(4): k(f"buffer_load_dwordx4 v{DQ+i}, s[4:7], s37 offen offset:{1088*i} lds")
    k("s_lshl_b32 s40, s20, 10", f"s_add_u32 m0, s40, {STG_O}", "s_nop 0", f"buffer_load_dwordx4 v{DO}, s[8:11], s36 offen lds")
    k("s_cmp_eq_u32 s20, 0", f"s_cselect_b32 m0, {STG_O + 4096}, 145920", "s_nop 0", f"buffer_load_dwordx4 v{DO+1}, s[8:11], s36 offen lds")
    if OPT.get("fine"): st(k, "p0_dmaq")
    add64(k, 12, S_X, 39)
    for n in range(18): k(f"buffer_load_dwordx4 {v(Q_X+4*n,4)}, v{Q_XL}, s[12:15], {'s26' if n >= 9 else '0'} offen offset:{128*(n%9)}")
    if OPT.get("fine"): st(k, "p0_xiss")
    k("s_mov_b32 s56, s52", "s_mov_b32 s57, s53"); srd_fill(k, 56, 256)
    k("s_or_b32 s38, s2, s20", "s_cmp_lg_u32 s38, 0", "s_cbranch_scc1 no_nonce")
    k("s_memrealtime s[38:39]", "s_waitcnt lgkmcnt(0)", "s_or_b32 s38, s38, 1", "s_mov_b64 exec, 1", "v_mov_b32 v9, 0", "v_mov_b32 v10, s38", "v_mov_b32 v11, s39")
    k(f"buffer_store_dwordx2 v[10:11], v9, s[56:59], 0 offen {SC}", "s_waitcnt vmcnt(0)", "s_mov_b64 exec, -1")
    k.label("no_nonce")
    k(f"s_add_u32 s{S_FL}, s{S_WS}, {hx(WS_F)}", f"s_addc_u32 s{S_FL+1}, s{S_WS+1}, 0"); srd_fill(k, S_FL, 12 * FT() + 5 * 8192)
    r4, c4 = t3, t4
    k(f"v_bfe_u32 v{r4}, v0, 2, 2", f"v_and_b32 v{c4}, 3, v0")
    k(f"v_mul_u32_u24 v{t5}, 4480, v{q4}", f"v_mul_u32_u24 v{t6}, 544, v{r4}", f"v_add3_u32 v{t5}, v{t5}, v{t6}, {STG_Q}".replace(f", {STG_Q}", ", 0"), f"v_add_u32 v{t5}, {STG_Q}, v{t5}", f"v_lshl_add_u32 v{t5}, v{c4}, 3, v{t5}")
    k("s_cmp_eq_u32 s20, 3", "s_cselect_b32 s40, 4, s20", "s_cselect_b64 vcc, -1, 0", "s_lshl_b32 s40, s40, 5", "s_add_u32 s40, s40, 288", f"v_add_u32 v{TQ}, s40, v{t5}")
    k("s_mul_i32 s40, s20, 72", "s_add_u32 s40, s40, 144", "s_add_u32 s41, s40, 40", "s_cmp_eq_u32 s20, 2", "s_cselect_b32 s40, 384, s40", f"v_add_u32 v{TQ+1}, s40, v{t5}", f"v_add_u32 v{TQ+2}, s41, v{t5}")
    k(f"v_lshl_add_u32 v{t6}, v{c4}, 6, v{t5}", f"v_add_u32 v{t6}, 32, v{t6}", f"v_cndmask_b32 v{TQ+1}, v{TQ+1}, v{t6}, vcc")
    k("s_mul_i32 s40, s20, 36", "s_and_b32 s41, s20, 1", "s_lshl_b32 s41, s41, 2", "s_add_u32 s40, s40, s41", f"v_add_u32 v{TQ+3}, s40, v{t5}", "s_cmp_ge_u32 s20, 2", "s_cselect_b64 vcc, -1, 0", f"v_cndmask_b32 v{TQ+2}, v{TQ+2}, v{TQ+3}, vcc")
    k(f"v_lshrrev_b32 v{t6}, 1, v{q4}", f"v_and_b32 v{t7}, 1, v{q4}", f"v_lshl_add_u32 v{tmp}, v{t7}, 2, v{r4}", f"v_lshl_add_u32 v{tmp}, v{t6}, 4, v{tmp}", f"v_mul_u32_u24 v{tmp}, 160, v{tmp}")
    k(f"v_lshl_add_u32 v{tmp}, v{c4}, 3, v{tmp}", f"v_add_u32 v{TO+1}, {STG_O + 128}, v{tmp}", "s_lshl_b32 s40, s20, 5", f"s_add_u32 s40, s40, {STG_O}", f"v_add_u32 v{TO}, s40, v{tmp}")
    k("s_and_b32 s40, s2, 7", "s_lshl_b32 s40, s40, 2", "s_add_u32 s40, s40, s20", f"s_mul_i32 s40, s40, {72*1024}", f"s_add_u32 s40, s40, {hx(WS_WQ)}")
    k("s_lshr_b32 s42, s2, 3", "s_mul_i32 s41, s42, 3072", "s_add_u32 s42, s42, 54", "s_lshl_b32 s42, s42, 10", "s_cmp_ge_u32 s20, 2", "s_cselect_b64 vcc, -1, 0", f"v_cndmask_b32 v44, v{V_L16}, v{t9}, vcc")
    k(f"s_mul_i32 s43, s34, {90*1024}", f"s_add_u32 s43, s43, {hx(WS_WO)}", "s_mul_i32 s45, s35, 5120", "s_lshl_b32 s46, s20, 10", "s_add_u32 s46, s46, s45", "s_add_u32 s45, s45, 4096", "s_cmp_eq_u32 s20, 0", "s_cselect_b64 vcc, -1, 0", f"v_cndmask_b32 v45, v{t9}, v{V_L16}, vcc")
    k("s_mov_b32 s64, s62", "s_mov_b32 s65, s63", "s_mov_b64 s[72:73], s[48:49]", "s_lshr_b32 s74, s2, 3", "s_and_b32 s75, s2, 7")
    srd_fill(k, 60, D * F * 2); srd_fill(k, 64, D * F * 2)
    k("s_lshl_b32 s76, s75, 2", "s_add_u32 s76, s76, s20", f"s_mul_i32 s76, s76, {WFR*1024}", f"s_add_u32 s76, s76, {hx(WS_W)}"); add64(k, 68, S_WS, 76); srd_fill(k, 68, WFR * 1024)
    l8, l7 = t5, t6
    k(f"v_lshrrev_b32 v{l8}, 3, v0", f"v_and_b32 v{l7}, 7, v0", "s_lshl_b32 s76, s20, 3", f"v_add_u32 v{l8}, s76, v{l8}")
    k("s_and_b32 s76, s20, 1", "s_lshl_b32 s76, s76, 1", f"v_add_u32 v{tmp}, s76, v{t7}", f"v_lshlrev_b32 v{tmp}, 1, v{tmp}", f"v_xor_b32 v{tmp}, v{tmp}, v{l7}", f"v_lshlrev_b32 v{tmp}, 4, v{tmp}")
    k(f"v_mul_u32_u24 v{l8}, 9216, v{l8}", f"v_add_u32 v{V_PD}, v{tmp}, v{l8}")
    k(f"v_lshrrev_b32 v{tmp}, 1, v{r4}", f"v_lshl_add_u32 v{tmp}, v{t7}, 1, v{tmp}", f"v_xor_b32 v{tmp}, s20, v{tmp}", f"v_lshlrev_b32 v{tmp}, 5, v{tmp}", f"v_lshl_add_u32 v{tmp}, v{c4}, 3, v{tmp}", f"v_lshl_add_u32 v{tmp}, v{r4}, 7, v{tmp}")
    k(f"v_lshl_add_u32 v{V_PT0}, v{q4}, 10, v{tmp}")
    st(k, "p0_issued")
    k("s_waitcnt vmcnt(18)")
    if OPT.get("fine"): st(k, "p0_qland")
    k("s_barrier")
    if OPT.get("fine"): st(k, "p0_bar")
    PT = Q_AC
    for ht in range(4):
        for e in range(2):
            k(f"ds_read_b64_tr_b16 {v(PT+4*ht+2*e,2)}, v{TQ+ht} offset:{e*2176}")
    for x in range(2):
        for e in range(2): k(f"ds_read_b64_tr_b16 {v(PT+16+4*x+2*e,2)}, v{TO+x} offset:{e*1280}")
    add64(k, 4, S_WS, 40); k("s_cmp_lt_u32 s2, 144", f"s_cselect_b32 s6, {72*1024}, 0")
    add64(k, 8, S_WS, 43); k("s_cmp_ge_u32 s2, 112", f"s_cselect_b32 s10, {90*1024}, 0")
    k("s_waitcnt lgkmcnt(0)")
    for ht in range(4): k(f"buffer_store_dwordx4 {v(PT+4*ht,4)}, v{44 if ht == 3 else V_L16}, s[4:7], s{41 + ht//3} offen offset:{1024*(ht%3)} {SC}")
    k(f"buffer_store_dwordx4 {v(PT+16,4)}, v{V_L16}, s[8:11], s46 offen {SC}", f"buffer_store_dwordx4 {v(PT+20,4)}, v45, s[8:11], s45 offen {SC}")
    st(k, "p0_prepst")
    q_setup(k)
    LT2 = 164; XR = 178
    ln_stats_norm(k, Q_X, Q_LT, 29); ln_stats_norm(k, Q_X, LT2, 29)
    c8, r8, u1 = 168, 169, 170
    k(f"v_and_b32 v{c8}, 7, v0", f"v_lshrrev_b32 v{r8}, 3, v0", f"v_xor_b32 v{r8}, v{r8}, v{c8}", f"v_lshlrev_b32 v{r8}, 4, v{r8}", f"v_and_b32 v{u1}, 3, v{c8}", f"v_lshl_add_u32 v{r8}, v{u1}, 8, v{r8}",
      f"v_lshrrev_b32 v{c8}, 2, v{c8}", f"v_lshl_add_u32 v{r8}, v{c8}, 12, v{r8}", "s_lshl_b32 s38, s20, 10", f"v_add_u32 v{Q_XW}, s38, v{r8}")
    k(f"v_lshrrev_b32 v{c8}, 4, v0", f"v_xor_b32 v{r8}, v0, v{c8}", f"v_lshlrev_b32 v{XR}, 4, v{r8}", f"v_xor_b32 v{XR+1}, 64, v{XR}", f"v_add_u32 v{XR+2}, 36864, v{XR}", f"v_add_u32 v{XR+3}, 36864, v{XR+1}")
    if OPT.get("fine"): st(k, "p0_qsetup")
    for i in range(18):
        k(f"s_waitcnt vmcnt({17 - i + 6})"); k(ln_acc(Q_X, Q_LT if i < 9 else LT2, 29, i))
    st(k, "p0_stats")
    k("v_mov_b32 v9, 0", "s_mov_b32 s23, 0x10000")
    k.label("non_l")
    k(f"buffer_load_dwordx2 v[10:11], v9, s[56:59], 0 offen {SC}", "s_waitcnt vmcnt(0)", f"v_readfirstlane_b32 s{S_NON}, v10", f"v_readfirstlane_b32 s{S_NON+1}, v11",
      "s_sub_u32 s23, s23, 1", "s_cbranch_scc1 non_d", f"s_cmp_eq_u32 s{S_NON}, 0", "s_cbranch_scc1 non_l", f"s_sub_u32 s24, s{S_NON}, s89", "s_cmp_lt_i32 s24, 0", "s_cbranch_scc1 non_l")
    k.label("non_d")
    publish(k, F_P0, layered=False, idx="phys")
    if OPT.get("fine"): st(k, "p0_pub")
    k("s_lshl_b32 s88, s20, 10")
    for rd in range(4): k(dma_round(rd, STG_F + 8192 * rd))
    if OPT.get("fine"): st(k, "p0_f0")
    for T_ in (Q_LT, LT2):
        k(f"v_add_f32 v{T_}, v{T_}, v{T_+1}", f"v_add_f32 v{T_+2}, v{T_+2}, v{T_+3}")
    for T_ in (Q_LT, LT2): xlane(k, T_, (1, 2, 4)); ln_fin2(k, T_)
    for i in list(range(0, 8)) + list(range(9, 17)) + [8, 17]:
        k(ln_apply(Q_X, Q_LT, i, True, Q_LT if i < 9 else LT2))
        if i == 8: k(f"v_add_u32 v{Q_XW}, 0x10000, v{Q_XW}")
        k(f"ds_write_b128 v{Q_XW}, {v(Q_X+4*i,4)} offset:{(8192*(i%9) if i % 9 < 8 else 0) + 128*(i//9)}")
    st(k, "p0_ln")
    k("s_waitcnt vmcnt(0) lgkmcnt(0)")
    wait(k, ["v_and_b32 v9, 31, v0", "v_min_u32 v9, 17, v9", "v_lshlrev_b32 v9, 3, v9", "s_bfe_u32 s23, s2, 0x30003", "s_add_u32 s23, s23, 112", "v_add_u32 v10, s23, v9", "v_add_u32 v9, s22, v9", "v_cmp_gt_u32 vcc, 32, v0", "s_nop 1", "v_cndmask_b32 v9, v10, v9, vcc", f"v_lshlrev_b32 v9, {FS[0]}, v9"])
    st(k, "p0_flags")
    N0 = int(OPT.get("n0", 12))
    for n in range(N0): k(q_aload(n))
    k("s_mov_b32 s14, 0")
    e1, e2 = int(OPT.get("e1", 17)), int(OPT.get("e2", 17))
    ex = {}
    FD = Q_X + 32
    def f0tr():
        k(f"v_add_u32 v{Q_T}, {STG_F}, v{V_PT0}", f"v_add_u32 v{Q_T+1}, 512, v{Q_T}")
        for rd in range(4):
            k(tr_round(FD + 8 * rd, Q_T, Q_T + 1, 8192 * rd))
            if rd == 1: k("s_waitcnt lgkmcnt(4)")
    ex.setdefault(12, []).append((f0tr, 0))
    for rd in range(4): ex.setdefault(e1 - 3 + rd, []).append((lambda rd=rd: k(st_round(rd, FD + 8 * rd)), 2))
    q_loop(k, N0, list(range(N0)), ex, chunk=False)
    k("s_branch q_epi")

def phase_qkv1(k):
    wgmap(k, int(OPT.get("qmap", 44)))
    q_setup(k)
    q4, tk = Q_T, Q_T + 1
    k("s_lshl_b32 s38, s20, 8", f"v_lshlrev_b32 v{Q_XL}, 10, v{q4}", f"v_lshl_add_u32 v{Q_XL}, v{tk}, 4, v{Q_XL}", f"v_add_u32 v{Q_XL}, s38, v{Q_XL}")
    k(f"s_mul_i32 s38, s21, {TILE}", f"s_add_u32 s38, s38, {hx(WS_XN)}"); add64(k, 8, S_WS, 38); srd_fill(k, 8, TILE)
    k("s_mov_b32 s27, 0", "s_lshl_b32 s38, s20, 10")
    NE = int(OPT.get("qne", 24))
    A1 = int(OPT.get("a1", 8)); assert A1 % 4 == 0
    if A1: k(f"s_mov_b32 s26, {A1 * 1024}")
    for n in range(A1, NE): k(q_aload(n))
    wait(k, tile_flags(F_RED, prev_layer=True), pw=int(OPT.get("qpw", 3)))
    st(k, "q1_flags")
    for i in range(18):
        k(f"s_add_u32 m0, s38, {4096*i}", "s_nop 0" if i == 0 else "s_add_u32 s27, s27, 0x1000", f"buffer_load_dwordx4 v{Q_XL}, s[8:11], s27 offen {SC} lds")
    k("s_waitcnt vmcnt(12)", "s_barrier")
    st(k, "q1_x0")
    q_loop(k, NE, [f"X{i}" for i in range(6, 18)], {}, chunk="dma")

import k_att2 as AT
def phase_att(k):
    A = AT; T = A.V_T; SO = A.SO
    q_fin(k)
    k(f"v_and_b32 v{T}, 31, v0", f"v_lshrrev_b32 v{T+1}, 5, v0")
    bias = [8, 9, 10, 11, 87]
    for i in range(5):
        k(f"s_add_i32 s23, s21, {i-4}", f"s_cmp_lt_i32 s23, 0", f"s_cselect_b32 s{bias[i]}, {A.NEG}, 0", "s_max_i32 s23, s23, 0",
          "s_lshl_b32 s23, s23, 3", "s_add_u32 s23, s23, s22", f"s_mul_i32 s{SO+i}, s23, {KVB}")
    k("s_lshl_b32 s15, s20, 11", f"v_add_u32 v{A.V_KM}, s15, v{V_L16}", f"v_add_u32 v{A.V_KM}, {KV_KM}, v{A.V_KM}")
    k("s_lshl_b32 s25, s20, 8", f"v_lshlrev_b32 v{A.V_KT}, 3, v{T}", f"v_add_u32 v{A.V_KT}, s25, v{A.V_KT}")
    k(f"v_mov_b32 v{T+3}, 0x80000000", f"v_cmp_gt_u32 vcc, 32, v0", f"v_add_u32 v{A.V_KT}, {KV_KT}, v{A.V_KT}", "s_waitcnt lgkmcnt(0)")
    for t in range(2): k(f"v_cndmask_b32 v{A.V_Q1+8*t}, 0, v{A.V_QTT+t}, vcc", f"v_cndmask_b32 v{A.V_Q1+8*t+5}, 0, v{A.V_QTT+t}, vcc")
    k(f"v_lshlrev_b32 v{T+4}, 2, v0", f"v_cndmask_b32 v{A.V_ST}, v{T+3}, v{T+4}, vcc")
    add64(k, 4, S_WS, 3); srd_fill(k, 4, 256 * KVB)
    k(f"v_mov_b32 v{T+9}, 0x3f80", f"v_mov_b32 v{T+8}, 0")
    for t in range(2):
        for p_ in range(2):
            q = A.V_Q1 + 8 * t + 4 * p_
            k(f"v_mov_b32 v{q + 1 - p_}, 0", f"v_cndmask_b32 v{q+2}, 0, v{T+9}, vcc", f"v_mov_b32 v{q+3}, 0")
    for i in range(5): k(f"v_mov_b32 v{T+9}, s{bias[i]}", f"v_accvgpr_write_b32 {a(A.A_K+12*i+3)}, v{T+8}", f"v_accvgpr_write_b32 {a(A.A_K+12*i+2)}, v{T+9}")
    k("s_mul_i32 s25, s20, 18", f"v_add_u32 v{T+4}, s25, v{T}", f"v_cmp_eq_u32 vcc, 18, v{T}", f"v_mov_b32 v{T+5}, 72", "s_nop 0", f"v_cndmask_b32 v{T+4}, v{T+4}, v{T+5}, vcc")
    k(f"v_lshrrev_b32 v{T+5}, 4, v{T+4}", f"v_and_b32 v{T+4}, 15, v{T+4}", f"v_lshlrev_b32 v{T+4}, 4, v{T+4}", f"v_lshl_add_u32 v{T+4}, v{T+5}, 11, v{T+4}", f"v_lshl_add_u32 v{T+4}, v{T+1}, 8, v{T+4}", f"v_add_u32 v{T+4}, {KV_V}, v{T+4}", f"v_cmp_gt_u32 vcc, 19, v{T}")
    k(f"v_lshlrev_b32 v{A.V_D4}, 2, v{T+1}", f"v_sub_u32 v{A.V_D4}, v{T}, v{A.V_D4}", f"v_cndmask_b32 v{A.V_VV}, v{T+3}, v{T+4}, vcc")
    for i in range(16): k(f"v_cmp_le_i32 s[{A.MSK+2*i}:{A.MSK+2*i+1}], {8*(i//4) + i%4}, v{A.V_D4}")
    k(f"v_mov_b32 v{T+9}, 0xffff")
    for d in range(8): k(f"v_cndmask_b32 v{A.V_MK+d}, 0, v{T+9}, s[{A.MSK+4*d}:{A.MSK+4*d+1}]")
    for d in range(8): k(f"v_cndmask_b32 v{A.V_MK+d}, v{A.V_MK+d}, -1, s[{A.MSK+4*d+2}:{A.MSK+4*d+3}]")
    k(f"s_mul_i32 s23, s21, {TILE}", "s_add_u32 s23, s23, s3", f"s_add_u32 s23, s23, {hx(WS_O)}"); add64(k, 16, S_WS, 23); srd_fill(k, 16, TILE)
    k("s_lshl_b32 s88, s22, 13", "s_add_u32 s88, s88, s15")
    k(f"v_lshlrev_b32 v{A.V_SO}, 4, v{T}", f"v_lshl_add_u32 v{A.V_SO}, v{T+1}, 10, v{A.V_SO}")
    k("s_add_u32 s89, s22, 64", "s_lshl_b32 s89, s89, 10", "s_lshl_b32 s23, s20, 8", "s_add_u32 s89, s89, s23")
    for i in range(4): k(f"v_mov_b32 v{A.V_MX+i}, 0xff7fffff")
    k("s_bfe_u32 s23, s2, 0x30003", f"s_mul_i32 s23, s23, {90*1024}", f"s_add_u32 s23, s23, {hx(WS_WO)}"); add64(k, 8, S_WS, 23); srd_fill(k, 8, 90 * 1024)
    st(k, "att_setup")
    wait(k, ["v_min_u32 v9, 4, v0", "s_sub_u32 s23, s21, 4", "v_add_u32 v9, s23, v9", "v_max_i32 v9, 0, v9", "v_lshlrev_b32 v9, 3, v9", "v_add_u32 v9, s22, v9", f"v_lshlrev_b32 v9, {FS[0]}, v9",
             f"s_add_u32 s23, s14, {F_QKV*FT()}", "v_add_u32 v9, s23, v9"], pw=3)
    st(k, "att_flags")
    kk = Kern("t")
    if int(OPT.get("jt", 1)):
        kk("s_mov_b32 s26, 0", "s_mov_b32 s27, 0x00020000", "s_mov_b64 s[24:25], s[60:61]", "s_mov_b64 s[12:13], s[60:61]", "s_cmp_lg_u32 s3, 0", "s_cbranch_scc1 att_notouch")
        kk("s_lshl_b32 s76, s20, 5", "s_add_u32 s76, s76, s74", "s_add_u32 s76, s76, 128", "s_sub_u32 s77, s76, 162", "s_lshl_b32 s77, s77, 1", "s_cmp_lt_u32 s76, 162", "s_cselect_b32 s76, s76, s77",
          f"s_cselect_b32 s77, 9216, 1152", f"s_cselect_b32 s80, 1152, {576*1152}", f"s_cselect_b32 s81, 0, {32*1152}", "s_cselect_b64 s[24:25], s[60:61], s[72:73]", "s_cselect_b64 s[12:13], s[64:65], s[72:73]")
        kk(div18(76, 78, 79), "s_lshl_b32 s79, s79, 5", "s_mul_i32 s79, s79, s77", "s_lshl_b32 s78, s78, 7", "s_add_u32 s78, s78, s79", "s_mul_i32 s79, s75, s80", "s_add_u32 s78, s78, s79", "s_add_u32 s81, s81, s78")
        kk(f"s_mov_b32 s26, {hx(D*F*2)}", "att_notouch:", "v_and_b32 v9, 31, v0", "v_mul_u32_u24 v9, s77, v9")
        kk("buffer_load_dword v10, v9, s[24:27], s78 offen", "s_mov_b64 s[24:25], s[12:13]", "buffer_load_dword v11, v9, s[24:27], s81 offen")
    A.body(k, st, SC, kk.L)
def wo_dma(k):
    o = [["s_mul_i32 s26, s20, 23552", f"s_add_u32 s27, s26, {WOIMG}"]]
    for g in range(6):
        o.append(["s_mov_b32 m0, s27", "s_add_u32 s27, s27, 0x1000", f"buffer_load_dwordx4 v{V_L16}, s[8:11], s26 offen {SC} lds"])
        for i in range(1, 4 if g < 5 else 3): o.append(f"buffer_load_dwordx4 v{V_L16}, s[8:11], s26 offen offset:{1024*i} {SC} lds")
        o[-1] = [o[-1], "s_add_u32 s26, s26, 0x1000"]
    o[-2] = ["s_cmp_eq_u32 s20, 3", "s_cbranch_scc1 wo_dsk", o[-2]]; o[-1] = [o[-1][0], "wo_dsk:"]
    return o

W_XL, W_A0, W_A1, W_RL, W_SP, W_S8, W_T, W_AC, W_R, W_AF, W_B = 2, 3, 4, 5, 6, 7, 16, 36, 56, 184, 108
def phase_wo(k):
    wgmap(k, 8)
    T = W_T; q4, tk, tok, n, lam, c, t1, t2 = range(T, T + 8)
    k(f"v_lshrrev_b32 v{q4}, 4, v0", f"v_and_b32 v{tk}, 15, v0", "s_lshl_b32 s38, s20, 4", f"v_add_u32 v{tok}, s38, v{tk}")
    k(f"v_lshlrev_b32 v{W_XL}, 10, v{q4}", f"v_lshl_add_u32 v8, v{tok}, 2, v{W_XL}", f"v_lshl_add_u32 v{W_XL}, v{tok}, 4, v{W_XL}")
    k(f"s_mul_i32 s39, s21, {TILE}", "s_add_u32 s41, s39, s3", f"s_add_u32 s42, s41, {hx(WS_O)}"); add64(k, 4, S_WS, 42); srd_fill(k, 4, TILE)
    k(f"s_add_u32 s42, s{S_WS}, {hx(WS_X2)}", f"s_addc_u32 s43, s{S_WS+1}, 0", "s_cmp_eq_u32 s3, 0", f"s_cselect_b32 s8, s{S_X}, s42", f"s_cselect_b32 s9, s{S_X+1}, s43", "s_cselect_b64 vcc, -1, 0", "s_cselect_b32 s36, 32, 2048")
    k("s_mul_i32 s46, s22, 9216", "s_mul_i32 s37, s22, 144", "s_cselect_b32 s45, s37, s46")
    k("s_add_u32 s8, s8, s39", "s_addc_u32 s9, s9, 0"); srd_fill(k, 8, TILE)
    k(f"v_mul_u32_u24 v{t1}, 1152, v{tok}", f"v_lshl_add_u32 v{t1}, v{q4}, 3, v{t1}")
    k(f"v_lshrrev_b32 v{n}, 1, v{q4}", f"v_and_b32 v{lam}, 1, v{q4}")
    k(f"v_lshlrev_b32 v{t2}, 4, v{tok}", f"v_lshl_add_u32 v{c}, v{lam}, 3, v{t2}", f"v_lshl_add_u32 v{c}, v{n}, 10, v{c}")
    k(f"v_cndmask_b32 v{W_RL}, v{c}, v{t1}, vcc")
    k("s_mov_b64 s[48:49], s[8:9]", "s_mov_b64 s[50:51], s[10:11]")
    k(f"v_add_u32 v{W_A0}, {WOIMG}, v{V_L16}", f"v_add_u32 v{W_A1}, {WOIMG + 61440}, v{V_L16}")
    k(f"v_lshl_add_u32 v{t1}, v{lam}, 1, v{n}", f"v_lshl_add_u32 v{W_SP}, v{t1}, 10, v{t2}")
    k(f"v_lshl_add_u32 v{t1}, v{q4}, 3, v{t2}", f"v_add_u32 v{t1}, 8192, v{t1}", f"v_mov_b32 v{c}, 0x80000000", f"v_cmp_gt_u32 vcc, 2, v{q4}", "s_nop 1", f"v_cndmask_b32 v{W_S8}, v{c}, v{t1}, vcc")
    k(f"s_add_u32 s42, s41, {hx(WS_X1)}"); add64(k, 16, S_WS, 42); srd_fill(k, 16, TILE)
    k("s_add_u32 s47, s46, 4096", "s_mov_b32 s40, 0", "s_mov_b32 s29, 0x3f803f80", f"v_cndmask_b32 v{W_T+12}, 0, -1, vcc")
    k(f"v_lshlrev_b32 v{t1}, 3, v{tok}", f"v_cmp_gt_u32 vcc, 16, v0", "s_lshl_b32 s42, s21, 3", "s_add_u32 s42, s42, s22", "s_lshl_b32 s42, s42, 9", "s_add_u32 s42, s42, s3", f"s_add_u32 s42, s42, {hx(WS_SS)}", f"v_cndmask_b32 v{W_T+13}, v{c}, v{t1}, vcc")
    add64(k, 8, S_WS, 42); srd_fill(k, 8, 512)
    def aread(ks): return [f"ds_read_b128 {v(W_AF + 20*(ks%3) + 4*ht, 4)}, v{W_A1 if ks >= 12 else W_A0} offset:{(5*ks+ht)*1024 - (61440 if ks >= 12 else 0)}" for ht in range(5)]
    st(k, "wo_setup")
    k("s_waitcnt vmcnt(0)")
    kk = Kern("t"); wgmap(kk, int(OPT.get("map", 2)), 34, 35)
    kk.L = [x.replace("s44", "s30").replace("s45", "s31").replace("s46", "s32").replace("s47", "s33") for x in kk.L]
    wait(k, tile_flags(F_ATT) + kk.L + ["v_and_b32 v10, 31, v0", "s_lshl_b32 s35, s35, 5", "v_add_u32 v10, s35, v10", "v_lshlrev_b32 v10, 3, v10", f"v_add_u32 v10, {F_PF*FT()}, v10",
                               "v_cmp_gt_u32 vcc, 32, v0", "s_nop 1", "v_cndmask_b32 v9, v10, v9, vcc"])
    st(k, "wo_flags")
    for i in range(18):
        if i < 16: k(f"buffer_load_dwordx4 {v(W_B+4*i,4)}, v{W_XL}, s[4:7], s40 offen {SC}")
        else:
            for d in range(4): k(f"buffer_load_dword v{W_B+4*i+d}, v8, s[4:7], s40 offen offset:{256*d} {SC}")
        if i < 17: k("s_add_u32 s40, s40, 0x1000")
    k(aread(0), aread(1))
    RS = int(OPT.get("rs", 0))
    for ks in range(18):
        k(f"s_waitcnt vmcnt({(15 - ks + 8 if ks < 16 else 4 * (17 - ks)) + max(0, min(5, ks - RS))}) lgkmcnt({5 if ks < 17 else 0})")
        ar = aread(ks + 2) if ks < 16 else []
        for ht in range(5):
            ac = v(W_AC + 4 * ht, 4)
            k(f"v_mfma_f32_16x16x32_bf16 {ac}, {v(W_AF + 20*(ks%3) + 4*ht, 4)}, {v(W_B+4*ks,4)}, {'0' if ks == 0 else ac}")
            if ar: k(ar[ht])
        if RS <= ks < RS + 5: k(f"buffer_load_dwordx2 {v(W_R+2*(ks-RS),2)}, v{W_RL}, s[48:51], s45 offen {SC}", "s_add_u32 s45, s45, s36")
    k.label("wo_epi")
    st(k, "wo_mfma")
    k("s_waitcnt vmcnt(0)")
    for ht in range(5):
        for d in range(2):
            k(f"v_lshlrev_b32 v{T+4*(ht&1)+2*d}, 16, v{W_R+2*ht+d}", f"v_and_b32 v{T+4*(ht&1)+2*d+1}, 0xffff0000, v{W_R+2*ht+d}")
        if ht == 0: k("s_nop 3")
        for i in range(4): k(f"v_add_f32 v{W_AC+4*ht+i}, v{W_AC+4*ht+i}, v{T+4*(ht&1)+i}")
    P = W_B
    WO_STATS(k)
    for ht in range(0):
        for d in range(2): k(f"v_cvt_pk_bf16_f32 v{P+2*ht+d}, v{W_AC+4*ht+2*d}, v{W_AC+4*ht+2*d+1}")
    R1 = int(OPT.get("r1", 12))
    if R1:
        kk = Kern("t"); wgmap(kk, int(OPT.get("map", 2)), 34, 35)
        k([x.replace("s44", "s30").replace("s45", "s31").replace("s46", "s32").replace("s47", "s33") for x in kk.L])
        k("s_lshl_b32 s24, s35, 2", "s_add_u32 s24, s24, s20", f"s_mul_i32 s24, s24, {WFR*1024}", f"s_add_u32 s24, s24, {hx(WS_W)}"); add64(k, 4, S_WS, 24); srd_fill(k, 4, WFR * 1024)
        k("s_mov_b32 s23, 0"); F4.preload(k, 0, R1)
    publish(k, F_WO, vm=R1)
    st(k, "wo_pub")

def WO_STATS(k):
    P = W_B; T = W_T + 8
    for ht in range(5):
        for d in range(2): k(f"v_cvt_pk_bf16_f32 v{P+2*ht+d}, v{W_AC+4*ht+2*d}, v{W_AC+4*ht+2*d+1}")
    k(f"v_and_b32 v{P+12}, v{P+8}, v{W_T+12}", f"v_and_b32 v{P+13}, v{P+9}, v{W_T+12}", f"v_mov_b32 v{T}, 0", f"v_mov_b32 v{T+2}, 0")
    for pr in range(2):
        for d in range(2): k(f"v_permlane16_swap_b32 v{P+4*pr+d}, v{P+4*pr+2+d}")
    k(f"buffer_store_dwordx4 {v(P,4)}, v{W_SP}, s[16:19], s46 offen {SC}", f"buffer_store_dwordx4 {v(P+4,4)}, v{W_SP}, s[16:19], s47 offen {SC}")
    k(f"buffer_store_dwordx2 {v(P+8,2)}, v{W_S8}, s[16:19], s46 offen {SC}")
    for x in list(range(P, P + 8)) + [P + 12, P + 13]:
        k(f"v_dot2c_f32_bf16 v{T}, s29, v{x}", f"v_dot2c_f32_bf16 v{T+2}, v{x}, v{x}")
    k("s_nop 2")
    xlane(k, T, (16, 32))
    k(f"v_mov_b32 v{T+1}, v{T+2}", f"buffer_store_dwordx2 {v(T,2)}, v{W_T+13}, s[8:11], 0 offen {SC}")
def phase_ffn(k):
    F_ = FF; mp = int(OPT.get("map", 2)); late = int(OPT.get("late", 8))
    wgmap(k, mp)
    k("s_mov_b32 s29, 0x3f803f80")
    t0, t1, t2, t5, t6 = 64, 65, 66, 67, 68
    k(f"v_lshrrev_b32 v{t0}, 4, v0", f"v_and_b32 v{t1}, 15, v0", "s_lshl_b32 s38, s20, 8")
    k(f"v_lshlrev_b32 v{t2}, 10, v{t0}", f"v_lshl_add_u32 v{t2}, v{t1}, 4, v{t2}", f"v_add_u32 v{F_.V_XL}, s38, v{t2}")
    k(f"s_mul_i32 s39, s21, {TILE}", "s_add_u32 s39, s39, s3", f"s_add_u32 s39, s39, {hx(WS_X1)}"); add64(k, 8, S_WS, 39); srd_fill(k, 8, TILE)
    k("s_lshl_b32 s24, s22, 2", "s_add_u32 s24, s24, s20", f"s_mul_i32 s24, s24, {WFR*1024}", f"s_add_u32 s24, s24, {hx(WS_W)}"); add64(k, 4, S_WS, 24); srd_fill(k, 4, WFR * 1024)
    k("s_lshl_b32 s41, s22, 5", "s_add_u32 s41, s41, s21", f"s_mul_i32 s41, s41, {TILE}", "s_add_u32 s41, s41, s3", f"s_add_u32 s41, s41, {hx(WS_P)}"); add64(k, 16, S_WS, 41); srd_fill(k, 16, TILE)
    k("s_mov_b32 s27, 0", "s_mov_b32 s40, 0")
    k(f"v_and_b32 v{t6}, 1, v{t0}", f"v_lshrrev_b32 v{t5}, 1, v{t0}", f"v_add_u32 v{F_.V_XR1}, 36864, v{V_L16}")
    k("s_lshr_b32 s41, s20, 1", "s_lshl_b32 s41, s41, 12", "s_and_b32 s42, s20, 1", "s_lshl_b32 s42, s42, 3", "s_add_u32 s41, s41, s42")
    k(f"v_add_u32 v{F_.V_HW}, s41, v{V_L16}")
    k("s_lshl_b32 s41, s20, 10", f"v_add_u32 v{F_.V_XW}, s41, v{V_L16}")
    k(f"v_lshlrev_b32 v{F_.V_ST}, 10, v{t5}", f"v_lshl_add_u32 v{F_.V_ST}, v{t6}, 8, v{F_.V_ST}", f"v_lshl_add_u32 v{F_.V_ST}, v{t1}, 4, v{F_.V_ST}")
    k("s_lshl_b32 s41, s20, 11", f"v_add_u32 v{F_.V_ST}, s41, v{F_.V_ST}", f"v_mov_b32 v{F_.V_C2}, {fl(F_.C2)}")
    k("s_cmp_eq_u32 s3, 0", "s_cselect_b32 s31, 0, 0x4000", "s_lshl_b32 s30, s21, 9", "s_add_u32 s31, s31, s30", f"s_add_u32 s31, s31, {12*FT()}")
    k("s_lshl_b32 s30, s22, 2", "s_add_u32 s30, s30, s20", "s_lshl_b32 s30, s30, 3", "s_add_u32 s30, s30, s31")
    k("s_lshl_b32 s42, s21, 12", "s_add_u32 s42, s42, s3", f"s_add_u32 s42, s42, {hx(WS_SS)}"); add64(k, 32, S_WS, 42); srd_fill(k, 32, 4096)
    k("s_lshl_b32 s42, s20, 7", f"v_lshlrev_b32 v{t2}, 3, v{t1}", f"v_lshl_add_u32 v{t2}, v{t0}, 10, v{t2}", f"v_add_u32 v{t2}, s42, v{t2}")
    R1 = int(OPT.get("r1", 12)); assert R1 % 3 == 0
    k(f"s_mov_b32 s23, {R1 * 1024}")
    F4.preload(k, R1)
    k("s_mov_b32 s26, s23")
    k("s_cmp_lg_u32 s3, 0", "s_cbranch_scc1 ffn_nojs")
    js = jit_setup()
    k([x for x in js if x.startswith("s_") and "vcc" not in x and not x.startswith("s_lshl_b32 s76")])
    for n_, rd in enumerate(range(4, 8)):
        g_ = dma_round(rd, 0); pre = g_[0][:-3]; o2 = "s78" if rd <= 4 else "s77"
        k(pre, f"s_mov_b32 s{44+3*n_}, s78", f"s_mov_b32 s{45+3*n_}, {o2}", f"s_add_u32 s76, s74, {32*rd}", f"s_lshl_b32 s{46+3*n_}, s76, 11")
        if rd == 5 and int(OPT.get("ro", 0)):
            k("s_cmp_eq_u32 s76, 170", "s_cselect_b32 s79, 0x4000, 0", "s_add_u32 s49, s49, s79", "s_sub_u32 s79, s76, 171", "s_cmp_lt_u32 s79, 8", "s_cselect_b32 s79, 0x800, 0", "s_sub_u32 s49, s49, s79")
    k("s_cmp_lt_u32 s76, 243", f"s_cselect_b32 s56, {WFR*1024}, 0")
    k.label("ffn_nojs")
    wait(k, tile_flags(F_WO))
    st(k, "ffn_flags")
    if int(OPT.get("touch", 0)):
        per = 18 * mp * (1 if int(OPT["touch"]) == 1 else 1)
        k(f"s_mul_i32 s41, s44, {per}", "v_add_u32 v11, s41, v0", "v_lshlrev_b32 v11, 7, v11", f"v_cmp_gt_u32 vcc, {per}, v0", "v_mov_b32 v5, 0x80000000", f"s_mov_b32 s49, {int(OPT.get('tch0', 3)) * TILE}", "v_cndmask_b32 v11, v5, v11, vcc")
    k("s_mov_b32 s23, s26")
    LT = F_.V_LT
    k(f"buffer_load_dwordx2 {v(LT+8,2)}, v{t2}, s[32:35], 0 offen {SC}", f"buffer_load_dwordx2 {v(LT+10,2)}, v{t2}, s[32:35], 0 offen offset:512 {SC}")
    XS = int(OPT.get("xs", 8))
    def xl(i): return [f"buffer_load_dwordx4 {v(F_.V_X+4*i,4)}, v{F_.V_XL}, s[8:11], s40 offen {SC}"] + (["s_add_u32 s40, s40, 0x1000"] if i < 17 else [])
    for i in range(XS): k(xl(i))
    k(f"s_waitcnt vmcnt({XS})", f"v_add_f32 v{LT}, v{LT+8}, v{LT+10}", f"v_add_f32 v{LT+2}, v{LT+9}, v{LT+11}")
    kk = Kern("t"); xlane(kk, LT, (16, 32)); ln_fin2(kk, LT)
    k(merge(kk.L, [xl(i) for i in range(XS, 18)]))
    st(k, "ffn_stats")
    def lnq(i):
        kk = Kern("t"); kk(ln_apply(F_.V_X, F_.V_LT, i, pk=(i < 6))); ln_write(kk, i, F_.V_X, F_.V_XW); return kk.L
    F4.group0(k, lnq)
    st(k, "ffn_g0")
    PG = int(OPT.get("peel", 0))
    k(f"s_mov_b32 s25, {4 - PG}", "s_mov_b32 s26, 99", "s_cmp_lg_u32 s3, 0", "s_cbranch_scc1 ffn_loopA_odd")
    JD = 200
    x1 = {2: [x for x in jit_setup() if x.startswith("v_") or "vcc" in x or x.startswith(("s_lshl_b32 s76", "s_cmp_lt_u32 s74"))]}
    import re as _re
    for n_, rd in enumerate(range(4, 8)):
        g_ = dma_round(rd, STG_J + 8192 * n_)
        a0 = g_[0][-3:]; a1 = g_[1]
        x1[4 * (6 + 7 * n_)] = [a0[0]]; x1[4 * (6 + 7 * n_) + 1] = [a0[2].replace("s78 offen", f"s{44+3*n_} offen")]
        x1[4 * (9 + 7 * n_)] = [a1[0]]; x1[4 * (9 + 7 * n_) + 1] = [_re.sub(r"s7[78] offen", f"s{45+3*n_} offen", a1[2])]
    F4.groupA(k, 1, x1)
    x2 = {4 * 13 + 1: ["s_barrier"]}
    for n_, rd in enumerate(range(4, 8)):
        sel = 0 if rd == 4 else (2 if rd == 5 else 1)
        for e_, op in enumerate(tr_round(JD + 8 * n_, J_T0 + sel, J_T1 + sel, 8192 * n_)): x2[4 * (14 + 2 * n_ + e_ // 2) + 2 * (e_ % 2)] = [op]
        g_ = st_round(rd, JD + 8 * n_)
        x2[4 * (24 + 3 * n_) + 1] = (["s_waitcnt lgkmcnt(0)"] if n_ == 0 else []) + (["s_mov_b32 s70, s56"] if rd == 7 else []) + [g_[0][-1].replace("s78", f"s{46+3*n_}")]
        x2[4 * (25 + 3 * n_) + 1] = [g_[1][0].replace("s78", f"s{46+3*n_}")]
    F4.groupA(k, 2, x2)
    x3 = {4 * 18 + 1: ["s_lshl_b32 s76, s2, 2", "s_add_u32 s76, s76, s20", "s_lshl_b32 s76, s76, 3", f"s_add_u32 s76, s76, {FPJ()}", "s_mov_b64 exec, 1", "v_mov_b32 v9, 0", f"v_mov_b32 v10, s{S_NON}", f"v_mov_b32 v11, s{S_NON+1}",
                        f"buffer_store_dwordx2 v[10:11], v9, s[{S_FL}:{S_FL+3}], s76 offen {SC}", "s_mov_b64 exec, -1"]}
    F4.groupA(k, 3, x3)
    k(f"s_mov_b32 s25, {2 - PG}", f"s_mov_b32 s26, {2 - PG}", "v_and_b32 v9, 31, v0", "v_lshlrev_b32 v9, 3, v9", "v_add_u32 v9, s22, v9", "v_lshlrev_b32 v9, 2, v9", "v_add_u32 v9, s20, v9", "v_lshlrev_b32 v9, 3, v9", f"v_add_u32 v9, {FPJ()}, v9")
    k.label("ffn_loopA")
    F4.groupA(k, 2)
    k.label("ffn_loopA_odd")
    pl = f"buffer_load_dwordx2 v[10:11], v9, s[{S_FL}:{S_FL+3}], 0 offen {SC}"
    xo = {1: ["s_cmp_lg_u32 s25, s26", "s_cbranch_scc1 jit_p0", pl + " ; COND", "jit_p0:"],
          4 * 22 + 1: ["s_cmp_lg_u32 s25, s26", "s_cbranch_scc1 jit_p1", "s_mov_b32 s76, 0x10000", "jit_l:", f"v_cmp_ne_u64 vcc, s[{S_NON}:{S_NON+1}], v[10:11]", "s_sub_u32 s76, s76, 1", "s_cselect_b64 s[78:79], 0, -1", "s_nop 1",
                       "s_and_b64 vcc, vcc, s[78:79]", "s_cbranch_vccz jit_p1", pl + " ; COND", "s_waitcnt vmcnt(0)", "s_branch jit_l", "jit_p1:"]}
    F4.groupA(k, 1, xo)
    k("s_sub_u32 s25, s25, 1", "s_cmp_lg_u32 s25, 0", "s_cbranch_scc1 ffn_loopA")
    if PG: F4.groupA(k, 6); F4.groupA(k, 7)
    k(f"s_mul_i32 s50, s20, {17*1024}", f"s_add_u32 s50, s50, {F4.RES}", f"v_add_u32 v5, s50, v{V_L16}", "s_sub_u32 s50, s50, 4096")
    F4.groupA(k, 8)
    st(k, "ffn_A")
    hook = ["s_mov_b64 exec, 1", "v_mov_b32 v9, 0", f"v_mov_b32 v10, s{S_NON}", f"v_mov_b32 v11, s{S_NON+1}",
            f"buffer_store_dwordx2 v[10:11], v9, s[{S_FL}:{S_FL+3}], s30 offen {SC}", "s_mov_b64 exec, -1"]
    hook2 = [x.replace("s30 offen", "s30 offen offset:256") for x in hook] if int(OPT.get("mid2", 1)) else None
    F4.phaseB(k, OPT.get("bsc", SC), hook, st if OPT.get("bst") else None, hook2)
    st(k, "ffn_B")

def phase_red(k):
    R = 16; ACC = 100
    pm4, pm1, rm4, rm1, t0, t1 = 2, 3, 4, 5, 6, 7
    k("s_lshl_b32 s23, s22, 3", f"v_and_b32 v{t0}, 7, v0", f"v_add_u32 v{t0}, s23, v{t0}")
    k(f"v_lshrrev_b32 v{t1}, 3, v0", "s_lshl_b32 s24, s20, 3", f"v_add_u32 v{t1}, s24, v{t1}")
    k(f"v_lshlrev_b32 v{pm4}, 4, v{t0}", f"v_lshl_add_u32 v{pm4}, v{t1}, 10, v{pm4}", f"v_mul_u32_u24 v{rm4}, 1152, v{t0}", f"v_lshl_add_u32 v{rm4}, v{t1}, 4, v{rm4}")
    k(f"v_lshrrev_b32 v{t1}, 5, v0", "s_lshl_b32 s24, s20, 1", f"v_add_u32 v{t1}, s24, v{t1}", f"v_add_u32 v8, s23, v{t1}", "v_bfe_u32 v9, v0, 2, 3", "v_bfe_u32 v10, v0, 3, 2", "v_and_b32 v11, 3, v0")
    k("s_cmp_eq_u32 s3, 0", "s_cselect_b64 vcc, -1, 0", f"v_cndmask_b32 v{t0}, v8, v{t0}, vcc", f"v_cndmask_b32 v{t1}, v9, v{t1}, vcc", "v_cndmask_b32 v10, v11, v10, vcc", f"v_add_u32 v{t1}, 64, v{t1}")
    k(f"v_lshlrev_b32 v{pm1}, 4, v{t0}", f"v_lshl_add_u32 v{pm1}, v{t1}, 10, v{pm1}", f"v_mul_u32_u24 v{rm1}, 1152, v{t0}", f"v_lshl_add_u32 v{rm1}, v{t1}, 4, v{rm1}")
    k(f"v_lshl_add_u32 v{pm1}, v10, 2, v{pm1}", f"v_lshl_add_u32 v{rm1}, v10, 2, v{rm1}")
    k(f"s_mul_i32 s24, s21, {TILE}", "s_add_u32 s25, s24, s3"); add64(k, 4, S_WS, 25); srd_fill(k, 4, LSTR - 31 * TILE)
    k(f"s_add_u32 s8, s4, {hx(WS_X2)}", "s_addc_u32 s9, s5, 0"); add64(k, 26, S_OUT, 24)
    k("s_cmp_eq_u32 s3, 0", "s_cselect_b32 s8, s8, s26", "s_cselect_b32 s9, s9, s27", "s_cselect_b32 s28, 0x8000, 512", "s_cselect_b64 vcc, -1, 0"); srd_fill(k, 8, TILE)
    k(f"v_cndmask_b32 v{rm4}, v{rm4}, v{pm4}, vcc", f"v_cndmask_b32 v{rm1}, v{rm1}, v{pm1}, vcc")
    ACCB = 110
    def ld0(j, srd=4): return [f"buffer_load_dwordx4 {v(R+10*j,4)}, v{pm4}, s[{srd}:{srd+3}], s25 offen {SC}"]
    def ld1(j): return ["s_add_u32 s26, s25, 0x8000", f"buffer_load_dwordx4 {v(R+10*j+4,4)}, v{pm4}, s[4:7], s26 offen {SC}"]
    def ld2(j): return [f"buffer_load_dword v{R+10*j+8}, v{pm1}, s[4:7], s25 offen {SC}"]
    def over(fn):
        k(f"s_mov_b32 s25, {hx(WS_P)}")
        for j in range(8):
            k(fn(j))
            if j < 7: k(f"s_add_u32 s25, s25, {hx(ACT)}")
    k("v_lshlrev_b32 v9, 3, v0", f"buffer_load_dwordx2 v[10:11], v9, s[{S_FL}:{S_FL+3}], s31 offen {SC}")
    k("s_mov_b32 s32, 0x00003f80", "s_mov_b32 s33, 0x3f800000")
    for i in range(18): k(f"v_mov_b32 v{ACCB+i}, 0")
    k("s_waitcnt vmcnt(0)", f"v_cmp_ne_u64 vcc, s[{S_NON}:{S_NON+1}], v[10:11]", "s_nop 3", "s_cmp_eq_u32 vcc_lo, 0", "s_cselect_b32 s34, 1, 0", "s_cmp_eq_u32 vcc_hi, 0", "s_cselect_b32 s35, 1, 0", "s_cmp_eq_u32 s20, 3", "s_cselect_b32 s35, 0, s35")
    RP = int(OPT.get("rp", 2))
    if RP == 1: k("s_cselect_b32 s34, 0, s34")
    publish(k, F_FFN)
    k("s_cmp_eq_u32 s34, 0", "s_cbranch_scc1 red_noearly")
    over(ld0)
    k.label("red_noearly")
    k(f"s_mov_b32 s25, {hx(WS_X1)}"); k(ld0(8), ld1(8), ld2(8))
    k("s_cmp_eq_u32 s35, 0", "s_cbranch_scc1 red_noearly1")
    over(ld1)
    k.label("red_noearly1")
    wait(k, tile_flags(F_FFN), pw=3 if RP else 0)
    st(k, "red_flags")
    over(ld2)
    k("s_cmp_lg_u32 s35, 0", "s_cbranch_scc1 red_haveearly1")
    over(ld1)
    k.label("red_haveearly1")
    k("s_cmp_lg_u32 s34, 0", "s_cbranch_scc1 red_haveearly")
    over(ld0)
    k("s_waitcnt vmcnt(0)")
    k.label("red_haveearly")
    k("s_waitcnt vmcnt(16)")
    def acc(j, ds):
        for d in ds: k(f"v_dot2c_f32_bf16 v{ACCB+2*d}, s32, v{R+10*j+d}", f"v_dot2c_f32_bf16 v{ACCB+2*d+1}, s33, v{R+10*j+d}")
    k("s_cmp_eq_u32 s35, 0", "s_cbranch_scc1 red_w", "s_waitcnt vmcnt(8)")
    k.label("red_w")
    for j in range(9): acc(j, range(4))
    acc(8, range(4, 9))
    k("s_waitcnt vmcnt(0)")
    for j in range(8): acc(j, range(4, 9))
    k("s_nop 2")
    for d in range(9): k(f"v_cvt_pk_bf16_f32 v{R+d}, v{ACCB+2*d}, v{ACCB+2*d+1}")
    k(f"buffer_store_dwordx4 {v(R,4)}, v{rm4}, s[8:11], 0 offen {SC}", f"buffer_store_dwordx4 {v(R+4,4)}, v{rm4}, s[8:11], s28 offen {SC}", f"buffer_store_dword v{R+8}, v{rm1}, s[8:11], 0 offen {SC}")

def red_ln(k):
    R = 16; ACCB = 110; T = 130
    k(f"v_mov_b32 v{T}, 0", f"v_mov_b32 v{T+2}, 0", "s_mov_b32 s29, 0x3f803f80")
    for d in range(9): k(f"v_dot2c_f32_bf16 v{T}, s29, v{R+d}", f"v_dot2c_f32_bf16 v{T+2}, v{R+d}, v{R+d}")
    k("s_nop 1")
    xlane(k, T, (8, 16, 32))
    k(f"v_and_b32 v{T+8}, 7, v0", f"v_lshlrev_b32 v{T+8}, 3, v{T+8}", f"v_add_u32 v{T+8}, {TILE}, v{T+8}", "s_lshl_b32 s23, s20, 6", f"v_add_u32 v{T+9}, s23, v{T+8}", f"v_mov_b32 v{T+1}, v{T+2}")
    k(f"ds_write_b64 v{T+9}, {v(T,2)}", "s_waitcnt lgkmcnt(0)", "s_barrier")
    for w_ in range(4): k(f"ds_read_b64 {v(T+10+2*w_,2)}, v{T+8} offset:{64*w_}")
    k(f"s_add_u32 s8, s4, {hx(WS_XN)}", "s_addc_u32 s9, s5, 0")
    for d in range(9): k(f"v_lshlrev_b32 v{ACCB+2*d}, 16, v{R+d}", f"v_and_b32 v{ACCB+2*d+1}, 0xffff0000, v{R+d}")
    k("s_waitcnt lgkmcnt(0)")
    k(f"v_add_f32 v{T}, v{T+10}, v{T+12}", f"v_add_f32 v{T+2}, v{T+11}, v{T+13}", f"v_add_f32 v{T+14}, v{T+14}, v{T+16}", f"v_add_f32 v{T+15}, v{T+15}, v{T+17}", f"v_add_f32 v{T}, v{T}, v{T+14}", f"v_add_f32 v{T+2}, v{T+2}, v{T+15}")
    ln_fin2(k, T)
    for d in range(9): k(f"v_pk_fma_f32 {v(ACCB+2*d,2)}, {v(ACCB+2*d,2)}, {v(T+4,2)}, {v(T+6,2)} op_sel_hi:[1,0,0]")
    for d in range(9): k(f"v_cvt_pk_bf16_f32 v{R+12+d}, v{ACCB+2*d}, v{ACCB+2*d+1}")
    k(f"buffer_store_dwordx4 {v(R+12,4)}, v4, s[8:11], 0 offen {SC}", f"buffer_store_dwordx4 {v(R+16,4)}, v4, s[8:11], s28 offen {SC}", f"buffer_store_dword v{R+20}, v5, s[8:11], 0 offen {SC}")
def gen():
    k = Kern("mega")
    NST[0] = 0; NAMES.clear(); LBL[0] = 0; FS[0] = int(OPT.get("fs", 6))
    FF.STAMP = 0; FF.WG = int(OPT.get("wg", 1)); FF.TOUCH = 0
    st0 = len(k.L)
    startup(k)
    k.label("layer1")
    phase_qkv1(k)
    k.label("q_epi")
    q_epi(k)
    publish(k, F_QKV, extra=F_PF)
    st(k, "qkv_pub")
    phase_att(k)
    wd = wo_dma(k); n1 = int(OPT.get("wd1", 8))
    k(wd[:n1 + 1])
    publish(k, F_ATT, vm=n1, keep=True)
    k(wd[n1 + 1:])
    st(k, "att_pub")
    phase_wo(k)
    phase_ffn(k)
    phase_red(k)
    k("s_cmp_lg_u32 s3, 0", "s_cbranch_scc1 mega_end")
    red_ln(k)
    A1 = int(OPT.get("a1", 8))
    if A1:
        kk = Kern("t"); wgmap(kk, int(OPT.get("qmap", 44)), 34, 35); k(kk.L)
        k("s_lshl_b32 s38, s35, 2", "s_add_u32 s38, s38, s20", f"s_mul_i32 s38, s38, {72*1024}", f"s_add_u32 s38, s38, {hx(WS_WQ)}"); add64(k, 4, S_WS, 38); srd_fill(k, 4, 72 * 1024)
        k("s_mov_b32 s26, 0", "s_cmp_ge_u32 s20, 2", "s_cselect_b64 vcc, -1, 0", "v_mov_b32 v161, 0x80000000", f"v_cndmask_b32 v{Q_A2}, v{V_L16}, v161, vcc")
        for n in range(A1): k(q_aload(n))
    publish(k, F_RED, vm=A1)
    st(k, "red_pub")
    if STAMP[0]: dump(k, 0)
    k(f"s_mov_b32 s3, {hx(LSTR)}", f"s_mov_b32 s14, {5*FT()}", "s_branch layer1")
    k.label("mega_end")
    if STAMP[0]:
        k("s_waitcnt vmcnt(0)"); st(k, "end"); dump(k, 1)
    k.label("mega_done")
    k("s_endpgm")
    return k
def dump(k, L):
    LBL[0] += 1
    k("s_cmp_lg_u32 s20, 0", f"s_cbranch_scc1 dmp{LBL[0]}", f"s_lshl_b32 s23, s2, 9", f"s_add_u32 s23, s23, {hx(WS_ST + 256*L)}"); add64(k, 4, S_WS, 23); srd_fill(k, 4, 256)
    k("v_lshlrev_b32 v9, 2, v0", f"buffer_store_dword v{V_STAMP}, v9, s[4:7], 0 offen", "s_waitcnt vmcnt(0)")
    k.label(f"dmp{LBL[0]}")
class JP(list):
    def __init__(s): super().__init__([0, 1, 1, 1, 1, 1])
def trips(w):
    d = {"ffn_loopA": [0, 1, 1, 0] if int(OPT.get("peel", 0)) else [1, 0, 1, 1, 1, 0], "ffn_loopA_odd": [0, 1], "jit_p0": [0, 1, 1, 1, 1, 1], "jit_p1": JP(), "ffn_loopB": [1, 1, 0] * 2, "mega_end": [0, 1], "ffn_nomid": [1, 0, 1] * 2, "red_noearly": [0, 1], "red_haveearly": [1, 0], "red_noearly1": [w & 1, 1], "red_haveearly1": [1 - (w & 1), 0], "red_w": [w & 1, 1], "att_notouch": [0, 1], "ffn_nojs": [0, 1], "att_sk0": [0, 1], "att_sk1": [0, 1], "att_sk2": [0, 1], "q_nof": [0, 1], "att_noprep2": [0, 1], "ffn_noring": [1, 0], "ffn_ring2": [0, 1], "wo_l1": [0, 1],
         "q_p0b": [0, 1], "q_p1b": [0, 1], "q_p0d": 9 if w >= 2 else 0, "q_p1d": 9 if w >= 2 else 0, "q_epi2": 9 if w >= 2 else 0, "q_epi3": 9 if w == 3 else 0, "no_cpf": 0 if w == 3 else 9, "no_touch": 0 if w == 3 else 9, "q_noscale": 9 if w else 0, "no_nonce": 9 if w else 0}
    for i in range(17): d[f"res_sk{i}"] = [0, 1]
    d["wo_dsk"] = 9 if w == 3 else 0
    for i in range(1, 40):
        for n in (f"pub{i}", f"wt{i}_d", f"dmp{i}"): d[n] = 9 if w else 0
        d[f"pub{i}_x"] = [0, 1]
        d[f"wt{i}_d"] = 9 if w != POLLW.get(f"wt{i}", 0) else 0
    return d
```

```python
from common import *
V_KM, V_KT, V_QT, V_VV, V_SO, V_ST, V_D4, V_QMO = 2, 3, 4, 5, 6, 7, 8, 22
V_MX = 16; V_MK = 216; V_QM = 24; V_Q1 = 224; V_QTT = 240
V_NM = 40; V_O = 72; V_S = 104; V_P = 168; V_T = 200
A_K = 0; A_V = 60
MSK = 28; SO = 82
NEG = bf16u(-1e30)
def mf(d, A, B, c): return f"v_mfma_f32_32x32x16_bf16 {d}, {A}, {B}, {c}"
def kmain(b): return a(A_K + 12 * (b // 2) + 4 + 4 * (b % 2), 4)
def ktail(b): return a(A_K + 12 * (b // 2), 4)
def qk(t, b, sb, c):
    S_ = v(V_S + 16 * sb, 16)
    return [mf(S_, kmain(b), v(V_QM + 4*t, 4), c), mf(S_, ktail(b), v(V_Q1 + 8*t + 4*(b % 2), 4), S_)]
def cost(x): return 2 if isinstance(x, str) and x.startswith(("v_exp", "v_rcp")) else 1
class VM:
    def __init__(s, k, loads): s.k = k; s.todo = list(loads); s.q = []; s.done = set()
    def issue(s, n=1):
        for _ in range(n):
            if s.todo:
                tag, op = s.todo.pop(0); s.k(op); s.q.append(tag)
    def need(s, tags):
        tags = [t for t in tags if t not in s.done]
        while any(t in [x[0] for x in s.todo] for t in tags): s.issue()
        if tags:
            i = max(s.q.index(t) for t in tags); s.k(f"s_waitcnt vmcnt({len(s.q) - 1 - i})"); s.done.update(s.q[:i + 1]); s.q = s.q[i + 1:]
    def __call__(s, x):
        if isinstance(x, (list, tuple)) and not (len(x) == 2 and x[0] in ("NEED", "ISSUE")):
            for y in x: s(y)
        elif isinstance(x, tuple): s.need(x[1]) if x[0] == "NEED" else s.issue(x[1])
        else:
            s.k(x)
            if x.startswith("buffer_") and "COND" not in x: s.q.append("x")
def inter(E, main, side, lead=0, tail=0):
    tot = sum(cost(x) for x in main); span = max(1, tot - lead - tail); c = 0; si = 0
    for x in main:
        while si < len(side) and c >= lead + si * span / len(side):
            E(side[si]); si += 1
        E(x); c += cost(x)
    while si < len(side): E(side[si]); si += 1
def body(k, st, SC, after_p1=()):
    T = V_T
    L = []
    def km(b): return (f"K{b}", f"buffer_load_dwordx4 {kmain(b)}, v{V_KM}, s[4:7], s{SO+b//2} offen offset:{1024*(b%2)} {SC}")
    def kt(i): return (f"T{i}", f"buffer_load_dwordx2 {a(A_K+12*i,2)}, v{V_KT}, s[4:7], s{SO+i} offen {SC}")
    def vl(b): return [(f"v{b}", f"buffer_load_dwordx4 {a(A_V+8*b,4)}, v{V_VV}, s[4:7], s{SO+b//2} offen offset:{(2*(b%2))*512} {SC}"),
                       (f"V{b}", f"buffer_load_dwordx4 {a(A_V+8*b+4,4)}, v{V_VV}, s[4:7], s{SO+b//2} offen offset:{(2*(b%2)+1)*512} {SC}")]
    L += [km(0), kt(0), km(8), kt(4), km(1), km(9)] + vl(0) + vl(8) + [km(2), kt(1)] + vl(1) + vl(9) + [km(3)] + vl(2) + [km(4), kt(2)] + vl(3) + [km(5)] + vl(4) + [km(6), kt(3)] + vl(5) + [km(7)] + vl(6) + vl(7)
    E = VM(k, L)
    kn = lambda bs: ("NEED", [f"K{b}" for b in bs] + [f"T{b//2}" for b in bs])
    k("s_mov_b32 s15, 0")
    E.issue(int(OPT.get("an0", 8)))
    k.label("att_again")
    free = [0, 1, 2, 3]; sb = {}
    units = [(0, (0, 8)), (1, (8,)), (1, (1, 9)), (0, (1,))] + [(t, (b,)) for b in range(2, 8) for t in range(2)]
    def m1(i, c):
        t, bs = units[i]; sb[i] = [free.pop(0) for _ in bs]; o = []
        for b, s_ in zip(bs, sb[i]): o += qk(t, b, s_, c(t))
        return ([kn(bs)] + o[:1],) + tuple(o[1:])
    def merge_ops(i):
        lo, hi = [V_S + 16 * x for x in sb[i]]
        return [f"v_cndmask_b32 v{lo+n}, v{lo+n}, v{hi+n}, s[{MSK+2*n}:{MSK+2*n+1}]" for n in range(16)]
    def mx_ops(t, S_): return [f"v_max3_f32 v{V_MX+2*t+(n&1)}, v{S_+2*n}, v{S_+2*n+1}, v{V_MX+2*t+(n&1)}" for n in range(8)]
    zero = lambda t: "0"
    o0 = list(m1(0, zero)); E(o0[0]); st(k, "att_first"); E(o0[1:]); E(("ISSUE", 2))
    E(list(m1(2, zero))); n_ = min(2, len(E.todo)); E(("ISSUE", 2)); k(f"s_nop {7 - 2 * n_}")
    for i in (0, 2):
        inter(E, merge_ops(i) + mx_ops(units[i][0], V_S + 16 * sb[i][0]), [("ISSUE", 1), ("ISSUE", 1)], 4, 4)
        free.append(sb[i][1])
    for t in range(2): k(f"v_max_f32 v{V_MX+2*t}, v{V_MX+2*t}, v{V_MX+2*t+1}")
    for t in range(2): k(f"v_mov_b32 v{V_MX+2*t+1}, v{V_MX+2*t}")
    E(("ISSUE", 1)); k("s_nop 0")
    for t in range(2): k(f"v_permlane32_swap_b32 v{V_MX+2*t}, v{V_MX+2*t+1}")
    E(("ISSUE", 1)); k("s_nop 0")
    for t in range(2): k(f"v_max_f32 v{V_MX+2*t}, v{V_MX+2*t}, v{V_MX+2*t+1}")
    st(k, "att_p1")
    pfree = [0, 1, 2, 3]; pb = {}
    nmc = lambda t: v(V_NM + 16 * t, 16)
    for n in range(16): k(f"v_sub_f32 v{V_NM+16+n}, 0, v{V_MX+2}")
    k("s_nop 0")
    ostarted = set()
    def m2(i):
        t, bs = units[i]; o = []; O_ = v(V_O + 16 * t, 16)
        for b, p_ in zip(bs, pb[i]):
            for s_ in range(2):
                c = O_ if t in ostarted else "0"; ostarted.add(t)
                o.append([("NEED", [f"V{b}"]), mf(O_, a(A_V + 8*b + 4*s_, 4), v(V_P + 8*p_ + 4*s_, 4), c)])
        return o
    for i in range(16):
        t, bs = units[i]; S_ = V_S + 16 * sb[i][0]
        side = list(m1(i + 1, nmc)) if (i + 1 < 16 and i + 1 != 2) else []
        m2ops = m2(i - 1) if i >= 1 else []
        pb[i] = [pfree.pop(0) for _ in bs]
        P0 = V_P + 8 * pb[i][0]
        x = [f"v_sub_f32 v{S_+n}, v{S_+n}, v{V_MX+2*t}" for n in range(16)] if len(bs) == 2 else []
        if i == 1: x += [f"v_sub_f32 v{V_NM+n}, 0, v{V_MX}" for n in range(16)]
        for n in range(8):
            x += [f"v_exp_f32 v{S_+2*n}, v{S_+2*n}", f"v_exp_f32 v{S_+2*n+1}, v{S_+2*n+1}"]
            if n >= 1: x.append(f"v_cvt_pk_bf16_f32 v{P0+n-1}, v{S_+2*n-2}, v{S_+2*n-1}")
        last = f"v_cvt_pk_bf16_f32 v{P0+7}, v{S_+14}, v{S_+15}"
        if len(bs) == 2:
            P1 = V_P + 8 * pb[i][1]
            x += [f"v_and_b32 v{P1}, v{P0}, v{V_MK}", last]
            for n in range(1, 8): x.append(f"v_and_b32 v{P1+n}, v{P0+n}, v{V_MK+n}")
            for n in range(8): x.append(f"v_xor_b32 v{P0+n}, v{P0+n}, v{P1+n}")
        else: x.append(last)
        if i >= 1:
            for p_ in pb[i - 1]: pfree.append(p_)
        ex = [("ISSUE", 1), ("ISSUE", 1), ("ISSUE", 1)]
        if after_p1 and not E.todo: ex = [list(after_p1)]; after_p1 = None
        inter(E, x, side + ex + m2ops, 1, 3)
        free.append(sb[i][0])
    k("s_nop 1")
    E(m2(15))
    st(k, "att_p2")
    k("s_nop 5")
    def lsum(t):
        O_ = V_O + 16 * t; R = T + 4 * t
        return [f"v_mov_b32 v{R+1}, v{O_+10}", f"v_max3_f32 v{R+2}, |v{O_}|, |v{O_+1}|, |v{O_+2}|", f"v_max3_f32 v{R+3}, |v{O_+3}|, |v{O_+4}|, |v{O_+5}|", f"v_permlane32_swap_b32 v{O_+10}, v{R+1}",
                f"v_max3_f32 v{R+2}, |v{O_+6}|, |v{O_+7}|, v{R+2}", f"v_max3_f32 v{R+3}, |v{O_+8}|, |v{O_+9}|, v{R+3}", f"v_max_f32 v{R+2}, v{R+2}, v{R+3}",
                f"v_cmp_nlt_f32 s[{24+2*t}:{25+2*t}], v{O_+10}, v{T+8}", f"v_cmp_nlt_f32 vcc, v{R+2}, v{T+9}", f"v_rcp_f32 v{R}, v{O_+10}", "s_nop 1", f"s_or_b64 s[{24+2*t}:{25+2*t}], s[{24+2*t}:{25+2*t}], vcc"]
    k(f"v_mov_b32 v{T+8}, {fl(2.0 ** int(OPT.get('lthr', 30)))}", f"v_mov_b32 v{T+9}, {fl(2.0 ** 120)}")
    E(lsum(0)); E(lsum(1))
    k("s_or_b64 s[24:25], s[24:25], s[26:27]", "s_cselect_b32 s24, 1, 0", "s_cmp_gt_u32 s24, s15", "s_cbranch_scc1 att_full")
    def epi(t):
        O_ = V_O + 16 * t; R = T + 4 * t; P_ = V_NM + 8 * t
        o = [f"v_mul_f32 v{O_+n}, v{O_+n}, v{R}" for n in range(10)]
        o += [f"v_cvt_pk_bf16_f32 v{P_+n}, v{O_+2*n}, v{O_+2*n+1}" for n in range(5)]
        o += [f"buffer_store_dwordx4 {v(P_,4)}, v{V_SO}, s[16:19], s88 offen offset:{512*t} {SC}", f"buffer_store_dword v{P_+4}, v{V_ST}, s[16:19], s89 offen offset:{128*t} {SC}"]
        return o
    E(epi(0)); E(epi(1))
    def full(k):
        k.label("att_full")
        k("s_mov_b32 s15, 1", "s_waitcnt vmcnt(0)")
        for t in range(2): k(f"v_mov_b32 v{V_MX+2*t+1}, v{V_MX+2*t}")
        us = [u for u in units if len(u[1]) == 1]
        for n0 in range(0, 14, 4):
            grp = us[n0:n0 + 4]
            for s_, (t, bs) in enumerate(grp): k(qk(t, bs[0], s_, "0"))
            k("s_nop 11")
            for s_, (t, bs) in enumerate(grp): k(mx_ops(t, V_S + 16 * s_))
        k("s_branch att_again")
    return full
```

```python
from common import *
import k_ffn3 as FF
import k_ffn4 as F4
LDS = 163840
SC = "sc1"
S_WS, S_X, S_OUT, S_NON, S_FL = 96, 98, 100, 90, 92
S_FO = 19
S_FO = 75 + 0
V_L16, V_PD, V_PT0, V_PT1, V_STAMP = 1, 12, 13, 14, 15
F_P0, F_QKV, F_ATT, F_WO, F_FFN, F_RED, F_PF = 0, 1, 2, 3, 4, 5, 11
STG_Q, STG_O, STG_F, STG_J = 73728, 91648, 96768, 73728
FS = [3]
def FT(): return 256 << FS[0]
def FPJ(): return 12 * FT() + 4 * 8192
F_PJ = 0
WOIMG = 0
NST = [0]
def st(k, name=""):
    if STAMP[0]:
        k("s_memtime s[0:1]" if STAMP[0] == 2 else "s_memrealtime s[0:1]", "s_waitcnt lgkmcnt(0)", f"v_writelane_b32 v{V_STAMP}, s0, {NST[0]}" + f" ; {name}")
        NAMES.append(name); NST[0] += 1
NAMES = []
OOL = []
def add64(k, d, base, off_s):
    k(f"s_add_u32 s{d}, s{base}, s{off_s}", f"s_addc_u32 s{d+1}, s{base+1}, 0")
LBL = [0]
POLLW = {}
def publish(k, fid, layered=True, vm=0, idx="task", extra=None, keep=False):
    LBL[0] += 1; L = f"pub{LBL[0]}"
    k(f"s_waitcnt vmcnt({vm})", "s_barrier", "s_cmp_lg_u32 s20, 0", f"s_cbranch_scc1 {L}")
    if idx == "task": k("s_lshl_b32 s23, s21, 3", "s_add_u32 s23, s23, s22", f"s_lshl_b32 s23, s23, {FS[0]}")
    else: k(f"s_lshl_b32 s23, s2, {FS[0]}")
    k(f"s_add_u32 s23, s23, {fid*FT()}")
    if layered: k("s_add_u32 s23, s23, s14")
    k("s_mov_b64 exec, 1", "v_mov_b32 v9, 0", f"v_mov_b32 v10, s{S_NON}", f"v_mov_b32 v11, s{S_NON+1}")
    k(f"buffer_store_dwordx2 v[10:11], v9, s[{S_FL}:{S_FL+3}], s23 offen {SC}")
    if extra is not None:
        k("s_cmp_lg_u32 s3, 0", f"s_cbranch_scc1 {L}_x")
        k("s_lshl_b32 s23, s75, 5", "s_add_u32 s23, s23, s74", "s_lshl_b32 s23, s23, 3", f"s_add_u32 s23, s23, {extra*FT()}", f"buffer_store_dwordx2 v[10:11], v9, s[{S_FL}:{S_FL+3}], s23 offen {SC}")
        k.label(f"{L}_x")
    k("s_mov_b64 exec, -1")
    k.label(L)
def wait(k, setup, pw=0):
    LBL[0] += 1; L = f"wt{LBL[0]}"; POLLW[L] = pw
    k(f"s_cmp_lg_u32 s20, {pw}", f"s_cbranch_scc1 {L}_d")
    k(setup, "s_mov_b32 s23, 0x10000")
    if int(OPT.get("pre", 0)): k(f"s_sleep {OPT['pre']}")
    k.label(f"{L}_l")
    if int(OPT.get("slp", 0)): k(f"s_sleep {OPT['slp']}")
    k(f"buffer_load_dwordx2 v[10:11], v9, s[{S_FL}:{S_FL+3}], 0 offen {SC}", "s_waitcnt vmcnt(0)")
    k(f"v_cmp_ne_u64 vcc, s[{S_NON}:{S_NON+1}], v[10:11]", "s_sub_u32 s23, s23, 1", "s_cselect_b64 s[24:25], 0, -1", "s_nop 1", "s_and_b64 vcc, vcc, s[24:25]", f"s_cbranch_vccnz {L}_l")
    k.label(f"{L}_d")
    k("s_barrier")
def tile_flags(fid, prev_layer=False):
    o = ["v_and_b32 v9, 7, v0", "s_lshl_b32 s23, s21, 3", "v_add_u32 v9, s23, v9", f"v_lshlrev_b32 v9, {FS[0]}, v9", f"s_add_u32 s23, s14, {hx(fid*FT() - (5*FT() if prev_layer else 0))}", "v_add_u32 v9, s23, v9"]
    return o

def div18(su, sq, sr): return [f"s_mul_i32 s{sq}, s{su}, 3641", f"s_lshr_b32 s{sq}, s{sq}, 16", f"s_mul_i32 s{sr}, s{sq}, 18", f"s_sub_u32 s{sr}, s{su}, s{sr}"]
def soffA(rd): return [f"s_add_u32 s76, s74, {32*rd}"] + div18(76, 78, 79) + [f"s_mul_i32 s79, s79, {32*9216}", "s_lshl_b32 s78, s78, 7", "s_add_u32 s78, s78, s79", "s_mul_i32 s79, s75, 1152", "s_add_u32 s78, s78, s79"]
def soffB(rd, d): return [f"s_add_u32 s76, s74, {hx(32*rd - 162)}", "s_lshl_b32 s76, s76, 1"] + div18(76, d, 79) + [f"s_mul_i32 s79, s79, {32*1152}", f"s_lshl_b32 s{d}, s{d}, 7", f"s_add_u32 s{d}, s{d}, s79", f"s_mul_i32 s79, s75, {576*1152}", f"s_add_u32 s{d}, s{d}, s79"]
J_PD, J_T0, J_T1 = 240, 243, 246
def dma_round(rd, lds):
    if rd <= 4: pre, s1, s2, o2, vd = soffA(rd), 60, 64, 78, V_PD
    elif rd == 5:
        pre = soffB(5, 77) + soffA(5) + ["s_cmp_lt_u32 s74, 2", "s_cselect_b32 s78, s78, s77", f"s_cselect_b32 s79, 0, {32*1152}", "s_add_u32 s77, s78, s79"]
        s1, s2, o2, vd = 80, 84, 77, J_PD + 2
    else: pre, s1, s2, o2, vd = soffB(rd, 78) + [f"s_add_u32 s77, s78, {32*1152}"], 36, 36, 77, J_PD + 1
    return [pre + [f"s_add_u32 m0, s88, {lds}", "s_nop 0", f"buffer_load_dwordx4 v{vd}, s[{s1}:{s1+3}], s78 offen lds"],
            [f"s_add_u32 m0, s88, {lds + 4096}", "s_nop 0", f"buffer_load_dwordx4 v{vd}, s[{s2}:{s2+3}], s{o2} offen lds"]]
def tr_round(T, t0, t1, off): return [f"ds_read_b64_tr_b16 {v(T + 4*u + 2*e, 2)}, v{(t0, t1)[e]} offset:{off + 4096*u}" for u in range(2) for e in range(2)]
def st_round(rd, T):
    pre = [f"s_add_u32 s76, s74, {32*rd}", "s_lshl_b32 s78, s76, 11"]
    if rd == 7: pre += ["s_cmp_lt_u32 s76, 243", f"s_cselect_b32 s70, {WFR*1024}, 0"]
    return [pre + [f"buffer_store_dwordx4 {v(T,4)}, v{V_L16}, s[68:71], s78 offen {SC}"], [f"buffer_store_dwordx4 {v(T+4,4)}, v{V_L16}, s[68:71], s78 offen offset:1024 {SC}"]]
def jit_setup():
    q4, r4, c4, t, l8 = 250, 251, 252, 253, 254
    o = [f"v_lshrrev_b32 v{q4}, 4, v0", f"v_bfe_u32 v{r4}, v0, 2, 2", f"v_and_b32 v{c4}, 7, v0", f"v_lshlrev_b32 v{t}, 1, v{q4}", f"v_xor_b32 v{t}, v{t}, v{c4}", f"v_lshlrev_b32 v{t}, 4, v{t}",
         f"v_lshrrev_b32 v{l8}, 3, v0", "s_lshl_b32 s76, s20, 3", f"v_add_u32 v{l8}, s76, v{l8}", f"v_mul_u32_u24 v{l8}, 1152, v{l8}", f"v_add_u32 v{J_PD+1}, v{t}, v{l8}",
         f"v_add_u32 v{J_T0}, {STG_J}, v{V_PT0}", f"v_add_u32 v{J_T1}, 512, v{J_T0}", f"v_lshlrev_b32 v{t}, 9, v{q4}", f"v_sub_u32 v{J_T0+1}, v{J_T0}, v{t}", f"v_add_u32 v{J_T1+1}, 2048, v{J_T0+1}",
         "s_cmp_lt_u32 s74, 2", "s_cselect_b64 vcc, -1, 0", "s_cselect_b64 s[80:81], s[60:61], s[72:73]", "s_cselect_b64 s[84:85], s[64:65], s[72:73]", "s_mov_b64 s[36:37], s[72:73]",
         f"v_cndmask_b32 v{J_PD+2}, v{J_PD+1}, v{V_PD}, vcc", f"v_cndmask_b32 v{J_T0+2}, v{J_T0+1}, v{J_T0}, vcc", f"v_cndmask_b32 v{J_T1+2}, v{J_T1+1}, v{J_T1}, vcc", "s_lshl_b32 s88, s20, 10"]
    for r_ in (36, 80, 84): o += [f"s_mov_b32 s{r_+2}, {hx(D*F*2)}", f"s_mov_b32 s{r_+3}, 0x00020000"]
    return o

Q_XL, Q_SQ, Q_S8, Q_STL, Q_TS, Q_BR1, Q_XW = 2, 3, 4, 5, 6, 7, 8
Q_A2 = 160
Q_VW, Q_VR, Q_VA = 172, 173, 174
Q_AC, Q_B, Q_LT, Q_T, Q_X = 48, 112, 144, 161, 184
BREG = FF.BREG
def q_aload(n):
    o = [f"buffer_load_dwordx4 {BREG(n)}, v{Q_A2 if n >= 54 else V_L16}, s[4:7], s26 offen" + (f" offset:{(n%4)*1024}" if n % 4 else "") + f" {SC}"]
    if n % 4 == 3: o.append("s_add_u32 s26, s26, 0x1000")
    return o
def q_setup(k):
    q4, tk, r1, r2, t5, t6 = range(Q_T, Q_T + 6)
    k(f"v_lshrrev_b32 v{q4}, 4, v0", f"v_and_b32 v{tk}, 15, v0", f"v_and_b32 v{r1}, 1, v{q4}", f"v_lshrrev_b32 v{r2}, 1, v{q4}")
    k("s_lshl_b32 s38, s20, 10", f"v_add_u32 v{Q_XW}, s38, v{V_L16}", f"v_add_u32 v{Q_BR1}, 36864, v{V_L16}")
    k(f"v_lshlrev_b32 v{t5}, 4, v{tk}", f"v_lshl_add_u32 v{t6}, v{r2}, 9, v{t5}", f"v_lshl_add_u32 v{Q_SQ}, v{r1}, 11, v{t6}")
    k("s_lshl_b32 s40, s20, 12", f"s_add_u32 s40, s40, {KV_KM}", "s_add_u32 s41, s40, 0x400")
    k("s_mul_i32 s39, s20, 4608", f"s_add_u32 s39, s39, {STG_Q}")
    k(f"v_mul_u32_u24 v{t6}, 72, v{tk}", f"v_lshl_add_u32 v{t6}, v{q4}, 3, v{t6}", f"v_add_u32 v{Q_VW}, s39, v{t6}")
    k(f"v_bfe_u32 v{t6}, v0, 2, 2", f"v_lshl_add_u32 v{t6}, v{r1}, 2, v{t6}", f"v_lshl_add_u32 v{t6}, v{r2}, 4, v{t6}", f"v_mul_u32_u24 v{t6}, 72, v{t6}", f"v_and_b32 v{Q_VR}, 3, v0", f"v_lshl_add_u32 v{t6}, v{Q_VR}, 3, v{t6}", f"v_add_u32 v{Q_VR}, s39, v{t6}")
    k(f"v_lshlrev_b32 v{t6}, 4, v{tk}", f"v_lshl_add_u32 v{t6}, v{r1}, 8, v{t6}", f"v_lshl_add_u32 v{t6}, v{r2}, 9, v{t6}")
    k("s_cmp_eq_u32 s20, 3", "s_cselect_b32 s39, 4, s20", "s_lshl_b32 s39, s39, 11", f"s_add_u32 s39, s39, {KV_V}", f"v_add_u32 v{Q_VA}, s39, v{t6}")
    k(f"v_lshlrev_b32 v{t6}, 9, v{r1}", f"v_lshl_add_u32 v{t6}, v{tk}, 3, v{t6}", f"v_add_u32 v{t6}, {KV_KT}, v{t6}")
    k(f"v_mov_b32 v{r1}, 0x80000000", f"v_cmp_gt_u32 vcc, 32, v0", f"v_mov_b32 v{r2}, {fl(QSCALE)}", "s_nop 0", f"v_cndmask_b32 v{Q_TS}, 1.0, v{r2}, vcc", f"v_cndmask_b32 v{Q_STL}, v{t6}, v{r1}, vcc")
    k("s_cmp_ge_u32 s20, 2", "s_cselect_b64 vcc, -1, 0", f"v_cndmask_b32 v{Q_A2}, v{V_L16}, v{r1}, vcc")
    k("s_lshl_b32 s38, s22, 2", "s_add_u32 s38, s38, s20", f"s_mul_i32 s38, s38, {72*1024}", f"s_add_u32 s38, s38, {hx(WS_WQ)}"); add64(k, 4, S_WS, 38); srd_fill(k, 4, 72 * 1024)
    k("s_lshl_b32 s38, s21, 3", "s_add_u32 s38, s38, s22", f"s_mul_i32 s38, s38, {KVB}", "s_add_u32 s38, s38, s3"); add64(k, 16, S_WS, 38); srd_fill(k, 16, KVB)
    k("s_mov_b32 s26, 0", "s_mov_b32 s29, 0x3f803f80", f"s_mov_b32 s28, {fl(QSCALE)}")
def ln_write(k, i, X, XW):
    off = i * 4096
    if i == 16: k(f"v_add_u32 v{XW}, 0x10000, v{XW}")
    k(f"ds_write_b128 v{XW}, {v(X+4*i,4)} offset:{off if off < 65536 else off - 65536}")
def q_bread(ks, sw=False): return [f"ds_read_b128 {v(Q_B + 16*(ks&1) + 4*tb, 4)}, v{(178 + (ks & 1) + (2 if ks >= 9 else 0)) if sw else (Q_BR1 if ks >= 9 else V_L16)} offset:{((4*ks+tb) % 36)*1024}" for tb in range(4)]
def q_lnq(i, pk):
    kk = Kern("t"); kk(ln_apply(Q_X, Q_LT, i, pk=pk)); ln_write(kk, i, Q_X, Q_XW); return kk.L
def q_loop(k, na, q, extra, chunk=True):
    k(q_bread(0, chunk is False))
    for ks in range(18):
        need = 3 * ks + 2 if ks < 17 else 71
        while need >= na: k(q_aload(na)); q.append(na); na += 1
        if chunk == "dma" and ks in (5, 11) and f"X{ks+6}" in q and (need not in q or q.index(need) < q.index(f"X{ks+6}")): need = f"X{ks+6}"
        if need in q:
            w = len(q) - 1 - q.index(need); q = q[q.index(need) + 1:]
            k(f"s_waitcnt vmcnt({min(63, w)}) lgkmcnt(0)")
        else: k("s_waitcnt lgkmcnt(0)")
        if ks in (5, 11) and chunk: k("s_barrier")
        br = q_bread((ks + 1) % 18, chunk is False)
        for tb in range(4):
            for ht in range(3):
                ac = v(Q_AC + 16*ht + 4*tb, 4)
                k(f"v_mfma_f32_16x16x32_bf16 {ac}, {BREG(3*ks+ht)}, {v(Q_B + 16*(ks&1) + 4*tb, 4)}, {'0' if ks == 0 else ac}")
                if tb < 2 and ht in (0, 1): k(br[2 * tb + ht])
                if ht == 2 and na < 72 and len(q) < 44 and (tb < 3 or QR4): k(q_aload(na)); q.append(na); na += 1
        for fn, nv in extra.get(ks, []):
            fn(); q += ["x"] * nv
QR4 = True
def q_pass(k, sw, a_, b_):
    def rd(ks): return [x.replace(v(Q_B + 16*(ks&1) + 4*tb, 4), v(Q_B + 16*(ks%3) + 4*tb, 4)) for tb, x in enumerate(q_bread(ks, sw))]
    if a_ == 0: k(rd(1))
    for ks in range(a_, b_):
        k(f"s_waitcnt lgkmcnt({4 if ks < 17 else 0})")
        br = rd(ks + 2) if ks < 16 else []
        for tb in range(4):
            ac = v(Q_AC + 32 + 4*tb, 4)
            k(f"v_mfma_f32_16x16x32_bf16 {ac}, {BREG(54+ks)}, {v(Q_B + 16*(ks%3) + 4*tb, 4)}, {'0' if ks == 0 else ac}")
            if br: k(br[tb])
def q_part(k, n, a_, b_):
    k("s_cmp_ge_u32 s20, 2", f"s_cbranch_scc1 q_p{n}d", "s_cmp_lg_u32 s3, 0", f"s_cbranch_scc1 q_p{n}b")
    q_pass(k, True, a_, b_)
    k(f"s_branch q_p{n}d")
    k.label(f"q_p{n}b")
    q_pass(k, False, a_, b_)
    k.label(f"q_p{n}d")
def q_epi(k):
    st(k, "qkv_mfma")
    P = Q_X; RS = 72
    def vtile(ht):
        for tb in range(4):
            O = P + 8 * ht + 2 * tb
            for d in range(2): k(f"v_cvt_pk_bf16_f32 v{O+d}, v{Q_AC+16*ht+4*tb+2*d}, v{Q_AC+16*ht+4*tb+2*d+1}")
            k(f"ds_write_b64 v{Q_VW}, {v(O,2)} offset:{tb*16*RS + 32*ht}")
    def vread(ht):
        for pr in range(2):
            for e in range(2): k(f"ds_read_b64_tr_b16 {v(Q_AC+8*ht+4*pr+2*e,2)}, v{Q_VR} offset:{pr*32*RS + e*8*RS + 32*ht}")
    def vstore(ht):
        for pr in range(2): k(f"buffer_store_dwordx4 {v(Q_AC+8*ht+4*pr,4)}, v{Q_VA}, s[16:19], 0 offen offset:{ht*2048 + pr*1024} {SC}")
    k("s_nop 5")
    vtile(0)
    k("s_cmp_ge_u32 s20, 2", "s_cbranch_scc1 q_epi2")
    for tb in range(4):
        O = P + 16 + 4 * tb
        for h in range(2):
            for d in range(2): k(f"v_cvt_pk_bf16_f32 v{O+2*h+d}, v{Q_AC+16*(1+h)+4*tb+2*d}, v{Q_AC+16*(1+h)+4*tb+2*d+1}")
    k("s_waitcnt lgkmcnt(0)")
    vread(0)
    for tb in range(4):
        for d in range(2): k(f"v_permlane16_swap_b32 v{P+16+4*tb+d}, v{P+16+4*tb+2+d}")
    for tb in range(4): k(f"buffer_store_dwordx4 {v(P+16+4*tb,4)}, v{Q_SQ}, s[16:19], s{40 + (tb>>1)} offen offset:{256*(tb&1)} {SC}")
    k("s_waitcnt lgkmcnt(0)")
    vstore(0)
    k("s_branch q_epid")
    k.label("q_epi2")
    k("s_cmp_eq_u32 s20, 3", "s_cbranch_scc1 q_epi3")
    vtile(1)
    k("s_waitcnt lgkmcnt(0)")
    vread(0); vread(1)
    k("s_waitcnt lgkmcnt(4)"); vstore(0); k("s_waitcnt lgkmcnt(0)"); vstore(1)
    k("s_branch q_epid")
    k.label("q_epi3")
    for tb in range(4):
        for i in range(4): k(f"v_mul_f32 v{Q_AC+16+4*tb+i}, v{Q_TS}, v{Q_AC+16+4*tb+i}")
    for a_ in range(2):
        for h in range(2):
            for x in range(2): k(f"v_cvt_pk_bf16_f32 v{P+16+4*a_+2*h+x}, v{Q_AC+16+4*(a_+2*x)+2*h}, v{Q_AC+16+4*(a_+2*x)+2*h+1}")
    vtile(1)
    k("s_waitcnt lgkmcnt(4)")
    vread(0)
    k(f"v_mov_b32 v{P+24}, 0x3f803f80", f"v_and_b32 v{P+25}, 8, v0", f"v_cmp_eq_u32 vcc, 0, v{P+25}")
    for a_ in range(2):
        for h in range(2): k(f"buffer_store_dwordx2 {v(P+16+4*a_+2*h,2)}, v{Q_STL}, s[16:19], 0 offen offset:{256*h + 128*a_} {SC}")
    k("s_waitcnt lgkmcnt(0)")
    for i in range(8): k(f"v_cndmask_b32 v{Q_AC+i}, v{P+24}, v{Q_AC+i}, vcc")
    vstore(0)
    k.label("q_epid")
    st(k, "qkv_st")
    q_part(k, 0, 0, int(OPT.get("qh", 14)))
    st(k, "qkv_q")
def q_fin(k):
    import k_att2 as A
    if int(OPT.get("qh", 14)) < 18:
        q_part(k, 1, int(OPT.get("qh", 14)), 18); k("s_nop 7")
    for i in range(16): k(f"v_mul_f32 v{Q_AC+32+i}, s28, v{Q_AC+32+i}")
    for tb in range(4):
        for d in range(2): k(f"v_cvt_pk_bf16_f32 v{A.V_QM+2*tb+d}, v{Q_AC+32+4*tb+2*d}, v{Q_AC+32+4*tb+2*d+1}")
    k("v_and_b32 v9, 31, v0", "v_mul_u32_u24 v9, 72, v9", "s_lshl_b32 s23, s20, 2", f"s_add_u32 s23, s23, {STG_Q + 3*4608 + 32}", "v_add_u32 v9, s23, v9")
    k(f"ds_read_b32 v{A.V_QTT}, v9", f"ds_read_b32 v{A.V_QTT+1}, v9 offset:{32*72}")
    for t in range(2):
        for d in range(2): k(f"v_permlane16_swap_b32 v{A.V_QM+4*t+d}, v{A.V_QM+4*t+2+d}")

def startup(k):
    k("s_cmp_ge_u32 s2, 256", "s_cbranch_scc1 mega_done")
    k("s_memrealtime s[56:57]")
    k(f"s_load_dwordx4 s[28:31], s[0:1], 0", f"s_load_dwordx2 s[32:33], s[0:1], {A_WO*8}", f"s_load_dwordx4 s[60:63], s[0:1], {A_WG*8}",
      f"s_load_dwordx4 s[48:51], s[0:1], {A_WD*8}", f"s_load_dwordx4 s[52:55], s[0:1], {A_DBG*8}")
    k("v_lshrrev_b32 v1, 6, v0", "v_and_b32 v0, 63, v0", "v_readfirstlane_b32 s20, v1", f"v_lshlrev_b32 v{V_L16}, 4, v0", "s_mov_b32 s3, 0")
    if STAMP[0]: k(f"v_mov_b32 v{V_STAMP}, 0")
    if int(OPT.get("cpf", 1)):
        k("s_cmp_lg_u32 s20, 3", "s_cbranch_scc1 no_cpf", "s_getpc_b64 s[34:35]")
        k.label("cpf_base")
        k("s_lshr_b32 s36, s2, 3", "s_mul_i32 s36, s36, 18", "v_add_u32 v4, s36, v0", f"v_and_b32 v4, 1023, v4", "v_lshlrev_b32 v4, 7, v4", "v_mov_b32 v7, s35")
        k("v_min_u32 v6, mega_done-cpf_base, v4", "v_add_co_u32 v2, vcc, s34, v6", "s_nop 1", "v_addc_co_u32 v3, vcc, 0, v7, vcc", "global_load_dword v5, v[2:3], off ; WAWOK")
        k.label("no_cpf")
    wgmap(k, int(OPT.get("qmap", 44)))
    T = 16
    q4, tk, tok, t3, t4, t5, t6, t7, tmp, t9 = range(T, T + 10)
    DQ, DO, TQ, TO = 32, 36, 38, 42
    k(f"v_lshrrev_b32 v{q4}, 4, v0", f"v_and_b32 v{tk}, 15, v0", "s_lshl_b32 s38, s20, 4", f"v_add_u32 v{tok}, s38, v{tk}")
    k(f"v_lshrrev_b32 v{t3}, 3, v0", f"v_add_u32 v{t3}, s38, v{t3}", f"v_mul_u32_u24 v{Q_XL}, 1152, v{t3}", f"v_and_b32 v{t3}, 7, v0", f"v_lshl_add_u32 v{Q_XL}, v{t3}, 4, v{Q_XL}", "s_movk_i32 s26, 9216")
    hi, c, u, h, col = t3, t4, t5, t6, t7
    k(f"v_lshrrev_b32 v{hi}, 5, v0", f"v_and_b32 v{c}, 31, v0", f"v_lshlrev_b32 v{tmp}, 1, v{hi}", f"v_sub_u32 v{c}, v{c}, v{tmp}")
    k(f"v_mul_u32_u24 v{u}, 57, v{c}", f"v_lshrrev_b32 v{u}, 9, v{u}", f"v_mul_u32_u24 v{u}, 1008, v{u}", f"v_lshl_add_u32 v{col}, v{c}, 4, v{u}")
    k(f"v_mul_u32_u24 v{tmp}, 3456, v{hi}", f"s_mul_i32 s42, s20, {8*3456}", f"v_add3_u32 v{col}, v{col}, v{tmp}, s42")
    k(f"v_mov_b32 v{t9}, 0x80000000", f"v_cmp_gt_u32 vcc, 27, v{c}", "s_nop 1", f"v_cndmask_b32 v{DQ}, v{t9}, v{col}, vcc")
    for i in range(1, 4): k(f"v_add_u32 v{DQ+i}, {i*(6912-1088)}, v{DQ}")
    k("s_sub_u32 s34, s2, 112", "s_lshr_b32 s35, s34, 3", "s_and_b32 s34, s34, 7", "s_movk_i32 s40, 6554")
    n_, lam, cc, t1, t2 = t3, t4, t5, t6, t7
    for x in range(2):
        if x == 0: k("s_lshl_b32 s41, s20, 6", f"v_add_u32 v{n_}, s41, v0")
        else: k(f"v_add_u32 v{n_}, 256, v0")
        k(f"v_mul_u32_u24 v{lam}, s40, v{n_}", f"v_lshrrev_b32 v{lam}, 16, v{lam}", f"v_mul_u32_u24 v{cc}, 10, v{lam}", f"v_sub_u32 v{cc}, v{n_}, v{cc}")
        k(f"v_lshrrev_b32 v{t1}, 4, v{lam}", f"v_lshl_add_u32 v{n_}, v{t1}, 1, v{lam}")
        k(f"v_bfe_u32 v{t2}, v{lam}, 2, 1", f"v_lshl_add_u32 v{t1}, v{t1}, 1, v{t2}", f"v_mul_u32_u24 v{t1}, 72, v{t1}")
        k(f"v_bfe_u32 v{t2}, v{lam}, 3, 1", f"v_mul_u32_u24 v{t2}, 36, v{t2}", f"v_add3_u32 v{t1}, v{t1}, v{t2}, 16", f"v_and_b32 v{t2}, 1, v{lam}", f"v_add_u32 v{t1}, v{t1}, v{t2}", f"v_bfe_u32 v{t2}, v{lam}, 1, 1", f"v_mul_u32_u24 v{t2}, 18, v{t2}", f"v_add_u32 v{t1}, v{t1}, v{t2}")
        k("s_cmp_lt_u32 s35, 16", "s_cselect_b64 vcc, -1, 0", f"v_cndmask_b32 v{t1}, v{t1}, v{n_}, vcc")
        k(f"v_mul_u32_u24 v{t1}, 1152, v{t1}", f"v_lshl_add_u32 v{t1}, v{cc}, 4, v{t1}", f"v_cmp_gt_u32 vcc, 9, v{cc}", "s_nop 1", f"v_cndmask_b32 v{DO+x}, v{t9}, v{t1}, vcc")
    k("s_cmp_eq_u32 s20, 0", "s_cselect_b64 vcc, -1, 0", f"v_cndmask_b32 v{DO+1}, v{t9}, v{DO+1}, vcc")
    k(f"s_mul_i32 s36, s35, {36*1152}", "s_sub_u32 s37, s35, 16", f"s_mul_i32 s37, s37, {288*1152}", "s_cmp_lt_u32 s35, 16", "s_cselect_b32 s36, s36, s37", "s_mul_i32 s37, s34, 144", "s_add_u32 s36, s36, s37")
    k("s_and_b32 s37, s2, 7", "s_mul_i32 s37, s37, 144", "s_lshr_b32 s39, s2, 3", f"s_mul_i32 s39, s39, {32*3456}", "s_add_u32 s37, s37, s39")
    srd_fill(k, 12, TILE)
    k(f"s_mul_i32 s39, s21, {TILE}")
    k("s_waitcnt lgkmcnt(0)")
    if STAMP[0]:
        k(f"v_writelane_b32 v{V_STAMP}, s56, 0"); NAMES.append("entry"); NST[0] += 1
    k("s_sub_u32 s89, s56, 5000")
    st(k, "kernarg")
    k(f"s_mov_b32 s{S_WS}, s54", f"s_mov_b32 s{S_WS+1}, s55", f"s_mov_b32 s{S_X}, s28", f"s_mov_b32 s{S_X+1}, s29", f"s_mov_b32 s{S_OUT}, s50", f"s_mov_b32 s{S_OUT+1}, s51")
    k("s_mov_b32 s4, s30", "s_mov_b32 s5, s31", "s_cmp_lt_u32 s2, 144", f"s_cselect_b32 s6, {D*3*D*2}, 0", "s_mov_b32 s7, 0x00020000")
    k("s_mov_b32 s8, s32", "s_mov_b32 s9, s33", "s_cmp_ge_u32 s2, 112", f"s_cselect_b32 s10, {D*D*2}, 0", "s_mov_b32 s11, 0x00020000")
    k("s_mul_i32 s40, s20, 4480", f"s_add_u32 m0, s40, {STG_Q}", "s_nop 0")
    for i in range(4): k(f"buffer_load_dwordx4 v{DQ+i}, s[4:7], s37 offen offset:{1088*i} lds")
    k("s_lshl_b32 s40, s20, 10", f"s_add_u32 m0, s40, {STG_O}", "s_nop 0", f"buffer_load_dwordx4 v{DO}, s[8:11], s36 offen lds")
    k("s_cmp_eq_u32 s20, 0", f"s_cselect_b32 m0, {STG_O + 4096}, 145920", "s_nop 0", f"buffer_load_dwordx4 v{DO+1}, s[8:11], s36 offen lds")
    if OPT.get("fine"): st(k, "p0_dmaq")
    add64(k, 12, S_X, 39)
    for n in range(18): k(f"buffer_load_dwordx4 {v(Q_X+4*n,4)}, v{Q_XL}, s[12:15], {'s26' if n >= 9 else '0'} offen offset:{128*(n%9)}")
    if OPT.get("fine"): st(k, "p0_xiss")
    k("s_mov_b32 s56, s52", "s_mov_b32 s57, s53"); srd_fill(k, 56, 256)
    k("s_or_b32 s38, s2, s20", "s_cmp_lg_u32 s38, 0", "s_cbranch_scc1 no_nonce")
    k("s_memrealtime s[38:39]", "s_waitcnt lgkmcnt(0)", "s_or_b32 s38, s38, 1", "s_mov_b64 exec, 1", "v_mov_b32 v9, 0", "v_mov_b32 v10, s38", "v_mov_b32 v11, s39")
    k(f"buffer_store_dwordx2 v[10:11], v9, s[56:59], 0 offen {SC}", "s_waitcnt vmcnt(0)", "s_mov_b64 exec, -1")
    k.label("no_nonce")
    k(f"s_add_u32 s{S_FL}, s{S_WS}, {hx(WS_F)}", f"s_addc_u32 s{S_FL+1}, s{S_WS+1}, 0"); srd_fill(k, S_FL, 12 * FT() + 5 * 8192)
    r4, c4 = t3, t4
    k(f"v_bfe_u32 v{r4}, v0, 2, 2", f"v_and_b32 v{c4}, 3, v0")
    k(f"v_mul_u32_u24 v{t5}, 4480, v{q4}", f"v_mul_u32_u24 v{t6}, 544, v{r4}", f"v_add3_u32 v{t5}, v{t5}, v{t6}, {STG_Q}".replace(f", {STG_Q}", ", 0"), f"v_add_u32 v{t5}, {STG_Q}, v{t5}", f"v_lshl_add_u32 v{t5}, v{c4}, 3, v{t5}")
    k("s_cmp_eq_u32 s20, 3", "s_cselect_b32 s40, 4, s20", "s_cselect_b64 vcc, -1, 0", "s_lshl_b32 s40, s40, 5", "s_add_u32 s40, s40, 288", f"v_add_u32 v{TQ}, s40, v{t5}")
    k("s_mul_i32 s40, s20, 72", "s_add_u32 s40, s40, 144", "s_add_u32 s41, s40, 40", "s_cmp_eq_u32 s20, 2", "s_cselect_b32 s40, 384, s40", f"v_add_u32 v{TQ+1}, s40, v{t5}", f"v_add_u32 v{TQ+2}, s41, v{t5}")
    k(f"v_lshl_add_u32 v{t6}, v{c4}, 6, v{t5}", f"v_add_u32 v{t6}, 32, v{t6}", f"v_cndmask_b32 v{TQ+1}, v{TQ+1}, v{t6}, vcc")
    k("s_mul_i32 s40, s20, 36", "s_and_b32 s41, s20, 1", "s_lshl_b32 s41, s41, 2", "s_add_u32 s40, s40, s41", f"v_add_u32 v{TQ+3}, s40, v{t5}", "s_cmp_ge_u32 s20, 2", "s_cselect_b64 vcc, -1, 0", f"v_cndmask_b32 v{TQ+2}, v{TQ+2}, v{TQ+3}, vcc")
    k(f"v_lshrrev_b32 v{t6}, 1, v{q4}", f"v_and_b32 v{t7}, 1, v{q4}", f"v_lshl_add_u32 v{tmp}, v{t7}, 2, v{r4}", f"v_lshl_add_u32 v{tmp}, v{t6}, 4, v{tmp}", f"v_mul_u32_u24 v{tmp}, 160, v{tmp}")
    k(f"v_lshl_add_u32 v{tmp}, v{c4}, 3, v{tmp}", f"v_add_u32 v{TO+1}, {STG_O + 128}, v{tmp}", "s_lshl_b32 s40, s20, 5", f"s_add_u32 s40, s40, {STG_O}", f"v_add_u32 v{TO}, s40, v{tmp}")
    k("s_and_b32 s40, s2, 7", "s_lshl_b32 s40, s40, 2", "s_add_u32 s40, s40, s20", f"s_mul_i32 s40, s40, {72*1024}", f"s_add_u32 s40, s40, {hx(WS_WQ)}")
    k("s_lshr_b32 s42, s2, 3", "s_mul_i32 s41, s42, 3072", "s_add_u32 s42, s42, 54", "s_lshl_b32 s42, s42, 10", "s_cmp_ge_u32 s20, 2", "s_cselect_b64 vcc, -1, 0", f"v_cndmask_b32 v44, v{V_L16}, v{t9}, vcc")
    k(f"s_mul_i32 s43, s34, {90*1024}", f"s_add_u32 s43, s43, {hx(WS_WO)}", "s_mul_i32 s45, s35, 5120", "s_lshl_b32 s46, s20, 10", "s_add_u32 s46, s46, s45", "s_add_u32 s45, s45, 4096", "s_cmp_eq_u32 s20, 0", "s_cselect_b64 vcc, -1, 0", f"v_cndmask_b32 v45, v{t9}, v{V_L16}, vcc")
    k("s_mov_b32 s64, s62", "s_mov_b32 s65, s63", "s_mov_b64 s[72:73], s[48:49]", "s_lshr_b32 s74, s2, 3", "s_and_b32 s75, s2, 7")
    srd_fill(k, 60, D * F * 2); srd_fill(k, 64, D * F * 2)
    k("s_lshl_b32 s76, s75, 2", "s_add_u32 s76, s76, s20", f"s_mul_i32 s76, s76, {WFR*1024}", f"s_add_u32 s76, s76, {hx(WS_W)}"); add64(k, 68, S_WS, 76); srd_fill(k, 68, WFR * 1024)
    l8, l7 = t5, t6
    k(f"v_lshrrev_b32 v{l8}, 3, v0", f"v_and_b32 v{l7}, 7, v0", "s_lshl_b32 s76, s20, 3", f"v_add_u32 v{l8}, s76, v{l8}")
    k("s_and_b32 s76, s20, 1", "s_lshl_b32 s76, s76, 1", f"v_add_u32 v{tmp}, s76, v{t7}", f"v_lshlrev_b32 v{tmp}, 1, v{tmp}", f"v_xor_b32 v{tmp}, v{tmp}, v{l7}", f"v_lshlrev_b32 v{tmp}, 4, v{tmp}")
    k(f"v_mul_u32_u24 v{l8}, 9216, v{l8}", f"v_add_u32 v{V_PD}, v{tmp}, v{l8}")
    k(f"v_lshrrev_b32 v{tmp}, 1, v{r4}", f"v_lshl_add_u32 v{tmp}, v{t7}, 1, v{tmp}", f"v_xor_b32 v{tmp}, s20, v{tmp}", f"v_lshlrev_b32 v{tmp}, 5, v{tmp}", f"v_lshl_add_u32 v{tmp}, v{c4}, 3, v{tmp}", f"v_lshl_add_u32 v{tmp}, v{r4}, 7, v{tmp}")
    k(f"v_lshl_add_u32 v{V_PT0}, v{q4}, 10, v{tmp}")
    st(k, "p0_issued")
    k("s_waitcnt vmcnt(18)")
    if OPT.get("fine"): st(k, "p0_qland")
    k("s_barrier")
    if OPT.get("fine"): st(k, "p0_bar")
    PT = Q_AC
    for ht in range(4):
        for e in range(2):
            k(f"ds_read_b64_tr_b16 {v(PT+4*ht+2*e,2)}, v{TQ+ht} offset:{e*2176}")
    for x in range(2):
        for e in range(2): k(f"ds_read_b64_tr_b16 {v(PT+16+4*x+2*e,2)}, v{TO+x} offset:{e*1280}")
    add64(k, 4, S_WS, 40); k("s_cmp_lt_u32 s2, 144", f"s_cselect_b32 s6, {72*1024}, 0")
    add64(k, 8, S_WS, 43); k("s_cmp_ge_u32 s2, 112", f"s_cselect_b32 s10, {90*1024}, 0")
    k("s_waitcnt lgkmcnt(0)")
    for ht in range(4): k(f"buffer_store_dwordx4 {v(PT+4*ht,4)}, v{44 if ht == 3 else V_L16}, s[4:7], s{41 + ht//3} offen offset:{1024*(ht%3)} {SC}")
    k(f"buffer_store_dwordx4 {v(PT+16,4)}, v{V_L16}, s[8:11], s46 offen {SC}", f"buffer_store_dwordx4 {v(PT+20,4)}, v45, s[8:11], s45 offen {SC}")
    st(k, "p0_prepst")
    q_setup(k)
    LT2 = 164; XR = 178
    ln_stats_norm(k, Q_X, Q_LT, 29); ln_stats_norm(k, Q_X, LT2, 29)
    c8, r8, u1 = 168, 169, 170
    k(f"v_and_b32 v{c8}, 7, v0", f"v_lshrrev_b32 v{r8}, 3, v0", f"v_xor_b32 v{r8}, v{r8}, v{c8}", f"v_lshlrev_b32 v{r8}, 4, v{r8}", f"v_and_b32 v{u1}, 3, v{c8}", f"v_lshl_add_u32 v{r8}, v{u1}, 8, v{r8}",
      f"v_lshrrev_b32 v{c8}, 2, v{c8}", f"v_lshl_add_u32 v{r8}, v{c8}, 12, v{r8}", "s_lshl_b32 s38, s20, 10", f"v_add_u32 v{Q_XW}, s38, v{r8}")
    k(f"v_lshrrev_b32 v{c8}, 4, v0", f"v_xor_b32 v{r8}, v0, v{c8}", f"v_lshlrev_b32 v{XR}, 4, v{r8}", f"v_xor_b32 v{XR+1}, 64, v{XR}", f"v_add_u32 v{XR+2}, 36864, v{XR}", f"v_add_u32 v{XR+3}, 36864, v{XR+1}")
    if OPT.get("fine"): st(k, "p0_qsetup")
    for i in range(18):
        k(f"s_waitcnt vmcnt({17 - i + 6})"); k(ln_acc(Q_X, Q_LT if i < 9 else LT2, 29, i))
    st(k, "p0_stats")
    k("v_mov_b32 v9, 0", "s_mov_b32 s23, 0x10000")
    k.label("non_l")
    k(f"buffer_load_dwordx2 v[10:11], v9, s[56:59], 0 offen {SC}", "s_waitcnt vmcnt(0)", f"v_readfirstlane_b32 s{S_NON}, v10", f"v_readfirstlane_b32 s{S_NON+1}, v11",
      "s_sub_u32 s23, s23, 1", "s_cbranch_scc1 non_d", f"s_cmp_eq_u32 s{S_NON}, 0", "s_cbranch_scc1 non_l", f"s_sub_u32 s24, s{S_NON}, s89", "s_cmp_lt_i32 s24, 0", "s_cbranch_scc1 non_l")
    k.label("non_d")
    publish(k, F_P0, layered=False, idx="phys")
    if OPT.get("fine"): st(k, "p0_pub")
    k("s_lshl_b32 s88, s20, 10")
    for rd in range(4): k(dma_round(rd, STG_F + 8192 * rd))
    if OPT.get("fine"): st(k, "p0_f0")
    for T_ in (Q_LT, LT2):
        k(f"v_add_f32 v{T_}, v{T_}, v{T_+1}", f"v_add_f32 v{T_+2}, v{T_+2}, v{T_+3}")
    for T_ in (Q_LT, LT2): xlane(k, T_, (1, 2, 4)); ln_fin2(k, T_)
    for i in list(range(0, 8)) + list(range(9, 17)) + [8, 17]:
        k(ln_apply(Q_X, Q_LT, i, True, Q_LT if i < 9 else LT2))
        if i == 8: k(f"v_add_u32 v{Q_XW}, 0x10000, v{Q_XW}")
        k(f"ds_write_b128 v{Q_XW}, {v(Q_X+4*i,4)} offset:{(8192*(i%9) if i % 9 < 8 else 0) + 128*(i//9)}")
    st(k, "p0_ln")
    k("s_waitcnt vmcnt(0) lgkmcnt(0)")
    wait(k, ["v_and_b32 v9, 31, v0", "v_min_u32 v9, 17, v9", "v_lshlrev_b32 v9, 3, v9", "s_bfe_u32 s23, s2, 0x30003", "s_add_u32 s23, s23, 112", "v_add_u32 v10, s23, v9", "v_add_u32 v9, s22, v9", "v_cmp_gt_u32 vcc, 32, v0", "s_nop 1", "v_cndmask_b32 v9, v10, v9, vcc", f"v_lshlrev_b32 v9, {FS[0]}, v9"])
    st(k, "p0_flags")
    N0 = int(OPT.get("n0", 12))
    for n in range(N0): k(q_aload(n))
    k("s_mov_b32 s14, 0")
    e1, e2 = int(OPT.get("e1", 17)), int(OPT.get("e2", 17))
    ex = {}
    FD = Q_X + 32
    def f0tr():
        k(f"v_add_u32 v{Q_T}, {STG_F}, v{V_PT0}", f"v_add_u32 v{Q_T+1}, 512, v{Q_T}")
        for rd in range(4):
            k(tr_round(FD + 8 * rd, Q_T, Q_T + 1, 8192 * rd))
            if rd == 1: k("s_waitcnt lgkmcnt(4)")
    ex.setdefault(12, []).append((f0tr, 0))
    for rd in range(4): ex.setdefault(e1 - 3 + rd, []).append((lambda rd=rd: k(st_round(rd, FD + 8 * rd)), 2))
    q_loop(k, N0, list(range(N0)), ex, chunk=False)
    k("s_branch q_epi")

def phase_qkv1(k):
    wgmap(k, int(OPT.get("qmap", 44)))
    q_setup(k)
    q4, tk = Q_T, Q_T + 1
    k("s_lshl_b32 s38, s20, 8", f"v_lshlrev_b32 v{Q_XL}, 10, v{q4}", f"v_lshl_add_u32 v{Q_XL}, v{tk}, 4, v{Q_XL}", f"v_add_u32 v{Q_XL}, s38, v{Q_XL}")
    k(f"s_mul_i32 s38, s21, {TILE}", f"s_add_u32 s38, s38, {hx(WS_XN)}"); add64(k, 8, S_WS, 38); srd_fill(k, 8, TILE)
    k("s_mov_b32 s27, 0", "s_lshl_b32 s38, s20, 10")
    NE = int(OPT.get("qne", 24))
    A1 = int(OPT.get("a1", 8)); assert A1 % 4 == 0
    if A1: k(f"s_mov_b32 s26, {A1 * 1024}")
    for n in range(A1, NE): k(q_aload(n))
    wait(k, tile_flags(F_RED, prev_layer=True), pw=int(OPT.get("qpw", 3)))
    st(k, "q1_flags")
    for i in range(18):
        k(f"s_add_u32 m0, s38, {4096*i}", "s_nop 0" if i == 0 else "s_add_u32 s27, s27, 0x1000", f"buffer_load_dwordx4 v{Q_XL}, s[8:11], s27 offen {SC} lds")
    k("s_waitcnt vmcnt(12)", "s_barrier")
    st(k, "q1_x0")
    q_loop(k, NE, [f"X{i}" for i in range(6, 18)], {}, chunk="dma")

import k_att2 as AT
def phase_att(k):
    A = AT; T = A.V_T; SO = A.SO
    q_fin(k)
    k(f"v_and_b32 v{T}, 31, v0", f"v_lshrrev_b32 v{T+1}, 5, v0")
    bias = [8, 9, 10, 11, 87]
    for i in range(5):
        k(f"s_add_i32 s23, s21, {i-4}", f"s_cmp_lt_i32 s23, 0", f"s_cselect_b32 s{bias[i]}, {A.NEG}, 0", "s_max_i32 s23, s23, 0",
          "s_lshl_b32 s23, s23, 3", "s_add_u32 s23, s23, s22", f"s_mul_i32 s{SO+i}, s23, {KVB}")
    k("s_lshl_b32 s15, s20, 11", f"v_add_u32 v{A.V_KM}, s15, v{V_L16}", f"v_add_u32 v{A.V_KM}, {KV_KM}, v{A.V_KM}")
    k("s_lshl_b32 s25, s20, 8", f"v_lshlrev_b32 v{A.V_KT}, 3, v{T}", f"v_add_u32 v{A.V_KT}, s25, v{A.V_KT}")
    k(f"v_mov_b32 v{T+3}, 0x80000000", f"v_cmp_gt_u32 vcc, 32, v0", f"v_add_u32 v{A.V_KT}, {KV_KT}, v{A.V_KT}", "s_waitcnt lgkmcnt(0)")
    for t in range(2): k(f"v_cndmask_b32 v{A.V_Q1+8*t}, 0, v{A.V_QTT+t}, vcc", f"v_cndmask_b32 v{A.V_Q1+8*t+5}, 0, v{A.V_QTT+t}, vcc")
    k(f"v_lshlrev_b32 v{T+4}, 2, v0", f"v_cndmask_b32 v{A.V_ST}, v{T+3}, v{T+4}, vcc")
    add64(k, 4, S_WS, 3); srd_fill(k, 4, 256 * KVB)
    k(f"v_mov_b32 v{T+9}, 0x3f80", f"v_mov_b32 v{T+8}, 0")
    for t in range(2):
        for p_ in range(2):
            q = A.V_Q1 + 8 * t + 4 * p_
            k(f"v_mov_b32 v{q + 1 - p_}, 0", f"v_cndmask_b32 v{q+2}, 0, v{T+9}, vcc", f"v_mov_b32 v{q+3}, 0")
    for i in range(5): k(f"v_mov_b32 v{T+9}, s{bias[i]}", f"v_accvgpr_write_b32 {a(A.A_K+12*i+3)}, v{T+8}", f"v_accvgpr_write_b32 {a(A.A_K+12*i+2)}, v{T+9}")
    k("s_mul_i32 s25, s20, 18", f"v_add_u32 v{T+4}, s25, v{T}", f"v_cmp_eq_u32 vcc, 18, v{T}", f"v_mov_b32 v{T+5}, 72", "s_nop 0", f"v_cndmask_b32 v{T+4}, v{T+4}, v{T+5}, vcc")
    k(f"v_lshrrev_b32 v{T+5}, 4, v{T+4}", f"v_and_b32 v{T+4}, 15, v{T+4}", f"v_lshlrev_b32 v{T+4}, 4, v{T+4}", f"v_lshl_add_u32 v{T+4}, v{T+5}, 11, v{T+4}", f"v_lshl_add_u32 v{T+4}, v{T+1}, 8, v{T+4}", f"v_add_u32 v{T+4}, {KV_V}, v{T+4}", f"v_cmp_gt_u32 vcc, 19, v{T}")
    k(f"v_lshlrev_b32 v{A.V_D4}, 2, v{T+1}", f"v_sub_u32 v{A.V_D4}, v{T}, v{A.V_D4}", f"v_cndmask_b32 v{A.V_VV}, v{T+3}, v{T+4}, vcc")
    for i in range(16): k(f"v_cmp_le_i32 s[{A.MSK+2*i}:{A.MSK+2*i+1}], {8*(i//4) + i%4}, v{A.V_D4}")
    k(f"v_mov_b32 v{T+9}, 0xffff")
    for d in range(8): k(f"v_cndmask_b32 v{A.V_MK+d}, 0, v{T+9}, s[{A.MSK+4*d}:{A.MSK+4*d+1}]")
    for d in range(8): k(f"v_cndmask_b32 v{A.V_MK+d}, v{A.V_MK+d}, -1, s[{A.MSK+4*d+2}:{A.MSK+4*d+3}]")
    k(f"s_mul_i32 s23, s21, {TILE}", "s_add_u32 s23, s23, s3", f"s_add_u32 s23, s23, {hx(WS_O)}"); add64(k, 16, S_WS, 23); srd_fill(k, 16, TILE)
    k("s_lshl_b32 s88, s22, 13", "s_add_u32 s88, s88, s15")
    k(f"v_lshlrev_b32 v{A.V_SO}, 4, v{T}", f"v_lshl_add_u32 v{A.V_SO}, v{T+1}, 10, v{A.V_SO}")
    k("s_add_u32 s89, s22, 64", "s_lshl_b32 s89, s89, 10", "s_lshl_b32 s23, s20, 8", "s_add_u32 s89, s89, s23")
    for i in range(4): k(f"v_mov_b32 v{A.V_MX+i}, 0xff7fffff")
    k("s_bfe_u32 s23, s2, 0x30003", f"s_mul_i32 s23, s23, {90*1024}", f"s_add_u32 s23, s23, {hx(WS_WO)}"); add64(k, 8, S_WS, 23); srd_fill(k, 8, 90 * 1024)
    st(k, "att_setup")
    wait(k, ["v_min_u32 v9, 4, v0", "s_sub_u32 s23, s21, 4", "v_add_u32 v9, s23, v9", "v_max_i32 v9, 0, v9", "v_lshlrev_b32 v9, 3, v9", "v_add_u32 v9, s22, v9", f"v_lshlrev_b32 v9, {FS[0]}, v9",
             f"s_add_u32 s23, s14, {F_QKV*FT()}", "v_add_u32 v9, s23, v9"], pw=3)
    st(k, "att_flags")
    kk = Kern("t")
    if int(OPT.get("jt", 1)):
        kk("s_mov_b32 s26, 0", "s_mov_b32 s27, 0x00020000", "s_mov_b64 s[24:25], s[60:61]", "s_mov_b64 s[12:13], s[60:61]", "s_cmp_lg_u32 s3, 0", "s_cbranch_scc1 att_notouch")
        kk("s_lshl_b32 s76, s20, 5", "s_add_u32 s76, s76, s74", "s_add_u32 s76, s76, 128", "s_sub_u32 s77, s76, 162", "s_lshl_b32 s77, s77, 1", "s_cmp_lt_u32 s76, 162", "s_cselect_b32 s76, s76, s77",
          f"s_cselect_b32 s77, 9216, 1152", f"s_cselect_b32 s80, 1152, {576*1152}", f"s_cselect_b32 s81, 0, {32*1152}", "s_cselect_b64 s[24:25], s[60:61], s[72:73]", "s_cselect_b64 s[12:13], s[64:65], s[72:73]")
        kk(div18(76, 78, 79), "s_lshl_b32 s79, s79, 5", "s_mul_i32 s79, s79, s77", "s_lshl_b32 s78, s78, 7", "s_add_u32 s78, s78, s79", "s_mul_i32 s79, s75, s80", "s_add_u32 s78, s78, s79", "s_add_u32 s81, s81, s78")
        kk(f"s_mov_b32 s26, {hx(D*F*2)}", "att_notouch:", "v_and_b32 v9, 31, v0", "v_mul_u32_u24 v9, s77, v9")
        kk("buffer_load_dword v10, v9, s[24:27], s78 offen", "s_mov_b64 s[24:25], s[12:13]", "buffer_load_dword v11, v9, s[24:27], s81 offen")
    OOL.append(A.body(k, st, SC, kk.L))
def wo_dma(k):
    o = [["s_mul_i32 s26, s20, 23552", f"s_add_u32 s27, s26, {WOIMG}"]]
    for g in range(6):
        o.append(["s_mov_b32 m0, s27", "s_add_u32 s27, s27, 0x1000", f"buffer_load_dwordx4 v{V_L16}, s[8:11], s26 offen {SC} lds"])
        for i in range(1, 4 if g < 5 else 3): o.append(f"buffer_load_dwordx4 v{V_L16}, s[8:11], s26 offen offset:{1024*i} {SC} lds")
        o[-1] = [o[-1], "s_add_u32 s26, s26, 0x1000"]
    o[-2] = ["s_cmp_eq_u32 s20, 3", "s_cbranch_scc1 wo_dsk", o[-2]]; o[-1] = [o[-1][0], "wo_dsk:"]
    return o

W_XL, W_A0, W_A1, W_RL, W_SP, W_S8, W_T, W_AC, W_R, W_AF, W_B = 2, 3, 4, 5, 6, 7, 16, 36, 56, 184, 108
def phase_wo(k):
    wgmap(k, 8)
    T = W_T; q4, tk, tok, n, lam, c, t1, t2 = range(T, T + 8)
    k(f"v_lshrrev_b32 v{q4}, 4, v0", f"v_and_b32 v{tk}, 15, v0", "s_lshl_b32 s38, s20, 4", f"v_add_u32 v{tok}, s38, v{tk}")
    k(f"v_lshlrev_b32 v{W_XL}, 10, v{q4}", f"v_lshl_add_u32 v8, v{tok}, 2, v{W_XL}", f"v_lshl_add_u32 v{W_XL}, v{tok}, 4, v{W_XL}")
    k(f"s_mul_i32 s39, s21, {TILE}", "s_add_u32 s41, s39, s3", f"s_add_u32 s42, s41, {hx(WS_O)}"); add64(k, 4, S_WS, 42); srd_fill(k, 4, TILE)
    k(f"s_add_u32 s42, s{S_WS}, {hx(WS_X2)}", f"s_addc_u32 s43, s{S_WS+1}, 0", "s_cmp_eq_u32 s3, 0", f"s_cselect_b32 s8, s{S_X}, s42", f"s_cselect_b32 s9, s{S_X+1}, s43", "s_cselect_b64 vcc, -1, 0", "s_cselect_b32 s36, 32, 2048")
    k("s_mul_i32 s46, s22, 9216", "s_mul_i32 s37, s22, 144", "s_cselect_b32 s45, s37, s46")
    k("s_add_u32 s8, s8, s39", "s_addc_u32 s9, s9, 0"); srd_fill(k, 8, TILE)
    k(f"v_mul_u32_u24 v{t1}, 1152, v{tok}", f"v_lshl_add_u32 v{t1}, v{q4}, 3, v{t1}")
    k(f"v_lshrrev_b32 v{n}, 1, v{q4}", f"v_and_b32 v{lam}, 1, v{q4}")
    k(f"v_lshlrev_b32 v{t2}, 4, v{tok}", f"v_lshl_add_u32 v{c}, v{lam}, 3, v{t2}", f"v_lshl_add_u32 v{c}, v{n}, 10, v{c}")
    k(f"v_cndmask_b32 v{W_RL}, v{c}, v{t1}, vcc")
    k("s_mov_b64 s[48:49], s[8:9]", "s_mov_b64 s[50:51], s[10:11]")
    k(f"v_add_u32 v{W_A0}, {WOIMG}, v{V_L16}", f"v_add_u32 v{W_A1}, {WOIMG + 61440}, v{V_L16}")
    k(f"v_lshl_add_u32 v{t1}, v{lam}, 1, v{n}", f"v_lshl_add_u32 v{W_SP}, v{t1}, 10, v{t2}")
    k(f"v_lshl_add_u32 v{t1}, v{q4}, 3, v{t2}", f"v_add_u32 v{t1}, 8192, v{t1}", f"v_mov_b32 v{c}, 0x80000000", f"v_cmp_gt_u32 vcc, 2, v{q4}", "s_nop 1", f"v_cndmask_b32 v{W_S8}, v{c}, v{t1}, vcc")
    k(f"s_add_u32 s42, s41, {hx(WS_X1)}"); add64(k, 16, S_WS, 42); srd_fill(k, 16, TILE)
    k("s_add_u32 s47, s46, 4096", "s_mov_b32 s40, 0", "s_mov_b32 s29, 0x3f803f80", f"v_cndmask_b32 v{W_T+12}, 0, -1, vcc")
    k(f"v_lshlrev_b32 v{t1}, 3, v{tok}", f"v_cmp_gt_u32 vcc, 16, v0", "s_lshl_b32 s42, s21, 3", "s_add_u32 s42, s42, s22", "s_lshl_b32 s42, s42, 9", "s_add_u32 s42, s42, s3", f"s_add_u32 s42, s42, {hx(WS_SS)}", f"v_cndmask_b32 v{W_T+13}, v{c}, v{t1}, vcc")
    add64(k, 8, S_WS, 42); srd_fill(k, 8, 512)
    def aread(ks): return [f"ds_read_b128 {v(W_AF + 20*(ks%3) + 4*ht, 4)}, v{W_A1 if ks >= 12 else W_A0} offset:{(5*ks+ht)*1024 - (61440 if ks >= 12 else 0)}" for ht in range(5)]
    st(k, "wo_setup")
    k("s_waitcnt vmcnt(0)")
    kk = Kern("t"); wgmap(kk, int(OPT.get("map", 2)), 34, 35)
    kk.L = [x.replace("s44", "s30").replace("s45", "s31").replace("s46", "s32").replace("s47", "s33") for x in kk.L]
    wait(k, tile_flags(F_ATT) + kk.L + ["v_and_b32 v10, 31, v0", "s_lshl_b32 s35, s35, 5", "v_add_u32 v10, s35, v10", "v_lshlrev_b32 v10, 3, v10", f"v_add_u32 v10, {F_PF*FT()}, v10",
                               "v_cmp_gt_u32 vcc, 32, v0", "s_nop 1", "v_cndmask_b32 v9, v10, v9, vcc"])
    st(k, "wo_flags")
    for i in range(18):
        if i < 16: k(f"buffer_load_dwordx4 {v(W_B+4*i,4)}, v{W_XL}, s[4:7], s40 offen {SC}")
        else:
            for d in range(4): k(f"buffer_load_dword v{W_B+4*i+d}, v8, s[4:7], s40 offen offset:{256*d} {SC}")
        if i < 17: k("s_add_u32 s40, s40, 0x1000")
    k(aread(0), aread(1))
    RS = int(OPT.get("rs", 0))
    for ks in range(18):
        k(f"s_waitcnt vmcnt({(15 - ks + 8 if ks < 16 else 4 * (17 - ks)) + max(0, min(5, ks - RS))}) lgkmcnt({5 if ks < 17 else 0})")
        ar = aread(ks + 2) if ks < 16 else []
        for ht in range(5):
            ac = v(W_AC + 4 * ht, 4)
            k(f"v_mfma_f32_16x16x32_bf16 {ac}, {v(W_AF + 20*(ks%3) + 4*ht, 4)}, {v(W_B+4*ks,4)}, {'0' if ks == 0 else ac}")
            if ar: k(ar[ht])
        if RS <= ks < RS + 5: k(f"buffer_load_dwordx2 {v(W_R+2*(ks-RS),2)}, v{W_RL}, s[48:51], s45 offen {SC}", "s_add_u32 s45, s45, s36")
    k.label("wo_epi")
    st(k, "wo_mfma")
    k("s_waitcnt vmcnt(0)")
    for ht in range(5):
        for d in range(2):
            k(f"v_lshlrev_b32 v{T+4*(ht&1)+2*d}, 16, v{W_R+2*ht+d}", f"v_and_b32 v{T+4*(ht&1)+2*d+1}, 0xffff0000, v{W_R+2*ht+d}")
        if ht == 0: k("s_nop 3")
        for i in range(4): k(f"v_add_f32 v{W_AC+4*ht+i}, v{W_AC+4*ht+i}, v{T+4*(ht&1)+i}")
    P = W_B
    WO_STATS(k)
    for ht in range(0):
        for d in range(2): k(f"v_cvt_pk_bf16_f32 v{P+2*ht+d}, v{W_AC+4*ht+2*d}, v{W_AC+4*ht+2*d+1}")
    R1 = int(OPT.get("r1", 12))
    if R1:
        kk = Kern("t"); wgmap(kk, int(OPT.get("map", 2)), 34, 35)
        k([x.replace("s44", "s30").replace("s45", "s31").replace("s46", "s32").replace("s47", "s33") for x in kk.L])
        k("s_lshl_b32 s24, s35, 2", "s_add_u32 s24, s24, s20", f"s_mul_i32 s24, s24, {WFR*1024}", f"s_add_u32 s24, s24, {hx(WS_W)}"); add64(k, 4, S_WS, 24); srd_fill(k, 4, WFR * 1024)
        k("s_mov_b32 s23, 0"); F4.preload(k, 0, R1)
    publish(k, F_WO, vm=R1)
    st(k, "wo_pub")

def WO_STATS(k):
    P = W_B; T = W_T + 8
    for ht in range(5):
        for d in range(2): k(f"v_cvt_pk_bf16_f32 v{P+2*ht+d}, v{W_AC+4*ht+2*d}, v{W_AC+4*ht+2*d+1}")
    k(f"v_and_b32 v{P+12}, v{P+8}, v{W_T+12}", f"v_and_b32 v{P+13}, v{P+9}, v{W_T+12}", f"v_mov_b32 v{T}, 0", f"v_mov_b32 v{T+2}, 0")
    for pr in range(2):
        for d in range(2): k(f"v_permlane16_swap_b32 v{P+4*pr+d}, v{P+4*pr+2+d}")
    k(f"buffer_store_dwordx4 {v(P,4)}, v{W_SP}, s[16:19], s46 offen {SC}", f"buffer_store_dwordx4 {v(P+4,4)}, v{W_SP}, s[16:19], s47 offen {SC}")
    k(f"buffer_store_dwordx2 {v(P+8,2)}, v{W_S8}, s[16:19], s46 offen {SC}")
    for x in list(range(P, P + 8)) + [P + 12, P + 13]:
        k(f"v_dot2c_f32_bf16 v{T}, s29, v{x}", f"v_dot2c_f32_bf16 v{T+2}, v{x}, v{x}")
    k("s_nop 2")
    xlane(k, T, (16, 32))
    k(f"v_mov_b32 v{T+1}, v{T+2}", f"buffer_store_dwordx2 {v(T,2)}, v{W_T+13}, s[8:11], 0 offen {SC}")
def phase_ffn(k):
    F_ = FF; mp = int(OPT.get("map", 2)); late = int(OPT.get("late", 8))
    wgmap(k, mp)
    k("s_mov_b32 s29, 0x3f803f80")
    t0, t1, t2, t5, t6 = 64, 65, 66, 67, 68
    k(f"v_lshrrev_b32 v{t0}, 4, v0", f"v_and_b32 v{t1}, 15, v0", "s_lshl_b32 s38, s20, 8")
    k(f"v_lshlrev_b32 v{t2}, 10, v{t0}", f"v_lshl_add_u32 v{t2}, v{t1}, 4, v{t2}", f"v_add_u32 v{F_.V_XL}, s38, v{t2}")
    k(f"s_mul_i32 s39, s21, {TILE}", "s_add_u32 s39, s39, s3", f"s_add_u32 s39, s39, {hx(WS_X1)}"); add64(k, 8, S_WS, 39); srd_fill(k, 8, TILE)
    k("s_lshl_b32 s24, s22, 2", "s_add_u32 s24, s24, s20", f"s_mul_i32 s24, s24, {WFR*1024}", f"s_add_u32 s24, s24, {hx(WS_W)}"); add64(k, 4, S_WS, 24); srd_fill(k, 4, WFR * 1024)
    k("s_lshl_b32 s41, s22, 5", "s_add_u32 s41, s41, s21", f"s_mul_i32 s41, s41, {TILE}", "s_add_u32 s41, s41, s3", f"s_add_u32 s41, s41, {hx(WS_P)}"); add64(k, 16, S_WS, 41); srd_fill(k, 16, TILE)
    k("s_mov_b32 s27, 0", "s_mov_b32 s40, 0")
    k(f"v_and_b32 v{t6}, 1, v{t0}", f"v_lshrrev_b32 v{t5}, 1, v{t0}", f"v_add_u32 v{F_.V_XR1}, 36864, v{V_L16}")
    k("s_lshr_b32 s41, s20, 1", "s_lshl_b32 s41, s41, 12", "s_and_b32 s42, s20, 1", "s_lshl_b32 s42, s42, 3", "s_add_u32 s41, s41, s42")
    k(f"v_add_u32 v{F_.V_HW}, s41, v{V_L16}")
    k("s_lshl_b32 s41, s20, 10", f"v_add_u32 v{F_.V_XW}, s41, v{V_L16}")
    k(f"v_lshlrev_b32 v{F_.V_ST}, 10, v{t5}", f"v_lshl_add_u32 v{F_.V_ST}, v{t6}, 8, v{F_.V_ST}", f"v_lshl_add_u32 v{F_.V_ST}, v{t1}, 4, v{F_.V_ST}")
    k("s_lshl_b32 s41, s20, 11", f"v_add_u32 v{F_.V_ST}, s41, v{F_.V_ST}", f"v_mov_b32 v{F_.V_C2}, {fl(F_.C2)}")
    k("s_cmp_eq_u32 s3, 0", "s_cselect_b32 s31, 0, 0x4000", "s_lshl_b32 s30, s21, 9", "s_add_u32 s31, s31, s30", f"s_add_u32 s31, s31, {12*FT()}")
    k("s_lshl_b32 s30, s22, 2", "s_add_u32 s30, s30, s20", "s_lshl_b32 s30, s30, 3", "s_add_u32 s30, s30, s31")
    k("s_lshl_b32 s42, s21, 12", "s_add_u32 s42, s42, s3", f"s_add_u32 s42, s42, {hx(WS_SS)}"); add64(k, 32, S_WS, 42); srd_fill(k, 32, 4096)
    k("s_lshl_b32 s42, s20, 7", f"v_lshlrev_b32 v{t2}, 3, v{t1}", f"v_lshl_add_u32 v{t2}, v{t0}, 10, v{t2}", f"v_add_u32 v{t2}, s42, v{t2}")
    R1 = int(OPT.get("r1", 12)); assert R1 % 3 == 0
    k(f"s_mov_b32 s23, {R1 * 1024}")
    F4.preload(k, R1)
    k("s_mov_b32 s26, s23")
    k("s_cmp_lg_u32 s3, 0", "s_cbranch_scc1 ffn_nojs")
    js = jit_setup()
    k([x for x in js if x.startswith("s_") and "vcc" not in x and not x.startswith("s_lshl_b32 s76")])
    for n_, rd in enumerate(range(4, 8)):
        g_ = dma_round(rd, 0); pre = g_[0][:-3]; o2 = "s78" if rd <= 4 else "s77"
        k(pre, f"s_mov_b32 s{44+3*n_}, s78", f"s_mov_b32 s{45+3*n_}, {o2}", f"s_add_u32 s76, s74, {32*rd}", f"s_lshl_b32 s{46+3*n_}, s76, 11")
        if rd == 5 and int(OPT.get("ro", 0)):
            k("s_cmp_eq_u32 s76, 170", "s_cselect_b32 s79, 0x4000, 0", "s_add_u32 s49, s49, s79", "s_sub_u32 s79, s76, 171", "s_cmp_lt_u32 s79, 8", "s_cselect_b32 s79, 0x800, 0", "s_sub_u32 s49, s49, s79")
    k("s_cmp_lt_u32 s76, 243", f"s_cselect_b32 s56, {WFR*1024}, 0")
    k.label("ffn_nojs")
    wait(k, tile_flags(F_WO))
    st(k, "ffn_flags")
    if int(OPT.get("touch", 0)):
        per = 18 * mp * (1 if int(OPT["touch"]) == 1 else 1)
        k(f"s_mul_i32 s41, s44, {per}", "v_add_u32 v11, s41, v0", "v_lshlrev_b32 v11, 7, v11", f"v_cmp_gt_u32 vcc, {per}, v0", "v_mov_b32 v5, 0x80000000", f"s_mov_b32 s49, {int(OPT.get('tch0', 3)) * TILE}", "v_cndmask_b32 v11, v5, v11, vcc")
    k("s_mov_b32 s23, s26")
    LT = F_.V_LT
    k(f"buffer_load_dwordx2 {v(LT+8,2)}, v{t2}, s[32:35], 0 offen {SC}", f"buffer_load_dwordx2 {v(LT+10,2)}, v{t2}, s[32:35], 0 offen offset:512 {SC}")
    XS = int(OPT.get("xs", 8))
    def xl(i): return [f"buffer_load_dwordx4 {v(F_.V_X+4*i,4)}, v{F_.V_XL}, s[8:11], s40 offen {SC}"] + (["s_add_u32 s40, s40, 0x1000"] if i < 17 else [])
    for i in range(XS): k(xl(i))
    k(f"s_waitcnt vmcnt({XS})", f"v_add_f32 v{LT}, v{LT+8}, v{LT+10}", f"v_add_f32 v{LT+2}, v{LT+9}, v{LT+11}")
    kk = Kern("t"); xlane(kk, LT, (16, 32)); ln_fin2(kk, LT)
    k(merge(kk.L, [xl(i) for i in range(XS, 18)]))
    st(k, "ffn_stats")
    def lnq(i):
        kk = Kern("t"); kk(ln_apply(F_.V_X, F_.V_LT, i, pk=(i < 6))); ln_write(kk, i, F_.V_X, F_.V_XW); return kk.L
    F4.group0(k, lnq)
    st(k, "ffn_g0")
    PG = int(OPT.get("peel", 0))
    k(f"s_mov_b32 s25, {4 - PG}", "s_mov_b32 s26, 99", "s_cmp_lg_u32 s3, 0", "s_cbranch_scc1 ffn_loopA_odd")
    JD = 200
    x1 = {2: [x for x in jit_setup() if x.startswith("v_") or "vcc" in x or x.startswith(("s_lshl_b32 s76", "s_cmp_lt_u32 s74"))]}
    import re as _re
    for n_, rd in enumerate(range(4, 8)):
        g_ = dma_round(rd, STG_J + 8192 * n_)
        a0 = g_[0][-3:]; a1 = g_[1]
        x1[4 * (6 + 7 * n_)] = [a0[0]]; x1[4 * (6 + 7 * n_) + 1] = [a0[2].replace("s78 offen", f"s{44+3*n_} offen")]
        x1[4 * (9 + 7 * n_)] = [a1[0]]; x1[4 * (9 + 7 * n_) + 1] = [_re.sub(r"s7[78] offen", f"s{45+3*n_} offen", a1[2])]
    F4.groupA(k, 1, x1)
    x2 = {4 * 13 + 1: ["s_barrier"]}
    for n_, rd in enumerate(range(4, 8)):
        sel = 0 if rd == 4 else (2 if rd == 5 else 1)
        for e_, op in enumerate(tr_round(JD + 8 * n_, J_T0 + sel, J_T1 + sel, 8192 * n_)): x2[4 * (14 + 2 * n_ + e_ // 2) + 2 * (e_ % 2)] = [op]
        g_ = st_round(rd, JD + 8 * n_)
        x2[4 * (24 + 3 * n_) + 1] = (["s_waitcnt lgkmcnt(0)"] if n_ == 0 else []) + (["s_mov_b32 s70, s56"] if rd == 7 else []) + [g_[0][-1].replace("s78", f"s{46+3*n_}")]
        x2[4 * (25 + 3 * n_) + 1] = [g_[1][0].replace("s78", f"s{46+3*n_}")]
    F4.groupA(k, 2, x2)
    x3 = {4 * 18 + 1: ["s_lshl_b32 s76, s2, 2", "s_add_u32 s76, s76, s20", "s_lshl_b32 s76, s76, 3", f"s_add_u32 s76, s76, {FPJ()}", "s_mov_b64 exec, 1", "v_mov_b32 v9, 0", f"v_mov_b32 v10, s{S_NON}", f"v_mov_b32 v11, s{S_NON+1}",
                        f"buffer_store_dwordx2 v[10:11], v9, s[{S_FL}:{S_FL+3}], s76 offen {SC}", "s_mov_b64 exec, -1"]}
    F4.groupA(k, 3, x3)
    k(f"s_mov_b32 s25, {2 - PG}", f"s_mov_b32 s26, {2 - PG}", "v_and_b32 v9, 31, v0", "v_lshlrev_b32 v9, 3, v9", "v_add_u32 v9, s22, v9", "v_lshlrev_b32 v9, 2, v9", "v_add_u32 v9, s20, v9", "v_lshlrev_b32 v9, 3, v9", f"v_add_u32 v9, {FPJ()}, v9")
    k.label("ffn_loopA")
    F4.groupA(k, 2)
    k.label("ffn_loopA_odd")
    pl = f"buffer_load_dwordx2 v[10:11], v9, s[{S_FL}:{S_FL+3}], 0 offen {SC}"
    xo = {1: ["s_cmp_lg_u32 s25, s26", "s_cbranch_scc1 jit_p0", pl + " ; COND", "jit_p0:"],
          4 * 22 + 1: ["s_cmp_lg_u32 s25, s26", "s_cbranch_scc1 jit_p1", "s_mov_b32 s76, 0x10000", "jit_l:", f"v_cmp_ne_u64 vcc, s[{S_NON}:{S_NON+1}], v[10:11]", "s_sub_u32 s76, s76, 1", "s_cselect_b64 s[78:79], 0, -1", "s_nop 1",
                       "s_and_b64 vcc, vcc, s[78:79]", "s_cbranch_vccz jit_p1", pl + " ; COND", "s_waitcnt vmcnt(0)", "s_branch jit_l", "jit_p1:"]}
    F4.groupA(k, 1, xo)
    k("s_sub_u32 s25, s25, 1", "s_cmp_lg_u32 s25, 0", "s_cbranch_scc1 ffn_loopA")
    if PG: F4.groupA(k, 6); F4.groupA(k, 7)
    k(f"s_mul_i32 s50, s20, {17*1024}", f"s_add_u32 s50, s50, {F4.RES}", f"v_add_u32 v5, s50, v{V_L16}", "s_sub_u32 s50, s50, 4096")
    F4.groupA(k, 8)
    st(k, "ffn_A")
    hook = ["s_mov_b64 exec, 1", "v_mov_b32 v9, 0", f"v_mov_b32 v10, s{S_NON}", f"v_mov_b32 v11, s{S_NON+1}",
            f"buffer_store_dwordx2 v[10:11], v9, s[{S_FL}:{S_FL+3}], s30 offen {SC}", "s_mov_b64 exec, -1"]
    hook2 = [x.replace("s30 offen", "s30 offen offset:256") for x in hook] if int(OPT.get("mid2", 1)) else None
    F4.phaseB(k, OPT.get("bsc", SC), hook, st if OPT.get("bst") else None, hook2)
    st(k, "ffn_B")

def phase_red(k):
    R = 16; ACC = 100
    pm4, pm1, rm4, rm1, t0, t1 = 2, 3, 4, 5, 6, 7
    k("s_lshl_b32 s23, s22, 3", f"v_and_b32 v{t0}, 7, v0", f"v_add_u32 v{t0}, s23, v{t0}")
    k(f"v_lshrrev_b32 v{t1}, 3, v0", "s_lshl_b32 s24, s20, 3", f"v_add_u32 v{t1}, s24, v{t1}")
    k(f"v_lshlrev_b32 v{pm4}, 4, v{t0}", f"v_lshl_add_u32 v{pm4}, v{t1}, 10, v{pm4}", f"v_mul_u32_u24 v{rm4}, 1152, v{t0}", f"v_lshl_add_u32 v{rm4}, v{t1}, 4, v{rm4}")
    k(f"v_lshrrev_b32 v{t1}, 5, v0", "s_lshl_b32 s24, s20, 1", f"v_add_u32 v{t1}, s24, v{t1}", f"v_add_u32 v8, s23, v{t1}", "v_bfe_u32 v9, v0, 2, 3", "v_bfe_u32 v10, v0, 3, 2", "v_and_b32 v11, 3, v0")
    k("s_cmp_eq_u32 s3, 0", "s_cselect_b64 vcc, -1, 0", f"v_cndmask_b32 v{t0}, v8, v{t0}, vcc", f"v_cndmask_b32 v{t1}, v9, v{t1}, vcc", "v_cndmask_b32 v10, v11, v10, vcc", f"v_add_u32 v{t1}, 64, v{t1}")
    k(f"v_lshlrev_b32 v{pm1}, 4, v{t0}", f"v_lshl_add_u32 v{pm1}, v{t1}, 10, v{pm1}", f"v_mul_u32_u24 v{rm1}, 1152, v{t0}", f"v_lshl_add_u32 v{rm1}, v{t1}, 4, v{rm1}")
    k(f"v_lshl_add_u32 v{pm1}, v10, 2, v{pm1}", f"v_lshl_add_u32 v{rm1}, v10, 2, v{rm1}")
    k(f"s_mul_i32 s24, s21, {TILE}", "s_add_u32 s25, s24, s3"); add64(k, 4, S_WS, 25); srd_fill(k, 4, LSTR - 31 * TILE)
    k(f"s_add_u32 s8, s4, {hx(WS_X2)}", "s_addc_u32 s9, s5, 0"); add64(k, 26, S_OUT, 24)
    k("s_cmp_eq_u32 s3, 0", "s_cselect_b32 s8, s8, s26", "s_cselect_b32 s9, s9, s27", "s_cselect_b32 s28, 0x8000, 512", "s_cselect_b64 vcc, -1, 0"); srd_fill(k, 8, TILE)
    k(f"v_cndmask_b32 v{rm4}, v{rm4}, v{pm4}, vcc", f"v_cndmask_b32 v{rm1}, v{rm1}, v{pm1}, vcc")
    ACCB = 110
    def ld0(j, srd=4): return [f"buffer_load_dwordx4 {v(R+10*j,4)}, v{pm4}, s[{srd}:{srd+3}], s25 offen {SC}"]
    def ld1(j): return ["s_add_u32 s26, s25, 0x8000", f"buffer_load_dwordx4 {v(R+10*j+4,4)}, v{pm4}, s[4:7], s26 offen {SC}"]
    def ld2(j): return [f"buffer_load_dword v{R+10*j+8}, v{pm1}, s[4:7], s25 offen {SC}"]
    def over(fn):
        k(f"s_mov_b32 s25, {hx(WS_P)}")
        for j in range(8):
            k(fn(j))
            if j < 7: k(f"s_add_u32 s25, s25, {hx(ACT)}")
    k("v_lshlrev_b32 v9, 3, v0", f"buffer_load_dwordx2 v[10:11], v9, s[{S_FL}:{S_FL+3}], s31 offen {SC}")
    k("s_mov_b32 s32, 0x00003f80", "s_mov_b32 s33, 0x3f800000")
    for i in range(18): k(f"v_mov_b32 v{ACCB+i}, 0")
    k("s_waitcnt vmcnt(0)", f"v_cmp_ne_u64 vcc, s[{S_NON}:{S_NON+1}], v[10:11]", "s_nop 3", "s_cmp_eq_u32 vcc_lo, 0", "s_cselect_b32 s34, 1, 0", "s_cmp_eq_u32 vcc_hi, 0", "s_cselect_b32 s35, 1, 0", "s_cmp_eq_u32 s20, 3", "s_cselect_b32 s35, 0, s35")
    RP = int(OPT.get("rp", 2))
    if RP == 1: k("s_cselect_b32 s34, 0, s34")
    publish(k, F_FFN)
    k("s_cmp_eq_u32 s34, 0", "s_cbranch_scc1 red_noearly")
    over(ld0)
    k.label("red_noearly")
    k(f"s_mov_b32 s25, {hx(WS_X1)}"); k(ld0(8), ld1(8), ld2(8))
    k("s_cmp_eq_u32 s35, 0", "s_cbranch_scc1 red_noearly1")
    over(ld1)
    k.label("red_noearly1")
    wait(k, tile_flags(F_FFN), pw=3 if RP else 0)
    st(k, "red_flags")
    over(ld2)
    k("s_cmp_lg_u32 s35, 0", "s_cbranch_scc1 red_haveearly1")
    over(ld1)
    k.label("red_haveearly1")
    k("s_cmp_lg_u32 s34, 0", "s_cbranch_scc1 red_haveearly")
    over(ld0)
    k("s_waitcnt vmcnt(0)")
    k.label("red_haveearly")
    k("s_waitcnt vmcnt(16)")
    def acc(j, ds):
        for d in ds: k(f"v_dot2c_f32_bf16 v{ACCB+2*d}, s32, v{R+10*j+d}", f"v_dot2c_f32_bf16 v{ACCB+2*d+1}, s33, v{R+10*j+d}")
    k("s_cmp_eq_u32 s35, 0", "s_cbranch_scc1 red_w", "s_waitcnt vmcnt(8)")
    k.label("red_w")
    for j in range(9): acc(j, range(4))
    acc(8, range(4, 9))
    k("s_waitcnt vmcnt(0)")
    for j in range(8): acc(j, range(4, 9))
    k("s_nop 2")
    for d in range(9): k(f"v_cvt_pk_bf16_f32 v{R+d}, v{ACCB+2*d}, v{ACCB+2*d+1}")
    k(f"buffer_store_dwordx4 {v(R,4)}, v{rm4}, s[8:11], 0 offen {SC}", f"buffer_store_dwordx4 {v(R+4,4)}, v{rm4}, s[8:11], s28 offen {SC}", f"buffer_store_dword v{R+8}, v{rm1}, s[8:11], 0 offen {SC}")

def red_ln(k):
    R = 16; ACCB = 110; T = 130
    k(f"v_mov_b32 v{T}, 0", f"v_mov_b32 v{T+2}, 0", "s_mov_b32 s29, 0x3f803f80")
    for d in range(9): k(f"v_dot2c_f32_bf16 v{T}, s29, v{R+d}", f"v_dot2c_f32_bf16 v{T+2}, v{R+d}, v{R+d}")
    k("s_nop 1")
    xlane(k, T, (8, 16, 32))
    k(f"v_and_b32 v{T+8}, 7, v0", f"v_lshlrev_b32 v{T+8}, 3, v{T+8}", f"v_add_u32 v{T+8}, {TILE}, v{T+8}", "s_lshl_b32 s23, s20, 6", f"v_add_u32 v{T+9}, s23, v{T+8}", f"v_mov_b32 v{T+1}, v{T+2}")
    k(f"ds_write_b64 v{T+9}, {v(T,2)}", "s_waitcnt lgkmcnt(0)", "s_barrier")
    for w_ in range(4): k(f"ds_read_b64 {v(T+10+2*w_,2)}, v{T+8} offset:{64*w_}")
    k(f"s_add_u32 s8, s4, {hx(WS_XN)}", "s_addc_u32 s9, s5, 0")
    for d in range(9): k(f"v_lshlrev_b32 v{ACCB+2*d}, 16, v{R+d}", f"v_and_b32 v{ACCB+2*d+1}, 0xffff0000, v{R+d}")
    k("s_waitcnt lgkmcnt(0)")
    k(f"v_add_f32 v{T}, v{T+10}, v{T+12}", f"v_add_f32 v{T+2}, v{T+11}, v{T+13}", f"v_add_f32 v{T+14}, v{T+14}, v{T+16}", f"v_add_f32 v{T+15}, v{T+15}, v{T+17}", f"v_add_f32 v{T}, v{T}, v{T+14}", f"v_add_f32 v{T+2}, v{T+2}, v{T+15}")
    ln_fin2(k, T)
    for d in range(9): k(f"v_pk_fma_f32 {v(ACCB+2*d,2)}, {v(ACCB+2*d,2)}, {v(T+4,2)}, {v(T+6,2)} op_sel_hi:[1,0,0]")
    for d in range(9): k(f"v_cvt_pk_bf16_f32 v{R+12+d}, v{ACCB+2*d}, v{ACCB+2*d+1}")
    k(f"buffer_store_dwordx4 {v(R+12,4)}, v4, s[8:11], 0 offen {SC}", f"buffer_store_dwordx4 {v(R+16,4)}, v4, s[8:11], s28 offen {SC}", f"buffer_store_dword v{R+20}, v5, s[8:11], 0 offen {SC}")
def gen():
    k = Kern("mega")
    NST[0] = 0; NAMES.clear(); OOL.clear(); LBL[0] = 0; FS[0] = int(OPT.get("fs", 6))
    FF.STAMP = 0; FF.WG = int(OPT.get("wg", 1)); FF.TOUCH = 0
    st0 = len(k.L)
    startup(k)
    k.label("layer1")
    phase_qkv1(k)
    k.label("q_epi")
    q_epi(k)
    publish(k, F_QKV, extra=F_PF)
    st(k, "qkv_pub")
    phase_att(k)
    wd = wo_dma(k); n1 = int(OPT.get("wd1", 8))
    k(wd[:n1 + 1])
    publish(k, F_ATT, vm=n1, keep=True)
    k(wd[n1 + 1:])
    st(k, "att_pub")
    phase_wo(k)
    phase_ffn(k)
    phase_red(k)
    k("s_cmp_lg_u32 s3, 0", "s_cbranch_scc1 mega_end")
    red_ln(k)
    A1 = int(OPT.get("a1", 8))
    if A1:
        kk = Kern("t"); wgmap(kk, int(OPT.get("qmap", 44)), 34, 35); k(kk.L)
        k("s_lshl_b32 s38, s35, 2", "s_add_u32 s38, s38, s20", f"s_mul_i32 s38, s38, {72*1024}", f"s_add_u32 s38, s38, {hx(WS_WQ)}"); add64(k, 4, S_WS, 38); srd_fill(k, 4, 72 * 1024)
        k("s_mov_b32 s26, 0", "s_cmp_ge_u32 s20, 2", "s_cselect_b64 vcc, -1, 0", "v_mov_b32 v161, 0x80000000", f"v_cndmask_b32 v{Q_A2}, v{V_L16}, v161, vcc")
        for n in range(A1): k(q_aload(n))
    publish(k, F_RED, vm=A1)
    st(k, "red_pub")
    if STAMP[0]: dump(k, 0)
    k(f"s_mov_b32 s3, {hx(LSTR)}", f"s_mov_b32 s14, {5*FT()}", "s_branch layer1")
    k.label("mega_end")
    if STAMP[0]:
        k("s_waitcnt vmcnt(0)"); st(k, "end"); dump(k, 1)
    k("s_endpgm")
    for fn in OOL: fn(k)
    k.label("mega_done")
    k("s_endpgm")
    return k
def dump(k, L):
    LBL[0] += 1
    k("s_cmp_lg_u32 s20, 0", f"s_cbranch_scc1 dmp{LBL[0]}", f"s_lshl_b32 s23, s2, 9", f"s_add_u32 s23, s23, {hx(WS_ST + 256*L)}"); add64(k, 4, S_WS, 23); srd_fill(k, 4, 256)
    k("v_lshlrev_b32 v9, 2, v0", f"buffer_store_dword v{V_STAMP}, v9, s[4:7], 0 offen", "s_waitcnt vmcnt(0)")
    k.label(f"dmp{LBL[0]}")
class JP(list):
    def __init__(s): super().__init__([0, 1, 1, 1, 1, 1])
def trips(w):
    d = {"ffn_loopA": [0, 1, 1, 0] if int(OPT.get("peel", 0)) else [1, 0, 1, 1, 1, 0], "ffn_loopA_odd": [0, 1], "jit_p0": [0, 1, 1, 1, 1, 1], "jit_p1": JP(), "ffn_loopB": [1, 1, 0] * 2, "mega_end": [0, 1], "ffn_nomid": [1, 0, 1] * 2, "red_noearly": [0, 1], "red_haveearly": [1, 0], "red_noearly1": [w & 1, 1], "red_haveearly1": [1 - (w & 1), 0], "red_w": [w & 1, 1], "att_notouch": [0, 0, 1] if w == 1 else [0, 1], "att_full": [1, 0, 0] if w == 1 else 0, "ffn_nojs": [0, 1], "att_sk0": [0, 1], "att_sk1": [0, 1], "att_sk2": [0, 1], "q_nof": [0, 1], "att_noprep2": [0, 1], "ffn_noring": [1, 0], "ffn_ring2": [0, 1], "wo_l1": [0, 1],
         "q_p0b": [0, 1], "q_p1b": [0, 1], "q_p0d": 9 if w >= 2 else 0, "q_p1d": 9 if w >= 2 else 0, "q_epi2": 9 if w >= 2 else 0, "q_epi3": 9 if w == 3 else 0, "no_cpf": 0 if w == 3 else 9, "no_touch": 0 if w == 3 else 9, "q_noscale": 9 if w else 0, "no_nonce": 9 if w else 0}
    for i in range(17): d[f"res_sk{i}"] = [0, 1]
    d["wo_dsk"] = 9 if w == 3 else 0
    for i in range(1, 40):
        for n in (f"pub{i}", f"wt{i}_d", f"dmp{i}"): d[n] = 9 if w else 0
        d[f"pub{i}_x"] = [0, 1]
        d[f"wt{i}_d"] = 9 if w != POLLW.get(f"wt{i}", 0) else 0
    return d
```

```python
from common import *
import k_ffn3 as FF
import k_ffn4 as F4
LDS = 163840
SC = "sc1"
S_WS, S_X, S_OUT, S_NON, S_FL = 96, 98, 100, 90, 92
S_FO = 19
S_FO = 75 + 0
V_L16, V_PD, V_PT0, V_PT1, V_STAMP = 1, 12, 13, 14, 15
F_P0, F_QKV, F_ATT, F_WO, F_FFN, F_RED, F_PF = 0, 1, 2, 3, 4, 5, 11
STG_Q, STG_O, STG_F, STG_J = 73728, 91648, 96768, 73728
FS = [3]
def FT(): return 256 << FS[0]
def FPJ(): return 12 * FT() + 4 * 8192
F_PJ = 0
WOIMG = 0
NST = [0]
def st(k, name=""):
    if STAMP[0]:
        k("s_memtime s[0:1]" if STAMP[0] == 2 else "s_memrealtime s[0:1]", "s_waitcnt lgkmcnt(0)", f"v_writelane_b32 v{V_STAMP}, s0, {NST[0]}" + f" ; {name}")
        NAMES.append(name); NST[0] += 1
NAMES = []
OOL = []
def add64(k, d, base, off_s):
    k(f"s_add_u32 s{d}, s{base}, s{off_s}", f"s_addc_u32 s{d+1}, s{base+1}, 0")
LBL = [0]
POLLW = {}
def publish(k, fid, layered=True, vm=0, idx="task", extra=None, keep=False):
    LBL[0] += 1; L = f"pub{LBL[0]}"
    k(f"s_waitcnt vmcnt({vm})", "s_barrier", "s_cmp_lg_u32 s20, 0", f"s_cbranch_scc1 {L}")
    if idx == "task": k("s_lshl_b32 s23, s21, 3", "s_add_u32 s23, s23, s22", f"s_lshl_b32 s23, s23, {FS[0]}")
    else: k(f"s_lshl_b32 s23, s2, {FS[0]}")
    k(f"s_add_u32 s23, s23, {fid*FT()}")
    if layered: k("s_add_u32 s23, s23, s14")
    k("s_mov_b64 exec, 1", "v_mov_b32 v9, 0", f"v_mov_b32 v10, s{S_NON}", f"v_mov_b32 v11, s{S_NON+1}")
    k(f"buffer_store_dwordx2 v[10:11], v9, s[{S_FL}:{S_FL+3}], s23 offen {SC}")
    if extra is not None:
        k("s_cmp_lg_u32 s3, 0", f"s_cbranch_scc1 {L}_x")
        k("s_lshl_b32 s23, s75, 5", "s_add_u32 s23, s23, s74", "s_lshl_b32 s23, s23, 3", f"s_add_u32 s23, s23, {extra*FT()}", f"buffer_store_dwordx2 v[10:11], v9, s[{S_FL}:{S_FL+3}], s23 offen {SC}")
        k.label(f"{L}_x")
    k("s_mov_b64 exec, -1")
    k.label(L)
def wait(k, setup, pw=0):
    LBL[0] += 1; L = f"wt{LBL[0]}"; POLLW[L] = pw
    k(f"s_cmp_lg_u32 s20, {pw}", f"s_cbranch_scc1 {L}_d")
    k(setup, "s_mov_b32 s23, 0x10000")
    if int(OPT.get("pre", 0)): k(f"s_sleep {OPT['pre']}")
    k.label(f"{L}_l")
    if int(OPT.get("slp", 0)): k(f"s_sleep {OPT['slp']}")
    k(f"buffer_load_dwordx2 v[10:11], v9, s[{S_FL}:{S_FL+3}], 0 offen {SC}", "s_waitcnt vmcnt(0)")
    k(f"v_cmp_ne_u64 vcc, s[{S_NON}:{S_NON+1}], v[10:11]", "s_sub_u32 s23, s23, 1", "s_cselect_b64 s[24:25], 0, -1", "s_nop 1", "s_and_b64 vcc, vcc, s[24:25]", f"s_cbranch_vccnz {L}_l")
    k.label(f"{L}_d")
    k("s_barrier")
def tile_flags(fid, prev_layer=False):
    o = ["v_and_b32 v9, 7, v0", "s_lshl_b32 s23, s21, 3", "v_add_u32 v9, s23, v9", f"v_lshlrev_b32 v9, {FS[0]}, v9", f"s_add_u32 s23, s14, {hx(fid*FT() - (5*FT() if prev_layer else 0))}", "v_add_u32 v9, s23, v9"]
    return o

def div18(su, sq, sr): return [f"s_mul_i32 s{sq}, s{su}, 3641", f"s_lshr_b32 s{sq}, s{sq}, 16", f"s_mul_i32 s{sr}, s{sq}, 18", f"s_sub_u32 s{sr}, s{su}, s{sr}"]
def soffA(rd): return [f"s_add_u32 s76, s74, {32*rd}"] + div18(76, 78, 79) + [f"s_mul_i32 s79, s79, {32*9216}", "s_lshl_b32 s78, s78, 7", "s_add_u32 s78, s78, s79", "s_mul_i32 s79, s75, 1152", "s_add_u32 s78, s78, s79"]
def soffB(rd, d): return [f"s_add_u32 s76, s74, {hx(32*rd - 162)}", "s_lshl_b32 s76, s76, 1"] + div18(76, d, 79) + [f"s_mul_i32 s79, s79, {32*1152}", f"s_lshl_b32 s{d}, s{d}, 7", f"s_add_u32 s{d}, s{d}, s79", f"s_mul_i32 s79, s75, {576*1152}", f"s_add_u32 s{d}, s{d}, s79"]
J_PD, J_T0, J_T1 = 240, 243, 246
def dma_round(rd, lds):
    if rd <= 4: pre, s1, s2, o2, vd = soffA(rd), 60, 64, 78, V_PD
    elif rd == 5:
        pre = soffB(5, 77) + soffA(5) + ["s_cmp_lt_u32 s74, 2", "s_cselect_b32 s78, s78, s77", f"s_cselect_b32 s79, 0, {32*1152}", "s_add_u32 s77, s78, s79"]
        s1, s2, o2, vd = 80, 84, 77, J_PD + 2
    else: pre, s1, s2, o2, vd = soffB(rd, 78) + [f"s_add_u32 s77, s78, {32*1152}"], 36, 36, 77, J_PD + 1
    return [pre + [f"s_add_u32 m0, s88, {lds}", "s_nop 0", f"buffer_load_dwordx4 v{vd}, s[{s1}:{s1+3}], s78 offen lds"],
            [f"s_add_u32 m0, s88, {lds + 4096}", "s_nop 0", f"buffer_load_dwordx4 v{vd}, s[{s2}:{s2+3}], s{o2} offen lds"]]
def tr_round(T, t0, t1, off): return [f"ds_read_b64_tr_b16 {v(T + 4*u + 2*e, 2)}, v{(t0, t1)[e]} offset:{off + 4096*u}" for u in range(2) for e in range(2)]
def st_round(rd, T):
    pre = [f"s_add_u32 s76, s74, {32*rd}", "s_lshl_b32 s78, s76, 11"]
    if rd == 7: pre += ["s_cmp_lt_u32 s76, 243", f"s_cselect_b32 s70, {WFR*1024}, 0"]
    return [pre + [f"buffer_store_dwordx4 {v(T,4)}, v{V_L16}, s[68:71], s78 offen {SC}"], [f"buffer_store_dwordx4 {v(T+4,4)}, v{V_L16}, s[68:71], s78 offen offset:1024 {SC}"]]
def jit_setup():
    q4, r4, c4, t, l8 = 250, 251, 252, 253, 254
    o = [f"v_lshrrev_b32 v{q4}, 4, v0", f"v_bfe_u32 v{r4}, v0, 2, 2", f"v_and_b32 v{c4}, 7, v0", f"v_lshlrev_b32 v{t}, 1, v{q4}", f"v_xor_b32 v{t}, v{t}, v{c4}", f"v_lshlrev_b32 v{t}, 4, v{t}",
         f"v_lshrrev_b32 v{l8}, 3, v0", "s_lshl_b32 s76, s20, 3", f"v_add_u32 v{l8}, s76, v{l8}", f"v_mul_u32_u24 v{l8}, 1152, v{l8}", f"v_add_u32 v{J_PD+1}, v{t}, v{l8}",
         f"v_add_u32 v{J_T0}, {STG_J}, v{V_PT0}", f"v_add_u32 v{J_T1}, 512, v{J_T0}", f"v_lshlrev_b32 v{t}, 9, v{q4}", f"v_sub_u32 v{J_T0+1}, v{J_T0}, v{t}", f"v_add_u32 v{J_T1+1}, 2048, v{J_T0+1}",
         "s_cmp_lt_u32 s74, 2", "s_cselect_b64 vcc, -1, 0", "s_cselect_b64 s[80:81], s[60:61], s[72:73]", "s_cselect_b64 s[84:85], s[64:65], s[72:73]", "s_mov_b64 s[36:37], s[72:73]",
         f"v_cndmask_b32 v{J_PD+2}, v{J_PD+1}, v{V_PD}, vcc", f"v_cndmask_b32 v{J_T0+2}, v{J_T0+1}, v{J_T0}, vcc", f"v_cndmask_b32 v{J_T1+2}, v{J_T1+1}, v{J_T1}, vcc", "s_lshl_b32 s88, s20, 10"]
    for r_ in (36, 80, 84): o += [f"s_mov_b32 s{r_+2}, {hx(D*F*2)}", f"s_mov_b32 s{r_+3}, 0x00020000"]
    return o

Q_XL, Q_SQ, Q_S8, Q_STL, Q_TS, Q_BR1, Q_XW = 2, 3, 4, 5, 6, 7, 8
Q_A2 = 160
Q_VW, Q_VR, Q_VA = 172, 173, 174
Q_AC, Q_B, Q_LT, Q_T, Q_X = 48, 112, 144, 161, 184
BREG = FF.BREG
def q_aload(n, srd=4, so=26):
    o = [f"buffer_load_dwordx4 {BREG(n)}, v{Q_A2 if n >= 54 else V_L16}, s[{srd}:{srd+3}], s{so} offen" + (f" offset:{(n%4)*1024}" if n % 4 else "") + f" {SC}"]
    if n % 4 == 3: o.append(f"s_add_u32 s{so}, s{so}, 0x1000")
    return o
def q_setup(k):
    q4, tk, r1, r2, t5, t6 = range(Q_T, Q_T + 6)
    k(f"v_lshrrev_b32 v{q4}, 4, v0", f"v_and_b32 v{tk}, 15, v0", f"v_and_b32 v{r1}, 1, v{q4}", f"v_lshrrev_b32 v{r2}, 1, v{q4}")
    k("s_lshl_b32 s38, s20, 10", f"v_add_u32 v{Q_XW}, s38, v{V_L16}", f"v_add_u32 v{Q_BR1}, 36864, v{V_L16}")
    k(f"v_lshlrev_b32 v{t5}, 4, v{tk}", f"v_lshl_add_u32 v{t6}, v{r2}, 9, v{t5}", f"v_lshl_add_u32 v{Q_SQ}, v{r1}, 11, v{t6}")
    k("s_lshl_b32 s40, s20, 12", f"s_add_u32 s40, s40, {KV_KM}", "s_add_u32 s41, s40, 0x400")
    k("s_mul_i32 s39, s20, 4608", f"s_add_u32 s39, s39, {STG_Q}")
    k(f"v_mul_u32_u24 v{t6}, 72, v{tk}", f"v_lshl_add_u32 v{t6}, v{q4}, 3, v{t6}", f"v_add_u32 v{Q_VW}, s39, v{t6}")
    k(f"v_bfe_u32 v{t6}, v0, 2, 2", f"v_lshl_add_u32 v{t6}, v{r1}, 2, v{t6}", f"v_lshl_add_u32 v{t6}, v{r2}, 4, v{t6}", f"v_mul_u32_u24 v{t6}, 72, v{t6}", f"v_and_b32 v{Q_VR}, 3, v0", f"v_lshl_add_u32 v{t6}, v{Q_VR}, 3, v{t6}", f"v_add_u32 v{Q_VR}, s39, v{t6}")
    k(f"v_lshlrev_b32 v{t6}, 4, v{tk}", f"v_lshl_add_u32 v{t6}, v{r1}, 8, v{t6}", f"v_lshl_add_u32 v{t6}, v{r2}, 9, v{t6}")
    k("s_cmp_eq_u32 s20, 3", "s_cselect_b32 s39, 4, s20", "s_lshl_b32 s39, s39, 11", f"s_add_u32 s39, s39, {KV_V}", f"v_add_u32 v{Q_VA}, s39, v{t6}")
    k(f"v_lshlrev_b32 v{t6}, 9, v{r1}", f"v_lshl_add_u32 v{t6}, v{tk}, 3, v{t6}", f"v_add_u32 v{t6}, {KV_KT}, v{t6}")
    k(f"v_mov_b32 v{r1}, 0x80000000", f"v_cmp_gt_u32 vcc, 32, v0", f"v_mov_b32 v{r2}, {fl(QSCALE)}", "s_nop 0", f"v_cndmask_b32 v{Q_TS}, 1.0, v{r2}, vcc", f"v_cndmask_b32 v{Q_STL}, v{t6}, v{r1}, vcc")
    k("s_cmp_ge_u32 s20, 2", "s_cselect_b64 vcc, -1, 0", f"v_cndmask_b32 v{Q_A2}, v{V_L16}, v{r1}, vcc")
    k("s_lshl_b32 s38, s22, 2", "s_add_u32 s38, s38, s20", f"s_mul_i32 s38, s38, {72*1024}", f"s_add_u32 s38, s38, {hx(WS_WQ)}"); add64(k, 4, S_WS, 38); srd_fill(k, 4, 72 * 1024)
    k("s_lshl_b32 s38, s21, 3", "s_add_u32 s38, s38, s22", f"s_mul_i32 s38, s38, {KVB}", "s_add_u32 s38, s38, s3"); add64(k, 16, S_WS, 38); srd_fill(k, 16, KVB)
    k("s_mov_b32 s26, 0", "s_mov_b32 s29, 0x3f803f80", f"s_mov_b32 s28, {fl(QSCALE)}")
def ln_write(k, i, X, XW):
    off = i * 4096
    if i == 16: k(f"v_add_u32 v{XW}, 0x10000, v{XW}")
    k(f"ds_write_b128 v{XW}, {v(X+4*i,4)} offset:{off if off < 65536 else off - 65536}")
def q_bread(ks, sw=False): return [f"ds_read_b128 {v(Q_B + 16*(ks&1) + 4*tb, 4)}, v{(178 + (ks & 1) + (2 if ks >= 9 else 0)) if sw else (Q_BR1 if ks >= 9 else V_L16)} offset:{((4*ks+tb) % 36)*1024}" for tb in range(4)]
def q_lnq(i, pk):
    kk = Kern("t"); kk(ln_apply(Q_X, Q_LT, i, pk=pk)); ln_write(kk, i, Q_X, Q_XW); return kk.L
def q_loop(k, na, q, extra, chunk=True):
    k(q_bread(0, chunk is False))
    for ks in range(18):
        need = 3 * ks + 2 if ks < 17 else 71
        while need >= na: k(q_aload(na)); q.append(na); na += 1
        if chunk == "dma" and ks in (5, 11) and f"X{ks+6}" in q and (need not in q or q.index(need) < q.index(f"X{ks+6}")): need = f"X{ks+6}"
        if need in q:
            w = len(q) - 1 - q.index(need); q = q[q.index(need) + 1:]
            k(f"s_waitcnt vmcnt({min(63, w)}) lgkmcnt(0)")
        else: k("s_waitcnt lgkmcnt(0)")
        if ks in (5, 11) and chunk: k("s_barrier")
        br = q_bread((ks + 1) % 18, chunk is False)
        for tb in range(4):
            for ht in range(3):
                ac = v(Q_AC + 16*ht + 4*tb, 4)
                k(f"v_mfma_f32_16x16x32_bf16 {ac}, {BREG(3*ks+ht)}, {v(Q_B + 16*(ks&1) + 4*tb, 4)}, {'0' if ks == 0 else ac}")
                if tb < 2 and ht in (0, 1): k(br[2 * tb + ht])
                if ht == 2 and na < 72 and len(q) < 44 and (tb < 3 or QR4): k(q_aload(na)); q.append(na); na += 1
        for fn, nv in extra.get(ks, []):
            fn(); q += ["x"] * nv
QR4 = True
def q_pass(k, sw, a_, b_):
    def rd(ks): return [x.replace(v(Q_B + 16*(ks&1) + 4*tb, 4), v(Q_B + 16*(ks%3) + 4*tb, 4)) for tb, x in enumerate(q_bread(ks, sw))]
    if a_ == 0: k(rd(1))
    for ks in range(a_, b_):
        k(f"s_waitcnt lgkmcnt({4 if ks < 17 else 0})")
        br = rd(ks + 2) if ks < 16 else []
        for tb in range(4):
            ac = v(Q_AC + 32 + 4*tb, 4)
            k(f"v_mfma_f32_16x16x32_bf16 {ac}, {BREG(54+ks)}, {v(Q_B + 16*(ks%3) + 4*tb, 4)}, {'0' if ks == 0 else ac}")
            if br: k(br[tb])
def q_part(k, n, a_, b_):
    k("s_cmp_ge_u32 s20, 2", f"s_cbranch_scc1 q_p{n}d", "s_cmp_lg_u32 s3, 0", f"s_cbranch_scc1 q_p{n}b")
    q_pass(k, True, a_, b_)
    k(f"s_branch q_p{n}d")
    k.label(f"q_p{n}b")
    q_pass(k, False, a_, b_)
    k.label(f"q_p{n}d")
def q_epi(k):
    st(k, "qkv_mfma")
    P = Q_X; RS = 72
    def vtile(ht):
        for tb in range(4):
            O = P + 8 * ht + 2 * tb
            for d in range(2): k(f"v_cvt_pk_bf16_f32 v{O+d}, v{Q_AC+16*ht+4*tb+2*d}, v{Q_AC+16*ht+4*tb+2*d+1}")
            k(f"ds_write_b64 v{Q_VW}, {v(O,2)} offset:{tb*16*RS + 32*ht}")
    def vread(ht):
        for pr in range(2):
            for e in range(2): k(f"ds_read_b64_tr_b16 {v(Q_AC+8*ht+4*pr+2*e,2)}, v{Q_VR} offset:{pr*32*RS + e*8*RS + 32*ht}")
    def vstore(ht):
        for pr in range(2): k(f"buffer_store_dwordx4 {v(Q_AC+8*ht+4*pr,4)}, v{Q_VA}, s[16:19], 0 offen offset:{ht*2048 + pr*1024} {SC}")
    k("s_nop 5")
    vtile(0)
    k("s_cmp_ge_u32 s20, 2", "s_cbranch_scc1 q_epi2")
    for tb in range(4):
        O = P + 16 + 4 * tb
        for h in range(2):
            for d in range(2): k(f"v_cvt_pk_bf16_f32 v{O+2*h+d}, v{Q_AC+16*(1+h)+4*tb+2*d}, v{Q_AC+16*(1+h)+4*tb+2*d+1}")
    k("s_waitcnt lgkmcnt(0)")
    vread(0)
    for tb in range(4):
        for d in range(2): k(f"v_permlane16_swap_b32 v{P+16+4*tb+d}, v{P+16+4*tb+2+d}")
    for tb in range(4): k(f"buffer_store_dwordx4 {v(P+16+4*tb,4)}, v{Q_SQ}, s[16:19], s{40 + (tb>>1)} offen offset:{256*(tb&1)} {SC}")
    k("s_waitcnt lgkmcnt(0)")
    vstore(0)
    k("s_branch q_epid")
    k.label("q_epi2")
    k("s_cmp_eq_u32 s20, 3", "s_cbranch_scc1 q_epi3")
    vtile(1)
    k("s_waitcnt lgkmcnt(0)")
    vread(0); vread(1)
    k("s_waitcnt lgkmcnt(4)"); vstore(0); k("s_waitcnt lgkmcnt(0)"); vstore(1)
    k("s_branch q_epid")
    k.label("q_epi3")
    for tb in range(4):
        for i in range(4): k(f"v_mul_f32 v{Q_AC+16+4*tb+i}, v{Q_TS}, v{Q_AC+16+4*tb+i}")
    for a_ in range(2):
        for h in range(2):
            for x in range(2): k(f"v_cvt_pk_bf16_f32 v{P+16+4*a_+2*h+x}, v{Q_AC+16+4*(a_+2*x)+2*h}, v{Q_AC+16+4*(a_+2*x)+2*h+1}")
    vtile(1)
    k("s_waitcnt lgkmcnt(4)")
    vread(0)
    k(f"v_mov_b32 v{P+24}, 0x3f803f80", f"v_and_b32 v{P+25}, 8, v0", f"v_cmp_eq_u32 vcc, 0, v{P+25}")
    for a_ in range(2):
        for h in range(2): k(f"buffer_store_dwordx2 {v(P+16+4*a_+2*h,2)}, v{Q_STL}, s[16:19], 0 offen offset:{256*h + 128*a_} {SC}")
    k("s_waitcnt lgkmcnt(0)")
    for i in range(8): k(f"v_cndmask_b32 v{Q_AC+i}, v{P+24}, v{Q_AC+i}, vcc")
    vstore(0)
    k.label("q_epid")
    st(k, "qkv_st")
    q_part(k, 0, 0, int(OPT.get("qh", 14)))
    st(k, "qkv_q")
def q_fin(k):
    import k_att2 as A
    if int(OPT.get("qh", 14)) < 18:
        q_part(k, 1, int(OPT.get("qh", 14)), 18); k("s_nop 7")
    for i in range(16): k(f"v_mul_f32 v{Q_AC+32+i}, s28, v{Q_AC+32+i}")
    for tb in range(4):
        for d in range(2): k(f"v_cvt_pk_bf16_f32 v{A.V_QM+2*tb+d}, v{Q_AC+32+4*tb+2*d}, v{Q_AC+32+4*tb+2*d+1}")
    k("v_and_b32 v9, 31, v0", "v_mul_u32_u24 v9, 72, v9", "s_lshl_b32 s23, s20, 2", f"s_add_u32 s23, s23, {STG_Q + 3*4608 + 32}", "v_add_u32 v9, s23, v9")
    k(f"ds_read_b32 v{A.V_QTT}, v9", f"ds_read_b32 v{A.V_QTT+1}, v9 offset:{32*72}")
    for t in range(2):
        for d in range(2): k(f"v_permlane16_swap_b32 v{A.V_QM+4*t+d}, v{A.V_QM+4*t+2+d}")

def startup(k):
    k("s_cmp_ge_u32 s2, 256", "s_cbranch_scc1 mega_done")
    k("s_memrealtime s[56:57]")
    k(f"s_load_dwordx4 s[28:31], s[0:1], 0", f"s_load_dwordx2 s[32:33], s[0:1], {A_WO*8}", f"s_load_dwordx4 s[60:63], s[0:1], {A_WG*8}",
      f"s_load_dwordx4 s[48:51], s[0:1], {A_WD*8}", f"s_load_dwordx4 s[52:55], s[0:1], {A_DBG*8}")
    k("v_lshrrev_b32 v1, 6, v0", "v_and_b32 v0, 63, v0", "v_readfirstlane_b32 s20, v1", f"v_lshlrev_b32 v{V_L16}, 4, v0", "s_mov_b32 s3, 0")
    if STAMP[0]: k(f"v_mov_b32 v{V_STAMP}, 0")
    if int(OPT.get("cpf", 1)):
        k("s_cmp_lg_u32 s20, 3", "s_cbranch_scc1 no_cpf", "s_getpc_b64 s[34:35]")
        k.label("cpf_base")
        k("s_lshr_b32 s36, s2, 3", "s_mul_i32 s36, s36, 18", "v_add_u32 v4, s36, v0", f"v_and_b32 v4, 1023, v4", "v_lshlrev_b32 v4, 7, v4", "v_mov_b32 v7, s35")
        k("v_min_u32 v6, mega_done-cpf_base, v4", "v_add_co_u32 v2, vcc, s34, v6", "s_nop 1", "v_addc_co_u32 v3, vcc, 0, v7, vcc", "global_load_dword v5, v[2:3], off ; WAWOK")
        k.label("no_cpf")
    wgmap(k, int(OPT.get("qmap", 44)))
    T = 16
    q4, tk, tok, t3, t4, t5, t6, t7, tmp, t9 = range(T, T + 10)
    DQ, DO, TQ, TO = 32, 36, 38, 42
    k(f"v_lshrrev_b32 v{q4}, 4, v0", f"v_and_b32 v{tk}, 15, v0", "s_lshl_b32 s38, s20, 4", f"v_add_u32 v{tok}, s38, v{tk}")
    k(f"v_lshrrev_b32 v{t3}, 3, v0", f"v_add_u32 v{t3}, s38, v{t3}", f"v_mul_u32_u24 v{Q_XL}, 1152, v{t3}", f"v_and_b32 v{t3}, 7, v0", f"v_lshl_add_u32 v{Q_XL}, v{t3}, 4, v{Q_XL}", "s_movk_i32 s26, 9216")
    hi, c, u, h, col = t3, t4, t5, t6, t7
    k(f"v_lshrrev_b32 v{hi}, 5, v0", f"v_and_b32 v{c}, 31, v0", f"v_lshlrev_b32 v{tmp}, 1, v{hi}", f"v_sub_u32 v{c}, v{c}, v{tmp}")
    k(f"v_mul_u32_u24 v{u}, 57, v{c}", f"v_lshrrev_b32 v{u}, 9, v{u}", f"v_mul_u32_u24 v{u}, 1008, v{u}", f"v_lshl_add_u32 v{col}, v{c}, 4, v{u}")
    k(f"v_mul_u32_u24 v{tmp}, 3456, v{hi}", f"s_mul_i32 s42, s20, {8*3456}", f"v_add3_u32 v{col}, v{col}, v{tmp}, s42")
    k(f"v_mov_b32 v{t9}, 0x80000000", f"v_cmp_gt_u32 vcc, 27, v{c}", "s_nop 1", f"v_cndmask_b32 v{DQ}, v{t9}, v{col}, vcc")
    for i in range(1, 4): k(f"v_add_u32 v{DQ+i}, {i*(6912-1088)}, v{DQ}")
    k("s_sub_u32 s34, s2, 112", "s_lshr_b32 s35, s34, 3", "s_and_b32 s34, s34, 7", "s_movk_i32 s40, 6554")
    n_, lam, cc, t1, t2 = t3, t4, t5, t6, t7
    for x in range(2):
        if x == 0: k("s_lshl_b32 s41, s20, 6", f"v_add_u32 v{n_}, s41, v0")
        else: k(f"v_add_u32 v{n_}, 256, v0")
        k(f"v_mul_u32_u24 v{lam}, s40, v{n_}", f"v_lshrrev_b32 v{lam}, 16, v{lam}", f"v_mul_u32_u24 v{cc}, 10, v{lam}", f"v_sub_u32 v{cc}, v{n_}, v{cc}")
        k(f"v_lshrrev_b32 v{t1}, 4, v{lam}", f"v_lshl_add_u32 v{n_}, v{t1}, 1, v{lam}")
        k(f"v_bfe_u32 v{t2}, v{lam}, 2, 1", f"v_lshl_add_u32 v{t1}, v{t1}, 1, v{t2}", f"v_mul_u32_u24 v{t1}, 72, v{t1}")
        k(f"v_bfe_u32 v{t2}, v{lam}, 3, 1", f"v_mul_u32_u24 v{t2}, 36, v{t2}", f"v_add3_u32 v{t1}, v{t1}, v{t2}, 16", f"v_and_b32 v{t2}, 1, v{lam}", f"v_add_u32 v{t1}, v{t1}, v{t2}", f"v_bfe_u32 v{t2}, v{lam}, 1, 1", f"v_mul_u32_u24 v{t2}, 18, v{t2}", f"v_add_u32 v{t1}, v{t1}, v{t2}")
        k("s_cmp_lt_u32 s35, 16", "s_cselect_b64 vcc, -1, 0", f"v_cndmask_b32 v{t1}, v{t1}, v{n_}, vcc")
        k(f"v_mul_u32_u24 v{t1}, 1152, v{t1}", f"v_lshl_add_u32 v{t1}, v{cc}, 4, v{t1}", f"v_cmp_gt_u32 vcc, 9, v{cc}", "s_nop 1", f"v_cndmask_b32 v{DO+x}, v{t9}, v{t1}, vcc")
    k("s_cmp_eq_u32 s20, 0", "s_cselect_b64 vcc, -1, 0", f"v_cndmask_b32 v{DO+1}, v{t9}, v{DO+1}, vcc")
    k(f"s_mul_i32 s36, s35, {36*1152}", "s_sub_u32 s37, s35, 16", f"s_mul_i32 s37, s37, {288*1152}", "s_cmp_lt_u32 s35, 16", "s_cselect_b32 s36, s36, s37", "s_mul_i32 s37, s34, 144", "s_add_u32 s36, s36, s37")
    k("s_and_b32 s37, s2, 7", "s_mul_i32 s37, s37, 144", "s_lshr_b32 s39, s2, 3", f"s_mul_i32 s39, s39, {32*3456}", "s_add_u32 s37, s37, s39")
    srd_fill(k, 12, TILE)
    k(f"s_mul_i32 s39, s21, {TILE}")
    k("s_waitcnt lgkmcnt(0)")
    if STAMP[0]:
        k(f"v_writelane_b32 v{V_STAMP}, s56, 0"); NAMES.append("entry"); NST[0] += 1
    k("s_sub_u32 s89, s56, 5000")
    st(k, "kernarg")
    k(f"s_mov_b32 s{S_WS}, s54", f"s_mov_b32 s{S_WS+1}, s55", f"s_mov_b32 s{S_X}, s28", f"s_mov_b32 s{S_X+1}, s29", f"s_mov_b32 s{S_OUT}, s50", f"s_mov_b32 s{S_OUT+1}, s51")
    k("s_mov_b32 s4, s30", "s_mov_b32 s5, s31", "s_cmp_lt_u32 s2, 144", f"s_cselect_b32 s6, {D*3*D*2}, 0", "s_mov_b32 s7, 0x00020000")
    k("s_mov_b32 s8, s32", "s_mov_b32 s9, s33", "s_cmp_ge_u32 s2, 112", f"s_cselect_b32 s10, {D*D*2}, 0", "s_mov_b32 s11, 0x00020000")
    k("s_mul_i32 s40, s20, 4480", f"s_add_u32 m0, s40, {STG_Q}", "s_nop 0")
    for i in range(4): k(f"buffer_load_dwordx4 v{DQ+i}, s[4:7], s37 offen offset:{1088*i} lds")
    k("s_lshl_b32 s40, s20, 10", f"s_add_u32 m0, s40, {STG_O}", "s_nop 0", f"buffer_load_dwordx4 v{DO}, s[8:11], s36 offen lds")
    k("s_cmp_eq_u32 s20, 0", f"s_cselect_b32 m0, {STG_O + 4096}, 145920", "s_nop 0", f"buffer_load_dwordx4 v{DO+1}, s[8:11], s36 offen lds")
    if OPT.get("fine"): st(k, "p0_dmaq")
    add64(k, 12, S_X, 39)
    for n in range(18): k(f"buffer_load_dwordx4 {v(Q_X+4*n,4)}, v{Q_XL}, s[12:15], {'s26' if n >= 9 else '0'} offen offset:{128*(n%9)}")
    if OPT.get("fine"): st(k, "p0_xiss")
    k("s_mov_b32 s56, s52", "s_mov_b32 s57, s53"); srd_fill(k, 56, 256)
    k("s_or_b32 s38, s2, s20", "s_cmp_lg_u32 s38, 0", "s_cbranch_scc1 no_nonce")
    k("s_memrealtime s[38:39]", "s_waitcnt lgkmcnt(0)", "s_or_b32 s38, s38, 1", "s_mov_b64 exec, 1", "v_mov_b32 v9, 0", "v_mov_b32 v10, s38", "v_mov_b32 v11, s39")
    k(f"buffer_store_dwordx2 v[10:11], v9, s[56:59], 0 offen {SC}", "s_waitcnt vmcnt(0)", "s_mov_b64 exec, -1")
    k.label("no_nonce")
    k(f"s_add_u32 s{S_FL}, s{S_WS}, {hx(WS_F)}", f"s_addc_u32 s{S_FL+1}, s{S_WS+1}, 0"); srd_fill(k, S_FL, 12 * FT() + 5 * 8192)
    r4, c4 = t3, t4
    k(f"v_bfe_u32 v{r4}, v0, 2, 2", f"v_and_b32 v{c4}, 3, v0")
    k(f"v_mul_u32_u24 v{t5}, 4480, v{q4}", f"v_mul_u32_u24 v{t6}, 544, v{r4}", f"v_add3_u32 v{t5}, v{t5}, v{t6}, {STG_Q}".replace(f", {STG_Q}", ", 0"), f"v_add_u32 v{t5}, {STG_Q}, v{t5}", f"v_lshl_add_u32 v{t5}, v{c4}, 3, v{t5}")
    k("s_cmp_eq_u32 s20, 3", "s_cselect_b32 s40, 4, s20", "s_cselect_b64 vcc, -1, 0", "s_lshl_b32 s40, s40, 5", "s_add_u32 s40, s40, 288", f"v_add_u32 v{TQ}, s40, v{t5}")
    k("s_mul_i32 s40, s20, 72", "s_add_u32 s40, s40, 144", "s_add_u32 s41, s40, 40", "s_cmp_eq_u32 s20, 2", "s_cselect_b32 s40, 384, s40", f"v_add_u32 v{TQ+1}, s40, v{t5}", f"v_add_u32 v{TQ+2}, s41, v{t5}")
    k(f"v_lshl_add_u32 v{t6}, v{c4}, 6, v{t5}", f"v_add_u32 v{t6}, 32, v{t6}", f"v_cndmask_b32 v{TQ+1}, v{TQ+1}, v{t6}, vcc")
    k("s_mul_i32 s40, s20, 36", "s_and_b32 s41, s20, 1", "s_lshl_b32 s41, s41, 2", "s_add_u32 s40, s40, s41", f"v_add_u32 v{TQ+3}, s40, v{t5}", "s_cmp_ge_u32 s20, 2", "s_cselect_b64 vcc, -1, 0", f"v_cndmask_b32 v{TQ+2}, v{TQ+2}, v{TQ+3}, vcc")
    k(f"v_lshrrev_b32 v{t6}, 1, v{q4}", f"v_and_b32 v{t7}, 1, v{q4}", f"v_lshl_add_u32 v{tmp}, v{t7}, 2, v{r4}", f"v_lshl_add_u32 v{tmp}, v{t6}, 4, v{tmp}", f"v_mul_u32_u24 v{tmp}, 160, v{tmp}")
    k(f"v_lshl_add_u32 v{tmp}, v{c4}, 3, v{tmp}", f"v_add_u32 v{TO+1}, {STG_O + 128}, v{tmp}", "s_lshl_b32 s40, s20, 5", f"s_add_u32 s40, s40, {STG_O}", f"v_add_u32 v{TO}, s40, v{tmp}")
    k("s_and_b32 s40, s2, 7", "s_lshl_b32 s40, s40, 2", "s_add_u32 s40, s40, s20", f"s_mul_i32 s40, s40, {72*1024}", f"s_add_u32 s40, s40, {hx(WS_WQ)}")
    k("s_lshr_b32 s42, s2, 3", "s_mul_i32 s41, s42, 3072", "s_add_u32 s42, s42, 54", "s_lshl_b32 s42, s42, 10", "s_cmp_ge_u32 s20, 2", "s_cselect_b64 vcc, -1, 0", f"v_cndmask_b32 v44, v{V_L16}, v{t9}, vcc")
    k(f"s_mul_i32 s43, s34, {90*1024}", f"s_add_u32 s43, s43, {hx(WS_WO)}", "s_mul_i32 s45, s35, 5120", "s_lshl_b32 s46, s20, 10", "s_add_u32 s46, s46, s45", "s_add_u32 s45, s45, 4096", "s_cmp_eq_u32 s20, 0", "s_cselect_b64 vcc, -1, 0", f"v_cndmask_b32 v45, v{t9}, v{V_L16}, vcc")
    k("s_mov_b32 s64, s62", "s_mov_b32 s65, s63", "s_mov_b64 s[72:73], s[48:49]", "s_lshr_b32 s74, s2, 3", "s_and_b32 s75, s2, 7")
    srd_fill(k, 60, D * F * 2); srd_fill(k, 64, D * F * 2)
    k("s_lshl_b32 s76, s75, 2", "s_add_u32 s76, s76, s20", f"s_mul_i32 s76, s76, {WFR*1024}", f"s_add_u32 s76, s76, {hx(WS_W)}"); add64(k, 68, S_WS, 76); srd_fill(k, 68, WFR * 1024)
    l8, l7 = t5, t6
    k(f"v_lshrrev_b32 v{l8}, 3, v0", f"v_and_b32 v{l7}, 7, v0", "s_lshl_b32 s76, s20, 3", f"v_add_u32 v{l8}, s76, v{l8}")
    k("s_and_b32 s76, s20, 1", "s_lshl_b32 s76, s76, 1", f"v_add_u32 v{tmp}, s76, v{t7}", f"v_lshlrev_b32 v{tmp}, 1, v{tmp}", f"v_xor_b32 v{tmp}, v{tmp}, v{l7}", f"v_lshlrev_b32 v{tmp}, 4, v{tmp}")
    k(f"v_mul_u32_u24 v{l8}, 9216, v{l8}", f"v_add_u32 v{V_PD}, v{tmp}, v{l8}")
    k(f"v_lshrrev_b32 v{tmp}, 1, v{r4}", f"v_lshl_add_u32 v{tmp}, v{t7}, 1, v{tmp}", f"v_xor_b32 v{tmp}, s20, v{tmp}", f"v_lshlrev_b32 v{tmp}, 5, v{tmp}", f"v_lshl_add_u32 v{tmp}, v{c4}, 3, v{tmp}", f"v_lshl_add_u32 v{tmp}, v{r4}, 7, v{tmp}")
    k(f"v_lshl_add_u32 v{V_PT0}, v{q4}, 10, v{tmp}")
    st(k, "p0_issued")
    k("s_waitcnt vmcnt(18)")
    if OPT.get("fine"): st(k, "p0_qland")
    k("s_barrier")
    if OPT.get("fine"): st(k, "p0_bar")
    PT = Q_AC
    for ht in range(4):
        for e in range(2):
            k(f"ds_read_b64_tr_b16 {v(PT+4*ht+2*e,2)}, v{TQ+ht} offset:{e*2176}")
    for x in range(2):
        for e in range(2): k(f"ds_read_b64_tr_b16 {v(PT+16+4*x+2*e,2)}, v{TO+x} offset:{e*1280}")
    add64(k, 4, S_WS, 40); k("s_cmp_lt_u32 s2, 144", f"s_cselect_b32 s6, {72*1024}, 0")
    add64(k, 8, S_WS, 43); k("s_cmp_ge_u32 s2, 112", f"s_cselect_b32 s10, {90*1024}, 0")
    k("s_waitcnt lgkmcnt(0)")
    for ht in range(4): k(f"buffer_store_dwordx4 {v(PT+4*ht,4)}, v{44 if ht == 3 else V_L16}, s[4:7], s{41 + ht//3} offen offset:{1024*(ht%3)} {SC}")
    k(f"buffer_store_dwordx4 {v(PT+16,4)}, v{V_L16}, s[8:11], s46 offen {SC}", f"buffer_store_dwordx4 {v(PT+20,4)}, v45, s[8:11], s45 offen {SC}")
    st(k, "p0_prepst")
    q_setup(k)
    LT2 = 164; XR = 178
    ln_stats_norm(k, Q_X, Q_LT, 29); ln_stats_norm(k, Q_X, LT2, 29)
    c8, r8, u1 = 168, 169, 170
    k(f"v_and_b32 v{c8}, 7, v0", f"v_lshrrev_b32 v{r8}, 3, v0", f"v_xor_b32 v{r8}, v{r8}, v{c8}", f"v_lshlrev_b32 v{r8}, 4, v{r8}", f"v_and_b32 v{u1}, 3, v{c8}", f"v_lshl_add_u32 v{r8}, v{u1}, 8, v{r8}",
      f"v_lshrrev_b32 v{c8}, 2, v{c8}", f"v_lshl_add_u32 v{r8}, v{c8}, 12, v{r8}", "s_lshl_b32 s38, s20, 10", f"v_add_u32 v{Q_XW}, s38, v{r8}")
    k(f"v_lshrrev_b32 v{c8}, 4, v0", f"v_xor_b32 v{r8}, v0, v{c8}", f"v_lshlrev_b32 v{XR}, 4, v{r8}", f"v_xor_b32 v{XR+1}, 64, v{XR}", f"v_add_u32 v{XR+2}, 36864, v{XR}", f"v_add_u32 v{XR+3}, 36864, v{XR+1}")
    if OPT.get("fine"): st(k, "p0_qsetup")
    for i in range(18):
        k(f"s_waitcnt vmcnt({17 - i + 6})"); k(ln_acc(Q_X, Q_LT if i < 9 else LT2, 29, i))
    st(k, "p0_stats")
    k("v_mov_b32 v9, 0", "s_mov_b32 s23, 0x10000")
    k.label("non_l")
    k(f"buffer_load_dwordx2 v[10:11], v9, s[56:59], 0 offen {SC}", "s_waitcnt vmcnt(0)", f"v_readfirstlane_b32 s{S_NON}, v10", f"v_readfirstlane_b32 s{S_NON+1}, v11",
      "s_sub_u32 s23, s23, 1", "s_cbranch_scc1 non_d", f"s_cmp_eq_u32 s{S_NON}, 0", "s_cbranch_scc1 non_l", f"s_sub_u32 s24, s{S_NON}, s89", "s_cmp_lt_i32 s24, 0", "s_cbranch_scc1 non_l")
    k.label("non_d")
    publish(k, F_P0, layered=False, idx="phys")
    if OPT.get("fine"): st(k, "p0_pub")
    k("s_lshl_b32 s88, s20, 10")
    for rd in range(4): k(dma_round(rd, STG_F + 8192 * rd))
    if OPT.get("fine"): st(k, "p0_f0")
    for T_ in (Q_LT, LT2):
        k(f"v_add_f32 v{T_}, v{T_}, v{T_+1}", f"v_add_f32 v{T_+2}, v{T_+2}, v{T_+3}")
    for T_ in (Q_LT, LT2): xlane(k, T_, (1, 2, 4)); ln_fin2(k, T_)
    for i in list(range(0, 8)) + list(range(9, 17)) + [8, 17]:
        k(ln_apply(Q_X, Q_LT, i, True, Q_LT if i < 9 else LT2))
        if i == 8: k(f"v_add_u32 v{Q_XW}, 0x10000, v{Q_XW}")
        k(f"ds_write_b128 v{Q_XW}, {v(Q_X+4*i,4)} offset:{(8192*(i%9) if i % 9 < 8 else 0) + 128*(i//9)}")
    st(k, "p0_ln")
    k("s_waitcnt vmcnt(0) lgkmcnt(0)")
    wait(k, ["v_and_b32 v9, 31, v0", "v_min_u32 v9, 17, v9", "v_lshlrev_b32 v9, 3, v9", "s_bfe_u32 s23, s2, 0x30003", "s_add_u32 s23, s23, 112", "v_add_u32 v10, s23, v9", "v_add_u32 v9, s22, v9", "v_cmp_gt_u32 vcc, 32, v0", "s_nop 1", "v_cndmask_b32 v9, v10, v9, vcc", f"v_lshlrev_b32 v9, {FS[0]}, v9"])
    st(k, "p0_flags")
    N0 = int(OPT.get("n0", 12))
    for n in range(N0): k(q_aload(n))
    k("s_mov_b32 s14, 0")
    e1, e2 = int(OPT.get("e1", 17)), int(OPT.get("e2", 17))
    ex = {}
    FD = Q_X + 32
    def f0tr():
        k(f"v_add_u32 v{Q_T}, {STG_F}, v{V_PT0}", f"v_add_u32 v{Q_T+1}, 512, v{Q_T}")
        for rd in range(4):
            k(tr_round(FD + 8 * rd, Q_T, Q_T + 1, 8192 * rd))
            if rd == 1: k("s_waitcnt lgkmcnt(4)")
    ex.setdefault(12, []).append((f0tr, 0))
    for rd in range(4): ex.setdefault(e1 - 3 + rd, []).append((lambda rd=rd: k(st_round(rd, FD + 8 * rd)), 2))
    q_loop(k, N0, list(range(N0)), ex, chunk=False)
    k("s_branch q_epi")

def phase_qkv1(k):
    wgmap(k, int(OPT.get("qmap", 44)))
    q_setup(k)
    q4, tk = Q_T, Q_T + 1
    k("s_lshl_b32 s38, s20, 8", f"v_lshlrev_b32 v{Q_XL}, 10, v{q4}", f"v_lshl_add_u32 v{Q_XL}, v{tk}, 4, v{Q_XL}", f"v_add_u32 v{Q_XL}, s38, v{Q_XL}")
    k(f"s_mul_i32 s38, s21, {TILE}", f"s_add_u32 s38, s38, {hx(WS_XN)}"); add64(k, 8, S_WS, 38); srd_fill(k, 8, TILE)
    k("s_mov_b32 s27, 0", "s_lshl_b32 s38, s20, 10")
    NE = int(OPT.get("qne", 40))
    A1 = int(OPT.get("a1", 8)) + int(OPT.get("a0", 20)); assert A1 % 4 == 0
    if A1: k(f"s_mov_b32 s26, {A1 * 1024}")
    for n in range(A1, NE): k(q_aload(n))
    wait(k, tile_flags(F_RED, prev_layer=True), pw=int(OPT.get("qpw", 3)))
    st(k, "q1_flags")
    for i in range(18):
        k(f"s_add_u32 m0, s38, {4096*i}", "s_nop 0" if i == 0 else "s_add_u32 s27, s27, 0x1000", f"buffer_load_dwordx4 v{Q_XL}, s[8:11], s27 offen {SC} lds")
    k("s_waitcnt vmcnt(12)", "s_barrier")
    st(k, "q1_x0")
    q_loop(k, NE, [f"X{i}" for i in range(6, 18)], {}, chunk="dma")

import k_att2 as AT
def phase_att(k):
    A = AT; T = A.V_T; SO = A.SO
    q_fin(k)
    k(f"v_and_b32 v{T}, 31, v0", f"v_lshrrev_b32 v{T+1}, 5, v0")
    bias = [8, 9, 10, 11, 87]
    for i in range(5):
        k(f"s_add_i32 s23, s21, {i-4}", f"s_cmp_lt_i32 s23, 0", f"s_cselect_b32 s{bias[i]}, {A.NEG}, 0", "s_max_i32 s23, s23, 0",
          "s_lshl_b32 s23, s23, 3", "s_add_u32 s23, s23, s22", f"s_mul_i32 s{SO+i}, s23, {KVB}")
    k("s_lshl_b32 s15, s20, 11", f"v_add_u32 v{A.V_KM}, s15, v{V_L16}", f"v_add_u32 v{A.V_KM}, {KV_KM}, v{A.V_KM}")
    k("s_lshl_b32 s25, s20, 8", f"v_lshlrev_b32 v{A.V_KT}, 3, v{T}", f"v_add_u32 v{A.V_KT}, s25, v{A.V_KT}")
    k(f"v_mov_b32 v{T+3}, 0x80000000", f"v_cmp_gt_u32 vcc, 32, v0", f"v_add_u32 v{A.V_KT}, {KV_KT}, v{A.V_KT}", "s_waitcnt lgkmcnt(0)")
    for t in range(2): k(f"v_cndmask_b32 v{A.V_Q1+8*t}, 0, v{A.V_QTT+t}, vcc", f"v_cndmask_b32 v{A.V_Q1+8*t+5}, 0, v{A.V_QTT+t}, vcc")
    k(f"v_lshlrev_b32 v{T+4}, 2, v0", f"v_cndmask_b32 v{A.V_ST}, v{T+3}, v{T+4}, vcc")
    add64(k, 4, S_WS, 3); srd_fill(k, 4, 256 * KVB)
    k(f"v_mov_b32 v{T+9}, 0x3f80", f"v_mov_b32 v{T+8}, 0")
    for t in range(2):
        for p_ in range(2):
            q = A.V_Q1 + 8 * t + 4 * p_
            k(f"v_mov_b32 v{q + 1 - p_}, 0", f"v_cndmask_b32 v{q+2}, 0, v{T+9}, vcc", f"v_mov_b32 v{q+3}, 0")
    for i in range(5): k(f"v_mov_b32 v{T+9}, s{bias[i]}", f"v_accvgpr_write_b32 {a(A.A_K+12*i+3)}, v{T+8}", f"v_accvgpr_write_b32 {a(A.A_K+12*i+2)}, v{T+9}")
    k("s_mul_i32 s25, s20, 18", f"v_add_u32 v{T+4}, s25, v{T}", f"v_cmp_eq_u32 vcc, 18, v{T}", f"v_mov_b32 v{T+5}, 72", "s_nop 0", f"v_cndmask_b32 v{T+4}, v{T+4}, v{T+5}, vcc")
    k(f"v_lshrrev_b32 v{T+5}, 4, v{T+4}", f"v_and_b32 v{T+4}, 15, v{T+4}", f"v_lshlrev_b32 v{T+4}, 4, v{T+4}", f"v_lshl_add_u32 v{T+4}, v{T+5}, 11, v{T+4}", f"v_lshl_add_u32 v{T+4}, v{T+1}, 8, v{T+4}", f"v_add_u32 v{T+4}, {KV_V}, v{T+4}", f"v_cmp_gt_u32 vcc, 19, v{T}")
    k(f"v_lshlrev_b32 v{A.V_D4}, 2, v{T+1}", f"v_sub_u32 v{A.V_D4}, v{T}, v{A.V_D4}", f"v_cndmask_b32 v{A.V_VV}, v{T+3}, v{T+4}, vcc")
    for i in range(16): k(f"v_cmp_le_i32 s[{A.MSK+2*i}:{A.MSK+2*i+1}], {8*(i//4) + i%4}, v{A.V_D4}")
    k(f"v_mov_b32 v{T+9}, 0xffff")
    for d in range(8): k(f"v_cndmask_b32 v{A.V_MK+d}, 0, v{T+9}, s[{A.MSK+4*d}:{A.MSK+4*d+1}]")
    for d in range(8): k(f"v_cndmask_b32 v{A.V_MK+d}, v{A.V_MK+d}, -1, s[{A.MSK+4*d+2}:{A.MSK+4*d+3}]")
    k(f"s_mul_i32 s23, s21, {TILE}", "s_add_u32 s23, s23, s3", f"s_add_u32 s23, s23, {hx(WS_O)}"); add64(k, 16, S_WS, 23); srd_fill(k, 16, TILE)
    k("s_lshl_b32 s88, s22, 13", "s_add_u32 s88, s88, s15")
    k(f"v_lshlrev_b32 v{A.V_SO}, 4, v{T}", f"v_lshl_add_u32 v{A.V_SO}, v{T+1}, 10, v{A.V_SO}")
    k("s_add_u32 s89, s22, 64", "s_lshl_b32 s89, s89, 10", "s_lshl_b32 s23, s20, 8", "s_add_u32 s89, s89, s23")
    for i in range(4): k(f"v_mov_b32 v{A.V_MX+i}, 0xff7fffff")
    k("s_bfe_u32 s23, s2, 0x30003", f"s_mul_i32 s23, s23, {90*1024}", f"s_add_u32 s23, s23, {hx(WS_WO)}"); add64(k, 8, S_WS, 23); srd_fill(k, 8, 90 * 1024)
    st(k, "att_setup")
    wait(k, ["v_min_u32 v9, 4, v0", "s_sub_u32 s23, s21, 4", "v_add_u32 v9, s23, v9", "v_max_i32 v9, 0, v9", "v_lshlrev_b32 v9, 3, v9", "v_add_u32 v9, s22, v9", f"v_lshlrev_b32 v9, {FS[0]}, v9",
             f"s_add_u32 s23, s14, {F_QKV*FT()}", "v_add_u32 v9, s23, v9"], pw=3)
    st(k, "att_flags")
    kk = Kern("t")
    if int(OPT.get("jt", 1)):
        kk("s_mov_b32 s26, 0", "s_mov_b32 s27, 0x00020000", "s_mov_b64 s[24:25], s[60:61]", "s_mov_b64 s[12:13], s[60:61]", "s_cmp_lg_u32 s3, 0", "s_cbranch_scc1 att_notouch")
        kk("s_lshl_b32 s76, s20, 5", "s_add_u32 s76, s76, s74", "s_add_u32 s76, s76, 128", "s_sub_u32 s77, s76, 162", "s_lshl_b32 s77, s77, 1", "s_cmp_lt_u32 s76, 162", "s_cselect_b32 s76, s76, s77",
          f"s_cselect_b32 s77, 9216, 1152", f"s_cselect_b32 s80, 1152, {576*1152}", f"s_cselect_b32 s81, 0, {32*1152}", "s_cselect_b64 s[24:25], s[60:61], s[72:73]", "s_cselect_b64 s[12:13], s[64:65], s[72:73]")
        kk(div18(76, 78, 79), "s_lshl_b32 s79, s79, 5", "s_mul_i32 s79, s79, s77", "s_lshl_b32 s78, s78, 7", "s_add_u32 s78, s78, s79", "s_mul_i32 s79, s75, s80", "s_add_u32 s78, s78, s79", "s_add_u32 s81, s81, s78")
        kk(f"s_mov_b32 s26, {hx(D*F*2)}", "att_notouch:", "v_and_b32 v9, 31, v0", "v_mul_u32_u24 v9, s77, v9")
        kk("buffer_load_dword v10, v9, s[24:27], s78 offen", "s_mov_b64 s[24:25], s[12:13]", "buffer_load_dword v11, v9, s[24:27], s81 offen")
    OOL.append(A.body(k, st, SC, kk.L))
def wo_dma(k):
    o = [["s_mul_i32 s26, s20, 23552", f"s_add_u32 s27, s26, {WOIMG}"]]
    for g in range(6):
        o.append(["s_mov_b32 m0, s27", "s_add_u32 s27, s27, 0x1000", f"buffer_load_dwordx4 v{V_L16}, s[8:11], s26 offen {SC} lds"])
        for i in range(1, 4 if g < 5 else 3): o.append(f"buffer_load_dwordx4 v{V_L16}, s[8:11], s26 offen offset:{1024*i} {SC} lds")
        o[-1] = [o[-1], "s_add_u32 s26, s26, 0x1000"]
    o[-2] = ["s_cmp_eq_u32 s20, 3", "s_cbranch_scc1 wo_dsk", o[-2]]; o[-1] = [o[-1][0], "wo_dsk:"]
    return o

W_XL, W_A0, W_A1, W_RL, W_SP, W_S8, W_T, W_AC, W_R, W_AF, W_B = 2, 3, 4, 5, 6, 7, 16, 36, 56, 184, 108
def phase_wo(k):
    wgmap(k, 8)
    T = W_T; q4, tk, tok, n, lam, c, t1, t2 = range(T, T + 8)
    k(f"v_lshrrev_b32 v{q4}, 4, v0", f"v_and_b32 v{tk}, 15, v0", "s_lshl_b32 s38, s20, 4", f"v_add_u32 v{tok}, s38, v{tk}")
    k(f"v_lshlrev_b32 v{W_XL}, 10, v{q4}", f"v_lshl_add_u32 v8, v{tok}, 2, v{W_XL}", f"v_lshl_add_u32 v{W_XL}, v{tok}, 4, v{W_XL}")
    k(f"s_mul_i32 s39, s21, {TILE}", "s_add_u32 s41, s39, s3", f"s_add_u32 s42, s41, {hx(WS_O)}"); add64(k, 4, S_WS, 42); srd_fill(k, 4, TILE)
    k(f"s_add_u32 s42, s{S_WS}, {hx(WS_X2)}", f"s_addc_u32 s43, s{S_WS+1}, 0", "s_cmp_eq_u32 s3, 0", f"s_cselect_b32 s8, s{S_X}, s42", f"s_cselect_b32 s9, s{S_X+1}, s43", "s_cselect_b64 vcc, -1, 0", "s_cselect_b32 s36, 32, 2048")
    k("s_mul_i32 s46, s22, 9216", "s_mul_i32 s37, s22, 144", "s_cselect_b32 s45, s37, s46")
    k("s_add_u32 s8, s8, s39", "s_addc_u32 s9, s9, 0"); srd_fill(k, 8, TILE)
    k(f"v_mul_u32_u24 v{t1}, 1152, v{tok}", f"v_lshl_add_u32 v{t1}, v{q4}, 3, v{t1}")
    k(f"v_lshrrev_b32 v{n}, 1, v{q4}", f"v_and_b32 v{lam}, 1, v{q4}")
    k(f"v_lshlrev_b32 v{t2}, 4, v{tok}", f"v_lshl_add_u32 v{c}, v{lam}, 3, v{t2}", f"v_lshl_add_u32 v{c}, v{n}, 10, v{c}")
    k(f"v_cndmask_b32 v{W_RL}, v{c}, v{t1}, vcc")
    k("s_mov_b64 s[48:49], s[8:9]", "s_mov_b64 s[50:51], s[10:11]")
    k(f"v_add_u32 v{W_A0}, {WOIMG}, v{V_L16}", f"v_add_u32 v{W_A1}, {WOIMG + 61440}, v{V_L16}")
    k(f"v_lshl_add_u32 v{t1}, v{lam}, 1, v{n}", f"v_lshl_add_u32 v{W_SP}, v{t1}, 10, v{t2}")
    k(f"v_lshl_add_u32 v{t1}, v{q4}, 3, v{t2}", f"v_add_u32 v{t1}, 8192, v{t1}", f"v_mov_b32 v{c}, 0x80000000", f"v_cmp_gt_u32 vcc, 2, v{q4}", "s_nop 1", f"v_cndmask_b32 v{W_S8}, v{c}, v{t1}, vcc")
    k(f"s_add_u32 s42, s41, {hx(WS_X1)}"); add64(k, 16, S_WS, 42); srd_fill(k, 16, TILE)
    k("s_add_u32 s47, s46, 4096", "s_mov_b32 s40, 0", "s_mov_b32 s29, 0x3f803f80", f"v_cndmask_b32 v{W_T+12}, 0, -1, vcc")
    k(f"v_lshlrev_b32 v{t1}, 3, v{tok}", f"v_cmp_gt_u32 vcc, 16, v0", "s_lshl_b32 s42, s21, 3", "s_add_u32 s42, s42, s22", "s_lshl_b32 s42, s42, 9", "s_add_u32 s42, s42, s3", f"s_add_u32 s42, s42, {hx(WS_SS)}", f"v_cndmask_b32 v{W_T+13}, v{c}, v{t1}, vcc")
    add64(k, 8, S_WS, 42); srd_fill(k, 8, 512)
    def aread(ks): return [f"ds_read_b128 {v(W_AF + 20*(ks%3) + 4*ht, 4)}, v{W_A1 if ks >= 12 else W_A0} offset:{(5*ks+ht)*1024 - (61440 if ks >= 12 else 0)}" for ht in range(5)]
    st(k, "wo_setup")
    k("s_waitcnt vmcnt(0)")
    kk = Kern("t"); wgmap(kk, int(OPT.get("map", 2)), 34, 35)
    kk.L = [x.replace("s44", "s30").replace("s45", "s31").replace("s46", "s32").replace("s47", "s33") for x in kk.L]
    wait(k, tile_flags(F_ATT) + kk.L + ["v_and_b32 v10, 31, v0", "s_lshl_b32 s35, s35, 5", "v_add_u32 v10, s35, v10", "v_lshlrev_b32 v10, 3, v10", f"v_add_u32 v10, {F_PF*FT()}, v10",
                               "v_cmp_gt_u32 vcc, 32, v0", "s_nop 1", "v_cndmask_b32 v9, v10, v9, vcc"])
    st(k, "wo_flags")
    for i in range(18):
        if i < 16: k(f"buffer_load_dwordx4 {v(W_B+4*i,4)}, v{W_XL}, s[4:7], s40 offen {SC}")
        else:
            for d in range(4): k(f"buffer_load_dword v{W_B+4*i+d}, v8, s[4:7], s40 offen offset:{256*d} {SC}")
        if i < 17: k("s_add_u32 s40, s40, 0x1000")
    k(aread(0), aread(1))
    RS = int(OPT.get("rs", 0))
    for ks in range(18):
        k(f"s_waitcnt vmcnt({(15 - ks + 8 if ks < 16 else 4 * (17 - ks)) + max(0, min(5, ks - RS))}) lgkmcnt({5 if ks < 17 else 0})")
        ar = aread(ks + 2) if ks < 16 else []
        for ht in range(5):
            ac = v(W_AC + 4 * ht, 4)
            k(f"v_mfma_f32_16x16x32_bf16 {ac}, {v(W_AF + 20*(ks%3) + 4*ht, 4)}, {v(W_B+4*ks,4)}, {'0' if ks == 0 else ac}")
            if ar: k(ar[ht])
        if RS <= ks < RS + 5: k(f"buffer_load_dwordx2 {v(W_R+2*(ks-RS),2)}, v{W_RL}, s[48:51], s45 offen {SC}", "s_add_u32 s45, s45, s36")
    k.label("wo_epi")
    st(k, "wo_mfma")
    k("s_waitcnt vmcnt(0)")
    for ht in range(5):
        for d in range(2):
            k(f"v_lshlrev_b32 v{T+4*(ht&1)+2*d}, 16, v{W_R+2*ht+d}", f"v_and_b32 v{T+4*(ht&1)+2*d+1}, 0xffff0000, v{W_R+2*ht+d}")
        if ht == 0: k("s_nop 3")
        for i in range(4): k(f"v_add_f32 v{W_AC+4*ht+i}, v{W_AC+4*ht+i}, v{T+4*(ht&1)+i}")
    P = W_B
    WO_STATS(k)
    for ht in range(0):
        for d in range(2): k(f"v_cvt_pk_bf16_f32 v{P+2*ht+d}, v{W_AC+4*ht+2*d}, v{W_AC+4*ht+2*d+1}")
    R1 = int(OPT.get("r1", 12))
    if R1:
        kk = Kern("t"); wgmap(kk, int(OPT.get("map", 2)), 34, 35)
        k([x.replace("s44", "s30").replace("s45", "s31").replace("s46", "s32").replace("s47", "s33") for x in kk.L])
        k("s_lshl_b32 s24, s35, 2", "s_add_u32 s24, s24, s20", f"s_mul_i32 s24, s24, {WFR*1024}", f"s_add_u32 s24, s24, {hx(WS_W)}"); add64(k, 4, S_WS, 24); srd_fill(k, 4, WFR * 1024)
        k("s_mov_b32 s23, 0"); F4.preload(k, 0, R1)
    publish(k, F_WO, vm=R1)
    st(k, "wo_pub")

def WO_STATS(k):
    P = W_B; T = W_T + 8
    for ht in range(5):
        for d in range(2): k(f"v_cvt_pk_bf16_f32 v{P+2*ht+d}, v{W_AC+4*ht+2*d}, v{W_AC+4*ht+2*d+1}")
    k(f"v_and_b32 v{P+12}, v{P+8}, v{W_T+12}", f"v_and_b32 v{P+13}, v{P+9}, v{W_T+12}", f"v_mov_b32 v{T}, 0", f"v_mov_b32 v{T+2}, 0")
    for pr in range(2):
        for d in range(2): k(f"v_permlane16_swap_b32 v{P+4*pr+d}, v{P+4*pr+2+d}")
    k(f"buffer_store_dwordx4 {v(P,4)}, v{W_SP}, s[16:19], s46 offen {SC}", f"buffer_store_dwordx4 {v(P+4,4)}, v{W_SP}, s[16:19], s47 offen {SC}")
    k(f"buffer_store_dwordx2 {v(P+8,2)}, v{W_S8}, s[16:19], s46 offen {SC}")
    for x in list(range(P, P + 8)) + [P + 12, P + 13]:
        k(f"v_dot2c_f32_bf16 v{T}, s29, v{x}", f"v_dot2c_f32_bf16 v{T+2}, v{x}, v{x}")
    k("s_nop 2")
    xlane(k, T, (16, 32))
    k(f"v_mov_b32 v{T+1}, v{T+2}", f"buffer_store_dwordx2 {v(T,2)}, v{W_T+13}, s[8:11], 0 offen {SC}")
def phase_ffn(k):
    F_ = FF; mp = int(OPT.get("map", 2)); late = int(OPT.get("late", 8))
    wgmap(k, mp)
    k("s_mov_b32 s29, 0x3f803f80")
    t0, t1, t2, t5, t6 = 64, 65, 66, 67, 68
    k(f"v_lshrrev_b32 v{t0}, 4, v0", f"v_and_b32 v{t1}, 15, v0", "s_lshl_b32 s38, s20, 8")
    k(f"v_lshlrev_b32 v{t2}, 10, v{t0}", f"v_lshl_add_u32 v{t2}, v{t1}, 4, v{t2}", f"v_add_u32 v{F_.V_XL}, s38, v{t2}")
    k(f"s_mul_i32 s39, s21, {TILE}", "s_add_u32 s39, s39, s3", f"s_add_u32 s39, s39, {hx(WS_X1)}"); add64(k, 8, S_WS, 39); srd_fill(k, 8, TILE)
    k("s_lshl_b32 s24, s22, 2", "s_add_u32 s24, s24, s20", f"s_mul_i32 s24, s24, {WFR*1024}", f"s_add_u32 s24, s24, {hx(WS_W)}"); add64(k, 4, S_WS, 24); srd_fill(k, 4, WFR * 1024)
    k("s_lshl_b32 s41, s22, 5", "s_add_u32 s41, s41, s21", f"s_mul_i32 s41, s41, {TILE}", "s_add_u32 s41, s41, s3", f"s_add_u32 s41, s41, {hx(WS_P)}"); add64(k, 16, S_WS, 41); srd_fill(k, 16, TILE)
    k("s_mov_b32 s27, 0", "s_mov_b32 s40, 0")
    k(f"v_and_b32 v{t6}, 1, v{t0}", f"v_lshrrev_b32 v{t5}, 1, v{t0}", f"v_add_u32 v{F_.V_XR1}, 36864, v{V_L16}")
    k("s_lshr_b32 s41, s20, 1", "s_lshl_b32 s41, s41, 12", "s_and_b32 s42, s20, 1", "s_lshl_b32 s42, s42, 3", "s_add_u32 s41, s41, s42")
    k(f"v_add_u32 v{F_.V_HW}, s41, v{V_L16}")
    k("s_lshl_b32 s41, s20, 10", f"v_add_u32 v{F_.V_XW}, s41, v{V_L16}")
    k(f"v_lshlrev_b32 v{F_.V_ST}, 10, v{t5}", f"v_lshl_add_u32 v{F_.V_ST}, v{t6}, 8, v{F_.V_ST}", f"v_lshl_add_u32 v{F_.V_ST}, v{t1}, 4, v{F_.V_ST}")
    k("s_lshl_b32 s41, s20, 11", f"v_add_u32 v{F_.V_ST}, s41, v{F_.V_ST}", f"v_mov_b32 v{F_.V_C2}, {fl(F_.C2)}")
    k("s_cmp_eq_u32 s3, 0", "s_cselect_b32 s31, 0, 0x4000", "s_lshl_b32 s30, s21, 9", "s_add_u32 s31, s31, s30", f"s_add_u32 s31, s31, {12*FT()}")
    k("s_lshl_b32 s30, s22, 2", "s_add_u32 s30, s30, s20", "s_lshl_b32 s30, s30, 3", "s_add_u32 s30, s30, s31")
    k("s_lshl_b32 s42, s21, 12", "s_add_u32 s42, s42, s3", f"s_add_u32 s42, s42, {hx(WS_SS)}"); add64(k, 32, S_WS, 42); srd_fill(k, 32, 4096)
    k("s_lshl_b32 s42, s20, 7", f"v_lshlrev_b32 v{t2}, 3, v{t1}", f"v_lshl_add_u32 v{t2}, v{t0}, 10, v{t2}", f"v_add_u32 v{t2}, s42, v{t2}")
    R1 = int(OPT.get("r1", 12)); assert R1 % 3 == 0
    k(f"s_mov_b32 s23, {R1 * 1024}")
    F4.preload(k, R1)
    k("s_mov_b32 s26, s23")
    k("s_cmp_lg_u32 s3, 0", "s_cbranch_scc1 ffn_nojs")
    js = jit_setup()
    k([x for x in js if x.startswith("s_") and "vcc" not in x and not x.startswith("s_lshl_b32 s76")])
    for n_, rd in enumerate(range(4, 8)):
        g_ = dma_round(rd, 0); pre = g_[0][:-3]; o2 = "s78" if rd <= 4 else "s77"
        k(pre, f"s_mov_b32 s{44+3*n_}, s78", f"s_mov_b32 s{45+3*n_}, {o2}", f"s_add_u32 s76, s74, {32*rd}", f"s_lshl_b32 s{46+3*n_}, s76, 11")
        if rd == 5 and int(OPT.get("ro", 0)):
            k("s_cmp_eq_u32 s76, 170", "s_cselect_b32 s79, 0x4000, 0", "s_add_u32 s49, s49, s79", "s_sub_u32 s79, s76, 171", "s_cmp_lt_u32 s79, 8", "s_cselect_b32 s79, 0x800, 0", "s_sub_u32 s49, s49, s79")
    k("s_cmp_lt_u32 s76, 243", f"s_cselect_b32 s56, {WFR*1024}, 0")
    k.label("ffn_nojs")
    wait(k, tile_flags(F_WO))
    st(k, "ffn_flags")
    if int(OPT.get("touch", 0)):
        per = 18 * mp * (1 if int(OPT["touch"]) == 1 else 1)
        k(f"s_mul_i32 s41, s44, {per}", "v_add_u32 v11, s41, v0", "v_lshlrev_b32 v11, 7, v11", f"v_cmp_gt_u32 vcc, {per}, v0", "v_mov_b32 v5, 0x80000000", f"s_mov_b32 s49, {int(OPT.get('tch0', 3)) * TILE}", "v_cndmask_b32 v11, v5, v11, vcc")
    k("s_mov_b32 s23, s26")
    LT = F_.V_LT
    k(f"buffer_load_dwordx2 {v(LT+8,2)}, v{t2}, s[32:35], 0 offen {SC}", f"buffer_load_dwordx2 {v(LT+10,2)}, v{t2}, s[32:35], 0 offen offset:512 {SC}")
    XS = int(OPT.get("xs", 8))
    def xl(i): return [f"buffer_load_dwordx4 {v(F_.V_X+4*i,4)}, v{F_.V_XL}, s[8:11], s40 offen {SC}"] + (["s_add_u32 s40, s40, 0x1000"] if i < 17 else [])
    for i in range(XS): k(xl(i))
    k(f"s_waitcnt vmcnt({XS})", f"v_add_f32 v{LT}, v{LT+8}, v{LT+10}", f"v_add_f32 v{LT+2}, v{LT+9}, v{LT+11}")
    kk = Kern("t"); xlane(kk, LT, (16, 32)); ln_fin2(kk, LT)
    k(merge(kk.L, [xl(i) for i in range(XS, 18)]))
    st(k, "ffn_stats")
    def lnq(i):
        kk = Kern("t"); kk(ln_apply(F_.V_X, F_.V_LT, i, pk=(i < 6))); ln_write(kk, i, F_.V_X, F_.V_XW); return kk.L
    F4.group0(k, lnq)
    st(k, "ffn_g0")
    PG = int(OPT.get("peel", 0))
    k(f"s_mov_b32 s25, {4 - PG}", "s_mov_b32 s26, 99", "s_cmp_lg_u32 s3, 0", "s_cbranch_scc1 ffn_loopA_odd")
    JD = 200
    x1 = {2: [x for x in jit_setup() if x.startswith("v_") or "vcc" in x or x.startswith(("s_lshl_b32 s76", "s_cmp_lt_u32 s74"))]}
    import re as _re
    for n_, rd in enumerate(range(4, 8)):
        g_ = dma_round(rd, STG_J + 8192 * n_)
        a0 = g_[0][-3:]; a1 = g_[1]
        x1[4 * (6 + 7 * n_)] = [a0[0]]; x1[4 * (6 + 7 * n_) + 1] = [a0[2].replace("s78 offen", f"s{44+3*n_} offen")]
        x1[4 * (9 + 7 * n_)] = [a1[0]]; x1[4 * (9 + 7 * n_) + 1] = [_re.sub(r"s7[78] offen", f"s{45+3*n_} offen", a1[2])]
    F4.groupA(k, 1, x1)
    x2 = {4 * 13 + 1: ["s_barrier"]}
    for n_, rd in enumerate(range(4, 8)):
        sel = 0 if rd == 4 else (2 if rd == 5 else 1)
        for e_, op in enumerate(tr_round(JD + 8 * n_, J_T0 + sel, J_T1 + sel, 8192 * n_)): x2[4 * (14 + 2 * n_ + e_ // 2) + 2 * (e_ % 2)] = [op]
        g_ = st_round(rd, JD + 8 * n_)
        x2[4 * (24 + 3 * n_) + 1] = (["s_waitcnt lgkmcnt(0)"] if n_ == 0 else []) + (["s_mov_b32 s70, s56"] if rd == 7 else []) + [g_[0][-1].replace("s78", f"s{46+3*n_}")]
        x2[4 * (25 + 3 * n_) + 1] = [g_[1][0].replace("s78", f"s{46+3*n_}")]
    F4.groupA(k, 2, x2)
    x3 = {4 * 18 + 1: ["s_lshl_b32 s76, s2, 2", "s_add_u32 s76, s76, s20", "s_lshl_b32 s76, s76, 3", f"s_add_u32 s76, s76, {FPJ()}", "s_mov_b64 exec, 1", "v_mov_b32 v9, 0", f"v_mov_b32 v10, s{S_NON}", f"v_mov_b32 v11, s{S_NON+1}",
                        f"buffer_store_dwordx2 v[10:11], v9, s[{S_FL}:{S_FL+3}], s76 offen {SC}", "s_mov_b64 exec, -1"]}
    F4.groupA(k, 3, x3)
    k(f"s_mov_b32 s25, {2 - PG}", f"s_mov_b32 s26, {2 - PG}", "v_and_b32 v9, 31, v0", "v_lshlrev_b32 v9, 3, v9", "v_add_u32 v9, s22, v9", "v_lshlrev_b32 v9, 2, v9", "v_add_u32 v9, s20, v9", "v_lshlrev_b32 v9, 3, v9", f"v_add_u32 v9, {FPJ()}, v9")
    k.label("ffn_loopA")
    F4.groupA(k, 2)
    k.label("ffn_loopA_odd")
    pl = f"buffer_load_dwordx2 v[10:11], v9, s[{S_FL}:{S_FL+3}], 0 offen {SC}"
    xo = {1: ["s_cmp_lg_u32 s25, s26", "s_cbranch_scc1 jit_p0", pl + " ; COND", "jit_p0:"],
          4 * 22 + 1: ["s_cmp_lg_u32 s25, s26", "s_cbranch_scc1 jit_p1", "s_mov_b32 s76, 0x10000", "jit_l:", f"v_cmp_ne_u64 vcc, s[{S_NON}:{S_NON+1}], v[10:11]", "s_sub_u32 s76, s76, 1", "s_cselect_b64 s[78:79], 0, -1", "s_nop 1",
                       "s_and_b64 vcc, vcc, s[78:79]", "s_cbranch_vccz jit_p1", pl + " ; COND", "s_waitcnt vmcnt(0)", "s_branch jit_l", "jit_p1:"]}
    F4.groupA(k, 1, xo)
    k("s_sub_u32 s25, s25, 1", "s_cmp_lg_u32 s25, 0", "s_cbranch_scc1 ffn_loopA")
    if PG: F4.groupA(k, 6); F4.groupA(k, 7)
    k(f"s_mul_i32 s50, s20, {17*1024}", f"s_add_u32 s50, s50, {F4.RES}", f"v_add_u32 v5, s50, v{V_L16}", "s_sub_u32 s50, s50, 4096")
    F4.groupA(k, 8)
    st(k, "ffn_A")
    hook = ["s_mov_b64 exec, 1", "v_mov_b32 v9, 0", f"v_mov_b32 v10, s{S_NON}", f"v_mov_b32 v11, s{S_NON+1}",
            f"buffer_store_dwordx2 v[10:11], v9, s[{S_FL}:{S_FL+3}], s30 offen {SC}", "s_mov_b64 exec, -1"]
    hook2 = [x.replace("s30 offen", "s30 offen offset:256") for x in hook] if int(OPT.get("mid2", 1)) else None
    F4.phaseB(k, OPT.get("bsc", SC), hook, st if OPT.get("bst") else None, hook2)
    st(k, "ffn_B")

def phase_red(k):
    R = 16; ACC = 100
    pm4, pm1, rm4, rm1, t0, t1 = 2, 3, 4, 5, 6, 7
    k("s_lshl_b32 s23, s22, 3", f"v_and_b32 v{t0}, 7, v0", f"v_add_u32 v{t0}, s23, v{t0}")
    k(f"v_lshrrev_b32 v{t1}, 3, v0", "s_lshl_b32 s24, s20, 3", f"v_add_u32 v{t1}, s24, v{t1}")
    k(f"v_lshlrev_b32 v{pm4}, 4, v{t0}", f"v_lshl_add_u32 v{pm4}, v{t1}, 10, v{pm4}", f"v_mul_u32_u24 v{rm4}, 1152, v{t0}", f"v_lshl_add_u32 v{rm4}, v{t1}, 4, v{rm4}")
    k(f"v_lshrrev_b32 v{t1}, 5, v0", "s_lshl_b32 s24, s20, 1", f"v_add_u32 v{t1}, s24, v{t1}", f"v_add_u32 v8, s23, v{t1}", "v_bfe_u32 v9, v0, 2, 3", "v_bfe_u32 v10, v0, 3, 2", "v_and_b32 v11, 3, v0")
    k("s_cmp_eq_u32 s3, 0", "s_cselect_b64 vcc, -1, 0", f"v_cndmask_b32 v{t0}, v8, v{t0}, vcc", f"v_cndmask_b32 v{t1}, v9, v{t1}, vcc", "v_cndmask_b32 v10, v11, v10, vcc", f"v_add_u32 v{t1}, 64, v{t1}")
    k(f"v_lshlrev_b32 v{pm1}, 4, v{t0}", f"v_lshl_add_u32 v{pm1}, v{t1}, 10, v{pm1}", f"v_mul_u32_u24 v{rm1}, 1152, v{t0}", f"v_lshl_add_u32 v{rm1}, v{t1}, 4, v{rm1}")
    k(f"v_lshl_add_u32 v{pm1}, v10, 2, v{pm1}", f"v_lshl_add_u32 v{rm1}, v10, 2, v{rm1}")
    k(f"s_mul_i32 s24, s21, {TILE}", "s_add_u32 s25, s24, s3"); add64(k, 4, S_WS, 25); srd_fill(k, 4, LSTR - 31 * TILE)
    k(f"s_add_u32 s8, s4, {hx(WS_X2)}", "s_addc_u32 s9, s5, 0"); add64(k, 26, S_OUT, 24)
    k("s_cmp_eq_u32 s3, 0", "s_cselect_b32 s8, s8, s26", "s_cselect_b32 s9, s9, s27", "s_cselect_b32 s28, 0x8000, 512", "s_cselect_b64 vcc, -1, 0"); srd_fill(k, 8, TILE)
    k(f"v_cndmask_b32 v{rm4}, v{rm4}, v{pm4}, vcc", f"v_cndmask_b32 v{rm1}, v{rm1}, v{pm1}, vcc")
    ACCB = 110
    def ld0(j, srd=4): return [f"buffer_load_dwordx4 {v(R+10*j,4)}, v{pm4}, s[{srd}:{srd+3}], s25 offen {SC}"]
    def ld1(j): return ["s_add_u32 s26, s25, 0x8000", f"buffer_load_dwordx4 {v(R+10*j+4,4)}, v{pm4}, s[4:7], s26 offen {SC}"]
    def ld2(j): return [f"buffer_load_dword v{R+10*j+8}, v{pm1}, s[4:7], s25 offen {SC}"]
    def over(fn):
        k(f"s_mov_b32 s25, {hx(WS_P)}")
        for j in range(8):
            k(fn(j))
            if j < 7: k(f"s_add_u32 s25, s25, {hx(ACT)}")
    k("v_lshlrev_b32 v9, 3, v0", f"buffer_load_dwordx2 v[10:11], v9, s[{S_FL}:{S_FL+3}], s31 offen {SC}")
    k("s_mov_b32 s32, 0x00003f80", "s_mov_b32 s33, 0x3f800000")
    for i in range(18): k(f"v_mov_b32 v{ACCB+i}, 0")
    k("s_waitcnt vmcnt(0)", f"v_cmp_ne_u64 vcc, s[{S_NON}:{S_NON+1}], v[10:11]", "s_nop 3", "s_cmp_eq_u32 vcc_lo, 0", "s_cselect_b32 s34, 1, 0", "s_cmp_eq_u32 vcc_hi, 0", "s_cselect_b32 s35, 1, 0", "s_cmp_eq_u32 s20, 3", "s_cselect_b32 s35, 0, s35")
    RP = int(OPT.get("rp", 2))
    if RP == 1: k("s_cselect_b32 s34, 0, s34")
    publish(k, F_FFN)
    k("s_cmp_eq_u32 s34, 0", "s_cbranch_scc1 red_noearly")
    over(ld0)
    k.label("red_noearly")
    k(f"s_mov_b32 s25, {hx(WS_X1)}"); k(ld0(8), ld1(8), ld2(8))
    k("s_cmp_eq_u32 s35, 0", "s_cbranch_scc1 red_noearly1")
    over(ld1)
    k.label("red_noearly1")
    A0 = int(OPT.get("a0", 20))
    if A0:
        k("s_cmp_lg_u32 s3, 0", "s_cbranch_scc1 red_noa")
        kk = Kern("t"); wgmap(kk, int(OPT.get("qmap", 44)), 36, 37); k(kk.L)
        k("s_lshl_b32 s38, s37, 2", "s_add_u32 s38, s38, s20", f"s_mul_i32 s38, s38, {72*1024}", f"s_add_u32 s38, s38, {hx(WS_WQ)}"); add64(k, 76, S_WS, 38); srd_fill(k, 76, 72 * 1024)
        k("s_mov_b32 s80, 0")
        if OPT.get("a0w", 1): k("s_cmp_eq_u32 s20, 3", "s_cbranch_scc1 red_noa")
        for n in range(A0): k(q_aload(n, 76, 80))
        k.label("red_noa")
    wait(k, tile_flags(F_FFN), pw=3 if RP else 0)
    if A0 and OPT.get("a0w", 1):
        k("s_cmp_lg_u32 s3, 0", "s_cbranch_scc1 red_noa2", "s_cmp_lg_u32 s20, 3", "s_cbranch_scc1 red_noa2")
        for n in range(A0): k(q_aload(n, 76, 80))
        k.label("red_noa2")
    st(k, "red_flags")
    over(ld2)
    k("s_cmp_lg_u32 s35, 0", "s_cbranch_scc1 red_haveearly1")
    over(ld1)
    k.label("red_haveearly1")
    k("s_cmp_lg_u32 s34, 0", "s_cbranch_scc1 red_haveearly")
    over(ld0)
    k("s_waitcnt vmcnt(0)")
    k.label("red_haveearly")
    k("s_waitcnt vmcnt(16)")
    def acc(j, ds):
        for d in ds: k(f"v_dot2c_f32_bf16 v{ACCB+2*d}, s32, v{R+10*j+d}", f"v_dot2c_f32_bf16 v{ACCB+2*d+1}, s33, v{R+10*j+d}")
    k("s_cmp_eq_u32 s35, 0", "s_cbranch_scc1 red_w", "s_waitcnt vmcnt(8)")
    k.label("red_w")
    for j in range(9): acc(j, range(4))
    acc(8, range(4, 9))
    k("s_waitcnt vmcnt(0)")
    for j in range(8): acc(j, range(4, 9))
    k("s_nop 2")
    for d in range(9): k(f"v_cvt_pk_bf16_f32 v{R+d}, v{ACCB+2*d}, v{ACCB+2*d+1}")
    k(f"buffer_store_dwordx4 {v(R,4)}, v{rm4}, s[8:11], 0 offen {SC}", f"buffer_store_dwordx4 {v(R+4,4)}, v{rm4}, s[8:11], s28 offen {SC}", f"buffer_store_dword v{R+8}, v{rm1}, s[8:11], 0 offen {SC}")

def red_ln(k):
    R = 16; ACCB = 110; T = 130
    k(f"v_mov_b32 v{T}, 0", f"v_mov_b32 v{T+2}, 0", "s_mov_b32 s29, 0x3f803f80")
    for d in range(9): k(f"v_dot2c_f32_bf16 v{T}, s29, v{R+d}", f"v_dot2c_f32_bf16 v{T+2}, v{R+d}, v{R+d}")
    k("s_nop 1")
    xlane(k, T, (8, 16, 32))
    k(f"v_and_b32 v{T+8}, 7, v0", f"v_lshlrev_b32 v{T+8}, 3, v{T+8}", f"v_add_u32 v{T+8}, {TILE}, v{T+8}", "s_lshl_b32 s23, s20, 6", f"v_add_u32 v{T+9}, s23, v{T+8}", f"v_mov_b32 v{T+1}, v{T+2}")
    k(f"ds_write_b64 v{T+9}, {v(T,2)}", "s_waitcnt lgkmcnt(0)", "s_barrier")
    for w_ in range(4): k(f"ds_read_b64 {v(T+10+2*w_,2)}, v{T+8} offset:{64*w_}")
    k(f"s_add_u32 s8, s4, {hx(WS_XN)}", "s_addc_u32 s9, s5, 0")
    for d in range(9): k(f"v_lshlrev_b32 v{ACCB+2*d}, 16, v{R+d}", f"v_and_b32 v{ACCB+2*d+1}, 0xffff0000, v{R+d}")
    k("s_waitcnt lgkmcnt(0)")
    k(f"v_add_f32 v{T}, v{T+10}, v{T+12}", f"v_add_f32 v{T+2}, v{T+11}, v{T+13}", f"v_add_f32 v{T+14}, v{T+14}, v{T+16}", f"v_add_f32 v{T+15}, v{T+15}, v{T+17}", f"v_add_f32 v{T}, v{T}, v{T+14}", f"v_add_f32 v{T+2}, v{T+2}, v{T+15}")
    ln_fin2(k, T)
    for d in range(9): k(f"v_pk_fma_f32 {v(ACCB+2*d,2)}, {v(ACCB+2*d,2)}, {v(T+4,2)}, {v(T+6,2)} op_sel_hi:[1,0,0]")
    for d in range(9): k(f"v_cvt_pk_bf16_f32 v{R+12+d}, v{ACCB+2*d}, v{ACCB+2*d+1}")
    k(f"buffer_store_dwordx4 {v(R+12,4)}, v4, s[8:11], 0 offen {SC}", f"buffer_store_dwordx4 {v(R+16,4)}, v4, s[8:11], s28 offen {SC}", f"buffer_store_dword v{R+20}, v5, s[8:11], 0 offen {SC}")
def gen():
    k = Kern("mega")
    NST[0] = 0; NAMES.clear(); OOL.clear(); LBL[0] = 0; FS[0] = int(OPT.get("fs", 6))
    FF.STAMP = 0; FF.WG = int(OPT.get("wg", 1)); FF.TOUCH = 0
    st0 = len(k.L)
    startup(k)
    k.label("layer1")
    phase_qkv1(k)
    k.label("q_epi")
    q_epi(k)
    publish(k, F_QKV, extra=F_PF)
    st(k, "qkv_pub")
    phase_att(k)
    wd = wo_dma(k); n1 = int(OPT.get("wd1", 8))
    k(wd[:n1 + 1])
    publish(k, F_ATT, vm=n1, keep=True)
    k(wd[n1 + 1:])
    st(k, "att_pub")
    phase_wo(k)
    phase_ffn(k)
    phase_red(k)
    k("s_cmp_lg_u32 s3, 0", "s_cbranch_scc1 mega_end")
    red_ln(k)
    A1 = int(OPT.get("a1", 8))
    if A1:
        kk = Kern("t"); wgmap(kk, int(OPT.get("qmap", 44)), 34, 35); k(kk.L)
        k("s_lshl_b32 s38, s35, 2", "s_add_u32 s38, s38, s20", f"s_mul_i32 s38, s38, {72*1024}", f"s_add_u32 s38, s38, {hx(WS_WQ)}"); add64(k, 4, S_WS, 38); srd_fill(k, 4, 72 * 1024)
        A0 = int(OPT.get("a0", 20))
        k(f"s_mov_b32 s26, {A0 * 1024}")
        for n in range(A0, A0 + A1): k(q_aload(n))
    publish(k, F_RED, vm=A1)
    st(k, "red_pub")
    if STAMP[0]: dump(k, 0)
    k(f"s_mov_b32 s3, {hx(LSTR)}", f"s_mov_b32 s14, {5*FT()}", "s_branch layer1")
    k.label("mega_end")
    if STAMP[0]:
        k("s_waitcnt vmcnt(0)"); st(k, "end"); dump(k, 1)
    k("s_endpgm")
    for fn in OOL: fn(k)
    k.label("mega_done")
    k("s_endpgm")
    return k
def dump(k, L):
    LBL[0] += 1
    k("s_cmp_lg_u32 s20, 0", f"s_cbranch_scc1 dmp{LBL[0]}", f"s_lshl_b32 s23, s2, 9", f"s_add_u32 s23, s23, {hx(WS_ST + 256*L)}"); add64(k, 4, S_WS, 23); srd_fill(k, 4, 256)
    k("v_lshlrev_b32 v9, 2, v0", f"buffer_store_dword v{V_STAMP}, v9, s[4:7], 0 offen", "s_waitcnt vmcnt(0)")
    k.label(f"dmp{LBL[0]}")
class JP(list):
    def __init__(s): super().__init__([0, 1, 1, 1, 1, 1])
def RN(w): return 9 if (w == 3 and OPT.get("a0w", 1)) else [0, 1]
def RN2(w): return [0, 1] if w == 3 else 9
def trips(w):
    d = {"ffn_loopA": [0, 1, 1, 0] if int(OPT.get("peel", 0)) else [1, 0, 1, 1, 1, 0], "ffn_loopA_odd": [0, 1], "jit_p0": [0, 1, 1, 1, 1, 1], "jit_p1": JP(), "ffn_loopB": [1, 1, 0] * 2, "mega_end": [0, 1], "ffn_nomid": [1, 0, 1] * 2, "red_noearly": [0, 1], "red_haveearly": [1, 0], "red_noearly1": [w & 1, 1], "red_haveearly1": [1 - (w & 1), 0], "red_w": [w & 1, 1], "red_noa": RN(w), "red_noa2": RN2(w), "att_notouch": [0, 0, 1] if w == 1 else [0, 1], "att_full": [1, 0, 0] if w == 1 else 0, "ffn_nojs": [0, 1], "att_sk0": [0, 1], "att_sk1": [0, 1], "att_sk2": [0, 1], "q_nof": [0, 1], "att_noprep2": [0, 1], "ffn_noring": [1, 0], "ffn_ring2": [0, 1], "wo_l1": [0, 1],
         "q_p0b": [0, 1], "q_p1b": [0, 1], "q_p0d": 9 if w >= 2 else 0, "q_p1d": 9 if w >= 2 else 0, "q_epi2": 9 if w >= 2 else 0, "q_epi3": 9 if w == 3 else 0, "no_cpf": 0 if w == 3 else 9, "no_touch": 0 if w == 3 else 9, "q_noscale": 9 if w else 0, "no_nonce": 9 if w else 0}
    for i in range(17): d[f"res_sk{i}"] = [0, 1]
    d["wo_dsk"] = 9 if w == 3 else 0
    for i in range(1, 40):
        for n in (f"pub{i}", f"wt{i}_d", f"dmp{i}"): d[n] = 9 if w else 0
        d[f"pub{i}_x"] = [0, 1]
        d[f"wt{i}_d"] = 9 if w != POLLW.get(f"wt{i}", 0) else 0
    return d
```

```python
import sys
from common import *
import mega
NAME = "interleave_layers__sliding_block__glu_gated_geglu__prompt_kernel"
DOC = """; Persistent single-launch implementation (256 workgroups x 4 waves, one per CU, generated by a script of my own).
; Work item = (64-token tile r, column/head slice j). Phases hand data over through d_ws with write-through (sc1) stores,
; a drained flag word per producer (value = per-launch nonce published through d_debug) and sc1 loads on the consumer side,
"""
def build(opts):
    STAMP[0] = int(opts.get("stamp", 0)); OPT.update(opts)
    k = mega.gen()
    errs = check(k, [mega.trips(w) for w in (0, 1, 2, 3)])
    for e in errs: print("HAZARD", e, file=sys.stderr)
    if errs: raise SystemExit(1)
    if opts.get("stx") or opts.get("ldx"):
        L = []
        for x in k.L:
            if x.startswith("buffer_store") and " sc1" in x and opts.get("stx"): x = x.replace(" sc1", " " + opts["stx"].replace("+", " "))
            if x.startswith("buffer_load") and " sc1" in x and opts.get("ldx") and "s23 offen" not in x: x = x.replace(" sc1", " " + opts["ldx"].replace("+", " "))
            L.append(x)
        k.L = L
    hdr = f"; @launch grid=(256,1,1) block=(256,1,1) lds={mega.LDS}\n"
    if not STAMP[0]: hdr += DOC
    if STAMP[0]: hdr += "; stamps: " + ",".join(mega.NAMES) + "\n"
    return hdr + '.amdgcn_target "amdgcn-amd-amdhsa--gfx950"\n.text\n' + f".globl {NAME}\n.p2align 8\n.type {NAME},@function\n{NAME}:\n" + k.text() + '\n.section .rodata,"a"\n' + desc(NAME, 256, 256, 102) + "\n"
if __name__ == "__main__":
    opts = dict(x.split("=") for x in sys.argv[2:])
    open(sys.argv[1], "w").write(build(opts))
```
